```python
import torch

def _softmax(x, axis=-1):
    return torch.softmax(x, dim=axis)
def _gelu(x):
    return torch.nn.functional.gelu(x, approximate="tanh")
def _silu(x):
    return torch.nn.functional.silu(x)
def _sigmoid(x):
    return torch.sigmoid(x)
def _layernorm(x, axis=-1, eps=1e-5):
    m = x.mean(dim=axis, keepdim=True)
    v = x.var(dim=axis, keepdim=True, unbiased=False)
    return (x - m) / torch.sqrt(v + eps)
def _scatter_add(tgt, idx, src, axis=0):
    return tgt.clone().index_add_(axis, idx, src)
def _segment_sum(src, seg, n):
    out = torch.zeros((n,) + src.shape[1:], dtype=src.dtype)
    return out.index_add_(0, seg, src)
def _pad(x, pw):
    flat = tuple(v for pair in reversed(pw) for v in pair)
    return torch.nn.functional.pad(x, flat)

kernel_name = 'gated_mix__compressed_kv_cla__glu_gated_glu__decode'

def setup_inputs():

    _w = (lambda a: (lambda t: t.to(torch.bfloat16) if t.is_floating_point() else t)(torch.as_tensor(a)))
    def _A_setup():
        B, H, Sq, Sk, D, M = 1, 32, 1, 8192, 192, 640
        Dc = 4 * D
        return {
            "x": _w((lambda *s: torch.randn(*s, dtype=torch.bfloat16) * 0.05)(B, Sq, M)),
            "c_kv": _w((lambda *s: torch.randn(*s, dtype=torch.bfloat16) * 1.6)(B, Sk, Dc)),
            "w_q": _w((lambda *s: torch.randn(*s, dtype=torch.bfloat16) * 3.2)(M, H, D) * (M ** -0.5)),
            "w_uk": _w((lambda *s: torch.randn(*s, dtype=torch.bfloat16) * 3.2)(Dc, H, D) * (Dc ** -0.5)),
            "w_uv": _w((lambda *s: torch.randn(*s, dtype=torch.bfloat16) * 1.6)(Dc, H, D) * (Dc ** -0.5)),
            "w_o": _w((lambda *s: torch.randn(*s, dtype=torch.bfloat16) * 1.6)(H, D, M) * ((H * D) ** -0.5)),
        }
    _A_in = _A_setup()

    def _B_setup():
        B, S, D, F = 1, 1, 640, 1536
        return {
            "x": _w((lambda *s: torch.randn(*s, dtype=torch.bfloat16) * 0.05)(B, S, D)),
            "w_gate": _w((lambda *s: torch.randn(*s, dtype=torch.bfloat16) * 1.6)(D, F)),
            "w_up": _w((lambda *s: torch.randn(*s, dtype=torch.bfloat16) * 0.05)(D, F)),
            "w_down": _w((lambda *s: torch.randn(*s, dtype=torch.bfloat16) * 0.05)(F, D)),
        }
    _B_in = _B_setup()

    return {
        "A_x": _A_in["x"],
        "A_c_kv": _A_in["c_kv"],
        "A_w_q": _A_in["w_q"],
        "A_w_uk": _A_in["w_uk"],
        "A_w_uv": _A_in["w_uv"],
        "A_w_o": _A_in["w_o"],
        "B_x": _B_in["x"],
        "B_w_gate": _B_in["w_gate"],
        "B_w_up": _B_in["w_up"],
        "B_w_down": _B_in["w_down"],
        "gate_w": _w((lambda *s: torch.randn(*s, dtype=torch.bfloat16) * 0.05)(640) * 16.0),
    }

def reference(A_x, A_c_kv, A_w_q, A_w_uk, A_w_uv, A_w_o, B_x, B_w_gate, B_w_up, B_w_down, gate_w):
    def _A_ref(x, c_kv, w_q, w_uk, w_uv, w_o):
        B, Sq, M = x.shape[0], x.shape[1], x.shape[2]
        Sk = c_kv.shape[1]
        H, D = w_q.shape[1], w_q.shape[2]
        q = torch.einsum("bqm,mhd->bhqd", x, w_q)
        k = torch.einsum("bkc,chd->bhkd", c_kv, w_uk)
        v = torch.einsum("bkc,chd->bhkd", c_kv, w_uv)
        scores = torch.einsum("bhqd,bhkd->bhqk", q, k) * (D ** -0.5)
        off = Sk - Sq
        qi = torch.arange(Sq)[:, None]
        kj = torch.arange(Sk)[None, :]
        cmask = kj <= (qi + off)
        scores = torch.where(cmask[None, None], scores, -1e9)
        p = _softmax(scores, axis=-1)
        ctx = torch.einsum("bhqk,bhkd->bhqd", p, v)
        return torch.einsum("bhqd,hdm->bqm", ctx, w_o)

    def _B_ref(x, w_gate, w_up, w_down):
        g = torch.einsum("bsd,df->bsf", x, w_gate)
        u = torch.einsum("bsd,df->bsf", x, w_up)
        h = _sigmoid(g) * u
        return torch.einsum("bsf,fd->bsd", h, w_down)

    x = A_x
    g = _sigmoid((x * gate_w).sum(-1, keepdims=True))
    a = _A_ref(x, A_c_kv, A_w_q, A_w_uk, A_w_uv, A_w_o)
    b = _B_ref(x, B_w_gate, B_w_up, B_w_down)
    return g * a + (1 - g) * b
```

```python
import sys, math

NAME = "gated_mix__compressed_kv_cla__glu_gated_glu__decode"

WS_EPOCH = 0
WS_QP    = 0x1000
WS_QA    = 0x80000
WS_PB    = 0x100000
WS_MI    = 0x180000
WS_CF    = 0x18F000
WS_ML    = 0x190000
WS_OUTP  = 0x1A0000
WS_OP    = 0x200000
WS_ST    = 0x400000
WS_SIZE  = 0x500000

S_W, S_X, S_LI, S_H, S_J4, S_EP = 3, 4, 5, 6, 7, 8
SRD = dict(X=16, CKV=20, WQ=24, WUK=28, WUV=32, WO=36, BX=40, WG=44, WU=48, WD=52, GW=56, OUT=60, WS=64, DBG=68)
SRD_SIZE = dict(X=1280, CKV=12582912, WQ=7864320, WUK=9437184, WUV=9437184, WO=7864320, BX=1280,
                WG=1966080, WU=1966080, WD=1966080, GW=1280, OUT=1280, WS=WS_SIZE, DBG=256)
KARG_ORDER = ["X", "CKV", "WQ", "WUK", "WUV", "WO", "BX", "WG", "WU", "WD", "GW", "OUT", "DBG", "WS"]
S_M8 = 72
S_T = 74
S_CNT = 96
S_LB, S_BLK, S_G, S_S = 10, 11, 12, 13
S_WSCF = 14
S_STAMP = 98

POLL_LIMIT = 100000

class Asm:
    def __init__(self):
        self.L = []
        self.uid = 0
    def __call__(self, s):
        for line in s.strip("\n").split("\n"):
            self.L.append("    " + line.strip())
    def label(self, n):
        self.L.append(n + ":")
    def newlabel(self, base):
        self.uid += 1
        return f"L_{base}_{self.uid}"
    def text(self):
        return "\n".join(self.L) + "\n"

def srd(n):
    b = SRD[n]
    return f"s[{b}:{b+3}]"
def vr(b, n=1):
    return f"v{b}" if n == 1 else f"v[{b}:{b+n-1}]"

class Gen:
    def __init__(self, stamps=False, stop_after=None, nt=True):
        self.a = Asm()
        self.stamps = stamps
        self.stop_after = stop_after
        self.NT = " nt" if nt else ""

    def stamp(self, idx, wave=0):
        if not self.stamps:
            return
        a = self.a
        a(f"s_memrealtime s[{S_STAMP}:{S_STAMP+1}]")
        a("s_waitcnt lgkmcnt(0)")
        a(f"v_writelane_b32 v255, s{S_STAMP}, {idx}")

    def stamp_flush(self):
        if not self.stamps:
            return
        a = self.a
        a(f"s_lshl_b32 s{S_T+20}, s2, 3")
        a(f"s_add_u32 s{S_T+20}, s{S_T+20}, s{S_W}")
        a(f"s_lshl_b32 s{S_T+20}, s{S_T+20}, 7")
        a(f"s_add_u32 s{S_T+20}, s{S_T+20}, {WS_ST}")
        a("v_lshlrev_b32 v252, 2, v1")
        a("s_mov_b32 exec_lo, -1")
        a("s_mov_b32 exec_hi, 0")
        a(f"buffer_store_dword v255, v252, {srd('WS')}, s{S_T+20} offen")
        a("s_mov_b64 exec, -1")

    def treduce8(self, acc, t0, t1):
        a = self.a
        a("s_nop 2")
        for k in range(4):
            a(f"v_permlane32_swap_b32 v{acc+k}, v{acc+k+4}")
        a("s_nop 1")
        for k in range(4):
            a(f"v_add_f32 v{acc+k}, v{acc+k}, v{acc+k+4}")
        a("s_nop 1")
        for k in range(2):
            a(f"v_permlane16_swap_b32 v{acc+k}, v{acc+k+2}")
        a("s_nop 1")
        for k in range(2):
            a(f"v_add_f32 v{acc+k}, v{acc+k}, v{acc+k+2}")
        a("s_nop 0")
        a(f"v_cndmask_b32 v{t0}, v{acc}, v{acc+1}, s[{S_M8}:{S_M8+1}]")
        a(f"v_cndmask_b32 v{t1}, v{acc+1}, v{acc}, s[{S_M8}:{S_M8+1}]")
        a("s_nop 1")
        a(f"v_add_f32_dpp v{acc}, v{t1}, v{t0} row_ror:8 row_mask:0xf bank_mask:0xf")

    def cf_check(self, vb):
        a = self.a
        a(f"v_lshlrev_b32 v{vb+4}, 4, v1")
        l = self.poll_begin()
        a(f"buffer_load_dwordx4 {vr(vb,4)}, v{vb+4}, {srd('WS')}, s{S_WSCF} offen sc1")
        a("s_waitcnt vmcnt(0)")
        for k in range(4):
            a(f"v_xor_b32 v{vb+k}, s{S_EP}, v{vb+k}")
        a(f"v_or3_b32 v{vb}, v{vb}, v{vb+1}, v{vb+2}")
        a(f"v_or_b32 v{vb}, v{vb}, v{vb+3}")
        self.poll_end(l, vb)

    def poll_begin(self):
        l = self.a.newlabel("poll")
        self.a(f"s_mov_b32 s{S_CNT}, 0")
        self.a.label(l)
        return l
    def poll_end(self, l, vbad):
        a = self.a
        ok = a.newlabel("ok")
        a(f"v_cmp_ne_u32 vcc, 0, v{vbad}")
        a(f"s_cbranch_vccz {ok}")
        a(f"s_add_u32 s{S_CNT}, s{S_CNT}, 1")
        a(f"s_cmp_lt_u32 s{S_CNT}, {POLL_LIMIT}")
        a(f"s_cbranch_scc1 {l}")
        a.label(ok)

    def prologue(self):
        a = self.a
        a("s_cmp_ge_u32 s2, 256")
        a("s_cbranch_scc1 L_exit")
        for i, n in enumerate(KARG_ORDER):
            b = SRD[n]
            a(f"s_load_dwordx2 s[{b}:{b+1}], s[0:1], {i*8}")
        a("v_and_b32 v1, 63, v0")
        a("v_mov_b32 v255, 0")
        a("v_lshrrev_b32 v2, 6, v0")
        a("s_nop 0")
        a(f"v_readfirstlane_b32 s{S_W}, v2")
        a(f"s_and_b32 s{S_X}, s2, 7")
        a(f"s_lshr_b32 s{S_LI}, s2, 3")
        a(f"s_and_b32 s9, s{S_LI}, 3")
        a(f"s_lshl_b32 s{S_H}, s{S_X}, 2")
        a(f"s_add_u32 s{S_H}, s{S_H}, s9")
        a(f"s_lshr_b32 s{S_J4}, s{S_LI}, 2")
        a(f"s_and_b32 s{S_J4}, s{S_J4}, 3")
        a("v_lshrrev_b32 v2, 3, v1")
        a("v_and_b32 v3, 7, v1")
        a("v_mul_u32_u24 v4, 12288, v2")
        a("v_lshl_add_u32 v4, v3, 4, v4")
        a(f"s_mov_b32 s{S_M8}, 0xff00ff00")
        a(f"s_mov_b32 s{S_M8+1}, 0xff00ff00")
        for n in KARG_ORDER:
            b = SRD[n]
            a(f"s_mov_b32 s{b+2}, {SRD_SIZE[n]}")
            a(f"s_mov_b32 s{b+3}, 0x00020000")
        a("s_waitcnt lgkmcnt(0)")
        b = SRD["WS"]
        a(f"s_load_dword s{S_EP}, s[{b}:{b+1}], {WS_EPOCH}")
        a(f"s_mov_b32 s{S_WSCF}, {{WS_CF}}".format(WS_CF=WS_CF))
        self.stamp(0)
        a(f"s_cmp_ge_u32 s{S_LI}, 16")
        a("s_cbranch_scc1 L_bset")

    def aset_front(self):
        a = self.a
        T = S_T
        W0 = 20
        QF = 56
        ACC = 68
        a(f"s_lshr_b32 s{T}, s{S_W}, 1")
        a(f"s_and_b32 s{T+1}, s{S_W}, 1")
        a(f"s_mul_i32 s{T+2}, s{S_J4}, 192")
        a(f"s_mul_i32 s{T+3}, s{T}, 48")
        a(f"s_add_u32 s{T+2}, s{T+2}, s{T+3}")
        a(f"s_lshl_b32 s{T+3}, s{T+1}, 3")
        a(f"s_add_u32 s{T+2}, s{T+2}, s{T+3}")
        a(f"s_mul_i32 s{T+2}, s{T+2}, 12288")
        a(f"s_mul_i32 s{T+3}, s{S_H}, 384")
        a(f"s_add_u32 s{T+2}, s{T+2}, s{T+3}")
        for f in range(3):
            for t in range(3):
                r = W0 + (f*3+t)*4
                a(f"buffer_load_dwordx4 {vr(r,4)}, v4, {srd('WUK')}, s{T+2} offen offset:{t*128}{self.NT}")
            if f < 2:
                a(f"s_add_u32 s{T+2}, s{T+2}, 196608")
        a(f"s_lshl_b32 s{T+4}, s{S_X}, 4")
        a(f"s_add_u32 s{T+4}, s{T+4}, s{S_LI}")
        a(f"s_mul_i32 s{T+4}, s{T+4}, 2560")
        a(f"s_add_u32 s{T+4}, s{T+4}, {WS_OUTP}")
        a("v_mov_b32 v76, -1\nv_mov_b32 v77, -1\nv_mov_b32 v78, -1\nv_mov_b32 v79, -1")
        a("v_lshlrev_b32 v80, 4, v0")
        a("v_mov_b32 v81, 0x7fffffff")
        a("v_cmp_gt_u32 vcc, 160, v0")
        a("s_nop 1")
        a("v_cndmask_b32 v80, v81, v80, vcc")
        a(f"buffer_store_dwordx4 v[76:79], v80, {srd('WS')}, s{T+4} offen sc1")
        a("s_waitcnt vmcnt(0) lgkmcnt(0)")
        a(f"s_add_u32 s{S_EP}, s{S_EP}, 1")
        self.stamp(1)
        skip = a.newlabel("e1skip")
        a(f"s_cmp_ge_u32 s{S_W}, 3")
        a(f"s_cbranch_scc1 {skip}")
        a(f"s_mul_i32 s{T+5}, s{S_H}, {8*1536}")
        a(f"s_add_u32 s{T+5}, s{T+5}, {WS_QP}")
        a("v_lshlrev_b32 v5, 3, v0")
        G = 84
        l = self.poll_begin()
        a(f"s_mov_b32 s{T+6}, s{T+5}")
        for p in range(8):
            a(f"buffer_load_dwordx2 {vr(G+2*p,2)}, v5, {srd('WS')}, s{T+6} offen sc1")
            if p < 7:
                a(f"s_add_u32 s{T+6}, s{T+6}, 1536")
        a("s_waitcnt vmcnt(0)")
        a(f"v_xor_b32 v6, s{S_EP}, v{G+1}")
        for p in range(1, 8):
            a(f"v_xor_b32 v7, s{S_EP}, v{G+2*p+1}")
            a("v_or_b32 v6, v6, v7")
        self.poll_end(l, 6)
        for p in range(1, 8):
            a(f"v_add_f32 v{G}, v{G}, v{G+2*p}")
        a(f"v_cvt_pk_bf16_f32 v6, v{G}, v{G}")
        a("v_lshlrev_b32 v7, 1, v0")
        a(f"ds_write_b16 v7, v6 offset:{self.L_Q}")
        a("s_waitcnt lgkmcnt(0)")
        a.label(skip)
        a("s_barrier")
        self.stamp(2)
        a("v_lshlrev_b32 v5, 4, v3")
        for t in range(3):
            a(f"ds_read_b128 {vr(QF+4*t,4)}, v5 offset:{self.L_Q + t*128}")
        for f in range(3):
            a(f"v_mov_b32 v{ACC+f}, 0")
        a("s_waitcnt lgkmcnt(0)")
        for t in range(3):
            for k in range(4):
                for f in range(3):
                    a(f"v_dot2c_f32_bf16 v{ACC+f}, v{W0+(f*3+t)*4+k}, v{QF+4*t+k}")
        a("s_nop 2")
        for ctrl in ["quad_perm:[1,0,3,2]", "quad_perm:[2,3,0,1]", "row_half_mirror"]:
            for f in range(3):
                a(f"v_add_f32_dpp v{ACC+f}, v{ACC+f}, v{ACC+f} {ctrl} row_mask:0xf bank_mask:0xf")
            a("s_nop 0")
        a(f"s_lshl_b32 s{T+7}, s{S_W}, 6")
        a(f"v_lshlrev_b32 v5, 1, v2")
        a(f"v_add_u32 v5, s{T+7}, v5")
        for f in range(3):
            a(f"v_cvt_pk_bf16_f32 v{ACC+f}, v{ACC+f}, v{ACC+f}")
        for f in range(3):
            a(f"ds_write_b16 v5, v{ACC+f} offset:{self.L_QS + f*16}")
        a("v_lshlrev_b32 v6, 4, v1")
        a("v_mov_b32 v7, 4")
        a("v_cmp_eq_u32 vcc, 3, v1")
        a("v_mov_b32 v8, 12")
        a("v_mov_b32 v9, 16")
        a("v_cndmask_b32 v6, v6, v8, vcc")
        a("v_cndmask_b32 v7, v7, v9, vcc")
        a("v_and_b32 v6, 63, v6")
        a(f"v_add_u32 v6, s{T+7}, v6")
        a("v_add_u32 v8, v6, v7")
        a("v_add_u32 v9, v8, v7")
        a("s_waitcnt lgkmcnt(0)")
        a(f"ds_read_b32 v72, v6 offset:{self.L_QS}")
        a(f"ds_read_b32 v73, v8 offset:{self.L_QS}")
        a(f"ds_read_b32 v74, v9 offset:{self.L_QS}")
        a(f"v_mov_b32 v75, s{S_EP}")
        a(f"s_lshl_b32 s{T+8}, s{S_J4}, 2")
        a(f"s_add_u32 s{T+8}, s{T+8}, s{T}")
        a(f"s_lshl_b32 s{T+8}, s{T+8}, 12")
        a(f"s_lshl_b32 s{T+9}, s{T+1}, 9")
        a(f"s_add_u32 s{T+8}, s{T+8}, s{T+9}")
        a(f"s_lshl_b32 s{T+9}, s{S_H}, 4")
        a(f"s_add_u32 s{T+8}, s{T+8}, s{T+9}")
        a(f"s_add_u32 s{T+8}, s{T+8}, {WS_QA}")
        a("v_lshlrev_b32 v6, 10, v1")
        a("v_mov_b32 v7, 0x7fffffff")
        a("v_cmp_gt_u32 vcc, 4, v1")
        a("s_nop 1")
        a("v_cndmask_b32 v6, v7, v6, vcc")
        a("s_waitcnt lgkmcnt(0)")
        a(f"buffer_store_dwordx4 v[72:75], v6, {srd('WS')}, s{T+8} offen sc1")
        self.stamp(3)

    def bset_front(self):
        a = self.a
        T = S_T
        XV = 10
        W0 = 20
        ACC = 60
        skip = a.newlabel("p1l")
        a(f"s_cmp_ge_u32 s{S_W}, 6")
        a(f"s_cbranch_scc1 {skip}")
        a(f"s_cmp_ge_u32 s{S_W}, 3")
        a(f"s_cselect_b32 s{T}, 1, 0")
        a(f"s_mul_i32 s{T+1}, s{T}, 3")
        a(f"s_sub_u32 s{T+1}, s{S_W}, s{T+1}")
        a(f"s_mul_i32 s{T+2}, s{S_J4}, 160")
        a(f"s_mul_i32 s{T+3}, s{T}, 80")
        a(f"s_add_u32 s{T+2}, s{T+2}, s{T+3}")
        a(f"s_lshl_b32 s{T+3}, s{T+2}, 1")
        a("v_lshlrev_b32 v5, 1, v2")
        for i in range(10):
            a(f"buffer_load_ushort v{XV+i}, v5, {srd('X')}, s{T+3} offen offset:{16*i}")
        a(f"s_mul_i32 s{T+4}, s{T+2}, 12288")
        a(f"s_mul_i32 s{T+5}, s{S_H}, 384")
        a(f"s_add_u32 s{T+4}, s{T+4}, s{T+5}")
        a(f"s_lshl_b32 s{T+5}, s{T+1}, 7")
        a(f"s_add_u32 s{T+4}, s{T+4}, s{T+5}")
        for i in range(10):
            a(f"buffer_load_dwordx4 {vr(W0+4*i,4)}, v4, {srd('WQ')}, s{T+4} offen{self.NT}")
            if i < 9:
                a(f"s_add_u32 s{T+4}, s{T+4}, 98304")
        a.label(skip)
        a("s_waitcnt lgkmcnt(0)")
        a("s_barrier")
        self.bset_clears()
        skip2 = a.newlabel("p1c")
        a(f"s_cmp_ge_u32 s{S_W}, 6")
        a(f"s_cbranch_scc1 {skip2}")
        a("s_waitcnt vmcnt(0)")
        self.stamp(13)
        for k in range(8):
            a(f"v_mov_b32 v{ACC+k}, 0")
        for i in range(10):
            a(f"v_lshlrev_b32 v68, 16, v{XV+i}")
            for k in range(4):
                a(f"v_dot2c_f32_bf16 v{ACC+2*k}, v{W0+4*i+k}, v{XV+i}")
            for k in range(4):
                a(f"v_dot2c_f32_bf16 v{ACC+2*k+1}, v{W0+4*i+k}, v68")
        self.treduce8(ACC, 68, 69)
        a("s_waitcnt lgkmcnt(0)")
        a(f"s_add_u32 s{S_EP}, s{S_EP}, 1")
        j = a.newlabel("p1j")
        a(f"s_branch {j}")
        a.label(skip2)
        a("s_waitcnt lgkmcnt(0)")
        a(f"s_add_u32 s{S_EP}, s{S_EP}, 1")
        self.bset_dma_early()
        self.stamp(15)
        a.label(j)
        self.stamp(1)
        skip4 = a.newlabel("p1p")
        a(f"s_cmp_ge_u32 s{S_W}, 6")
        a(f"s_cbranch_scc1 {skip4}")
        a(f"s_lshl_b32 s{T+5}, s{S_H}, 3")
        a(f"s_lshl_b32 s{T+6}, s{S_J4}, 1")
        a(f"s_add_u32 s{T+5}, s{T+5}, s{T+6}")
        a(f"s_add_u32 s{T+5}, s{T+5}, s{T}")
        a(f"s_mul_i32 s{T+5}, s{T+5}, 1536")
        a(f"s_lshl_b32 s{T+6}, s{T+1}, 9")
        a(f"s_add_u32 s{T+5}, s{T+5}, s{T+6}")
        a(f"s_add_u32 s{T+5}, s{T+5}, {WS_QP}")
        a("v_lshlrev_b32 v5, 6, v3")
        a("v_lshl_add_u32 v5, v2, 3, v5")
        a(f"v_mov_b32 v{ACC+1}, s{S_EP}")
        a(f"buffer_store_dwordx2 {vr(ACC,2)}, v5, {srd('WS')}, s{T+5} offen sc1")
        a.label(skip4)
        self.stamp(2)

    def bset_clears(self):
        a = self.a
        T = S_T + 8
        skip = a.newlabel("clr")
        a(f"s_cmp_lt_u32 s{S_W}, 6")
        a(f"s_cbranch_scc1 {skip}")
        a(f"s_sub_u32 s{T}, s{S_LI}, 16")
        a(f"s_lshl_b32 s{T+1}, s{S_X}, 5")
        a(f"s_lshl_b32 s{T+2}, s{T}, 1")
        a(f"s_add_u32 s{T+1}, s{T+1}, s{T+2}")
        a("v_subrev_u32 v5, 384, v0")
        a("v_mov_b32 v76, -1\nv_mov_b32 v77, -1\nv_mov_b32 v78, -1\nv_mov_b32 v79, -1")
        a("v_lshlrev_b32 v6, 4, v5")
        a(f"s_lshl_b32 s{T+2}, s{T+1}, 11")
        a(f"s_add_u32 s{T+2}, s{T+2}, {WS_PB}")
        a(f"buffer_store_dwordx4 v[76:79], v6, {srd('WS')}, s{T+2} offen sc1")
        a(f"buffer_store_dwordx4 v[76:79], v6, {srd('WS')}, s{T+2} offen offset:2048 sc1")
        a("v_mov_b32 v7, 0x7fffffff")
        a("v_cmp_gt_u32 vcc, 16, v5")
        a("s_nop 1")
        a("v_cndmask_b32 v8, v7, v6, vcc")
        a(f"s_lshl_b32 s{T+2}, s{T+1}, 7")
        a(f"s_add_u32 s{T+2}, s{T+2}, {WS_MI}")
        a(f"buffer_store_dwordx4 v[76:79], v8, {srd('WS')}, s{T+2} offen sc1")
        a(f"s_lshl_b32 s{T+3}, s{S_X}, 1")
        a(f"s_lshr_b32 s{T+4}, s{T}, 3")
        a(f"s_add_u32 s{T+3}, s{T+3}, s{T+4}")
        a(f"s_and_b32 s{T+4}, s{T}, 7")
        a(f"s_lshl_b32 s{T+5}, s{T+4}, 4")
        a(f"s_add_u32 s{T+5}, s{T+5}, s{T+3}")
        a(f"s_mul_i32 s{T+5}, s{T+5}, 384")
        a(f"s_add_u32 s{T+5}, s{T+5}, {WS_OP}")
        a(f"s_mov_b32 s{T+6}, 49152")
        for i in range(6):
            a(f"v_add_u32 v8, {128*i}, v5")
            a("v_mul_u32_u24 v9, 2731, v8")
            a("v_lshrrev_b32 v9, 16, v9")
            a("v_mul_u32_u24 v70, 24, v9")
            a("v_sub_u32 v70, v8, v70")
            a(f"v_mul_lo_u32 v9, v9, s{T+6}")
            a("v_lshl_add_u32 v9, v70, 4, v9")
            a(f"buffer_store_dwordx4 v[76:79], v9, {srd('WS')}, s{T+5} offen sc1")
        a("v_lshlrev_b32 v8, 7, v5")
        a("v_cmp_gt_u32 vcc, 32, v5")
        a("s_nop 1")
        a("v_cndmask_b32 v8, v7, v8, vcc")
        a(f"s_lshl_b32 s{T+5}, s{T+3}, 3")
        a(f"s_add_u32 s{T+5}, s{T+5}, {WS_ML}")
        a(f"s_cmp_eq_u32 s{T+4}, 0")
        a(f"s_cselect_b32 s{T+5}, s{T+5}, 0x7fffff00")
        a(f"buffer_store_dwordx2 v[76:77], v8, {srd('WS')}, s{T+5} offen sc1")
        a.label(skip)

    def bset_ids(self):
        a = self.a
        a(f"s_sub_u32 s{S_LB}, s{S_LI}, 16")
        a(f"s_lshl_b32 s{S_BLK}, s{S_X}, 5")
        a(f"s_lshl_b32 s9, s{S_LB}, 1")
        a(f"s_add_u32 s{S_BLK}, s{S_BLK}, s9")
        a(f"s_lshl_b32 s{S_G}, s{S_X}, 1")
        a(f"s_lshr_b32 s9, s{S_LB}, 3")
        a(f"s_add_u32 s{S_G}, s{S_G}, s9")
        a(f"s_and_b32 s{S_S}, s{S_LB}, 7")
        self.PVO = 212
        self.pv_lane_offsets()

    def pv_dma(self, kp, ldsbase, nw, w0):
        a = self.a
        T = S_T + 8
        per = 48 // nw
        rows = 256 // nw
        a(f"s_sub_u32 s{T+2}, s{S_W}, {w0}")
        a(f"s_lshl_b32 s{T}, s{S_G}, 9")
        a(f"s_mul_i32 s{T+1}, s{T+2}, {rows}")
        a(f"s_add_u32 s{T}, s{T}, s{T+1}")
        if kp:
            a(f"s_add_u32 s{T}, s{T}, 256")
        a(f"s_mul_i32 s{T}, s{T}, 1536")
        a(f"s_mul_i32 s{T+1}, s{S_S}, 192")
        a(f"s_add_u32 s{T}, s{T}, s{T+1}")
        a(f"s_mul_i32 s{T+1}, s{T+2}, {per*1024}")
        a(f"s_add_u32 s{T+1}, s{T+1}, {ldsbase}")
        for n in range(per):
            a(f"s_add_u32 m0, s{T+1}, {n*1024}")
            if n % 3 == 0 and n > 0:
                a(f"s_add_u32 s{T}, s{T}, {16*1536}")
            else:
                a("s_nop 0")
            a(f"buffer_load_dwordx4 v{self.PVO+(n%3)}, {srd('CKV')}, s{T} offen{self.NT} lds")

    def pv_lane_offsets(self):
        a = self.a
        for n in range(3):
            a(f"v_add_u32 v5, {64*n}, v1")
            a("v_mul_u32_u24 v6, 5462, v5")
            a("v_lshrrev_b32 v6, 16, v6")
            a("v_mul_u32_u24 v7, 12, v6")
            a("v_sub_u32 v7, v5, v7")
            a("v_mul_u32_u24 v6, 1536, v6")
            a(f"v_lshl_add_u32 v{self.PVO+n}, v7, 4, v6")

    def bset_dma_early(self):
        a = self.a
        T = S_T + 8
        self.PVO = 212
        a("v_mov_b32 v70, 0")
        a("v_mov_b32 v73, v1")
        a("v_cmp_le_u32 vcc, 32, v1")
        a("v_add_u32 v5, 64, v1")
        a("v_subrev_u32 v6, 32, v1")
        a("v_cndmask_b32 v71, 0, 1, vcc")
        a("v_cndmask_b32 v74, v5, v6, vcc")
        a("v_mov_b32 v72, 1")
        a("v_add_u32 v75, 32, v1")
        for b in range(3):
            a(f"v_mul_u32_u24 v{218+b}, 1536, v{70+b}")
        a(f"s_sub_u32 s{T+2}, s{S_W}, 6")
        a(f"s_lshl_b32 s{T}, s{S_X}, 10")
        a(f"s_lshl_b32 s{T+1}, s{S_LB}, 6")
        a(f"s_add_u32 s{T}, s{T}, s{T+1}")
        a(f"s_lshl_b32 s{T+1}, s{T+2}, 5")
        a(f"s_add_u32 s{T}, s{T}, s{T+1}")
        a(f"s_mul_i32 s{T}, s{T}, 1536")
        a(f"s_mul_i32 s{T+3}, s{T+2}, 49152")
        a(f"s_add_u32 s{T+3}, s{T+3}, {self.L_S}")
        for aa in range(16):
            for b in range(3):
                n = 3*aa + b
                a(f"v_add_u32 v5, {(2*aa) & 15}, v{70+b}")
                a(f"v_xor_b32 v5, v5, v{73+b}")
                a(f"v_lshl_add_u32 v5, v5, 4, v{218+b}")
                a(f"s_add_u32 m0, s{T+3}, {n*1024}")
                a(f"s_add_u32 s{T+5}, s{T}, {2*aa*1536}")
                a(f"buffer_load_dwordx4 v5, {srd('CKV')}, s{T+5} offen{self.NT} lds")
        a("s_waitcnt vmcnt(48)")
        self.stamp(14)
        a(f"s_sub_u32 s{T+5}, s2, 128")
        a(f"s_lshl_b32 s{T+5}, s{T+5}, 1")
        a(f"s_add_u32 s{T+5}, s{T+5}, s{T+2}")
        a(f"s_lshl_b32 s{T+5}, s{T+5}, 2")
        a(f"s_add_u32 s{T+5}, s{T+5}, {WS_CF}")
        a(f"v_mov_b32 v5, s{S_EP}")
        a("v_mov_b32 v6, 0")
        a("s_mov_b64 exec, 1")
        a(f"buffer_store_dword v5, v6, {srd('WS')}, s{T+5} offen sc1")
        a("s_mov_b64 exec, -1")
        self.pv_dma(0, self.L_PA, 2, 6)

    def bset_s_phase(self):
        a = self.a
        T = S_T
        QA = 20; AF = 84; ACC = 180
        a("s_waitcnt vmcnt(25)")
        a("s_barrier")
        self.stamp(3)
        notS = a.newlabel("notS")
        a(f"s_cmp_ge_u32 s{S_W}, 4")
        a(f"s_cbranch_scc1 {notS}")
        a(f"s_lshl_b32 s{T}, s{S_W}, 14")
        a(f"s_add_u32 s{T}, s{T}, {WS_QA}")
        a("v_lshlrev_b32 v5, 4, v1")
        def qa_loads():
            a(f"s_mov_b32 s{T+1}, s{T}")
            for n in range(16):
                a(f"buffer_load_dwordx4 {vr(QA+4*n,4)}, v5, {srd('WS')}, s{T+1} offen offset:{(n%4)*1024} sc1")
                if n % 4 == 3 and n < 15:
                    a(f"s_add_u32 s{T+1}, s{T+1}, 4096")
        qa_loads()
        a("v_and_b32 v6, 31, v1")
        a("v_lshrrev_b32 v7, 5, v1")
        a("v_and_b32 v8, 15, v6")
        a("v_xor_b32 v8, v8, v7")
        a("v_mul_u32_u24 v6, 1536, v6")
        a(f"v_add_u32 v6, {self.L_S}, v6")
        a(f"s_mul_i32 s{T+2}, s{S_W}, 24")
        for i in range(12):
            a(f"s_add_u32 s{T+3}, s{T+2}, {2*i}")
            a(f"v_xor_b32 v9, s{T+3}, v8")
            a("v_lshl_add_u32 v9, v9, 4, v6")
            a(f"ds_read_b128 {vr(AF+4*i,4)}, v9")
            a(f"ds_read_b128 {vr(AF+48+4*i,4)}, v9 offset:49152")
            if i % 4 == 3:
                a("s_waitcnt lgkmcnt(0)")
        a("s_waitcnt vmcnt(16) lgkmcnt(0)")
        done1 = a.newlabel("s1")
        a(f"s_branch {done1}")
        a.label(notS)
        a("s_waitcnt vmcnt(0)")
        a.label(done1)
        a("s_barrier")
        nodma = a.newlabel("nodma")
        a(f"s_cmp_lt_u32 s{S_W}, 6")
        a(f"s_cbranch_scc1 {nodma}")
        self.pv_dma(1, self.L_S, 2, 6)
        a.label(nodma)
        notS2 = a.newlabel("notS2")
        a(f"s_cmp_ge_u32 s{S_W}, 4")
        a(f"s_cbranch_scc1 {notS2}")
        a("s_waitcnt vmcnt(0)")
        ok = a.newlabel("qaok")
        def qa_check():
            a(f"v_xor_b32 v6, s{S_EP}, v{QA+3}")
            for n in range(1, 16):
                a(f"v_xor_b32 v7, s{S_EP}, v{QA+4*n+3}")
                a("v_or_b32 v6, v6, v7")
        qa_check()
        a("v_cmp_ne_u32 vcc, 0, v6")
        a(f"s_cbranch_vccz {ok}")
        l = self.poll_begin()
        qa_loads()
        a("s_waitcnt vmcnt(0)")
        qa_check()
        self.poll_end(l, 6)
        a.label(ok)
        noep = a.newlabel("noep")
        a(f"s_lshl_b32 s9, s2, 3")
        a(f"s_add_u32 s9, s9, s{S_W}")
        a(f"s_cmp_lg_u32 s9, {255*8}")
        a(f"s_cbranch_scc1 {noep}")
        a(f"v_mov_b32 v6, s{S_EP}")
        a("v_mov_b32 v7, 0")
        a("s_mov_b64 exec, 1")
        a(f"buffer_store_dword v6, v7, {srd('WS')}, 0 offen sc1")
        a("s_mov_b64 exec, -1")
        a.label(noep)
        self.stamp(4)
        for sg in range(4):
            for f in range(3):
                a(f"v_mov_b32 v{QA+(sg*4+f)*4+3}, v{QA+(sg*4+3)*4+f}")
        a("s_nop 1")
        for i in range(12):
            sg, f = i // 3, i % 3
            B = QA + (sg*4+f)*4
            for kb in range(2):
                c = "0" if i == 0 else vr(ACC+16*kb, 16)
                a(f"v_mfma_f32_32x32x16_bf16 {vr(ACC+16*kb,16)}, {vr(AF+48*kb+4*i,4)}, {vr(B,4)}, {c}")
        a(f"s_lshl_b32 s{T+2}, s{S_W}, 13")
        a(f"s_add_u32 s{T+2}, s{T+2}, {self.L_RED}")
        a("v_lshlrev_b32 v5, 4, v1")
        a(f"v_add_u32 v6, s{T+2}, v5")
        a("s_nop 15")
        for kb in range(2):
            for q in range(4):
                a(f"ds_write_b128 v6, {vr(ACC+16*kb+4*q,4)} offset:{(kb*4+q)*1024}")
        a("s_waitcnt vmcnt(0) lgkmcnt(0)")
        j1 = a.newlabel("s2")
        a(f"s_branch {j1}")
        a.label(notS2)
        self.pv_read_frags(self.L_PA)
        a("s_waitcnt lgkmcnt(0)")
        a.label(j1)
        self.stamp(8)
        a("s_barrier")
        self.stamp(9)
        notS3 = a.newlabel("notS3")
        a(f"s_cmp_ge_u32 s{S_W}, 4")
        a(f"s_cbranch_scc1 {notS3}")
        a(f"s_lshl_b32 s{T+2}, s{S_W}, 10")
        a(f"s_add_u32 s{T+2}, s{T+2}, {self.L_RED}")
        a(f"v_add_u32 v6, s{T+2}, v5")
        R = 20
        for src in range(4):
            for kb in range(2):
                a(f"ds_read_b128 {vr(R+(src*2+kb)*4,4)}, v6 offset:{src*8192+kb*4096}")
        a("s_waitcnt lgkmcnt(0)")
        for kb in range(2):
            for r in range(4):
                a(f"v_add_f32 v{R+kb*4+r}, v{R+kb*4+r}, v{R+8+kb*4+r}")
                a(f"v_add_f32 v{R+16+kb*4+r}, v{R+16+kb*4+r}, v{R+24+kb*4+r}")
        a(f"s_mov_b32 s{T+3}, 0x{self.f32bits(192**-0.5*math.log2(math.e)):08x}")
        for kb in range(2):
            for r in range(4):
                a(f"v_add_f32 v{R+kb*4+r}, v{R+kb*4+r}, v{R+16+kb*4+r}")
        for kb in range(2):
            for r in range(4):
                a(f"v_mul_f32 v{R+kb*4+r}, s{T+3}, v{R+kb*4+r}")
        for kb in range(2):
            a(f"v_max3_f32 v{R+8+kb}, v{R+kb*4}, v{R+kb*4+1}, v{R+kb*4+2}")
            a(f"v_max_f32 v{R+8+kb}, v{R+8+kb}, v{R+kb*4+3}")
        a(f"v_mov_b32 v{R+10}, v{R+8}")
        a(f"v_mov_b32 v{R+11}, v{R+9}")
        a("s_nop 1")
        a(f"v_permlane32_swap_b32 v{R+8}, v{R+10}")
        a(f"v_permlane32_swap_b32 v{R+9}, v{R+11}")
        a("s_nop 1")
        a(f"v_max_f32 v{R+8}, v{R+8}, v{R+10}")
        a(f"v_max_f32 v{R+9}, v{R+9}, v{R+11}")
        a("v_and_b32 v7, 31, v1")
        a("v_lshlrev_b32 v7, 2, v7")
        a(f"s_lshl_b32 s{T+2}, s{S_W}, 7")
        a(f"v_add_u32 v8, s{T+2}, v7")
        a(f"ds_write_b32 v8, v{R+8} offset:{self.L_MX}")
        a(f"ds_write_b32 v8, v{R+9} offset:{self.L_MX+512}")
        a("s_waitcnt lgkmcnt(0)")
        a.label(notS3)
        a("s_barrier")
        self.stamp(10)
        notS4 = a.newlabel("notS4")
        a(f"s_cmp_ge_u32 s{S_W}, 4")
        a(f"s_cbranch_scc1 {notS4}")
        M = R + 12
        for kb in range(2):
            for q in range(4):
                a(f"ds_read_b32 v{M+kb*4+q}, v7 offset:{self.L_MX+kb*512+q*128}")
        a("s_waitcnt lgkmcnt(0)")
        for kb in range(2):
            a(f"v_max3_f32 v{M+kb*4}, v{M+kb*4}, v{M+kb*4+1}, v{M+kb*4+2}")
            a(f"v_max_f32 v{M+kb*4}, v{M+kb*4}, v{M+kb*4+3}")
            a(f"v_ceil_f32 v{M+kb*4}, v{M+kb*4}")
        for kb in range(2):
            for r in range(4):
                a(f"v_sub_f32 v{R+kb*4+r}, v{R+kb*4+r}, v{M+kb*4}")
        for kb in range(2):
            for r in range(4):
                a(f"v_exp_f32 v{R+kb*4+r}, v{R+kb*4+r}")
        a("s_nop 0")
        P = R + 20
        for kb in range(2):
            a(f"v_cvt_pk_bf16_f32 v{P+kb*2}, v{R+kb*4}, v{R+kb*4+1}")
            a(f"v_cvt_pk_bf16_f32 v{P+kb*2+1}, v{R+kb*4+2}, v{R+kb*4+3}")
        for k in range(4):
            a(f"v_and_b32 v{P+k}, 0x7fff7fff, v{P+k}")
        a("v_bfe_u32 v8, v1, 4, 1")
        a("v_lshlrev_b32 v8, 10, v8")
        a("v_and_b32 v9, 15, v1")
        a("v_lshl_add_u32 v8, v9, 4, v8")
        a("v_lshrrev_b32 v9, 5, v1")
        a("v_lshl_add_u32 v8, v9, 3, v8")
        a(f"s_lshl_b32 s{T+2}, s{S_BLK}, 11")
        a(f"s_lshl_b32 s{T+3}, s{S_W}, 8")
        a(f"s_add_u32 s{T+2}, s{T+2}, s{T+3}")
        a(f"s_add_u32 s{T+2}, s{T+2}, {WS_PB}")
        a(f"buffer_store_dwordx2 {vr(P,2)}, v8, {srd('WS')}, s{T+2} offen sc1")
        a(f"buffer_store_dwordx2 {vr(P+2,2)}, v8, {srd('WS')}, s{T+2} offen offset:2048 sc1")
        a(f"v_min_u32 v{M}, 0xfffffffe, v{M}")
        a(f"v_min_u32 v{M+4}, 0xfffffffe, v{M+4}")
        a("v_mov_b32 v9, 0x7fffffff")
        a("v_cmp_gt_u32 vcc, 32, v1")
        a(f"s_lshl_b32 s{T+2}, s{S_BLK}, 7")
        a(f"s_add_u32 s{T+2}, s{T+2}, {WS_MI}")
        a("v_cndmask_b32 v9, v9, v7, vcc")
        a(f"s_cmp_eq_u32 s{S_W}, 0")
        a(f"s_cselect_b32 s{T+2}, s{T+2}, 0x7fffff00")
        a(f"buffer_store_dword v{M}, v9, {srd('WS')}, s{T+2} offen sc1")
        a(f"buffer_store_dword v{M+4}, v9, {srd('WS')}, s{T+2} offen offset:128 sc1")
        self.stamp(5)
        a.label(notS4)
        nocf = a.newlabel("nocf")
        a(f"s_cmp_lg_u32 s{S_W}, 4")
        a(f"s_cbranch_scc1 {nocf}")
        self.cf_check(20)
        a.label(nocf)
        a("s_waitcnt vmcnt(0)")
        a("s_barrier")
        notS5 = a.newlabel("notS5")
        a(f"s_cmp_ge_u32 s{S_W}, 4")
        a(f"s_cbranch_scc1 {notS5}")
        self.pv_read_frags(self.L_S)
        a.label(notS5)

    def pv_read_frags(self, base):
        a = self.a
        T = S_T + 8
        AF = 84
        a("v_lshrrev_b32 v6, 4, v1")
        a("v_and_b32 v7, 15, v1")
        a("v_lshrrev_b32 v8, 2, v7")
        a("v_lshl_add_u32 v8, v6, 3, v8")
        a("v_mul_u32_u24 v8, 192, v8")
        a("v_and_b32 v7, 3, v7")
        a("v_lshl_add_u32 v8, v7, 3, v8")
        a(f"s_lshr_b32 s{T}, s{S_W}, 1")
        a(f"s_and_b32 s{T}, s{T}, 1")
        a(f"s_mul_i32 s{T}, s{T}, 96")
        a(f"s_add_u32 s{T}, s{T}, {base}")
        a(f"v_add_u32 v8, s{T}, v8")
        cnt = 0
        for bb in range(8):
            for ct in range(3):
                r = AF + (bb*3+ct)*4
                off = bb*6144 + ct*32
                a(f"ds_read_b64_tr_b16 {vr(r,2)}, v8 offset:{off}")
                a(f"ds_read_b64_tr_b16 {vr(r+2,2)}, v8 offset:{off+768}")
                cnt += 2
                if cnt % 12 == 0:
                    a("s_waitcnt lgkmcnt(0)")

    def bset_pv_phase(self):
        a = self.a
        T = S_T
        AF = 84; P = 20; MI = 52; DL = 60; ACC = 180; LA = 192; ON = 196
        a(f"s_cmp_lt_u32 s{S_W}, 4")
        a(f"s_cselect_b32 s{T}, 8, 0")
        a(f"s_lshl_b32 s{T+1}, s{S_G}, 4")
        a(f"s_add_u32 s{T+1}, s{T+1}, s{T}")
        a(f"s_and_b32 s{T+2}, s{S_W}, 1")
        a(f"s_lshl_b32 s{T+3}, s{T+1}, 11")
        a(f"s_lshl_b32 s{T+4}, s{T+2}, 10")
        a(f"s_add_u32 s{T+3}, s{T+3}, s{T+4}")
        a(f"s_add_u32 s{T+3}, s{T+3}, {WS_PB}")
        a(f"s_lshl_b32 s{T+4}, s{T+1}, 7")
        a(f"s_lshl_b32 s{T+5}, s{T+2}, 6")
        a(f"s_add_u32 s{T+4}, s{T+4}, s{T+5}")
        a(f"s_add_u32 s{T+4}, s{T+4}, {WS_MI}")
        a("v_lshlrev_b32 v5, 4, v1")
        a("v_and_b32 v6, 15, v1")
        a("v_lshlrev_b32 v6, 2, v6")
        for k in range(4):
            a(f"v_mov_b32 v{ON+k}, 0x3f803f80")
        l = self.poll_begin()
        a(f"s_mov_b32 s{T+5}, s{T+3}")
        for bb in range(8):
            a(f"buffer_load_dwordx4 {vr(P+4*bb,4)}, v5, {srd('WS')}, s{T+5} offen offset:{(bb%2)*2048} sc1")
            if bb % 2 == 1 and bb < 7:
                a(f"s_add_u32 s{T+5}, s{T+5}, 4096")
        for bb in range(8):
            a(f"buffer_load_dword v{MI+bb}, v6, {srd('WS')}, s{T+4} offen offset:{bb*128} sc1")
        a("s_waitcnt vmcnt(0) lgkmcnt(0)")
        a(f"v_or3_b32 v7, v{P}, v{P+1}, v{P+2}")
        for k in range(3, 31, 2):
            a(f"v_or3_b32 v7, v7, v{P+k}, v{P+k+1}")
        a(f"v_or_b32 v7, v7, v{P+31}")
        a("v_and_b32 v7, 0x80008000, v7")
        a(f"v_max3_u32 v8, v{MI}, v{MI+1}, v{MI+2}")
        a(f"v_max3_u32 v8, v8, v{MI+3}, v{MI+4}")
        a(f"v_max3_u32 v8, v8, v{MI+5}, v{MI+6}")
        a(f"v_max_u32 v8, v8, v{MI+7}")
        a("v_cmp_eq_u32 vcc, -1, v8")
        a("s_nop 1")
        a("v_cndmask_b32 v8, 0, 1, vcc")
        a("v_or_b32 v7, v7, v8")
        self.poll_end(l, 7)
        self.stamp(6)
        a(f"v_max3_f32 v9, v{MI}, v{MI+1}, v{MI+2}")
        a(f"v_max3_f32 v9, v9, v{MI+3}, v{MI+4}")
        a(f"v_max3_f32 v9, v9, v{MI+5}, v{MI+6}")
        a(f"v_max_f32 v9, v9, v{MI+7}")
        a(f"s_mov_b32 s{T+5}, 0x437f0000")
        a(f"s_mov_b32 s{T+6}, 0x00800080")
        for bb in range(8):
            a(f"v_sub_f32 v{DL+bb}, v9, v{MI+bb}")
            a(f"v_min_f32 v{DL+bb}, s{T+5}, v{DL+bb}")
            a(f"v_cvt_u32_f32 v{DL+bb}, v{DL+bb}")
            a(f"v_mul_u32_u24 v{DL+bb}, s{T+6}, v{DL+bb}")
        for bb in range(8):
            for k in range(4):
                a(f"v_pk_sub_u16 v{P+4*bb+k}, v{P+4*bb+k}, v{DL+bb} clamp")
            a("s_nop 1")
            for ct in range(3):
                c = "0" if bb == 0 else vr(ACC+4*ct, 4)
                a(f"v_mfma_f32_16x16x32_bf16 {vr(ACC+4*ct,4)}, {vr(AF+(bb*3+ct)*4,4)}, {vr(P+4*bb,4)}, {c}")
            c = "0" if bb == 0 else vr(LA, 4)
            a(f"v_mfma_f32_16x16x32_bf16 {vr(LA,4)}, {vr(ON,4)}, {vr(P+4*bb,4)}, {c}")
        a("s_nop 7")
        self.stamp(11)
        a(f"s_and_b32 s{T+5}, s{S_W}, 3")
        a(f"s_lshl_b32 s{T+5}, s{T+5}, 12")
        a(f"s_add_u32 s{T+5}, s{T+5}, {self.L_PR}")
        a(f"v_add_u32 v8, s{T+5}, v5")
        kp1 = a.newlabel("kp1")
        a(f"s_cmp_lt_u32 s{S_W}, 4")
        a(f"s_cbranch_scc1 {kp1}")
        a(f"v_mov_b32 v{LA+1}, v9")
        for ct in range(3):
            a(f"ds_write_b128 v8, {vr(ACC+4*ct,4)} offset:{ct*1024}")
        a(f"ds_write_b128 v8, {vr(LA,4)} offset:3072")
        a("s_waitcnt lgkmcnt(0)")
        a.label(kp1)
        a("s_barrier")
        self.stamp(12)
        fin = a.newlabel("pvfin")
        a(f"s_cmp_ge_u32 s{S_W}, 4")
        a(f"s_cbranch_scc1 {fin}")
        O = 20
        for k in range(4):
            a(f"ds_read_b128 {vr(O+4*k,4)}, v8 offset:{k*1024}")
        a("s_waitcnt lgkmcnt(0)")
        a(f"v_max_f32 v10, v9, v{O+13}")
        a(f"v_sub_f32 v11, v9, v10")
        a(f"v_sub_f32 v12, v{O+13}, v10")
        a("v_exp_f32 v11, v11")
        a("v_exp_f32 v12, v12")
        a("s_nop 0")
        for k in range(12):
            a(f"v_mul_f32 v{ACC+k}, v{ACC+k}, v11")
            a(f"v_fmac_f32 v{ACC+k}, v{O+k}, v12")
            a(f"v_min_u32 v{ACC+k}, 0xfffffffe, v{ACC+k}")
        a(f"v_mul_f32 v{LA}, v{LA}, v11")
        a(f"v_fmac_f32 v{LA}, v{O+12}, v12")
        a(f"v_min_u32 v11, 0xfffffffe, v{LA}")
        a(f"v_min_u32 v10, 0xfffffffe, v10")
        a("v_and_b32 v6, 15, v1")
        a(f"s_mov_b32 s{T+5}, 49152")
        a(f"v_mul_lo_u32 v7, v6, s{T+5}")
        a("v_lshrrev_b32 v12, 4, v1")
        a("v_lshl_add_u32 v7, v12, 4, v7")
        a(f"s_mul_i32 s{T+5}, s{T+2}, {16*49152}")
        a(f"s_lshl_b32 s{T+6}, s{S_S}, 4")
        a(f"s_add_u32 s{T+6}, s{T+6}, s{S_G}")
        a(f"s_mul_i32 s{T+6}, s{T+6}, 384")
        a(f"s_add_u32 s{T+5}, s{T+5}, s{T+6}")
        a(f"s_lshr_b32 s{T+6}, s{S_W}, 1")
        a(f"s_mul_i32 s{T+7}, s{T+6}, 192")
        a(f"s_add_u32 s{T+5}, s{T+5}, s{T+7}")
        a(f"s_add_u32 s{T+5}, s{T+5}, {WS_OP}")
        for ct in range(3):
            a(f"buffer_store_dwordx4 {vr(ACC+4*ct,4)}, v7, {srd('WS')}, s{T+5} offen offset:{ct*64} sc1")
        a("v_lshlrev_b32 v6, 7, v6")
        a("v_mov_b32 v7, 0x7fffffff")
        a("v_cmp_gt_u32 vcc, 16, v1")
        a(f"s_lshl_b32 s{T+5}, s{T+2}, 11")
        a(f"s_lshl_b32 s{T+7}, s{S_G}, 3")
        a(f"s_add_u32 s{T+5}, s{T+5}, s{T+7}")
        a(f"s_add_u32 s{T+5}, s{T+5}, {WS_ML}")
        a("v_cndmask_b32 v6, v7, v6, vcc")
        a(f"s_or_b32 s{T+7}, s{T+6}, s{S_S}")
        a(f"s_cmp_eq_u32 s{T+7}, 0")
        a(f"s_cselect_b32 s{T+5}, s{T+5}, 0x7fffff00")
        a(f"buffer_store_dwordx2 v[10:11], v6, {srd('WS')}, s{T+5} offen sc1")
        a.label(fin)
        self.stamp(7)

    def wo_lane_offsets(self):
        a = self.a
        a("v_mul_u32_u24 v6, 52429, v0")
        a("v_lshrrev_b32 v6, 22, v6")
        a("v_mul_u32_u24 v7, 80, v6")
        a("v_sub_u32 v7, v0, v7")
        a("v_mul_u32_u24 v5, 1280, v6")
        a("v_lshl_add_u32 v5, v7, 4, v5")
        a("v_mov_b32 v8, 0x7fffffff")
        a("v_cmp_gt_u32 vcc, 480, v0")
        a("s_nop 1")
        a("v_cndmask_b32 v5, v8, v5, vcc")

    def gemv_out(self, W0, nrows_i, CO, outp_soff):
        a = self.a
        ACC = 120
        for k in range(8):
            a(f"v_mov_b32 v{ACC+k}, 0")
        for i in range(nrows_i):
            a(f"v_lshlrev_b32 v128, 16, v{CO+i}")
            for k in range(4):
                a(f"v_dot2c_f32_bf16 v{ACC+2*k}, v{W0+4*i+k}, v{CO+i}")
            for k in range(4):
                a(f"v_dot2c_f32_bf16 v{ACC+2*k+1}, v{W0+4*i+k}, v128")
        a("v_mul_u32_u24 v129, 2560, v6")
        a("v_lshl_add_u32 v129, v7, 5, v129")
        a("s_nop 1")
        a(f"ds_write_b128 v129, {vr(ACC,4)} offset:{self.L_R}")
        a(f"ds_write_b128 v129, {vr(ACC+4,4)} offset:{self.L_R+16}")
        a("s_waitcnt lgkmcnt(0)")
        a("s_barrier")
        skip = a.newlabel("go")
        a(f"s_cmp_ge_u32 s{S_W}, 3")
        a(f"s_cbranch_scc1 {skip}")
        a("v_lshlrev_b32 v129, 4, v0")
        R = 132
        for sl in range(6):
            a(f"ds_read_b128 {vr(R+4*sl,4)}, v129 offset:{self.L_R+sl*2560}")
        a("s_waitcnt lgkmcnt(0)")
        for k in range(4):
            a(f"v_add_f32 v{R+k}, v{R+k}, v{R+4+k}")
            a(f"v_add_f32 v{R+8+k}, v{R+8+k}, v{R+12+k}")
            a(f"v_add_f32 v{R+16+k}, v{R+16+k}, v{R+20+k}")
        for k in range(4):
            a(f"v_add_f32 v{R+k}, v{R+k}, v{R+8+k}")
        for k in range(4):
            a(f"v_add_f32 v{R+k}, v{R+k}, v{R+16+k}")
        for k in range(4):
            a(f"v_min_u32 v{R+k}, 0xfffffffe, v{R+k}")
        a("v_mov_b32 v130, 0x7fffffff")
        a("v_cmp_gt_u32 vcc, 160, v0")
        a("s_nop 1")
        a("v_cndmask_b32 v129, v130, v129, vcc")
        a(f"buffer_store_dwordx4 {vr(R,4)}, v129, {srd('WS')}, s{outp_soff} offen sc1")
        a.label(skip)

    def aset_back(self):
        a = self.a
        T = S_T
        a(f"s_lshl_b32 s{T+10}, s{S_X}, 4")
        a(f"s_add_u32 s{T+10}, s{T+10}, s{S_LI}")
        a(f"s_mul_i32 s{T+10}, s{T+10}, 2560")
        a(f"s_add_u32 s{T+10}, s{T+10}, {WS_OUTP}")
        self.wo_lane_offsets()
        a(f"s_cmp_ge_u32 s{S_LI}, 12")
        a("s_cbranch_scc1 L_bbranch")
        WV = 20
        WO = 68
        a(f"s_mul_i32 s{T}, s{S_W}, {96*12288}")
        a(f"s_mul_i32 s{T+1}, s{S_H}, 384")
        a(f"s_add_u32 s{T}, s{T}, s{T+1}")
        a(f"s_lshl_b32 s{T+1}, s{S_J4}, 7")
        a(f"s_add_u32 s{T}, s{T}, s{T+1}")
        for i in range(12):
            a(f"buffer_load_dwordx4 {vr(WV+4*i,4)}, v4, {srd('WUV')}, s{T} offen{self.NT}")
            if i < 11:
                a(f"s_add_u32 s{T}, s{T}, 98304")
        a(f"s_mul_i32 s{T}, s{S_H}, 192")
        a(f"s_lshl_b32 s{T+1}, s{S_J4}, 6")
        a(f"s_add_u32 s{T}, s{T}, s{T+1}")
        a(f"s_mul_i32 s{T}, s{T}, 1280")
        for i in range(10):
            a(f"buffer_load_dwordx4 {vr(WO+4*i,4)}, v5, {srd('WO')}, s{T} offen{self.NT}")
            a(f"s_add_u32 s{T}, s{T}, 7680")
        a("v_mov_b32 v8, 0x7fffffff")
        a("v_cmp_gt_u32 vcc, 4, v6")
        a("s_nop 1")
        a("v_cndmask_b32 v9, v8, v5, vcc")
        a(f"buffer_load_dwordx4 {vr(WO+40,4)}, v9, {srd('WO')}, s{T} offen{self.NT}")
        self.stamp(4)
        self.cf_check(112)
        self.stamp(5)
        OPV = 132
        a("v_cmp_le_u32 vcc, 24, v1")
        a("s_nop 1")
        a("v_cndmask_b32 v10, 0, 1, vcc")
        a("v_mul_u32_u24 v11, 24, v10")
        a("v_sub_u32 v11, v1, v11")
        a("v_mul_u32_u24 v12, 384, v10")
        a("v_lshl_add_u32 v12, v11, 4, v12")
        a("v_mov_b32 v13, v12")
        a("v_cmp_gt_u32 vcc, 48, v1")
        a("s_nop 1")
        a("v_cndmask_b32 v12, v8, v12, vcc")
        a(f"s_lshl_b32 s{T}, s{S_H}, 3")
        a(f"s_add_u32 s{T}, s{T}, s{S_W}")
        a(f"s_mul_i32 s{T}, s{T}, {16*384}")
        a(f"s_add_u32 s{T}, s{T}, {WS_OP}")
        a(f"s_lshl_b32 s{T+1}, s{S_H}, 7")
        a(f"s_add_u32 s{T+1}, s{T+1}, {WS_ML}")
        a("v_and_b32 v14, 15, v1")
        a("v_lshlrev_b32 v14, 3, v14")
        l = self.poll_begin()
        a(f"buffer_load_dwordx2 v[116:117], v14, {srd('WS')}, s{T+1} offen sc1")
        a(f"s_mov_b32 s{T+2}, s{T}")
        for i in range(8):
            a(f"buffer_load_dwordx4 {vr(OPV+4*i,4)}, v12, {srd('WS')}, s{T+2} offen offset:{(i%4)*768} sc1")
            if i == 3:
                a(f"s_add_u32 s{T+2}, s{T+2}, 3072")
        a("s_waitcnt vmcnt(0)")
        a(f"v_max3_u32 v15, v116, v117, v{OPV}")
        for k in range(1, 31, 2):
            a(f"v_max3_u32 v15, v15, v{OPV+k}, v{OPV+k+1}")
        a(f"v_max_u32 v15, v15, v{OPV+31}")
        a("v_cmp_eq_u32 vcc, -1, v15")
        a("s_nop 1")
        a("v_cndmask_b32 v15, 0, 1, vcc")
        self.poll_end(l, 15)
        self.stamp(6)
        a("v_mov_b32 v118, v116")
        a("s_nop 1")
        for ctrl in ["quad_perm:[1,0,3,2]", "quad_perm:[2,3,0,1]", "row_half_mirror", "row_mirror"]:
            a(f"v_max_f32_dpp v118, v118, v118 {ctrl} row_mask:0xf bank_mask:0xf")
            a("s_nop 1")
        a("v_sub_f32 v119, v116, v118")
        a("v_exp_f32 v119, v119")
        a("s_nop 0")
        a("v_mul_f32 v120, v117, v119")
        a("s_nop 1")
        for ctrl in ["quad_perm:[1,0,3,2]", "quad_perm:[2,3,0,1]", "row_half_mirror", "row_mirror"]:
            a(f"v_add_f32_dpp v120, v120, v120 {ctrl} row_mask:0xf bank_mask:0xf")
            a("s_nop 1")
        a("v_rcp_f32 v120, v120")
        a("s_nop 0")
        a("v_mul_f32 v119, v119, v120")
        a("v_lshlrev_b32 v121, 2, v10")
        WN = 164
        for i in range(8):
            a(f"ds_bpermute_b32 v{WN+i}, v121, v119 offset:{8*i}")
        a("s_waitcnt lgkmcnt(0)")
        for k in range(4):
            a(f"v_mul_f32 v{122+k}, v{WN}, v{OPV+k}")
        for i in range(1, 8):
            for k in range(4):
                a(f"v_fmac_f32 v{122+k}, v{WN+i}, v{OPV+4*i+k}")
        a(f"s_lshl_b32 s{T+2}, s{S_W}, 10")
        a(f"s_add_u32 s{T+2}, s{T+2}, {self.L_O}")
        a(f"v_add_u32 v13, s{T+2}, v13")
        a("s_mov_b32 exec_hi, 0xffff")
        a("ds_write_b128 v13, v[122:125]")
        a("s_mov_b32 exec_hi, -1")
        a("v_lshlrev_b32 v13, 2, v2")
        a(f"v_add_u32 v13, s{T+2}, v13")
        a("s_waitcnt lgkmcnt(0)")
        OV = 132
        for i in range(12):
            a(f"ds_read2_b32 {vr(OV+2*i,2)}, v13 offset0:{8*i} offset1:{8*i+96}")
        a("s_waitcnt lgkmcnt(0)")
        for i in range(12):
            a(f"v_add_f32 v{OV+2*i}, v{OV+2*i}, v{OV+2*i+1}")
        for i in range(12):
            a(f"v_cvt_pk_bf16_f32 v{OV+2*i}, v{OV+2*i}, v{OV+2*i}")
        for i in range(12):
            a(f"v_and_b32 v{OV+2*i+1}, 0xffff0000, v{OV+2*i}")
            a(f"v_and_b32 v{OV+2*i}, 0xffff, v{OV+2*i}")
        ACC = 120
        for k in range(8):
            a(f"v_mov_b32 v{ACC+k}, 0")
        for i in range(12):
            for k in range(4):
                a(f"v_dot2c_f32_bf16 v{ACC+2*k}, v{WV+4*i+k}, v{OV+2*i}")
            for k in range(4):
                a(f"v_dot2c_f32_bf16 v{ACC+2*k+1}, v{WV+4*i+k}, v{OV+2*i+1}")
        self.treduce8(ACC, 128, 129)
        a("v_lshlrev_b32 v13, 5, v3")
        a("v_lshl_add_u32 v13, v2, 2, v13")
        a(f"s_lshl_b32 s{T+2}, s{S_W}, 8")
        a(f"v_add_u32 v13, s{T+2}, v13")
        a(f"ds_write_b32 v13, v{ACC} offset:{self.L_C}")
        a("s_waitcnt lgkmcnt(0)")
        a("s_barrier")
        self.stamp(7)
        skip = a.newlabel("cx")
        a(f"s_cmp_lg_u32 s{S_W}, 0")
        a(f"s_cbranch_scc1 {skip}")
        a("v_lshlrev_b32 v13, 2, v1")
        for w in range(8):
            a(f"ds_read_b32 v{132+w}, v13 offset:{self.L_C+w*256}")
        a("s_waitcnt lgkmcnt(0)")
        for w in range(1, 8):
            a(f"v_add_f32 v132, v132, v{132+w}")
        a("v_cvt_pk_bf16_f32 v132, v132, v132")
        a("v_lshlrev_b32 v13, 1, v1")
        a(f"ds_write_b16 v13, v132 offset:{self.L_CB}")
        a("s_waitcnt lgkmcnt(0)")
        a.label(skip)
        a("s_barrier")
        a("v_lshlrev_b32 v13, 1, v6")
        CO = 132
        for i in range(11):
            a(f"ds_read_u16 v{CO+i}, v13 offset:{self.L_CB+12*i}")
        a("s_waitcnt lgkmcnt(0)")
        self.gemv_out(WO, 11, CO, T+10)
        self.stamp(8)
        a("s_branch L_aend")

        a.label("L_bbranch")
        WG = 20
        XB = 84
        WD = 100
        WD = 160
        a(f"s_lshl_b32 s{T}, s{S_X}, 2")
        a(f"s_add_u32 s{T}, s{T}, s{S_LI}")
        a(f"s_sub_u32 s{T}, s{T}, 12")
        a("v_mul_u32_u24 v10, 43, v1")
        a("v_lshrrev_b32 v10, 8, v10")
        a("v_mul_u32_u24 v11, 6, v10")
        a("v_sub_u32 v11, v1, v11")
        a("v_mul_u32_u24 v12, 3072, v10")
        a("v_lshl_add_u32 v12, v11, 4, v12")
        a("v_cmp_gt_u32 vcc, 60, v1")
        a("s_nop 1")
        a("v_cndmask_b32 v12, v8, v12, vcc")
        a("v_lshlrev_b32 v13, 1, v10")
        a(f"s_and_b32 s{T+1}, s{S_W}, 3")
        a(f"s_mul_i32 s{T+2}, s{T+1}, 320")
        for i in range(16):
            a(f"buffer_load_ushort v{XB+i}, v13, {srd('X')}, s{T+2} offen offset:{20*i}")
        a(f"s_mul_i32 s{T+2}, s{T+1}, {160*3072}")
        a(f"s_mul_i32 s{T+3}, s{T}, 96")
        a(f"s_add_u32 s{T+2}, s{T+2}, s{T+3}")
        up = a.newlabel("up"); upd = a.newlabel("upd")
        a(f"s_cmp_ge_u32 s{S_W}, 4")
        a(f"s_cbranch_scc1 {up}")
        for i in range(16):
            a(f"buffer_load_dwordx4 {vr(WG+4*i,4)}, v12, {srd('WG')}, s{T+2} offen{self.NT}")
            a(f"s_add_u32 s{T+2}, s{T+2}, 30720")
        a(f"s_branch {upd}")
        a.label(up)
        for i in range(16):
            a(f"buffer_load_dwordx4 {vr(WG+4*i,4)}, v12, {srd('WU')}, s{T+2} offen{self.NT}")
            a(f"s_add_u32 s{T+2}, s{T+2}, 30720")
        a.label(upd)
        a(f"s_mul_i32 s{T+2}, s{T}, {48*1280}")
        for i in range(8):
            a(f"buffer_load_dwordx4 {vr(WD+4*i,4)}, v5, {srd('WD')}, s{T+2} offen{self.NT}")
            a(f"s_add_u32 s{T+2}, s{T+2}, 7680")
        a("s_waitcnt vmcnt(8)")
        ACC = 120
        for k in range(8):
            a(f"v_mov_b32 v{ACC+k}, 0")
        for i in range(16):
            a(f"v_lshlrev_b32 v128, 16, v{XB+i}")
            for k in range(4):
                a(f"v_dot2c_f32_bf16 v{ACC+2*k}, v{WG+4*i+k}, v{XB+i}")
            for k in range(4):
                a(f"v_dot2c_f32_bf16 v{ACC+2*k+1}, v{WG+4*i+k}, v128")
        a(f"s_mul_i32 s{T+2}, s{S_W}, 1920")
        a("v_mul_u32_u24 v13, 192, v10")
        a("v_lshl_add_u32 v13, v11, 5, v13")
        a(f"v_add_u32 v13, s{T+2}, v13")
        a("s_mov_b32 exec_hi, 0x0fffffff")
        a(f"ds_write_b128 v13, {vr(ACC,4)} offset:{self.L_R}")
        a(f"ds_write_b128 v13, {vr(ACC+4,4)} offset:{self.L_R+16}")
        a("s_mov_b32 exec_hi, -1")
        a("s_waitcnt lgkmcnt(0)")
        a("s_barrier")
        skip = a.newlabel("bg")
        a(f"s_cmp_ge_u32 s{S_W}, 2")
        a(f"s_cbranch_scc1 {skip}")
        a("v_cmp_le_u32 vcc, 48, v0")
        a("v_mov_b32 v14, 7488")
        a("v_lshlrev_b32 v13, 2, v0")
        a("v_cndmask_b32 v14, 0, v14, vcc")
        a("v_add_u32 v13, v13, v14")
        a("v_min_u32 v13, 15356, v13")
        for j in range(40):
            a(f"ds_read_b32 v{20+j}, v13 offset:{self.L_R+j*192}")
            if j % 8 == 7:
                a("s_waitcnt lgkmcnt(0)")
        for j in range(1, 40):
            a(f"v_add_f32 v20, v20, v{20+j}")
        a("v_lshlrev_b32 v13, 2, v0")
        a(f"ds_write_b32 v13, v20 offset:{self.L_C}")
        a("s_waitcnt lgkmcnt(0)")
        a.label(skip)
        a("s_barrier")
        skip = a.newlabel("bh")
        a(f"s_cmp_lg_u32 s{S_W}, 0")
        a(f"s_cbranch_scc1 {skip}")
        a("v_lshlrev_b32 v13, 2, v1")
        a(f"ds_read_b32 v20, v13 offset:{self.L_C}")
        a(f"ds_read_b32 v21, v13 offset:{self.L_C+192}")
        a("s_waitcnt lgkmcnt(0)")
        a(f"v_mul_f32 v20, 0x{self.f32bits(-math.log2(math.e)):08x}, v20")
        a("v_exp_f32 v20, v20")
        a("s_nop 0")
        a("v_add_f32 v20, 1.0, v20")
        a("v_rcp_f32 v20, v20")
        a("s_nop 0")
        a("v_mul_f32 v20, v20, v21")
        a("v_cvt_pk_bf16_f32 v20, v20, v20")
        a("v_lshlrev_b32 v13, 1, v1")
        a(f"ds_write_b16 v13, v20 offset:{self.L_CB}")
        a("s_waitcnt lgkmcnt(0)")
        a.label(skip)
        a("s_barrier")
        a("v_lshlrev_b32 v13, 1, v6")
        CO = 132
        for i in range(8):
            a(f"ds_read_u16 v{CO+i}, v13 offset:{self.L_CB+12*i}")
        a("s_waitcnt vmcnt(0) lgkmcnt(0)")
        self.gemv_out(WD, 8, CO, T+10)
        self.stamp(8)
        a.label("L_aend")

    def bset_final(self):
        a = self.a
        T = S_T
        a(f"s_cmp_ge_u32 s{S_LB}, 5")
        a("s_cbranch_scc1 L_bend")
        a("v_lshlrev_b32 v5, 2, v1")
        for i in range(5):
            a(f"buffer_load_dword v{20+i}, v5, {srd('X')}, 0 offen offset:{256*i}")
            a(f"buffer_load_dword v{25+i}, v5, {srd('GW')}, 0 offen offset:{256*i}")
        a("v_mov_b32 v30, 0")
        a("s_waitcnt vmcnt(0)")
        for i in range(5):
            a(f"v_dot2c_f32_bf16 v30, v{20+i}, v{25+i}")
        a("s_nop 2")
        for ctrl in ["quad_perm:[1,0,3,2]", "quad_perm:[2,3,0,1]", "row_half_mirror", "row_mirror"]:
            a(f"v_add_f32_dpp v30, v30, v30 {ctrl} row_mask:0xf bank_mask:0xf")
            a("s_nop 1")
        a("v_mov_b32 v31, v30")
        a("s_nop 1")
        a("v_permlane16_swap_b32 v30, v31")
        a("s_nop 1")
        a("v_add_f32 v30, v30, v31")
        a("v_mov_b32 v31, v30")
        a("s_nop 1")
        a("v_permlane32_swap_b32 v30, v31")
        a("s_nop 1")
        a("v_add_f32 v30, v30, v31")
        a(f"v_mul_f32 v30, 0x{self.f32bits(-math.log2(math.e)):08x}, v30")
        a("v_exp_f32 v30, v30")
        a("s_nop 0")
        a("v_add_f32 v30, 1.0, v30")
        a("v_rcp_f32 v30, v30")
        a("s_nop 0")
        a("v_sub_f32 v31, 1.0, v30")
        a("v_cmp_le_u32 vcc, 48, v1")
        a("s_nop 1")
        a("v_cndmask_b32 v30, v30, v31, vcc")
        a(f"s_mul_i32 s{T}, s{S_X}, 5")
        a(f"s_add_u32 s{T}, s{T}, s{S_LB}")
        a(f"s_lshl_b32 s{T+1}, s{T}, 6")
        a(f"s_add_u32 s{T+1}, s{T+1}, {WS_OUTP}")
        a("v_lshrrev_b32 v6, 2, v0")
        a("v_mul_u32_u24 v6, 2560, v6")
        a("v_and_b32 v7, 3, v0")
        a("v_lshl_add_u32 v6, v7, 4, v6")
        l = self.poll_begin()
        a(f"buffer_load_dwordx4 v[32:35], v6, {srd('WS')}, s{T+1} offen sc1")
        a("s_waitcnt vmcnt(0)")
        a("v_max3_u32 v8, v32, v33, v34")
        a("v_max_u32 v8, v8, v35")
        a("v_cmp_eq_u32 vcc, -1, v8")
        a("s_nop 1")
        a("v_cndmask_b32 v8, 0, 1, vcc")
        self.poll_end(l, 8)
        self.stamp(13)
        for k in range(4):
            a(f"v_mul_f32 v{32+k}, v{32+k}, v30")
        a("s_nop 1")
        a("v_permlane32_swap_b32 v32, v34")
        a("v_permlane32_swap_b32 v33, v35")
        a("s_nop 1")
        a("v_add_f32 v32, v32, v34")
        a("v_add_f32 v33, v33, v35")
        a("s_nop 1")
        a("v_permlane16_swap_b32 v32, v33")
        a("s_nop 1")
        a("v_add_f32 v32, v32, v33")
        a("s_nop 1")
        a("v_add_f32_dpp v32, v32, v32 row_ror:8 row_mask:0xf bank_mask:0xf")
        a("s_nop 1")
        a("v_add_f32_dpp v32, v32, v32 row_ror:4 row_mask:0xf bank_mask:0xf")
        a("v_and_b32 v8, 3, v1")
        a("v_lshlrev_b32 v8, 2, v8")
        a("v_bfe_u32 v9, v1, 5, 1")
        a("v_lshl_add_u32 v8, v9, 1, v8")
        a("v_bfe_u32 v9, v1, 4, 1")
        a("v_add_u32 v8, v8, v9")
        a("v_lshlrev_b32 v8, 2, v8")
        a(f"s_lshl_b32 s{T+2}, s{S_W}, 6")
        a(f"v_add_u32 v8, s{T+2}, v8")
        a(f"ds_write_b32 v8, v32 offset:{self.L_F}")
        a("s_waitcnt lgkmcnt(0)")
        a("s_barrier")
        a(f"s_cmp_lg_u32 s{S_W}, 0")
        a("s_cbranch_scc1 L_bend")
        a("v_and_b32 v8, 15, v1")
        a("v_lshlrev_b32 v9, 2, v8")
        for w in range(8):
            a(f"ds_read_b32 v{40+w}, v9 offset:{self.L_F+w*64}")
        a("s_waitcnt lgkmcnt(0)")
        for w in range(1, 8):
            a(f"v_add_f32 v40, v40, v{40+w}")
        a("v_cvt_pk_bf16_f32 v40, v40, v40")
        a("v_lshlrev_b32 v8, 1, v8")
        a("v_mov_b32 v9, 0x7fffffff")
        a("v_cmp_gt_u32 vcc, 16, v1")
        a(f"s_lshl_b32 s{T+2}, s{T}, 5")
        a("v_cndmask_b32 v8, v9, v8, vcc")
        a(f"buffer_store_short v40, v8, {srd('OUT')}, s{T+2} offen")
        self.stamp(14)
        a.label("L_bend")

    @staticmethod
    def f32bits(x):
        import struct
        return struct.unpack("<I", struct.pack("<f", x))[0]

    def build(self):
        a = self.a
        self.L_Q = 0
        self.L_QS = self.L_Q + 512
        self.L_MX = 1024
        self.L_FLAG = 2048
        self.L_S = 8192
        self.L_PA = 106496
        self.L_RED = 57344
        self.L_PR = 90112
        self.L_O = 4096
        self.L_C = 12288
        self.L_CB = 14336
        self.L_R = 16384
        self.L_F = 3072
        self.prologue()
        self.aset_front()
        self.aset_back()
        self.stamp_flush()
        a("s_branch L_exit")
        a.label("L_bset")
        self.bset_ids()
        self.bset_front()
        self.bset_s_phase()
        self.bset_pv_phase()
        self.bset_final()
        self.stamp_flush()
        a.label("L_exit")
        a("s_endpgm")
        hdr = f"""; generated by dev/gen.py
; @launch grid=(256,1,1) block=(512,1,1) lds=163840
.amdgcn_target "amdgcn-amd-amdhsa--gfx950"
.text
.globl {NAME}_kernel
.p2align 8
.type {NAME}_kernel,@function
{NAME}_kernel:
"""
        ftr = f""".section .rodata,"a"
.p2align 6
.amdhsa_kernel {NAME}_kernel
  .amdhsa_next_free_vgpr 256
  .amdhsa_next_free_sgpr 102
  .amdhsa_accum_offset 256
  .amdhsa_group_segment_fixed_size 0
  .amdhsa_kernarg_size 112
  .amdhsa_user_sgpr_count 2
  .amdhsa_user_sgpr_kernarg_segment_ptr 1
  .amdhsa_system_sgpr_workgroup_id_x 1
.end_amdhsa_kernel
"""
        return hdr + a.text() + ftr

if __name__ == "__main__":
    out = sys.argv[1] if len(sys.argv) > 1 else "k.s"
    g = Gen(stamps=("--stamps" in sys.argv))
    open(out, "w").write(g.build())
```

```python
import sys, math, struct

NAME = "gated_mix__compressed_kv_cla__glu_gated_glu__decode"

WS_EPOCH = 0
WS_CF    = 0x400
WS_QA    = 0x10000
WS_QPG   = 0x20000
WS_QPL   = 0x80000
WS_PBG   = 0x100000
WS_PBL   = 0x1A0000
WS_ML    = 0x240000
WS_OUTP  = 0x250000
WS_OP    = 0x2A0000
WS_ST    = 0x440000
WS_SIZE  = 0x480000
PBS = 2560

S_W, S_X, S_LI, S_H, S_J4, S_EP = 3, 4, 5, 6, 7, 8
S_LB, S_BLK, S_G, S_S = 10, 11, 12, 13
S_WSCF = 14
SRD = dict(X=16, CKV=20, WQ=24, WUK=28, WUV=32, WO=36, WG=44, WU=48, WD=52, GW=56, OUT=60, WS=64)
SRD_SIZE = dict(X=1280, CKV=12582912, WQ=7864320, WUK=9437184, WUV=9437184, WO=7864320,
                WG=1966080, WU=1966080, WD=1966080, GW=1280, OUT=1280, WS=WS_SIZE)
KARG = dict(X=0, CKV=8, WQ=16, WUK=24, WUV=32, WO=40, WG=56, WU=64, WD=72, GW=80, OUT=88, WS=104)
S_M8 = 72
S_T = 74
S_CNT = 96
S_PB = 97
S_PM = 15
S_STAMP = 98
POLL_LIMIT = 100000

class Asm:
    def __init__(self):
        self.L = []; self.uid = 0
    def __call__(self, s):
        for line in s.strip("\n").split("\n"):
            self.L.append("    " + line.strip())
    def label(self, n): self.L.append(n + ":")
    def newlabel(self, base):
        self.uid += 1
        return f"L_{base}_{self.uid}"
    def text(self): return "\n".join(self.L) + "\n"

def srd(n):
    b = SRD[n]; return f"s[{b}:{b+3}]"
def vr(b, n=1):
    return f"v{b}" if n == 1 else f"v[{b}:{b+n-1}]"
def f32bits(x):
    return struct.unpack("<I", struct.pack("<f", x))[0]

class Gen:
    def __init__(self, stamps=False, nt_front=False, nt_ckv=False, nt_back=False, local=True, lperiod=8, a_delay=1, qa_ack=1, exp_linear=0, a_win=63, s_win=63, pv_win=63, mlpoll=1, exp_nobulk=0, a_probe=0, s_probe=0, exp_noclear=0, exp_nowuk=0):
        self.a = Asm()
        self.stamps = stamps
        self.NTF = " nt" if nt_front else ""
        self.NTC = " nt" if nt_ckv else ""
        self.NTB = " nt" if nt_back else ""
        self.local = local
        self.a_delay = a_delay
        self.qa_ack = qa_ack
        self.exp_noclear = exp_noclear; self.exp_nowuk = exp_nowuk
        self.a_probe = a_probe; self.s_probe = s_probe
        self.exp_nobulk = exp_nobulk
        self.a_win = a_win; self.s_win = s_win; self.pv_win = pv_win; self.mlpoll = mlpoll
        self.exp_linear = exp_linear
        self.lperiod = lperiod
        self.L_Q = 0; self.L_QS = 512; self.L_F = 3072; self.L_FLAG = 2048; self.L_X = 4096
        self.L_S = 8192; self.L_PA = 106496; self.L_RED = 57344; self.L_PR = 90112
        self.L_O = 4096; self.L_C = 12288; self.L_CB = 14336; self.L_R = 16384
        self.PVO = 212

    def stamp(self, idx):
        if not self.stamps: return
        a = self.a
        a(f"s_memrealtime s[{S_STAMP}:{S_STAMP+1}]")
        a("s_waitcnt lgkmcnt(0)")
        a(f"v_writelane_b32 v255, s{S_STAMP}, {idx}")
    def stamp_val(self, idx, sreg):
        if not self.stamps: return
        self.a(f"s_add_u32 s9, s{sreg}, 1")
        self.a(f"v_writelane_b32 v255, s9, {idx}")
    def stamp_flush(self):
        if not self.stamps: return
        a = self.a
        a(f"s_lshl_b32 s{S_T+20}, s2, 3")
        a(f"s_add_u32 s{S_T+20}, s{S_T+20}, s{S_W}")
        a(f"s_lshl_b32 s{S_T+20}, s{S_T+20}, 7")
        a(f"s_add_u32 s{S_T+20}, s{S_T+20}, {WS_ST}")
        a("v_lshlrev_b32 v252, 2, v1")
        a("s_mov_b32 exec_lo, -1")
        a("s_mov_b32 exec_hi, 0")
        a(f"buffer_store_dword v255, v252, {srd('WS')}, s{S_T+20} offen")
        a("s_mov_b64 exec, -1")

    def treduce8(self, acc, t0, t1):
        a = self.a
        a("s_nop 2")
        for k in range(4): a(f"v_permlane32_swap_b32 v{acc+k}, v{acc+k+4}")
        a("s_nop 1")
        for k in range(4): a(f"v_add_f32 v{acc+k}, v{acc+k}, v{acc+k+4}")
        a("s_nop 1")
        for k in range(2): a(f"v_permlane16_swap_b32 v{acc+k}, v{acc+k+2}")
        a("s_nop 1")
        for k in range(2): a(f"v_add_f32 v{acc+k}, v{acc+k}, v{acc+k+2}")
        a("s_nop 0")
        a(f"v_cndmask_b32 v{t0}, v{acc}, v{acc+1}, s[{S_M8}:{S_M8+1}]")
        a(f"v_cndmask_b32 v{t1}, v{acc+1}, v{acc}, s[{S_M8}:{S_M8+1}]")
        a("s_nop 1")
        a(f"v_add_f32_dpp v{acc}, v{t1}, v{t0} row_ror:8 row_mask:0xf bank_mask:0xf")

    def skip_if(self, cmp, label):
        self.a(cmp); self.a(f"s_cbranch_scc1 {label}")

    def poll_begin(self, lbase=None, gbase=None):
        a = self.a
        l = a.newlabel("poll")
        a(f"s_mov_b32 s{S_CNT}, 0")
        a.label(l)
        if lbase is not None:
            if self.local:
                a(f"s_and_b32 s9, s{S_CNT}, {self.lperiod-1}")
                a(f"s_cmp_eq_u32 s9, {self.lperiod-1}")
                a(f"s_cselect_b32 s{S_PB}, s{gbase}, s{lbase}")
            else:
                a(f"s_mov_b32 s{S_PB}, s{gbase}")
        return l
    def poll_end(self, l, vbad):
        a = self.a
        ok = a.newlabel("ok")
        a(f"v_cmp_ne_u32 vcc, 0, v{vbad}")
        a(f"s_cbranch_vccz {ok}")
        a(f"s_add_u32 s{S_CNT}, s{S_CNT}, 1")
        a(f"s_cmp_lt_u32 s{S_CNT}, {POLL_LIMIT}")
        a(f"s_cbranch_scc1 {l}")
        a.label(ok)

    def gpoll(self, n, issue, check, pre=None, first_issued=False):
        a = self.a
        top = a.newlabel("gp"); done = a.newlabel("gpd")
        a(f"s_mov_b32 s{S_PM}, {(1<<n)-1}")
        a(f"s_mov_b32 s{S_CNT}, 0")
        if first_issued:
            chk = a.newlabel("gpc")
            a(f"s_branch {chk}")
        a.label(top)
        if pre: pre()
        for i in range(n):
            sk = a.newlabel("gi")
            a(f"s_bitcmp0_b32 s{S_PM}, {i}")
            a(f"s_cbranch_scc1 {sk}")
            issue(i)
            a.label(sk)
        if first_issued: a.label(chk)
        a("s_waitcnt vmcnt(0)")
        for i in range(n):
            sk = a.newlabel("gc")
            a(f"s_bitcmp0_b32 s{S_PM}, {i}")
            a(f"s_cbranch_scc1 {sk}")
            check(i)
            a(f"s_cbranch_vccnz {sk}")
            a(f"s_bitset0_b32 s{S_PM}, {i}")
            a.label(sk)
        a(f"s_cmp_eq_u32 s{S_PM}, 0")
        a(f"s_cbranch_scc1 {done}")
        a(f"s_add_u32 s{S_CNT}, s{S_CNT}, 1")
        a(f"s_cmp_lt_u32 s{S_CNT}, {POLL_LIMIT}")
        a(f"s_cbranch_scc1 {top}")
        a.label(done)

    def cf_check(self, vb):
        a = self.a
        a(f"v_lshlrev_b32 v{vb+4}, 4, v1")
        l = self.poll_begin()
        a(f"buffer_load_dwordx4 {vr(vb,4)}, v{vb+4}, {srd('WS')}, s{S_WSCF} offen sc1")
        a("s_waitcnt vmcnt(0)")
        for k in range(4): a(f"v_xor_b32 v{vb+k}, s{S_EP}, v{vb+k}")
        a(f"v_or3_b32 v{vb}, v{vb}, v{vb+1}, v{vb+2}")
        a(f"v_or_b32 v{vb}, v{vb}, v{vb+3}")
        self.poll_end(l, vb)

    def prologue(self):
        a = self.a
        a("s_cmp_ge_u32 s2, 256")
        a("s_cbranch_scc1 L_exit")
        a("s_load_dwordx16 s[76:91], s[0:1], 0")
        a("s_load_dwordx8 s[92:99], s[0:1], 64")
        a("s_load_dwordx2 s[64:65], s[0:1], 104")
        a("v_and_b32 v1, 63, v0")
        if self.stamps: a("v_mov_b32 v255, 0")
        a("v_lshrrev_b32 v2, 6, v0")
        a("s_nop 0")
        a(f"v_readfirstlane_b32 s{S_W}, v2")
        a(f"s_and_b32 s{S_X}, s2, 7")
        a(f"s_lshr_b32 s{S_LI}, s2, 3")
        a(f"s_and_b32 s{S_LI}, s{S_LI}, 15")
        a(f"s_and_b32 s9, s{S_LI}, 3")
        a(f"s_lshl_b32 s{S_H}, s{S_X}, 2")
        a(f"s_add_u32 s{S_H}, s{S_H}, s9")
        a(f"s_lshr_b32 s{S_J4}, s{S_LI}, 2")
        a("v_lshrrev_b32 v2, 3, v1")
        a("v_and_b32 v3, 7, v1")
        a("v_mul_u32_u24 v4, 12288, v2")
        a("v_lshl_add_u32 v4, v3, 4, v4")
        a(f"s_mov_b32 s{S_M8}, 0xff00ff00")
        a(f"s_mov_b32 s{S_M8+1}, 0xff00ff00")
        for n in SRD:
            b = SRD[n]
            a(f"s_mov_b32 s{b+2}, {SRD_SIZE[n]}")
            a(f"s_mov_b32 s{b+3}, 0x00020000")
        a(f"s_mov_b32 s{S_WSCF}, {WS_CF}")
        a("s_waitcnt lgkmcnt(0)")
        a(f"s_load_dword s{S_EP}, s[64:65], {WS_EPOCH}")
        for n in SRD:
            if n == "WS": continue
            b = SRD[n]; src = 76 + KARG[n] // 4
            a(f"s_mov_b64 s[{b}:{b+1}], s[{src}:{src+1}]")
        self.stamp(0)
        a("s_cmp_lt_u32 s2, 128")
        a("s_cbranch_scc1 L_bset")

    def aset_front(self):
        a = self.a; T = S_T
        W0 = 20; QF = 56; ACC = 68
        a(f"s_lshr_b32 s{T}, s{S_W}, 1")
        a(f"s_and_b32 s{T+1}, s{S_W}, 1")
        a(f"s_mul_i32 s{T+2}, s{S_J4}, 192")
        a(f"s_mul_i32 s{T+3}, s{T}, 48")
        a(f"s_add_u32 s{T+2}, s{T+2}, s{T+3}")
        a(f"s_lshl_b32 s{T+3}, s{T+1}, 3")
        a(f"s_add_u32 s{T+2}, s{T+2}, s{T+3}")
        a(f"s_mul_i32 s{T+2}, s{T+2}, 12288")
        a(f"s_mul_i32 s{T+3}, s{S_H}, 384")
        a(f"s_add_u32 s{T+2}, s{T+2}, s{T+3}")
        if self.a_delay:
            a("s_waitcnt lgkmcnt(0)")
        for _ in range(self.exp_nowuk): a("s_sleep 16")
        for f in range(3):
            for t in range(3):
                r = W0 + (f*3+t)*4
                a(f"buffer_load_dwordx4 {vr(r,4)}, v4, {srd('WUK')}, s{T+2} offen offset:{t*128}{self.NTF}")
                if self.a_probe and f*3+t == self.a_probe-1:
                    a(f"s_waitcnt vmcnt({self.a_probe-1})")
            if f < 2: a(f"s_add_u32 s{T+2}, s{T+2}, 196608")
        a(f"s_lshl_b32 s{T+10}, s{S_X}, 4")
        a(f"s_add_u32 s{T+10}, s{T+10}, s{S_LI}")
        a(f"s_mul_i32 s{T+10}, s{T+10}, 2560")
        a(f"s_add_u32 s{T+10}, s{T+10}, {WS_OUTP}")
        a("v_mov_b32 v76, -1\nv_mov_b32 v77, -1\nv_mov_b32 v78, -1\nv_mov_b32 v79, -1")
        a("v_lshlrev_b32 v80, 4, v0")
        a("v_mov_b32 v81, 0x7fffffff")
        a("v_cmp_gt_u32 vcc, 160, v0")
        a("s_nop 1")
        a("v_cndmask_b32 v80, v81, v80, vcc")
        a(f"buffer_store_dwordx4 v[76:79], v80, {srd('WS')}, s{T+10} offen sc1")
        a("v_lshlrev_b32 v5, 2, v1")
        a("v_mov_b32 v6, 0")
        a(f"ds_write_b32 v5, v6 offset:{self.L_CB}")
        a(f"ds_write_b32 v5, v6 offset:{self.L_CB+256}")
        a(f"s_mul_i32 s{T+5}, s{S_H}, {8*1536}")
        a(f"s_add_u32 s{T+6}, s{T+5}, {WS_QPL}")
        a(f"s_add_u32 s{T+5}, s{T+5}, {WS_QPG}")
        a("s_waitcnt vmcnt(0) lgkmcnt(0)")
        a(f"s_add_u32 s{S_EP}, s{S_EP}, 1")
        self.stamp(1)
        skip = a.newlabel("e1skip")
        self.skip_if(f"s_cmp_ge_u32 s{S_W}, 3", skip)
        a("v_lshlrev_b32 v5, 3, v0")
        G = 84
        l = self.poll_begin(T+6, T+5)
        for p in range(8):
            a(f"buffer_load_dwordx2 {vr(G+2*p,2)}, v5, {srd('WS')}, s{S_PB} offen offset:{(p%2)*1536} sc1")
            if p % 2 == 1 and p < 7: a(f"s_add_u32 s{S_PB}, s{S_PB}, 3072")
        a("s_waitcnt vmcnt(0)")
        a(f"v_xor_b32 v6, s{S_EP}, v{G+1}")
        for p in range(1, 8):
            a(f"v_xor_b32 v7, s{S_EP}, v{G+2*p+1}")
            a("v_or_b32 v6, v6, v7")
        self.poll_end(l, 6)
        self.stamp_val(16, S_CNT)
        for p in range(1, 8): a(f"v_add_f32 v{G}, v{G}, v{G+2*p}")
        a(f"v_cvt_pk_bf16_f32 v6, v{G}, v{G}")
        a("v_lshlrev_b32 v7, 1, v0")
        a(f"ds_write_b16 v7, v6 offset:{self.L_Q}")
        a("s_waitcnt lgkmcnt(0)")
        a.label(skip)
        a("v_lshlrev_b32 v5, 4, v3")
        a(f"s_lshl_b32 s{T+7}, s{S_W}, 6")
        a("v_lshlrev_b32 v10, 1, v2")
        a(f"v_add_u32 v10, s{T+7}, v10")
        a("v_lshlrev_b32 v6, 4, v1")
        a("v_mov_b32 v7, 4")
        a("v_cmp_eq_u32 vcc, 3, v1")
        a("v_mov_b32 v8, 12")
        a("v_mov_b32 v9, 16")
        a("v_cndmask_b32 v6, v6, v8, vcc")
        a("v_cndmask_b32 v7, v7, v9, vcc")
        a("v_and_b32 v6, 63, v6")
        a(f"v_add_u32 v11, s{T+7}, v6")
        a("v_add_u32 v12, v11, v7")
        a("v_add_u32 v13, v12, v7")
        a(f"s_lshl_b32 s{T+8}, s{S_J4}, 2")
        a(f"s_add_u32 s{T+8}, s{T+8}, s{T}")
        a(f"s_lshl_b32 s{T+8}, s{T+8}, 12")
        a(f"s_lshl_b32 s{T+9}, s{T+1}, 9")
        a(f"s_add_u32 s{T+8}, s{T+8}, s{T+9}")
        a(f"s_lshl_b32 s{T+9}, s{S_H}, 4")
        a(f"s_add_u32 s{T+8}, s{T+8}, s{T+9}")
        a(f"s_add_u32 s{T+8}, s{T+8}, {WS_QA}")
        a("v_lshlrev_b32 v14, 10, v1")
        a("v_mov_b32 v7, 0x7fffffff")
        a("v_cmp_gt_u32 vcc, 4, v1")
        a(f"v_mov_b32 v75, s{S_EP}")
        a("v_cndmask_b32 v14, v7, v14, vcc")
        for f in range(3): a(f"v_mov_b32 v{ACC+f}, 0")
        a("s_barrier")
        self.stamp(2)
        for t in range(3):
            a(f"ds_read_b128 {vr(QF+4*t,4)}, v5 offset:{self.L_Q + t*128}")
        for t in range(3):
            a(f"s_waitcnt lgkmcnt({2-t})")
            for k in range(4):
                for f in range(3):
                    a(f"v_dot2c_f32_bf16 v{ACC+f}, v{W0+(f*3+t)*4+k}, v{QF+4*t+k}")
        a("s_nop 2")
        for ctrl in ["quad_perm:[1,0,3,2]", "quad_perm:[2,3,0,1]", "row_half_mirror"]:
            for f in range(3):
                a(f"v_add_f32_dpp v{ACC+f}, v{ACC+f}, v{ACC+f} {ctrl} row_mask:0xf bank_mask:0xf")
        for f in range(3): a(f"v_cvt_pk_bf16_f32 v{ACC+f}, v{ACC+f}, v{ACC+f}")
        for f in range(3): a(f"ds_write_b16 v10, v{ACC+f} offset:{self.L_QS + f*16}")
        a("s_waitcnt lgkmcnt(0)")
        a(f"ds_read_b32 v72, v11 offset:{self.L_QS}")
        a(f"ds_read_b32 v73, v12 offset:{self.L_QS}")
        a(f"ds_read_b32 v74, v13 offset:{self.L_QS}")
        a("s_waitcnt lgkmcnt(0)")
        a(f"buffer_store_dwordx4 v[72:75], v14, {srd('WS')}, s{T+8} offen sc1")
        self.stamp(3)
        if self.qa_ack: a("s_waitcnt vmcnt(0)")
        a("s_barrier")

    def wo_lane_offsets(self):
        a = self.a
        a("v_mul_u32_u24 v6, 52429, v0")
        a("v_lshrrev_b32 v6, 22, v6")
        a("v_mul_u32_u24 v7, 80, v6")
        a("v_sub_u32 v7, v0, v7")
        a("v_mul_u32_u24 v5, 1280, v6")
        a("v_lshl_add_u32 v5, v7, 4, v5")
        a("v_mov_b32 v8, 0x7fffffff")
        a("v_cmp_gt_u32 vcc, 480, v0")
        a("s_nop 1")
        a("v_cndmask_b32 v5, v8, v5, vcc")

    def preperm(self, W0, npairs, t0):
        a = self.a
        a("s_mov_b32 s94, 0x05040100")
        a("s_mov_b32 s95, 0x07060302")
        for p in range(npairs):
            for k in range(4):
                r0 = W0 + 8*p + k; r1 = r0 + 4
                a(f"v_perm_b32 v{t0}, v{r1}, v{r0}, s94")
                a(f"v_perm_b32 v{r1}, v{r1}, v{r0}, s95")
                a(f"v_mov_b32 v{r0}, v{t0}")

    def gemv_pairs(self, W0, npairs, CO, ACC):
        a = self.a
        for p in range(npairs):
            for k in range(4):
                a(f"v_dot2c_f32_bf16 v{ACC+2*k}, v{W0+8*p+k}, v{CO+p}")
            for k in range(4):
                a(f"v_dot2c_f32_bf16 v{ACC+2*k+1}, v{W0+8*p+4+k}, v{CO+p}")

    def out_reduce_publish(self, ACC, outp_soff):
        a = self.a
        a("s_nop 2")
        a(f"ds_write_b128 v129, {vr(ACC,4)} offset:{self.L_R}")
        a(f"ds_write_b128 v129, {vr(ACC+4,4)} offset:{self.L_R+16}")
        a("s_waitcnt lgkmcnt(0)")
        a("s_barrier")
        skip = a.newlabel("go")
        self.skip_if(f"s_cmp_ge_u32 s{S_W}, 3", skip)
        R = 132
        for sl in range(6):
            a(f"ds_read_b128 {vr(R+4*sl,4)}, v131 offset:{self.L_R+sl*2560}")
        a("s_waitcnt lgkmcnt(0)")
        for k in range(4):
            a(f"v_add_f32 v{R+k}, v{R+k}, v{R+4+k}")
            a(f"v_add_f32 v{R+8+k}, v{R+8+k}, v{R+12+k}")
            a(f"v_add_f32 v{R+16+k}, v{R+16+k}, v{R+20+k}")
        for k in range(4): a(f"v_add_f32 v{R+k}, v{R+k}, v{R+8+k}")
        for k in range(4): a(f"v_add_f32 v{R+k}, v{R+k}, v{R+16+k}")
        for k in range(4): a(f"v_min_u32 v{R+k}, 0xfffffffe, v{R+k}")
        a(f"buffer_store_dwordx4 {vr(R,4)}, v130, {srd('WS')}, s{outp_soff} offen sc1")
        a.label(skip)

    def write_pairs(self, vsrc, t0, t1, nvalid):
        a = self.a
        a(f"v_lshlrev_b32 v{t0}, 2, v1")
        a(f"v_add_u32 v{t1}, {self.L_CB - 24 + 2}, v{t0}")
        a(f"v_add_u32 v{t0}, {self.L_CB}, v{t0}")
        a(f"v_mov_b32 v{t0+2}, {self.L_CB + 500}")
        a("v_cmp_gt_u32 vcc, 6, v1")
        a("s_nop 1")
        a(f"v_cndmask_b32 v{t1}, v{t1}, v{t0+2}, vcc")
        if nvalid < 64:
            a(f"v_cmp_le_u32 vcc, {nvalid}, v1")
            a("s_nop 1")
            a(f"v_cndmask_b32 v{t1}, v{t1}, v{t0+2}, vcc")
            a(f"v_cndmask_b32 v{t0}, v{t0}, v{t0+2}, vcc")
        a(f"ds_write_b16 v{t0}, v{vsrc}")
        a(f"ds_write_b16 v{t1}, v{vsrc}")

    def out_addr_regs(self):
        a = self.a
        a("v_mul_u32_u24 v129, 2560, v6")
        a("v_lshl_add_u32 v129, v7, 5, v129")
        a("v_lshlrev_b32 v131, 4, v0")
        a("v_mov_b32 v130, 0x7fffffff")
        a("v_cmp_gt_u32 vcc, 160, v0")
        a("s_nop 1")
        a("v_cndmask_b32 v130, v130, v131, vcc")

    def aset_back(self):
        a = self.a; T = S_T
        self.wo_lane_offsets()
        self.out_addr_regs()
        if self.exp_nobulk:
            a(f"s_lshl_b32 s{T+1}, s{S_H}, 7")
            a(f"s_add_u32 s{T+1}, s{T+1}, {WS_ML}")
            a("v_and_b32 v14, 15, v1")
            a("v_lshlrev_b32 v14, 3, v14")
            self.cf_check(132)
            l = self.poll_begin()
            a(f"buffer_load_dwordx2 v[116:117], v14, {srd('WS')}, s{T+1} offen sc1")
            a("s_waitcnt vmcnt(0)")
            a("v_max_u32 v15, v116, v117")
            a("v_cmp_eq_u32 vcc, -1, v15")
            a("s_nop 1")
            a("v_cndmask_b32 v15, 0, 1, vcc")
            a("s_sleep 4")
            self.poll_end(l, 15)
        self.skip_if(f"s_cmp_ge_u32 s{S_LI}, 12", "L_bbranch")
        WV = 20; WO = 68
        a(f"s_mul_i32 s{T}, s{S_W}, {96*12288}")
        a(f"s_mul_i32 s{T+1}, s{S_H}, 384")
        a(f"s_add_u32 s{T}, s{T}, s{T+1}")
        a(f"s_lshl_b32 s{T+1}, s{S_J4}, 7")
        a(f"s_add_u32 s{T}, s{T}, s{T+1}")
        for i in range(12):
            a(f"buffer_load_dwordx4 {vr(WV+4*i,4)}, v4, {srd('WUV')}, s{T} offen{self.NTB}")
            if i >= self.a_win: a(f"s_waitcnt vmcnt({self.a_win})")
            if i < 11: a(f"s_add_u32 s{T}, s{T}, 98304")
        a(f"s_mul_i32 s{T}, s{S_H}, 192")
        a(f"s_lshl_b32 s{T+1}, s{S_J4}, 6")
        a(f"s_add_u32 s{T}, s{T}, s{T+1}")
        a(f"s_mul_i32 s{T}, s{T}, 1280")
        for i in range(10):
            a(f"buffer_load_dwordx4 {vr(WO+4*i,4)}, v5, {srd('WO')}, s{T} offen{self.NTB}")
            if 12 + i >= self.a_win: a(f"s_waitcnt vmcnt({self.a_win})")
            a(f"s_add_u32 s{T}, s{T}, 7680")
        a("v_cmp_gt_u32 vcc, 4, v6")
        a("s_nop 1")
        a("v_cndmask_b32 v9, v8, v5, vcc")
        a(f"buffer_load_dwordx4 {vr(WO+40,4)}, v9, {srd('WO')}, s{T} offen{self.NTB}")
        for k in range(4): a(f"v_mov_b32 v{WO+44+k}, 0")
        self.stamp(4)
        a("v_cmp_le_u32 vcc, 24, v1")
        a("s_nop 1")
        a("v_cndmask_b32 v10, 0, 1, vcc")
        a("v_mul_u32_u24 v11, 24, v10")
        a("v_sub_u32 v11, v1, v11")
        a("v_mul_u32_u24 v12, 384, v10")
        a("v_lshl_add_u32 v12, v11, 4, v12")
        a(f"s_lshl_b32 s{T+2}, s{S_W}, 10")
        a(f"s_add_u32 s{T+2}, s{T+2}, {self.L_O}")
        a(f"v_add_u32 v13, s{T+2}, v12")
        a("v_cmp_gt_u32 vcc, 48, v1")
        a("v_lshlrev_b32 v16, 2, v2")
        a(f"v_add_u32 v16, s{T+2}, v16")
        a("v_cndmask_b32 v12, v8, v12, vcc")
        a(f"s_lshl_b32 s{T}, s{S_H}, 3")
        a(f"s_add_u32 s{T}, s{T}, s{S_W}")
        a(f"s_mul_i32 s{T}, s{T}, {16*384}")
        a(f"s_add_u32 s{T}, s{T}, {WS_OP}")
        a(f"s_lshl_b32 s{T+1}, s{S_H}, 7")
        a(f"s_add_u32 s{T+1}, s{T+1}, {WS_ML}")
        a("v_and_b32 v14, 15, v1")
        a("v_lshlrev_b32 v14, 3, v14")
        a("v_lshlrev_b32 v121, 2, v10")
        a("v_lshlrev_b32 v17, 5, v3")
        a("v_lshl_add_u32 v17, v2, 2, v17")
        a(f"s_lshl_b32 s{T+3}, s{S_W}, 8")
        a(f"v_add_u32 v17, s{T+3}, v17")
        a("v_lshlrev_b32 v18, 2, v6")
        a("v_lshlrev_b32 v172, 2, v1")
        a(f"v_add_u32 v173, {self.L_CB - 24 + 2}, v172")
        a(f"v_add_u32 v172, {self.L_CB}, v172")
        a(f"v_mov_b32 v174, {self.L_CB + 500}")
        a("v_cmp_gt_u32 vcc, 6, v1")
        a("s_nop 1")
        a("v_cndmask_b32 v173, v173, v174, vcc")
        a("s_waitcnt vmcnt(11)")
        self.preperm(WV, 6, 128)
        a("s_waitcnt vmcnt(0)")
        self.preperm(WO, 6, 128)
        self.stamp(5)
        self.cf_check(132)
        OPV = 132
        def e4_issue(i):
            if i == 8:
                a(f"buffer_load_dwordx2 v[116:117], v14, {srd('WS')}, s{T+1} offen sc1")
            else:
                so = T if i < 4 else T+2
                a(f"buffer_load_dwordx4 {vr(OPV+4*i,4)}, v12, {srd('WS')}, s{so} offen offset:{(i%4)*768} sc1")
        def e4_check(i):
            if i == 8:
                a("v_max_u32 v15, v116, v117")
            else:
                a(f"v_max3_u32 v15, v{OPV+4*i}, v{OPV+4*i+1}, v{OPV+4*i+2}")
                a(f"v_max_u32 v15, v15, v{OPV+4*i+3}")
            a("v_cmp_eq_u32 vcc, -1, v15")
        a(f"s_add_u32 s{T+2}, s{T}, 3072")
        if self.mlpoll:
            l = self.poll_begin()
            a(f"buffer_load_dwordx2 v[116:117], v14, {srd('WS')}, s{T+1} offen sc1")
            a("s_waitcnt vmcnt(0)")
            a("v_max_u32 v15, v116, v117")
            a("v_cmp_eq_u32 vcc, -1, v15")
            a("s_nop 1")
            a("v_cndmask_b32 v15, 0, 1, vcc")
            self.poll_end(l, 15)
            self.gpoll(8, e4_issue, e4_check)
        else:
            self.gpoll(9, e4_issue, e4_check)
        self.stamp(6)
        self.stamp_val(17, S_CNT)
        a("v_mov_b32 v118, v116")
        a("s_nop 1")
        for ctrl in ["quad_perm:[1,0,3,2]", "quad_perm:[2,3,0,1]", "row_half_mirror", "row_mirror"]:
            a(f"v_max_f32_dpp v118, v118, v118 {ctrl} row_mask:0xf bank_mask:0xf")
            a("s_nop 1")
        a("v_sub_f32 v119, v116, v118")
        a("v_exp_f32 v119, v119")
        a("s_nop 0")
        a("v_mul_f32 v120, v117, v119")
        WN = 164
        for i in range(8): a(f"ds_bpermute_b32 v{WN+i}, v121, v119 offset:{8*i}")
        for ctrl in ["quad_perm:[1,0,3,2]", "quad_perm:[2,3,0,1]", "row_half_mirror", "row_mirror"]:
            a(f"v_add_f32_dpp v120, v120, v120 {ctrl} row_mask:0xf bank_mask:0xf")
            a("s_nop 1")
        a("v_rcp_f32 v120, v120")
        a("s_waitcnt lgkmcnt(0)")
        for k in range(4): a(f"v_mul_f32 v{122+k}, v{WN}, v{OPV+k}")
        for i in range(1, 8):
            for k in range(4): a(f"v_fmac_f32 v{122+k}, v{WN+i}, v{OPV+4*i+k}")
        for k in range(4): a(f"v_mul_f32 v{122+k}, v{122+k}, v120")
        a("s_mov_b32 exec_hi, 0xffff")
        a("ds_write_b128 v13, v[122:125]")
        a("s_mov_b32 exec_hi, -1")
        a("s_waitcnt lgkmcnt(0)")
        OV = 132
        for i in range(12):
            a(f"ds_read2_b32 {vr(OV+2*i,2)}, v16 offset0:{8*i} offset1:{8*i+96}")
        ACC = 120
        for k in range(8): a(f"v_mov_b32 v{ACC+k}, 0")
        CO = 160
        for p in range(6):
            a(f"s_waitcnt lgkmcnt({10-2*p})")
            a(f"v_add_f32 v{OV+4*p}, v{OV+4*p}, v{OV+4*p+1}")
            a(f"v_add_f32 v{OV+4*p+2}, v{OV+4*p+2}, v{OV+4*p+3}")
            a(f"v_cvt_pk_bf16_f32 v{CO+p}, v{OV+4*p}, v{OV+4*p+2}")
        self.gemv_pairs(WV, 6, CO, ACC)
        self.treduce8(ACC, 128, 118)
        a(f"ds_write_b32 v17, v{ACC} offset:{self.L_C}")
        a("s_waitcnt lgkmcnt(0)")
        a("s_barrier")
        self.stamp(7)
        skip = a.newlabel("cx")
        self.skip_if(f"s_cmp_lg_u32 s{S_W}, 0", skip)
        a("v_lshlrev_b32 v13, 2, v1")
        for w in range(8): a(f"ds_read_b32 v{132+w}, v13 offset:{self.L_C+w*256}")
        a("s_waitcnt lgkmcnt(0)")
        a("v_add_f32 v132, v132, v133\nv_add_f32 v134, v134, v135\nv_add_f32 v136, v136, v137\nv_add_f32 v138, v138, v139")
        a("v_add_f32 v132, v132, v134\nv_add_f32 v136, v136, v138")
        a("v_add_f32 v132, v132, v136")
        a("v_cvt_pk_bf16_f32 v132, v132, v132")
        a("ds_write_b16 v172, v132")
        a("ds_write_b16 v173, v132")
        a("s_waitcnt lgkmcnt(0)")
        a.label(skip)
        for k in range(8): a(f"v_mov_b32 v{ACC+k}, 0")
        a("s_barrier")
        for p in range(6):
            a(f"ds_read_b32 v{CO+p}, v18 offset:{self.L_CB+48*p}")
        a("s_waitcnt lgkmcnt(0)")
        self.gemv_pairs(WO, 6, CO, ACC)
        self.out_reduce_publish(ACC, T+10)
        self.stamp(8)
        a("s_branch L_aend")

        a.label("L_bbranch")
        WG = 20; XB = 84; WD = 160
        a("v_lshlrev_b32 v19, 2, v6")
        a(f"s_lshl_b32 s{T}, s{S_X}, 2")
        a(f"s_add_u32 s{T}, s{T}, s{S_LI}")
        a(f"s_sub_u32 s{T}, s{T}, 12")
        a("v_mul_u32_u24 v10, 43, v1")
        a("v_lshrrev_b32 v10, 8, v10")
        a("v_mul_u32_u24 v11, 6, v10")
        a("v_sub_u32 v11, v1, v11")
        a("v_mul_u32_u24 v12, 3072, v10")
        a("v_lshl_add_u32 v12, v11, 4, v12")
        a("v_cmp_gt_u32 vcc, 60, v1")
        a("v_lshlrev_b32 v13, 1, v10")
        a("v_cndmask_b32 v12, v8, v12, vcc")
        a(f"s_and_b32 s{T+1}, s{S_W}, 3")
        a(f"s_mul_i32 s{T+2}, s{T+1}, 320")
        for i in range(16):
            a(f"buffer_load_ushort v{XB+i}, v13, {srd('X')}, s{T+2} offen offset:{20*i}")
        a(f"s_mul_i32 s{T+2}, s{T+1}, {160*3072}")
        a(f"s_mul_i32 s{T+3}, s{T}, 96")
        a(f"s_add_u32 s{T+2}, s{T+2}, s{T+3}")
        up = a.newlabel("up"); upd = a.newlabel("upd")
        self.skip_if(f"s_cmp_ge_u32 s{S_W}, 4", up)
        for i in range(16):
            a(f"buffer_load_dwordx4 {vr(WG+4*i,4)}, v12, {srd('WG')}, s{T+2} offen{self.NTB}")
            if i >= self.a_win: a(f"s_waitcnt vmcnt({self.a_win})")
            a(f"s_add_u32 s{T+2}, s{T+2}, 30720")
        a(f"s_branch {upd}")
        a.label(up)
        for i in range(16):
            a(f"buffer_load_dwordx4 {vr(WG+4*i,4)}, v12, {srd('WU')}, s{T+2} offen{self.NTB}")
            if i >= self.a_win: a(f"s_waitcnt vmcnt({self.a_win})")
            a(f"s_add_u32 s{T+2}, s{T+2}, 30720")
        a.label(upd)
        a(f"s_mul_i32 s{T+2}, s{T}, {48*1280}")
        for i in range(8):
            a(f"buffer_load_dwordx4 {vr(WD+4*i,4)}, v5, {srd('WD')}, s{T+2} offen{self.NTB}")
            if 16 + i >= self.a_win: a(f"s_waitcnt vmcnt({self.a_win})")
            a(f"s_add_u32 s{T+2}, s{T+2}, 7680")
        ACC = 120
        for k in range(8): a(f"v_mov_b32 v{ACC+k}, 0")
        for i in range(16):
            a(f"s_waitcnt vmcnt({8+15-i})")
            a(f"v_lshlrev_b32 v128, 16, v{XB+i}")
            for k in range(4): a(f"v_dot2c_f32_bf16 v{ACC+2*k}, v{WG+4*i+k}, v{XB+i}")
            for k in range(4): a(f"v_dot2c_f32_bf16 v{ACC+2*k+1}, v{WG+4*i+k}, v128")
        a(f"s_mul_i32 s{T+2}, s{S_W}, 1920")
        a("v_mul_u32_u24 v13, 192, v10")
        a("v_lshl_add_u32 v13, v11, 5, v13")
        a(f"v_add_u32 v13, s{T+2}, v13")
        a("s_mov_b32 exec_hi, 0x0fffffff")
        a(f"ds_write_b128 v13, {vr(ACC,4)} offset:{self.L_R}")
        a(f"ds_write_b128 v13, {vr(ACC+4,4)} offset:{self.L_R+16}")
        a("s_mov_b32 exec_hi, -1")
        a("s_waitcnt lgkmcnt(0)")
        a("s_barrier")
        skip = a.newlabel("bg")
        self.skip_if(f"s_cmp_ge_u32 s{S_W}, 2", skip)
        a("v_cmp_le_u32 vcc, 48, v0")
        a("v_mov_b32 v14, 7488")
        a("v_lshlrev_b32 v13, 2, v0")
        a("v_cndmask_b32 v14, 0, v14, vcc")
        a("v_add_u32 v13, v13, v14")
        a("v_min_u32 v13, 7868, v13")
        for j in range(40):
            a(f"ds_read_b32 v{20+j}, v13 offset:{self.L_R+j*192}")
            if j % 8 == 7: a("s_waitcnt lgkmcnt(0)")
        for j in range(1, 40): a(f"v_add_f32 v20, v20, v{20+j}")
        a("v_lshlrev_b32 v13, 2, v0")
        a(f"ds_write_b32 v13, v20 offset:{self.L_C}")
        a("s_waitcnt lgkmcnt(0)")
        a.label(skip)
        a("s_barrier")
        skip = a.newlabel("bh")
        self.skip_if(f"s_cmp_lg_u32 s{S_W}, 0", skip)
        a("v_lshlrev_b32 v13, 2, v1")
        a(f"ds_read_b32 v20, v13 offset:{self.L_C}")
        a(f"ds_read_b32 v21, v13 offset:{self.L_C+192}")
        a("s_waitcnt lgkmcnt(0)")
        a(f"v_mul_f32 v20, 0x{f32bits(-math.log2(math.e)):08x}, v20")
        a("v_exp_f32 v20, v20")
        a("s_nop 0")
        a("v_add_f32 v20, 1.0, v20")
        a("v_rcp_f32 v20, v20")
        a("s_nop 0")
        a("v_mul_f32 v20, v20, v21")
        a("v_cvt_pk_bf16_f32 v20, v20, v20")
        self.write_pairs(20, 13, 14, 48)
        a("s_waitcnt lgkmcnt(0)")
        a.label(skip)
        for k in range(8): a(f"v_mov_b32 v{ACC+k}, 0")
        a("s_waitcnt vmcnt(0)")
        self.preperm(WD, 4, 128)
        a("s_barrier")
        CO = 100
        for p in range(4):
            a(f"ds_read_b32 v{CO+p}, v19 offset:{self.L_CB+48*p}")
        a("s_waitcnt lgkmcnt(0)")
        self.gemv_pairs(WD, 4, CO, ACC)
        self.out_reduce_publish(ACC, T+10)
        self.stamp(8)
        a.label("L_aend")

    def bset_ids(self):
        a = self.a
        a(f"s_mov_b32 s{S_LB}, s{S_LI}")
        a(f"s_lshl_b32 s{S_BLK}, s{S_X}, 5")
        a(f"s_lshl_b32 s9, s{S_LB}, 1")
        a(f"s_add_u32 s{S_BLK}, s{S_BLK}, s9")
        a(f"s_lshl_b32 s{S_G}, s{S_X}, 1")
        a(f"s_lshr_b32 s9, s{S_LB}, 3")
        a(f"s_add_u32 s{S_G}, s{S_G}, s9")
        a(f"s_and_b32 s{S_S}, s{S_LB}, 7")

    def pv_lane_offsets(self):
        a = self.a
        for n in range(3):
            a(f"v_add_u32 v5, {64*n}, v1")
            a("v_mul_u32_u24 v6, 5462, v5")
            a("v_lshrrev_b32 v6, 16, v6")
            a("v_mul_u32_u24 v7, 12, v6")
            a("v_sub_u32 v7, v5, v7")
            a("v_mul_u32_u24 v6, 1536, v6")
            a(f"v_lshl_add_u32 v{self.PVO+n}, v7, 4, v6")

    def pv_dma(self, kp, ldsbase, nw, w0):
        a = self.a; T = S_T + 8
        per = 48 // nw; rows = 256 // nw
        a(f"s_sub_u32 s{T+2}, s{S_W}, {w0}")
        a(f"s_lshl_b32 s{T}, s{S_G}, 9")
        a(f"s_mul_i32 s{T+1}, s{T+2}, {rows}")
        a(f"s_add_u32 s{T}, s{T}, s{T+1}")
        if kp: a(f"s_add_u32 s{T}, s{T}, 256")
        a(f"s_mul_i32 s{T}, s{T}, 1536")
        a(f"s_mul_i32 s{T+1}, s{S_S}, 192")
        a(f"s_add_u32 s{T}, s{T}, s{T+1}")
        a(f"s_mul_i32 s{T+1}, s{T+2}, {per*1024}")
        a(f"s_add_u32 s{T+1}, s{T+1}, {ldsbase}")
        for n in range(per):
            a(f"s_add_u32 m0, s{T+1}, {n*1024}")
            if n % 3 == 0 and n > 0: a(f"s_add_u32 s{T}, s{T}, {16*1536}")
            else: a("s_nop 0")
            a(f"buffer_load_dwordx4 v{self.PVO+(n%3)}, {srd('CKV')}, s{T} offen{self.NTC} lds")
            if self.pv_win < 63: a(f"s_waitcnt vmcnt({self.pv_win})")

    def s_dma_prep(self):
        a = self.a
        a("v_mov_b32 v216, 0")
        a("v_mov_b32 v219, v1")
        a("v_cmp_le_u32 vcc, 32, v1")
        a("v_add_u32 v5, 64, v1")
        a("v_subrev_u32 v6, 32, v1")
        a("v_cndmask_b32 v217, 0, 1, vcc")
        a("v_cndmask_b32 v220, v5, v6, vcc")
        a("v_mov_b32 v218, 1")
        a("v_add_u32 v221, 32, v1")
        for b in range(3): a(f"v_mul_u32_u24 v{222+b}, 1536, v{216+b}")
        T = S_T + 8
        a(f"s_and_b32 s{T+2}, s{S_W}, 1")
        a(f"s_lshl_b32 s{T+2}, s{T+2}, 3")
        for aa in range(4):
            for b in range(3):
                n = 3*aa + b
                a(f"s_add_u32 s{T+4}, s{T+2}, {2*aa}")
                a(f"v_add_u32 v5, s{T+4}, v{216+b}")
                a(f"v_xor_b32 v5, v5, v{219+b}")
                a(f"v_lshl_add_u32 v{226+n}, v5, 4, v{222+b}")

    def s_dma(self):
        a = self.a; T = S_T + 8
        a(f"s_lshl_b32 s{T}, s{S_X}, 10")
        a(f"s_lshl_b32 s{T+1}, s{S_LB}, 6")
        a(f"s_add_u32 s{T}, s{T}, s{T+1}")
        a(f"s_lshl_b32 s{T+1}, s{S_W}, 3")
        a(f"s_add_u32 s{T}, s{T}, s{T+1}")
        a(f"s_mul_i32 s{T}, s{T}, 1536")
        a(f"s_mul_i32 s{T+3}, s{S_W}, 12288")
        a(f"s_add_u32 s{T+3}, s{T+3}, {self.L_S}")
        for n in range(12):
            a(f"s_add_u32 m0, s{T+3}, {n*1024}")
            if n % 3 == 0 and n > 0: a(f"s_add_u32 s{T}, s{T}, {2*1536}")
            else: a("s_nop 0")
            a(f"buffer_load_dwordx4 v{226+n}, {srd('CKV')}, s{T} offen{self.NTC} lds")
            if n >= self.s_win: a(f"s_waitcnt vmcnt({self.s_win})")
            if self.s_probe and n == self.s_probe-1: a(f"s_waitcnt vmcnt({self.s_probe-1})")

    def bset_clears(self):
        a = self.a; T = S_T + 8
        a("v_subrev_u32 v5, 384, v0")
        a("v_mov_b32 v76, -1\nv_mov_b32 v77, -1\nv_mov_b32 v78, -1\nv_mov_b32 v79, -1")
        a("v_lshlrev_b32 v6, 4, v5")
        a("v_mov_b32 v7, 0x7fffffff")
        a("v_cmp_gt_u32 vcc, 64, v5")
        a(f"s_mul_i32 s{T+2}, s{S_BLK}, {PBS}")
        a("v_cndmask_b32 v8, v7, v6, vcc")
        for base in (WS_PBG, WS_PBL):
            a(f"s_add_u32 s{T+3}, s{T+2}, {base}")
            a(f"buffer_store_dwordx4 v[76:79], v6, {srd('WS')}, s{T+3} offen sc1")
            a(f"buffer_store_dwordx4 v[76:79], v6, {srd('WS')}, s{T+3} offen offset:2048 sc1")
            a(f"s_add_u32 s{T+3}, s{T+3}, 4096")
            a(f"buffer_store_dwordx4 v[76:79], v8, {srd('WS')}, s{T+3} offen sc1")
        a(f"s_lshl_b32 s{T+5}, s{S_S}, 4")
        a(f"s_add_u32 s{T+5}, s{T+5}, s{S_G}")
        a(f"s_mul_i32 s{T+5}, s{T+5}, 384")
        a(f"s_add_u32 s{T+5}, s{T+5}, {WS_OP}")
        a(f"s_mov_b32 s{T+6}, 49152")
        for i in range(6):
            a(f"v_add_u32 v8, {128*i}, v5")
            a("v_mul_u32_u24 v9, 2731, v8")
            a("v_lshrrev_b32 v9, 16, v9")
            a("v_mul_u32_u24 v70, 24, v9")
            a("v_sub_u32 v70, v8, v70")
            a(f"v_mul_lo_u32 v9, v9, s{T+6}")
            a("v_lshl_add_u32 v9, v70, 4, v9")
            a(f"buffer_store_dwordx4 v[76:79], v9, {srd('WS')}, s{T+5} offen sc1")
        a("v_lshlrev_b32 v8, 7, v5")
        a("v_cmp_gt_u32 vcc, 32, v5")
        a(f"s_lshl_b32 s{T+5}, s{S_G}, 3")
        a(f"s_add_u32 s{T+5}, s{T+5}, {WS_ML}")
        a("v_cndmask_b32 v8, v7, v8, vcc")
        a(f"s_cmp_eq_u32 s{S_S}, 0")
        a(f"s_cselect_b32 s{T+5}, s{T+5}, 0x7fffff00")
        a(f"buffer_store_dwordx2 v[76:77], v8, {srd('WS')}, s{T+5} offen sc1")

    def bset_front(self):
        a = self.a; T = S_T
        XV = 10; W0 = 20; ACC = 60
        a(f"v_mov_b32 v5, {self.L_FLAG}")
        for k in range(4): a(f"v_mov_b32 v{6+k}, 0")
        a("ds_write_b128 v5, v[6:9]")
        a("ds_write_b128 v5, v[6:9] offset:16")
        skip = a.newlabel("p1l")
        self.skip_if(f"s_cmp_ge_u32 s{S_W}, 6", skip)
        a(f"s_cmp_ge_u32 s{S_W}, 3")
        a(f"s_cselect_b32 s{T}, 1, 0")
        a(f"s_mul_i32 s{T+1}, s{T}, 3")
        a(f"s_sub_u32 s{T+1}, s{S_W}, s{T+1}")
        a(f"s_mul_i32 s{T+2}, s{S_J4}, 160")
        a(f"s_mul_i32 s{T+3}, s{T}, 80")
        a(f"s_add_u32 s{T+2}, s{T+2}, s{T+3}")
        a(f"s_lshl_b32 s{T+3}, s{T+2}, 1")
        a("v_lshlrev_b32 v5, 1, v2")
        a(f"s_mul_i32 s{T+4}, s{T+2}, 12288")
        a(f"s_mul_i32 s{T+5}, s{S_H}, 384")
        a(f"s_add_u32 s{T+4}, s{T+4}, s{T+5}")
        a(f"s_lshl_b32 s{T+5}, s{T+1}, 7")
        a(f"s_add_u32 s{T+4}, s{T+4}, s{T+5}")
        for i in range(10):
            a(f"buffer_load_dwordx4 {vr(W0+4*i,4)}, v4, {srd('WQ')}, s{T+4} offen{self.NTF}")
            if i < 9: a(f"s_add_u32 s{T+4}, s{T+4}, 98304")
        a(f"v_add_u32 v9, s{T+3}, v5")
        a.label(skip)
        nox = a.newlabel("nox")
        self.skip_if(f"s_cmp_lg_u32 s{S_W}, 6", nox)
        a("v_lshlrev_b32 v8, 4, v1")
        a(f"buffer_load_dwordx4 v[20:23], v8, {srd('X')}, 0 offen")
        a(f"buffer_load_dwordx4 v[24:27], v8, {srd('X')}, 0 offen offset:1024")
        a.label(nox)
        self.bset_ids()
        self.pv_lane_offsets()
        self.s_dma_prep()
        nox2 = a.newlabel("nox2")
        self.skip_if(f"s_cmp_lg_u32 s{S_W}, 6", nox2)
        a("s_waitcnt vmcnt(0)")
        a(f"ds_write_b128 v8, v[20:23] offset:{self.L_X}")
        a(f"ds_write_b128 v8, v[24:27] offset:{self.L_X+1024}")
        a.label(nox2)
        a("s_waitcnt lgkmcnt(0)")
        a("s_barrier")
        ldr = a.newlabel("p1ldr"); j = a.newlabel("p1j")
        self.skip_if(f"s_cmp_ge_u32 s{S_W}, 6", ldr)
        a(f"s_lshl_b32 s{T+5}, s{S_H}, 3")
        a(f"s_lshl_b32 s{T+6}, s{S_J4}, 1")
        a(f"s_add_u32 s{T+5}, s{T+5}, s{T+6}")
        a(f"s_add_u32 s{T+5}, s{T+5}, s{T}")
        a(f"s_mul_i32 s{T+5}, s{T+5}, 1536")
        a(f"s_lshl_b32 s{T+6}, s{T+1}, 9")
        a(f"s_add_u32 s{T+5}, s{T+5}, s{T+6}")
        a(f"s_add_u32 s{T+6}, s{T+5}, {WS_QPG}")
        a(f"s_add_u32 s{T+5}, s{T+5}, {WS_QPL}")
        a("v_lshlrev_b32 v5, 6, v3")
        a("v_lshl_add_u32 v5, v2, 3, v5")
        for k in range(8): a(f"v_mov_b32 v{ACC+k}, 0")
        for i in range(10):
            a(f"ds_read_u16 v{XV+i}, v9 offset:{self.L_X+16*i}")
        a("s_waitcnt lgkmcnt(0)")
        a(f"s_add_u32 s{S_EP}, s{S_EP}, 1")
        for i in range(10):
            a(f"s_waitcnt vmcnt({9-i})")
            if i == 9: self.stamp(13)
            a(f"v_lshlrev_b32 v68, 16, v{XV+i}")
            for k in range(4): a(f"v_dot2c_f32_bf16 v{ACC+2*k}, v{W0+4*i+k}, v{XV+i}")
            for k in range(4): a(f"v_dot2c_f32_bf16 v{ACC+2*k+1}, v{W0+4*i+k}, v68")
        self.treduce8(ACC, 68, 69)
        a(f"v_mov_b32 v{ACC+1}, s{S_EP}")
        if self.local:
            a(f"buffer_store_dwordx2 {vr(ACC,2)}, v5, {srd('WS')}, s{T+5} offen")
        a(f"buffer_store_dwordx2 {vr(ACC,2)}, v5, {srd('WS')}, s{T+6} offen sc1")
        self.stamp(1)
        a(f"s_branch {j}")
        a.label(ldr)
        if not self.exp_noclear: self.bset_clears()
        a("s_waitcnt lgkmcnt(0)")
        a(f"s_add_u32 s{S_EP}, s{S_EP}, 1")
        a.label(j)
        a("s_barrier")
        self.s_dma()
        nocf = a.newlabel("nocf")
        self.skip_if(f"s_cmp_lt_u32 s{S_W}, 6", nocf)
        a("s_waitcnt vmcnt(12)")
        a(f"s_lshl_b32 s{T+13}, s2, 1")
        a(f"s_add_u32 s{T+13}, s{T+13}, s{S_W}")
        a(f"s_lshl_b32 s{T+13}, s{T+13}, 2")
        a(f"s_add_u32 s{T+13}, s{T+13}, {WS_CF - 24}")
        a(f"v_mov_b32 v5, s{S_EP}")
        a("v_mov_b32 v6, 0")
        a("s_mov_b64 exec, 1")
        a(f"buffer_store_dword v5, v6, {srd('WS')}, s{T+13} offen sc1")
        a("s_mov_b64 exec, -1")
        a.label(nocf)
        self.stamp(2)

    def bset_s_phase(self):
        a = self.a; T = S_T
        QA = 20; AF = 84; ACC = 180
        a("v_and_b32 v6, 31, v1")
        a("v_lshrrev_b32 v7, 5, v1")
        a("v_and_b32 v8, 15, v6")
        a("v_xor_b32 v8, v8, v7")
        a("v_mul_u32_u24 v6, 1536, v6")
        a(f"v_add_u32 v6, {self.L_S}, v6")
        a(f"s_mul_i32 s{T+2}, s{S_W}, 24")
        for i in range(12):
            a(f"s_add_u32 s{T+3}, s{T+2}, {2*i}")
            a(f"v_xor_b32 v9, s{T+3}, v8")
            a(f"v_lshl_add_u32 v{226+i}, v9, 4, v6")
        a(f"s_lshl_b32 s{T}, s{S_W}, 14")
        a(f"s_add_u32 s{T}, s{T}, {WS_QA}")
        a("v_lshlrev_b32 v5, 4, v1")
        for g in range(4): a(f"s_add_u32 s{T+9+g}, s{T}, {4096*g}")
        a("s_barrier")
        notS0 = a.newlabel("notS0")
        self.skip_if(f"s_cmp_ge_u32 s{S_W}, 4", notS0)
        for n in range(16):
            a(f"buffer_load_dwordx4 {vr(QA+4*n,4)}, v5, {srd('WS')}, s{T+9+n//4} offen offset:{(n%4)*1024} sc1")
        a("s_waitcnt vmcnt(16)")
        a.label(notS0)
        nw = a.newlabel("nw")
        self.skip_if(f"s_cmp_lt_u32 s{S_W}, 4", nw)
        a("s_waitcnt vmcnt(0)")
        a.label(nw)
        a("s_barrier")
        self.stamp(3)
        notS = a.newlabel("notS"); j4 = a.newlabel("j4")
        self.skip_if(f"s_cmp_ge_u32 s{S_W}, 4", notS)
        for i in range(12):
            a(f"ds_read_b128 {vr(AF+4*i,4)}, v{226+i}")
            a(f"ds_read_b128 {vr(AF+48+4*i,4)}, v{226+i} offset:49152")
            if i == 5: a("s_waitcnt lgkmcnt(0)")
        a("s_waitcnt lgkmcnt(0)")
        a("s_barrier")
        self.stamp(21)
        a(f"s_lshl_b32 s{T+2}, s{S_W}, 13")
        a(f"s_add_u32 s{T+2}, s{T+2}, {self.L_RED}")
        a(f"v_add_u32 v10, s{T+2}, v5")
        a(f"s_lshl_b32 s{T+2}, s{S_W}, 10")
        a(f"s_add_u32 s{T+2}, s{T+2}, {self.L_RED}")
        a(f"v_add_u32 v11, s{T+2}, v5")
        a("v_bfe_u32 v12, v1, 4, 1")
        a("v_lshlrev_b32 v12, 10, v12")
        a("v_and_b32 v9, 15, v1")
        a("v_lshl_add_u32 v12, v9, 4, v12")
        a("v_lshrrev_b32 v9, 5, v1")
        a("v_lshl_add_u32 v12, v9, 3, v12")
        a("v_and_b32 v13, 31, v1")
        a("v_lshlrev_b32 v13, 2, v13")
        a("v_mov_b32 v9, 0x7fffffff")
        a("v_cmp_gt_u32 vcc, 32, v1")
        a(f"s_mul_i32 s{T+4}, s{S_BLK}, {PBS}")
        a("v_cndmask_b32 v13, v9, v13, vcc")
        a(f"s_lshl_b32 s{T+3}, s{S_W}, 8")
        a(f"s_add_u32 s{T+5}, s{T+4}, s{T+3}")
        a(f"s_lshl_b32 s{T+3}, s{S_W}, 7")
        a(f"s_add_u32 s{T+6}, s{T+4}, s{T+3}")
        a(f"s_add_u32 s{T+6}, s{T+6}, 2048")
        def qa_issue(g):
            for k in range(4):
                n = 4*g + k
                a(f"buffer_load_dwordx4 {vr(QA+4*n,4)}, v5, {srd('WS')}, s{T+9+g} offen offset:{k*1024} sc1")
        def qa_check(g):
            a(f"v_xor_b32 v6, s{S_EP}, v{QA+16*g+3}")
            for k in range(1, 4):
                a(f"v_xor_b32 v7, s{S_EP}, v{QA+16*g+4*k+3}")
                a("v_or_b32 v6, v6, v7")
            a("v_cmp_ne_u32 vcc, 0, v6")
        self.gpoll(4, qa_issue, qa_check, first_issued=True)
        a(f"s_lshl_b32 s9, s{S_W}, 2")
        a(f"s_add_u32 s9, s9, {self.L_FLAG}")
        a("v_mov_b32 v6, s9")
        a("v_mov_b32 v7, 1")
        a("ds_write_b32 v6, v7")
        self.stamp(4)
        self.stamp_val(16, S_CNT)
        for sg in range(4):
            for f in range(3): a(f"v_mov_b32 v{QA+(sg*4+f)*4+3}, v{QA+(sg*4+3)*4+f}")
        a("s_nop 0")
        for i in range(12):
            sg, f = i // 3, i % 3
            B = QA + (sg*4+f)*4
            for kb in range(2):
                c = "0" if i == 0 else vr(ACC+16*kb, 16)
                a(f"v_mfma_f32_32x32x16_bf16 {vr(ACC+16*kb,16)}, {vr(AF+48*kb+4*i,4)}, {vr(B,4)}, {c}")
        noep = a.newlabel("noep")
        a("s_lshl_b32 s9, s2, 3")
        a(f"s_add_u32 s9, s9, s{S_W}")
        self.skip_if(f"s_cmp_lg_u32 s9, {127*8}", noep)
        a(f"v_mov_b32 v6, s{S_EP}")
        a("v_mov_b32 v7, 0")
        a("s_mov_b64 exec, 1")
        a(f"buffer_store_dword v6, v7, {srd('WS')}, 0 offen sc1")
        a("s_mov_b64 exec, -1")
        a.label(noep)
        a("s_nop 7")
        for q in range(4): a(f"ds_write_b128 v10, {vr(ACC+4*q,4)} offset:{q*1024}")
        a("s_nop 3")
        for q in range(4): a(f"ds_write_b128 v10, {vr(ACC+16+4*q,4)} offset:{(4+q)*1024}")
        a("s_waitcnt lgkmcnt(0)")
        self.stamp(8)
        a(f"s_lshl_b32 s9, s{S_W}, 2")
        a(f"s_add_u32 s9, s9, {self.L_FLAG+16}")
        a("v_mov_b32 v6, s9")
        a("v_mov_b32 v7, 1")
        a("ds_write_b32 v6, v7")
        a(f"v_mov_b32 v6, {self.L_FLAG+16}")
        l = self.poll_begin()
        a("ds_read_b128 v[20:23], v6")
        a("s_waitcnt lgkmcnt(0)")
        a("v_and_b32 v20, v20, v21")
        a("v_and_b32 v22, v22, v23")
        a("v_and_b32 v20, v20, v22")
        a("v_xor_b32 v20, 1, v20")
        self.poll_end(l, 20)
        R = 20
        for src in range(4):
            for kb in range(2):
                a(f"ds_read_b128 {vr(R+(src*2+kb)*4,4)}, v11 offset:{src*8192+kb*4096}")
        a(f"s_mov_b32 s{T+3}, 0x{f32bits(192**-0.5*math.log2(math.e)):08x}")
        a("s_waitcnt lgkmcnt(4)")
        for k in range(8): a(f"v_add_f32 v{R+k}, v{R+k}, v{R+8+k}")
        a("s_waitcnt lgkmcnt(0)")
        for k in range(8): a(f"v_add_f32 v{R+16+k}, v{R+16+k}, v{R+24+k}")
        for k in range(8): a(f"v_add_f32 v{R+k}, v{R+k}, v{R+16+k}")
        for k in range(8): a(f"v_mul_f32 v{R+k}, s{T+3}, v{R+k}")
        for kb in range(2):
            a(f"v_max3_f32 v{R+8+kb}, v{R+kb*4}, v{R+kb*4+1}, v{R+kb*4+2}")
        for kb in range(2):
            a(f"v_max_f32 v{R+8+kb}, v{R+8+kb}, v{R+kb*4+3}")
        a(f"v_mov_b32 v{R+10}, v{R+8}")
        a(f"v_mov_b32 v{R+11}, v{R+9}")
        a("s_nop 1")
        a(f"v_permlane32_swap_b32 v{R+8}, v{R+10}")
        a(f"v_permlane32_swap_b32 v{R+9}, v{R+11}")
        a("s_nop 1")
        a(f"v_max_f32 v{R+8}, v{R+8}, v{R+10}")
        a(f"v_max_f32 v{R+9}, v{R+9}, v{R+11}")
        a(f"v_ceil_f32 v{R+8}, v{R+8}")
        a(f"v_ceil_f32 v{R+9}, v{R+9}")
        for kb in range(2):
            for r in range(4): a(f"v_sub_f32 v{R+kb*4+r}, v{R+kb*4+r}, v{R+8+kb}")
        for k in range(8): a(f"v_exp_f32 v{R+k}, v{R+k}")
        a(f"v_min_u32 v{R+8}, 0xfffffffe, v{R+8}")
        a(f"v_min_u32 v{R+9}, 0xfffffffe, v{R+9}")
        P = R + 12
        for kb in range(2):
            a(f"v_cvt_pk_bf16_f32 v{P+kb*2}, v{R+kb*4}, v{R+kb*4+1}")
            a(f"v_cvt_pk_bf16_f32 v{P+kb*2+1}, v{R+kb*4+2}, v{R+kb*4+3}")
        for k in range(4): a(f"v_and_b32 v{P+k}, 0x7fff7fff, v{P+k}")
        paths = ([(WS_PBL, "")] if self.local else []) + [(WS_PBG, " sc1")]
        for base, fl in paths:
            a(f"s_add_u32 s{T+7}, s{T+5}, {base}")
            a(f"s_add_u32 s{T+8}, s{T+6}, {base}")
            a(f"buffer_store_dwordx2 {vr(P,2)}, v12, {srd('WS')}, s{T+7} offen{fl}")
            a(f"buffer_store_dwordx2 {vr(P+2,2)}, v12, {srd('WS')}, s{T+7} offen offset:{PBS}{fl}")
            a(f"buffer_store_dword v{R+8}, v13, {srd('WS')}, s{T+8} offen{fl}")
            a(f"buffer_store_dword v{R+9}, v13, {srd('WS')}, s{T+8} offen offset:{PBS}{fl}")
        self.stamp(5)
        a("s_barrier")
        self.stamp(14)
        self.pv_read_frags(self.L_S)
        a(f"s_branch {j4}")
        a.label(notS)
        a("s_barrier")
        a(f"v_mov_b32 v5, {self.L_FLAG}")
        l = self.poll_begin()
        a("ds_read_b128 v[20:23], v5")
        a("s_waitcnt lgkmcnt(0)")
        a("v_and_b32 v20, v20, v21")
        a("v_and_b32 v22, v22, v23")
        a("v_and_b32 v20, v20, v22")
        a("v_xor_b32 v20, 1, v20")
        self.poll_end(l, 20)
        self.stamp(19)
        self.pv_dma(0, self.L_PA, 4, 4)
        self.pv_dma(1, self.L_S, 4, 4)
        self.stamp(20)
        nocf = a.newlabel("nocf")
        self.skip_if(f"s_cmp_lg_u32 s{S_W}, 4", nocf)
        self.cf_check(20)
        a.label(nocf)
        a("s_waitcnt vmcnt(0)")
        a("s_barrier")
        self.stamp(14)
        self.pv_read_frags(self.L_PA)
        a.label(j4)

    def pv_read_frags(self, base):
        a = self.a; T = S_T + 8; AF = 84
        a("v_lshrrev_b32 v6, 4, v1")
        a("v_and_b32 v7, 15, v1")
        a("v_lshrrev_b32 v8, 2, v7")
        a("v_lshl_add_u32 v8, v6, 3, v8")
        a("v_mul_u32_u24 v8, 192, v8")
        a("v_and_b32 v7, 3, v7")
        a("v_lshl_add_u32 v8, v7, 3, v8")
        a(f"s_lshr_b32 s{T}, s{S_W}, 1")
        a(f"s_and_b32 s{T}, s{T}, 1")
        a(f"s_mul_i32 s{T}, s{T}, 96")
        a(f"s_add_u32 s{T}, s{T}, {base}")
        a(f"v_add_u32 v8, s{T}, v8")
        cnt = 0
        for bb in range(8):
            for ct in range(3):
                r = AF + (bb*3+ct)*4; off = bb*6144 + ct*32
                a(f"ds_read_b64_tr_b16 {vr(r,2)}, v8 offset:{off}")
                a(f"ds_read_b64_tr_b16 {vr(r+2,2)}, v8 offset:{off+768}")
                cnt += 2
                if cnt % 12 == 0: a("s_waitcnt lgkmcnt(6)")

    def bset_pv_phase(self):
        a = self.a; T = S_T
        AF = 84; P = 20; MI = 52; DL = 60; ACC = 180; LA = 192; ON = 196
        a(f"s_cmp_lt_u32 s{S_W}, 4")
        a(f"s_cselect_b32 s{T}, 8, 0")
        a(f"s_lshl_b32 s{T+1}, s{S_G}, 4")
        a(f"s_add_u32 s{T+1}, s{T+1}, s{T}")
        a(f"s_and_b32 s{T+2}, s{S_W}, 1")
        a(f"s_mul_i32 s{T+3}, s{T+1}, {PBS}")
        a(f"s_lshl_b32 s{T+4}, s{T+2}, 10")
        a(f"s_add_u32 s{T+3}, s{T+3}, s{T+4}")
        a(f"s_add_u32 s{T+4}, s{T+3}, {WS_PBG}")
        a(f"s_add_u32 s{T+3}, s{T+3}, {WS_PBL}")
        a("v_lshlrev_b32 v5, 4, v1")
        a("v_and_b32 v6, 15, v1")
        a("v_lshlrev_b32 v6, 2, v6")
        a("v_lshrrev_b32 v7, 4, v1")
        a("v_lshl_add_u32 v6, v7, 7, v6")
        a(f"s_mul_i32 s{T+5}, s{T+2}, 960")
        a(f"s_sub_u32 s{T+5}, 2048, s{T+5}")
        a(f"v_add_u32 v6, s{T+5}, v6")
        for k in range(4): a(f"v_mov_b32 v{ON+k}, 0x3f803f80")
        a("v_and_b32 v14, 15, v1")
        a(f"s_mov_b32 s{T+5}, 49152")
        a(f"v_mul_lo_u32 v15, v14, s{T+5}")
        a("v_lshl_add_u32 v15, v7, 4, v15")
        a(f"s_mul_i32 s{T+5}, s{T+2}, {16*49152}")
        a(f"s_lshl_b32 s{T+6}, s{S_S}, 4")
        a(f"s_add_u32 s{T+6}, s{T+6}, s{S_G}")
        a(f"s_mul_i32 s{T+6}, s{T+6}, 384")
        a(f"s_add_u32 s{T+5}, s{T+5}, s{T+6}")
        a(f"s_lshr_b32 s{T+6}, s{S_W}, 1")
        a(f"s_and_b32 s{T+6}, s{T+6}, 1")
        a(f"s_mul_i32 s{T+7}, s{T+6}, 192")
        a(f"s_add_u32 s{T+5}, s{T+5}, s{T+7}")
        a(f"s_add_u32 s{T+5}, s{T+5}, {WS_OP}")
        a("v_lshlrev_b32 v14, 7, v14")
        a("v_mov_b32 v16, 0x7fffffff")
        a("v_cmp_gt_u32 vcc, 16, v1")
        a(f"s_lshl_b32 s{T+8}, s{T+2}, 11")
        a(f"s_lshl_b32 s{T+7}, s{S_G}, 3")
        a(f"s_add_u32 s{T+8}, s{T+8}, s{T+7}")
        a(f"s_add_u32 s{T+8}, s{T+8}, {WS_ML}")
        a("v_cndmask_b32 v14, v16, v14, vcc")
        a(f"s_or_b32 s{T+7}, s{T+6}, s{S_S}")
        a(f"s_cmp_eq_u32 s{T+7}, 0")
        a(f"s_cselect_b32 s{T+8}, s{T+8}, 0x7fffff00")
        a(f"s_and_b32 s{T+9}, s{S_W}, 3")
        a(f"s_lshl_b32 s{T+9}, s{T+9}, 12")
        a(f"s_add_u32 s{T+9}, s{T+9}, {self.L_PR}")
        a(f"v_add_u32 v17, s{T+9}, v5")
        def p_pre():
            if self.local:
                a(f"s_and_b32 s9, s{S_CNT}, {self.lperiod-1}")
                a(f"s_cmp_eq_u32 s9, {self.lperiod-1}")
                a(f"s_cselect_b32 s{S_PB}, s{T+4}, s{T+3}")
            else:
                a(f"s_mov_b32 s{S_PB}, s{T+4}")
        def p_issue(bb):
            a(f"s_add_u32 s9, s{S_PB}, {bb*PBS}")
            a(f"buffer_load_dwordx4 {vr(P+4*bb,4)}, v5, {srd('WS')}, s9 offen sc1")
            a(f"buffer_load_dword v{MI+bb}, v6, {srd('WS')}, s9 offen sc1")
        def p_check(bb):
            a(f"v_or3_b32 v7, v{P+4*bb}, v{P+4*bb+1}, v{P+4*bb+2}")
            a(f"v_or_b32 v7, v7, v{P+4*bb+3}")
            a("v_and_b32 v7, 0x80008000, v7")
            a(f"v_cmp_eq_u32 vcc, -1, v{MI+bb}")
            a("s_nop 1")
            a("v_cndmask_b32 v8, 0, 1, vcc")
            a("v_or_b32 v7, v7, v8")
            a("v_cmp_ne_u32 vcc, 0, v7")
        a("s_waitcnt lgkmcnt(0)")
        self.stamp(15)
        self.gpoll(8, p_issue, p_check, pre=p_pre)
        self.stamp(6)
        self.stamp_val(17, S_CNT)
        a(f"v_max3_f32 v9, v{MI}, v{MI+1}, v{MI+2}")
        a(f"v_max3_f32 v9, v9, v{MI+3}, v{MI+4}")
        a(f"v_max3_f32 v9, v9, v{MI+5}, v{MI+6}")
        a(f"v_max_f32 v9, v9, v{MI+7}")
        a("v_mov_b32 v10, v9")
        a("s_nop 1")
        a("v_permlane16_swap_b32 v9, v10")
        a("s_nop 1")
        a("v_max_f32 v9, v9, v10")
        a("v_mov_b32 v10, v9")
        a("s_nop 1")
        a("v_permlane32_swap_b32 v9, v10")
        a("s_nop 1")
        a("v_max_f32 v9, v9, v10")
        a(f"s_mov_b32 s{T+10}, 0x437f0000")
        a(f"s_mov_b32 s{T+11}, 0x00800080")
        for bb in range(8): a(f"v_sub_f32 v{DL+bb}, v9, v{MI+bb}")
        for bb in range(8): a(f"v_min_f32 v{DL+bb}, s{T+10}, v{DL+bb}")
        for bb in range(8): a(f"v_cvt_u32_f32 v{DL+bb}, v{DL+bb}")
        for bb in range(8): a(f"v_mul_u32_u24 v{DL+bb}, s{T+11}, v{DL+bb}")
        for k in range(4): a(f"v_pk_sub_u16 v{P+k}, v{P+k}, v{DL} clamp")
        for bb in range(8):
            if bb < 7:
                for k in range(4): a(f"v_pk_sub_u16 v{P+4*(bb+1)+k}, v{P+4*(bb+1)+k}, v{DL+bb+1} clamp")
            else:
                a("s_nop 1")
            for ct in range(3):
                c = "0" if bb == 0 else vr(ACC+4*ct, 4)
                a(f"v_mfma_f32_16x16x32_bf16 {vr(ACC+4*ct,4)}, {vr(AF+(bb*3+ct)*4,4)}, {vr(P+4*bb,4)}, {c}")
            c = "0" if bb == 0 else vr(LA, 4)
            a(f"v_mfma_f32_16x16x32_bf16 {vr(LA,4)}, {vr(ON,4)}, {vr(P+4*bb,4)}, {c}")
        a("s_nop 7")
        self.stamp(11)
        kp1 = a.newlabel("kp1")
        self.skip_if(f"s_cmp_lt_u32 s{S_W}, 4", kp1)
        a(f"v_mov_b32 v{LA+1}, v9")
        for ct in range(3): a(f"ds_write_b128 v17, {vr(ACC+4*ct,4)} offset:{ct*1024}")
        a(f"ds_write_b128 v17, {vr(LA,4)} offset:3072")
        a("s_waitcnt lgkmcnt(0)")
        a.label(kp1)
        a("s_barrier")
        self.stamp(12)
        fin = a.newlabel("pvfin")
        self.skip_if(f"s_cmp_ge_u32 s{S_W}, 4", fin)
        O = 20
        for k in range(4): a(f"ds_read_b128 {vr(O+4*k,4)}, v17 offset:{k*1024}")
        a("s_waitcnt lgkmcnt(0)")
        a(f"v_max_f32 v10, v9, v{O+13}")
        a("v_sub_f32 v11, v9, v10")
        a(f"v_sub_f32 v12, v{O+13}, v10")
        a("v_exp_f32 v11, v11")
        a("v_exp_f32 v12, v12")
        a("s_nop 0")
        for k in range(12): a(f"v_mul_f32 v{ACC+k}, v{ACC+k}, v11")
        for k in range(12): a(f"v_fmac_f32 v{ACC+k}, v{O+k}, v12")
        for k in range(12): a(f"v_min_u32 v{ACC+k}, 0xfffffffe, v{ACC+k}")
        if self.exp_linear:
            a(f"s_lshl_b32 s{T+5}, s{S_G}, 3")
            a(f"s_add_u32 s{T+5}, s{T+5}, s{S_S}")
            a(f"s_lshl_b32 s{T+5}, s{T+5}, 2")
            a(f"s_add_u32 s{T+5}, s{T+5}, s{S_W}")
            a(f"s_mul_i32 s{T+5}, s{T+5}, 3072")
            a(f"s_add_u32 s{T+5}, s{T+5}, {WS_OP}")
            for ct in range(3):
                a(f"buffer_store_dwordx4 {vr(ACC+4*ct,4)}, v5, {srd('WS')}, s{T+5} offen offset:{ct*1024} sc1")
        else:
          for ct in range(3):
            a(f"buffer_store_dwordx4 {vr(ACC+4*ct,4)}, v15, {srd('WS')}, s{T+5} offen offset:{ct*64} sc1")
        a(f"v_mul_f32 v{LA}, v{LA}, v11")
        a(f"v_fmac_f32 v{LA}, v{O+12}, v12")
        a(f"v_min_u32 v11, 0xfffffffe, v{LA}")
        a("v_min_u32 v10, 0xfffffffe, v10")
        a(f"buffer_store_dwordx2 v[10:11], v14, {srd('WS')}, s{T+8} offen sc1")
        a.label(fin)
        self.stamp(7)

    def bset_final(self):
        a = self.a; T = S_T
        self.skip_if(f"s_cmp_ge_u32 s{S_LB}, 5", "L_bend")
        a("v_lshlrev_b32 v5, 2, v1")
        for i in range(5):
            a(f"buffer_load_dword v{20+i}, v5, {srd('X')}, 0 offen offset:{256*i}")
            a(f"buffer_load_dword v{25+i}, v5, {srd('GW')}, 0 offen offset:{256*i}")
        a("v_mov_b32 v30, 0")
        a("s_waitcnt vmcnt(0)")
        for i in range(5): a(f"v_dot2c_f32_bf16 v30, v{20+i}, v{25+i}")
        a("s_nop 2")
        for ctrl in ["quad_perm:[1,0,3,2]", "quad_perm:[2,3,0,1]", "row_half_mirror", "row_mirror"]:
            a(f"v_add_f32_dpp v30, v30, v30 {ctrl} row_mask:0xf bank_mask:0xf")
            a("s_nop 1")
        a("v_mov_b32 v31, v30")
        a("s_nop 1")
        a("v_permlane16_swap_b32 v30, v31")
        a("s_nop 1")
        a("v_add_f32 v30, v30, v31")
        a("v_mov_b32 v31, v30")
        a("s_nop 1")
        a("v_permlane32_swap_b32 v30, v31")
        a("s_nop 1")
        a("v_add_f32 v30, v30, v31")
        a(f"v_mul_f32 v30, 0x{f32bits(-math.log2(math.e)):08x}, v30")
        a("v_exp_f32 v30, v30")
        a("s_nop 0")
        a("v_add_f32 v30, 1.0, v30")
        a("v_rcp_f32 v30, v30")
        a("s_nop 0")
        a("v_sub_f32 v31, 1.0, v30")
        a("v_cmp_le_u32 vcc, 48, v1")
        a("s_nop 1")
        a("v_cndmask_b32 v30, v30, v31, vcc")
        a(f"s_mul_i32 s{T}, s{S_X}, 5")
        a(f"s_add_u32 s{T}, s{T}, s{S_LB}")
        a(f"s_lshl_b32 s{T+1}, s{T}, 6")
        a(f"s_add_u32 s{T+1}, s{T+1}, {WS_OUTP}")
        a("v_lshrrev_b32 v6, 2, v0")
        a("v_mul_u32_u24 v6, 2560, v6")
        a("v_and_b32 v7, 3, v0")
        a("v_lshl_add_u32 v6, v7, 4, v6")
        a("v_and_b32 v8, 3, v1")
        a("v_lshlrev_b32 v8, 2, v8")
        a("v_bfe_u32 v9, v1, 5, 1")
        a("v_lshl_add_u32 v8, v9, 1, v8")
        a("v_bfe_u32 v9, v1, 4, 1")
        a("v_add_u32 v8, v8, v9")
        a("v_lshlrev_b32 v8, 2, v8")
        a(f"s_lshl_b32 s{T+2}, s{S_W}, 6")
        a(f"v_add_u32 v10, s{T+2}, v8")
        a("v_and_b32 v11, 15, v1")
        a("v_lshlrev_b32 v12, 2, v11")
        a("v_lshlrev_b32 v11, 1, v11")
        a("v_mov_b32 v9, 0x7fffffff")
        a("v_cmp_gt_u32 vcc, 16, v1")
        a(f"s_lshl_b32 s{T+2}, s{T}, 5")
        a("v_cndmask_b32 v11, v9, v11, vcc")
        l = self.poll_begin()
        a(f"buffer_load_dwordx4 v[32:35], v6, {srd('WS')}, s{T+1} offen sc1")
        a("s_waitcnt vmcnt(0)")
        a("v_max3_u32 v8, v32, v33, v34")
        a("v_max_u32 v8, v8, v35")
        a("v_cmp_eq_u32 vcc, -1, v8")
        a("s_nop 1")
        a("v_cndmask_b32 v8, 0, 1, vcc")
        self.poll_end(l, 8)
        self.stamp(9)
        self.stamp_val(18, S_CNT)
        for k in range(4): a(f"v_mul_f32 v{32+k}, v{32+k}, v30")
        a("s_nop 1")
        a("v_permlane32_swap_b32 v32, v34")
        a("v_permlane32_swap_b32 v33, v35")
        a("s_nop 1")
        a("v_add_f32 v32, v32, v34")
        a("v_add_f32 v33, v33, v35")
        a("s_nop 1")
        a("v_permlane16_swap_b32 v32, v33")
        a("s_nop 1")
        a("v_add_f32 v32, v32, v33")
        a("s_nop 1")
        a("v_add_f32_dpp v32, v32, v32 row_ror:8 row_mask:0xf bank_mask:0xf")
        a("s_nop 1")
        a("v_add_f32_dpp v32, v32, v32 row_ror:4 row_mask:0xf bank_mask:0xf")
        a(f"ds_write_b32 v10, v32 offset:{self.L_F}")
        a("s_waitcnt lgkmcnt(0)")
        a("s_barrier")
        self.skip_if(f"s_cmp_lg_u32 s{S_W}, 0", "L_bend")
        for w in range(8): a(f"ds_read_b32 v{40+w}, v12 offset:{self.L_F+w*64}")
        a("s_waitcnt lgkmcnt(0)")
        a("v_add_f32 v40, v40, v41\nv_add_f32 v42, v42, v43\nv_add_f32 v44, v44, v45\nv_add_f32 v46, v46, v47")
        a("v_add_f32 v40, v40, v42\nv_add_f32 v44, v44, v46")
        a("v_add_f32 v40, v40, v44")
        a("v_cvt_pk_bf16_f32 v40, v40, v40")
        a(f"buffer_store_short v40, v11, {srd('OUT')}, s{T+2} offen")
        self.stamp(10)
        a.label("L_bend")

    def build(self):
        a = self.a
        self.prologue()
        self.aset_front()
        self.aset_back()
        self.stamp_flush()
        a("s_branch L_exit")
        a.label("L_bset")
        self.bset_front()
        self.bset_s_phase()
        self.bset_pv_phase()
        self.bset_final()
        self.stamp_flush()
        a.label("L_exit")
        a("s_endpgm")
        hdr = f"""; generated by dev/gen2.py
; @launch grid=(256,1,1) block=(512,1,1) lds=163840
.amdgcn_target "amdgcn-amd-amdhsa--gfx950"
.text
.globl {NAME}_kernel
.p2align 8
.type {NAME}_kernel,@function
{NAME}_kernel:
"""
        ftr = f""".section .rodata,"a"
.p2align 6
.amdhsa_kernel {NAME}_kernel
  .amdhsa_next_free_vgpr 256
  .amdhsa_next_free_sgpr 102
  .amdhsa_accum_offset 256
  .amdhsa_group_segment_fixed_size 0
  .amdhsa_kernarg_size 112
  .amdhsa_user_sgpr_count 2
  .amdhsa_user_sgpr_kernarg_segment_ptr 1
  .amdhsa_system_sgpr_workgroup_id_x 1
.end_amdhsa_kernel
"""
        return hdr + a.text() + ftr

if __name__ == "__main__":
    out = sys.argv[1] if len(sys.argv) > 1 else "k.s"
    kw = {}
    for arg in sys.argv[2:]:
        if arg == "--stamps": kw["stamps"] = True
        elif arg.startswith("--"):
            k, v = arg[2:].split("="); kw[k] = int(v)
    open(out, "w").write(Gen(**kw).build())
```

```python
import sys, math, struct

NAME = "gated_mix__compressed_kv_cla__glu_gated_glu__decode"

WS_EPOCH = 0
WS_CF    = 0x400
WS_QA    = 0x10000
WS_QPG   = 0x20000
WS_QPL   = 0x80000
WS_PBG   = 0x100000
WS_PBL   = 0x1A0000
WS_ML    = 0x240000
WS_OUTP  = 0x250000
WS_OP    = 0x2A0000
WS_ST    = 0x440000
WS_SIZE  = 0x480000
PBS = 2560

S_W, S_X, S_LI, S_H, S_J4, S_EP = 3, 4, 5, 6, 7, 8
S_LB, S_BLK, S_G, S_S = 10, 11, 12, 13
S_WSCF = 14
SRD = dict(X=16, CKV=20, WQ=24, WUK=28, WUV=32, WO=36, WG=44, WU=48, WD=52, GW=56, OUT=60, WS=64)
SRD_SIZE = dict(X=1280, CKV=12582912, WQ=7864320, WUK=9437184, WUV=9437184, WO=7864320,
                WG=1966080, WU=1966080, WD=1966080, GW=1280, OUT=1280, WS=WS_SIZE)
KARG = dict(X=0, CKV=8, WQ=16, WUK=24, WUV=32, WO=40, WG=56, WU=64, WD=72, GW=80, OUT=88, WS=104)
S_M8 = 72
S_T = 74
S_CNT = 96
S_PB = 97
S_PM = 15
S_STAMP = 98
POLL_LIMIT = 100000

class Asm:
    def __init__(self):
        self.L = []; self.uid = 0
    def __call__(self, s):
        for line in s.strip("\n").split("\n"):
            self.L.append("    " + line.strip())
    def label(self, n): self.L.append(n + ":")
    def newlabel(self, base):
        self.uid += 1
        return f"L_{base}_{self.uid}"
    def text(self): return "\n".join(self.L) + "\n"

def srd(n):
    b = SRD[n]; return f"s[{b}:{b+3}]"
def vr(b, n=1):
    return f"v{b}" if n == 1 else f"v[{b}:{b+n-1}]"
def f32bits(x):
    return struct.unpack("<I", struct.pack("<f", x))[0]

class Gen:
    def __init__(self, stamps=False, code_pf=0, tlb_warm=0, tlb_shift=21, nt_front=False, nt_ckv=False, nt_back=False, local=True, lperiod=8, a_delay=1, qa_ack=1, exp_linear=0, a_win=63, s_win=63, pv_win=63, mlpoll=1, exp_nobulk=0, a_probe=0, s_probe=0, exp_noclear=0, exp_nowuk=0):
        self.a = Asm()
        self.stamps = stamps
        self.NTF = " nt" if nt_front else ""
        self.NTC = " nt" if nt_ckv else ""
        self.NTB = " nt" if nt_back else ""
        self.local = local
        self.a_delay = a_delay
        self.qa_ack = qa_ack
        self.code_pf = code_pf
        self.tlb_warm = tlb_warm; self.tlb_shift = tlb_shift
        self.exp_noclear = exp_noclear; self.exp_nowuk = exp_nowuk
        self.a_probe = a_probe; self.s_probe = s_probe
        self.exp_nobulk = exp_nobulk
        self.a_win = a_win; self.s_win = s_win; self.pv_win = pv_win; self.mlpoll = mlpoll
        self.exp_linear = exp_linear
        self.lperiod = lperiod
        self.L_Q = 0; self.L_QS = 512; self.L_F = 3072; self.L_FLAG = 2048; self.L_X = 4096
        self.L_S = 8192; self.L_PA = 106496; self.L_RED = 57344; self.L_PR = 90112
        self.L_O = 4096; self.L_C = 12288; self.L_CB = 14336; self.L_R = 16384
        self.PVO = 212

    def stamp(self, idx):
        if not self.stamps: return
        a = self.a
        a(f"s_memrealtime s[{S_STAMP}:{S_STAMP+1}]")
        a("s_waitcnt lgkmcnt(0)")
        a(f"v_writelane_b32 v255, s{S_STAMP}, {idx}")
    def stamp_val(self, idx, sreg):
        if not self.stamps: return
        self.a(f"s_add_u32 s9, s{sreg}, 1")
        self.a(f"v_writelane_b32 v255, s9, {idx}")
    def stamp_flush(self):
        if not self.stamps: return
        a = self.a
        a(f"s_lshl_b32 s{S_T+20}, s2, 3")
        a(f"s_add_u32 s{S_T+20}, s{S_T+20}, s{S_W}")
        a(f"s_lshl_b32 s{S_T+20}, s{S_T+20}, 7")
        a(f"s_add_u32 s{S_T+20}, s{S_T+20}, {WS_ST}")
        a("v_lshlrev_b32 v252, 2, v1")
        a("s_mov_b32 exec_lo, -1")
        a("s_mov_b32 exec_hi, 0")
        a(f"buffer_store_dword v255, v252, {srd('WS')}, s{S_T+20} offen")
        a("s_mov_b64 exec, -1")

    def treduce8(self, acc, t0, t1):
        a = self.a
        a("s_nop 2")
        for k in range(4): a(f"v_permlane32_swap_b32 v{acc+k}, v{acc+k+4}")
        a("s_nop 1")
        for k in range(4): a(f"v_add_f32 v{acc+k}, v{acc+k}, v{acc+k+4}")
        a("s_nop 1")
        for k in range(2): a(f"v_permlane16_swap_b32 v{acc+k}, v{acc+k+2}")
        a("s_nop 1")
        for k in range(2): a(f"v_add_f32 v{acc+k}, v{acc+k}, v{acc+k+2}")
        a("s_nop 0")
        a(f"v_cndmask_b32 v{t0}, v{acc}, v{acc+1}, s[{S_M8}:{S_M8+1}]")
        a(f"v_cndmask_b32 v{t1}, v{acc+1}, v{acc}, s[{S_M8}:{S_M8+1}]")
        a("s_nop 1")
        a(f"v_add_f32_dpp v{acc}, v{t1}, v{t0} row_ror:8 row_mask:0xf bank_mask:0xf")

    def skip_if(self, cmp, label):
        self.a(cmp); self.a(f"s_cbranch_scc1 {label}")

    def poll_begin(self, lbase=None, gbase=None):
        a = self.a
        l = a.newlabel("poll")
        a(f"s_mov_b32 s{S_CNT}, 0")
        a.label(l)
        if lbase is not None:
            if self.local:
                a(f"s_and_b32 s9, s{S_CNT}, {self.lperiod-1}")
                a(f"s_cmp_eq_u32 s9, {self.lperiod-1}")
                a(f"s_cselect_b32 s{S_PB}, s{gbase}, s{lbase}")
            else:
                a(f"s_mov_b32 s{S_PB}, s{gbase}")
        return l
    def poll_end(self, l, vbad):
        a = self.a
        ok = a.newlabel("ok")
        a(f"v_cmp_ne_u32 vcc, 0, v{vbad}")
        a(f"s_cbranch_vccz {ok}")
        a(f"s_add_u32 s{S_CNT}, s{S_CNT}, 1")
        a(f"s_cmp_lt_u32 s{S_CNT}, {POLL_LIMIT}")
        a(f"s_cbranch_scc1 {l}")
        a.label(ok)

    def gpoll(self, n, issue, check, pre=None, first_issued=False):
        a = self.a
        top = a.newlabel("gp"); done = a.newlabel("gpd")
        a(f"s_mov_b32 s{S_PM}, {(1<<n)-1}")
        a(f"s_mov_b32 s{S_CNT}, 0")
        if first_issued:
            chk = a.newlabel("gpc")
            a(f"s_branch {chk}")
        a.label(top)
        if pre: pre()
        for i in range(n):
            sk = a.newlabel("gi")
            a(f"s_bitcmp0_b32 s{S_PM}, {i}")
            a(f"s_cbranch_scc1 {sk}")
            issue(i)
            a.label(sk)
        if first_issued: a.label(chk)
        a("s_waitcnt vmcnt(0)")
        for i in range(n):
            sk = a.newlabel("gc")
            a(f"s_bitcmp0_b32 s{S_PM}, {i}")
            a(f"s_cbranch_scc1 {sk}")
            check(i)
            a(f"s_cbranch_vccnz {sk}")
            a(f"s_bitset0_b32 s{S_PM}, {i}")
            a.label(sk)
        a(f"s_cmp_eq_u32 s{S_PM}, 0")
        a(f"s_cbranch_scc1 {done}")
        a(f"s_add_u32 s{S_CNT}, s{S_CNT}, 1")
        a(f"s_cmp_lt_u32 s{S_CNT}, {POLL_LIMIT}")
        a(f"s_cbranch_scc1 {top}")
        a.label(done)

    def lds_signal(self, base, widx_mask=3):
        a = self.a
        a(f"s_and_b32 s9, s{S_W}, {widx_mask}")
        a("s_lshl_b32 s9, s9, 2")
        a(f"s_add_u32 s9, s9, {self.L_FLAG+base}")
        a("v_mov_b32 v6, s9")
        a("v_mov_b32 v7, 1")
        a("ds_write_b32 v6, v7")
    def lds_wait(self, base, vt):
        a = self.a
        a(f"v_mov_b32 v6, {self.L_FLAG+base}")
        l = self.poll_begin()
        a(f"ds_read_b128 {vr(vt,4)}, v6")
        a("s_waitcnt lgkmcnt(0)")
        a(f"v_and_b32 v{vt}, v{vt}, v{vt+1}")
        a(f"v_and_b32 v{vt+2}, v{vt+2}, v{vt+3}")
        a(f"v_and_b32 v{vt}, v{vt}, v{vt+2}")
        a(f"v_xor_b32 v{vt}, 1, v{vt}")
        self.poll_end(l, vt)

    def cf_check(self, vb):
        a = self.a
        a(f"v_lshlrev_b32 v{vb+4}, 4, v1")
        l = self.poll_begin()
        a(f"buffer_load_dwordx4 {vr(vb,4)}, v{vb+4}, {srd('WS')}, s{S_WSCF} offen sc1")
        a("s_waitcnt vmcnt(0)")
        for k in range(4): a(f"v_xor_b32 v{vb+k}, s{S_EP}, v{vb+k}")
        a(f"v_or3_b32 v{vb}, v{vb}, v{vb+1}, v{vb+2}")
        a(f"v_or_b32 v{vb}, v{vb}, v{vb+3}")
        self.poll_end(l, vb)

    def prologue(self):
        a = self.a
        a("s_cmp_ge_u32 s2, 256")
        a("s_cbranch_scc1 L_exit")
        a("s_load_dwordx16 s[76:91], s[0:1], 0")
        a("s_load_dwordx8 s[92:99], s[0:1], 64")
        a("s_load_dwordx2 s[64:65], s[0:1], 104")
        a("v_and_b32 v1, 63, v0")
        if self.stamps: a("v_mov_b32 v255, 0")
        a("v_lshrrev_b32 v2, 6, v0")
        a("s_nop 0")
        a(f"v_readfirstlane_b32 s{S_W}, v2")
        a(f"s_and_b32 s{S_X}, s2, 7")
        a(f"s_lshr_b32 s{S_LI}, s2, 3")
        a(f"s_and_b32 s{S_LI}, s{S_LI}, 15")
        a(f"s_and_b32 s9, s{S_LI}, 3")
        a(f"s_lshl_b32 s{S_H}, s{S_X}, 2")
        a(f"s_add_u32 s{S_H}, s{S_H}, s9")
        a(f"s_lshr_b32 s{S_J4}, s{S_LI}, 2")
        a("v_lshrrev_b32 v2, 3, v1")
        a("v_and_b32 v3, 7, v1")
        a("v_mul_u32_u24 v4, 12288, v2")
        a("v_lshl_add_u32 v4, v3, 4, v4")
        a(f"s_mov_b32 s{S_M8}, 0xff00ff00")
        a(f"s_mov_b32 s{S_M8+1}, 0xff00ff00")
        for n in SRD:
            b = SRD[n]
            a(f"s_mov_b32 s{b+2}, {SRD_SIZE[n]}")
            a(f"s_mov_b32 s{b+3}, 0x00020000")
        a(f"s_mov_b32 s{S_WSCF}, {WS_CF}")
        a("s_waitcnt lgkmcnt(0)")
        a(f"s_load_dword s{S_EP}, s[64:65], {WS_EPOCH}")
        for n in SRD:
            if n == "WS": continue
            b = SRD[n]; src = 76 + KARG[n] // 4
            a(f"s_mov_b64 s[{b}:{b+1}], s[{src}:{src+1}]")
        self.stamp(0)
        if self.tlb_warm:
            ntw = a.newlabel("ntw")
            self.skip_if(f"s_cmp_lg_u32 s{S_W}, 7", ntw)
            a(f"v_lshlrev_b32 v252, {self.tlb_shift}, v1")
            for n in ["WS", "CKV", "WUK", "WUV", "WO", "WG", "WU", "WD", "GW", "OUT"]:
                a(f"buffer_load_dword v253, v252, {srd(n)}, 0 offen")
            a.label(ntw)
        if self.code_pf:
            npf = a.newlabel("npf")
            a(f"s_lshl_b32 s9, s{S_LI}, 3")
            a(f"s_add_u32 s9, s9, s{S_W}")
            self.skip_if("s_cmp_lg_u32 s9, 7", npf)
            a("s_getpc_b64 s[40:41]")
            a("L_pcref:")
            a("v_lshlrev_b32 v252, 4, v1")
            for i in range(self.code_pf):
                a(f"global_load_dwordx4 v[248:251], v252, s[40:41] offset:0")
                a("s_add_u32 s40, s40, 1024")
                a("s_addc_u32 s41, s41, 0")
            a.label(npf)
        a("s_cmp_lt_u32 s2, 128")
        a("s_cbranch_scc1 L_bset")

    def aset_front(self):
        a = self.a; T = S_T
        W0 = 20; QF = 56; ACC = 68
        a(f"s_lshr_b32 s{T}, s{S_W}, 1")
        a(f"s_and_b32 s{T+1}, s{S_W}, 1")
        a(f"s_mul_i32 s{T+2}, s{S_J4}, 192")
        a(f"s_mul_i32 s{T+3}, s{T}, 48")
        a(f"s_add_u32 s{T+2}, s{T+2}, s{T+3}")
        a(f"s_lshl_b32 s{T+3}, s{T+1}, 3")
        a(f"s_add_u32 s{T+2}, s{T+2}, s{T+3}")
        a(f"s_mul_i32 s{T+2}, s{T+2}, 12288")
        a(f"s_mul_i32 s{T+3}, s{S_H}, 384")
        a(f"s_add_u32 s{T+2}, s{T+2}, s{T+3}")
        if self.a_delay:
            a("s_waitcnt lgkmcnt(0)")
        for _ in range(self.exp_nowuk): a("s_sleep 16")
        for f in range(3):
            for t in range(3):
                r = W0 + (f*3+t)*4
                a(f"buffer_load_dwordx4 {vr(r,4)}, v4, {srd('WUK')}, s{T+2} offen offset:{t*128}{self.NTF}")
                if self.a_probe and f*3+t == self.a_probe-1:
                    a(f"s_waitcnt vmcnt({self.a_probe-1})")
            if f < 2: a(f"s_add_u32 s{T+2}, s{T+2}, 196608")
        a(f"s_lshl_b32 s{T+10}, s{S_X}, 4")
        a(f"s_add_u32 s{T+10}, s{T+10}, s{S_LI}")
        a(f"s_mul_i32 s{T+10}, s{T+10}, 2560")
        a(f"s_add_u32 s{T+10}, s{T+10}, {WS_OUTP}")
        a("v_mov_b32 v76, -1\nv_mov_b32 v77, -1\nv_mov_b32 v78, -1\nv_mov_b32 v79, -1")
        a("v_lshlrev_b32 v80, 4, v0")
        a("v_mov_b32 v81, 0x7fffffff")
        a("v_cmp_gt_u32 vcc, 160, v0")
        a("s_nop 1")
        a("v_cndmask_b32 v80, v81, v80, vcc")
        a(f"buffer_store_dwordx4 v[76:79], v80, {srd('WS')}, s{T+10} offen sc1")
        a("v_lshlrev_b32 v5, 2, v1")
        a("v_mov_b32 v6, 0")
        a(f"ds_write_b32 v5, v6 offset:{self.L_CB}")
        a(f"ds_write_b32 v5, v6 offset:{self.L_CB+256}")
        a(f"s_mul_i32 s{T+5}, s{S_H}, {8*1536}")
        a(f"s_add_u32 s{T+6}, s{T+5}, {WS_QPL}")
        a(f"s_add_u32 s{T+5}, s{T+5}, {WS_QPG}")
        a("s_waitcnt vmcnt(0) lgkmcnt(0)")
        a(f"s_add_u32 s{S_EP}, s{S_EP}, 1")
        self.stamp(1)
        skip = a.newlabel("e1skip")
        self.skip_if(f"s_cmp_ge_u32 s{S_W}, 3", skip)
        a("v_lshlrev_b32 v5, 3, v0")
        G = 84
        l = self.poll_begin(T+6, T+5)
        for p in range(8):
            a(f"buffer_load_dwordx2 {vr(G+2*p,2)}, v5, {srd('WS')}, s{S_PB} offen offset:{(p%2)*1536} sc1")
            if p % 2 == 1 and p < 7: a(f"s_add_u32 s{S_PB}, s{S_PB}, 3072")
        a("s_waitcnt vmcnt(0)")
        a(f"v_xor_b32 v6, s{S_EP}, v{G+1}")
        for p in range(1, 8):
            a(f"v_xor_b32 v7, s{S_EP}, v{G+2*p+1}")
            a("v_or_b32 v6, v6, v7")
        self.poll_end(l, 6)
        self.stamp_val(16, S_CNT)
        for p in range(1, 8): a(f"v_add_f32 v{G}, v{G}, v{G+2*p}")
        a(f"v_cvt_pk_bf16_f32 v6, v{G}, v{G}")
        a("v_lshlrev_b32 v7, 1, v0")
        a(f"ds_write_b16 v7, v6 offset:{self.L_Q}")
        a("s_waitcnt lgkmcnt(0)")
        a.label(skip)
        a("v_lshlrev_b32 v5, 4, v3")
        a(f"s_lshl_b32 s{T+7}, s{S_W}, 6")
        a("v_lshlrev_b32 v10, 1, v2")
        a(f"v_add_u32 v10, s{T+7}, v10")
        a("v_lshlrev_b32 v6, 4, v1")
        a("v_mov_b32 v7, 4")
        a("v_cmp_eq_u32 vcc, 3, v1")
        a("v_mov_b32 v8, 12")
        a("v_mov_b32 v9, 16")
        a("v_cndmask_b32 v6, v6, v8, vcc")
        a("v_cndmask_b32 v7, v7, v9, vcc")
        a("v_and_b32 v6, 63, v6")
        a(f"v_add_u32 v11, s{T+7}, v6")
        a("v_add_u32 v12, v11, v7")
        a("v_add_u32 v13, v12, v7")
        a(f"s_lshl_b32 s{T+8}, s{S_J4}, 2")
        a(f"s_add_u32 s{T+8}, s{T+8}, s{T}")
        a(f"s_lshl_b32 s{T+8}, s{T+8}, 12")
        a(f"s_lshl_b32 s{T+9}, s{T+1}, 9")
        a(f"s_add_u32 s{T+8}, s{T+8}, s{T+9}")
        a(f"s_lshl_b32 s{T+9}, s{S_H}, 4")
        a(f"s_add_u32 s{T+8}, s{T+8}, s{T+9}")
        a(f"s_add_u32 s{T+8}, s{T+8}, {WS_QA}")
        a("v_lshlrev_b32 v14, 10, v1")
        a("v_mov_b32 v7, 0x7fffffff")
        a("v_cmp_gt_u32 vcc, 4, v1")
        a(f"v_mov_b32 v75, s{S_EP}")
        a("v_cndmask_b32 v14, v7, v14, vcc")
        for f in range(3): a(f"v_mov_b32 v{ACC+f}, 0")
        a("s_barrier")
        self.stamp(2)
        for t in range(3):
            a(f"ds_read_b128 {vr(QF+4*t,4)}, v5 offset:{self.L_Q + t*128}")
        for t in range(3):
            a(f"s_waitcnt lgkmcnt({2-t})")
            for k in range(4):
                for f in range(3):
                    a(f"v_dot2c_f32_bf16 v{ACC+f}, v{W0+(f*3+t)*4+k}, v{QF+4*t+k}")
        a("s_nop 2")
        for ctrl in ["quad_perm:[1,0,3,2]", "quad_perm:[2,3,0,1]", "row_half_mirror"]:
            for f in range(3):
                a(f"v_add_f32_dpp v{ACC+f}, v{ACC+f}, v{ACC+f} {ctrl} row_mask:0xf bank_mask:0xf")
        for f in range(3): a(f"v_cvt_pk_bf16_f32 v{ACC+f}, v{ACC+f}, v{ACC+f}")
        for f in range(3): a(f"ds_write_b16 v10, v{ACC+f} offset:{self.L_QS + f*16}")
        a("s_waitcnt lgkmcnt(0)")
        a(f"ds_read_b32 v72, v11 offset:{self.L_QS}")
        a(f"ds_read_b32 v73, v12 offset:{self.L_QS}")
        a(f"ds_read_b32 v74, v13 offset:{self.L_QS}")
        a("s_waitcnt lgkmcnt(0)")
        a(f"buffer_store_dwordx4 v[72:75], v14, {srd('WS')}, s{T+8} offen sc1")
        self.stamp(3)
        if self.qa_ack: a("s_waitcnt vmcnt(0)")
        a("s_barrier")

    def wo_lane_offsets(self):
        a = self.a
        a("v_mul_u32_u24 v6, 52429, v0")
        a("v_lshrrev_b32 v6, 22, v6")
        a("v_mul_u32_u24 v7, 80, v6")
        a("v_sub_u32 v7, v0, v7")
        a("v_mul_u32_u24 v5, 1280, v6")
        a("v_lshl_add_u32 v5, v7, 4, v5")
        a("v_mov_b32 v8, 0x7fffffff")
        a("v_cmp_gt_u32 vcc, 480, v0")
        a("s_nop 1")
        a("v_cndmask_b32 v5, v8, v5, vcc")

    def preperm(self, W0, npairs, t0):
        a = self.a
        a("s_mov_b32 s94, 0x05040100")
        a("s_mov_b32 s95, 0x07060302")
        for p in range(npairs):
            for k in range(4):
                r0 = W0 + 8*p + k; r1 = r0 + 4
                a(f"v_perm_b32 v{t0}, v{r1}, v{r0}, s94")
                a(f"v_perm_b32 v{r1}, v{r1}, v{r0}, s95")
                a(f"v_mov_b32 v{r0}, v{t0}")

    def gemv_pairs(self, W0, npairs, CO, ACC):
        a = self.a
        for p in range(npairs):
            for k in range(4):
                a(f"v_dot2c_f32_bf16 v{ACC+2*k}, v{W0+8*p+k}, v{CO+p}")
            for k in range(4):
                a(f"v_dot2c_f32_bf16 v{ACC+2*k+1}, v{W0+8*p+4+k}, v{CO+p}")

    def out_reduce_publish(self, ACC, outp_soff):
        a = self.a
        a("s_nop 2")
        a(f"ds_write_b128 v129, {vr(ACC,4)} offset:{self.L_R}")
        a(f"ds_write_b128 v129, {vr(ACC+4,4)} offset:{self.L_R+16}")
        a("s_waitcnt lgkmcnt(0)")
        a("s_barrier")
        skip = a.newlabel("go")
        self.skip_if(f"s_cmp_ge_u32 s{S_W}, 3", skip)
        R = 132
        for sl in range(6):
            a(f"ds_read_b128 {vr(R+4*sl,4)}, v131 offset:{self.L_R+sl*2560}")
        a("s_waitcnt lgkmcnt(0)")
        for k in range(4):
            a(f"v_add_f32 v{R+k}, v{R+k}, v{R+4+k}")
            a(f"v_add_f32 v{R+8+k}, v{R+8+k}, v{R+12+k}")
            a(f"v_add_f32 v{R+16+k}, v{R+16+k}, v{R+20+k}")
        for k in range(4): a(f"v_add_f32 v{R+k}, v{R+k}, v{R+8+k}")
        for k in range(4): a(f"v_add_f32 v{R+k}, v{R+k}, v{R+16+k}")
        for k in range(4): a(f"v_min_u32 v{R+k}, 0xfffffffe, v{R+k}")
        a(f"buffer_store_dwordx4 {vr(R,4)}, v130, {srd('WS')}, s{outp_soff} offen sc1")
        a.label(skip)

    def write_pairs(self, vsrc, t0, t1, nvalid):
        a = self.a
        a(f"v_lshlrev_b32 v{t0}, 2, v1")
        a(f"v_add_u32 v{t1}, {self.L_CB - 24 + 2}, v{t0}")
        a(f"v_add_u32 v{t0}, {self.L_CB}, v{t0}")
        a(f"v_mov_b32 v{t0+2}, {self.L_CB + 500}")
        a("v_cmp_gt_u32 vcc, 6, v1")
        a("s_nop 1")
        a(f"v_cndmask_b32 v{t1}, v{t1}, v{t0+2}, vcc")
        if nvalid < 64:
            a(f"v_cmp_le_u32 vcc, {nvalid}, v1")
            a("s_nop 1")
            a(f"v_cndmask_b32 v{t1}, v{t1}, v{t0+2}, vcc")
            a(f"v_cndmask_b32 v{t0}, v{t0}, v{t0+2}, vcc")
        a(f"ds_write_b16 v{t0}, v{vsrc}")
        a(f"ds_write_b16 v{t1}, v{vsrc}")

    def out_addr_regs(self):
        a = self.a
        a("v_mul_u32_u24 v129, 2560, v6")
        a("v_lshl_add_u32 v129, v7, 5, v129")
        a("v_lshlrev_b32 v131, 4, v0")
        a("v_mov_b32 v130, 0x7fffffff")
        a("v_cmp_gt_u32 vcc, 160, v0")
        a("s_nop 1")
        a("v_cndmask_b32 v130, v130, v131, vcc")

    def aset_back(self):
        a = self.a; T = S_T
        self.wo_lane_offsets()
        self.out_addr_regs()
        if self.exp_nobulk:
            a(f"s_lshl_b32 s{T+1}, s{S_H}, 7")
            a(f"s_add_u32 s{T+1}, s{T+1}, {WS_ML}")
            a("v_and_b32 v14, 15, v1")
            a("v_lshlrev_b32 v14, 3, v14")
            self.cf_check(132)
            l = self.poll_begin()
            a(f"buffer_load_dwordx2 v[116:117], v14, {srd('WS')}, s{T+1} offen sc1")
            a("s_waitcnt vmcnt(0)")
            a("v_max_u32 v15, v116, v117")
            a("v_cmp_eq_u32 vcc, -1, v15")
            a("s_nop 1")
            a("v_cndmask_b32 v15, 0, 1, vcc")
            a("s_sleep 4")
            self.poll_end(l, 15)
        self.skip_if(f"s_cmp_ge_u32 s{S_LI}, 12", "L_bbranch")
        WV = 20; WO = 68
        a(f"s_mul_i32 s{T}, s{S_W}, {96*12288}")
        a(f"s_mul_i32 s{T+1}, s{S_H}, 384")
        a(f"s_add_u32 s{T}, s{T}, s{T+1}")
        a(f"s_lshl_b32 s{T+1}, s{S_J4}, 7")
        a(f"s_add_u32 s{T}, s{T}, s{T+1}")
        for i in range(12):
            a(f"buffer_load_dwordx4 {vr(WV+4*i,4)}, v4, {srd('WUV')}, s{T} offen{self.NTB}")
            if i >= self.a_win: a(f"s_waitcnt vmcnt({self.a_win})")
            if i < 11: a(f"s_add_u32 s{T}, s{T}, 98304")
        a(f"s_mul_i32 s{T}, s{S_H}, 192")
        a(f"s_lshl_b32 s{T+1}, s{S_J4}, 6")
        a(f"s_add_u32 s{T}, s{T}, s{T+1}")
        a(f"s_mul_i32 s{T}, s{T}, 1280")
        for i in range(10):
            a(f"buffer_load_dwordx4 {vr(WO+4*i,4)}, v5, {srd('WO')}, s{T} offen{self.NTB}")
            if 12 + i >= self.a_win: a(f"s_waitcnt vmcnt({self.a_win})")
            a(f"s_add_u32 s{T}, s{T}, 7680")
        a("v_cmp_gt_u32 vcc, 4, v6")
        a("s_nop 1")
        a("v_cndmask_b32 v9, v8, v5, vcc")
        a(f"buffer_load_dwordx4 {vr(WO+40,4)}, v9, {srd('WO')}, s{T} offen{self.NTB}")
        for k in range(4): a(f"v_mov_b32 v{WO+44+k}, 0")
        self.stamp(4)
        a("v_cmp_le_u32 vcc, 24, v1")
        a("s_nop 1")
        a("v_cndmask_b32 v10, 0, 1, vcc")
        a("v_mul_u32_u24 v11, 24, v10")
        a("v_sub_u32 v11, v1, v11")
        a("v_mul_u32_u24 v12, 384, v10")
        a("v_lshl_add_u32 v12, v11, 4, v12")
        a(f"s_lshl_b32 s{T+2}, s{S_W}, 10")
        a(f"s_add_u32 s{T+2}, s{T+2}, {self.L_O}")
        a(f"v_add_u32 v13, s{T+2}, v12")
        a("v_cmp_gt_u32 vcc, 48, v1")
        a("v_lshlrev_b32 v16, 2, v2")
        a(f"v_add_u32 v16, s{T+2}, v16")
        a("v_cndmask_b32 v12, v8, v12, vcc")
        a(f"s_lshl_b32 s{T}, s{S_H}, 3")
        a(f"s_add_u32 s{T}, s{T}, s{S_W}")
        a(f"s_mul_i32 s{T}, s{T}, {16*384}")
        a(f"s_add_u32 s{T}, s{T}, {WS_OP}")
        a(f"s_lshl_b32 s{T+1}, s{S_H}, 7")
        a(f"s_add_u32 s{T+1}, s{T+1}, {WS_ML}")
        a("v_and_b32 v14, 15, v1")
        a("v_lshlrev_b32 v14, 3, v14")
        a("v_lshlrev_b32 v121, 2, v10")
        a("v_lshlrev_b32 v17, 5, v3")
        a("v_lshl_add_u32 v17, v2, 2, v17")
        a(f"s_lshl_b32 s{T+3}, s{S_W}, 8")
        a(f"v_add_u32 v17, s{T+3}, v17")
        a("v_lshlrev_b32 v18, 2, v6")
        a("v_lshlrev_b32 v172, 2, v1")
        a(f"v_add_u32 v173, {self.L_CB - 24 + 2}, v172")
        a(f"v_add_u32 v172, {self.L_CB}, v172")
        a(f"v_mov_b32 v174, {self.L_CB + 500}")
        a("v_cmp_gt_u32 vcc, 6, v1")
        a("s_nop 1")
        a("v_cndmask_b32 v173, v173, v174, vcc")
        a("s_waitcnt vmcnt(11)")
        self.preperm(WV, 6, 128)
        a("s_waitcnt vmcnt(0)")
        self.preperm(WO, 6, 128)
        self.stamp(5)
        self.cf_check(132)
        OPV = 132
        def e4_issue(i):
            if i == 8:
                a(f"buffer_load_dwordx2 v[116:117], v14, {srd('WS')}, s{T+1} offen sc1")
            else:
                so = T if i < 4 else T+2
                a(f"buffer_load_dwordx4 {vr(OPV+4*i,4)}, v12, {srd('WS')}, s{so} offen offset:{(i%4)*768} sc1")
        def e4_check(i):
            if i == 8:
                a("v_max_u32 v15, v116, v117")
            else:
                a(f"v_max3_u32 v15, v{OPV+4*i}, v{OPV+4*i+1}, v{OPV+4*i+2}")
                a(f"v_max_u32 v15, v15, v{OPV+4*i+3}")
            a("v_cmp_eq_u32 vcc, -1, v15")
        a(f"s_add_u32 s{T+2}, s{T}, 3072")
        if self.mlpoll:
            l = self.poll_begin()
            a(f"buffer_load_dwordx2 v[116:117], v14, {srd('WS')}, s{T+1} offen sc1")
            a("s_waitcnt vmcnt(0)")
            a("v_max_u32 v15, v116, v117")
            a("v_cmp_eq_u32 vcc, -1, v15")
            a("s_nop 1")
            a("v_cndmask_b32 v15, 0, 1, vcc")
            self.poll_end(l, 15)
            self.gpoll(8, e4_issue, e4_check)
        else:
            self.gpoll(9, e4_issue, e4_check)
        self.stamp(6)
        self.stamp_val(17, S_CNT)
        a("v_mov_b32 v118, v116")
        a("s_nop 1")
        for ctrl in ["quad_perm:[1,0,3,2]", "quad_perm:[2,3,0,1]", "row_half_mirror", "row_mirror"]:
            a(f"v_max_f32_dpp v118, v118, v118 {ctrl} row_mask:0xf bank_mask:0xf")
            a("s_nop 1")
        a("v_sub_f32 v119, v116, v118")
        a("v_exp_f32 v119, v119")
        a("s_nop 0")
        a("v_mul_f32 v120, v117, v119")
        WN = 164
        for i in range(8): a(f"ds_bpermute_b32 v{WN+i}, v121, v119 offset:{8*i}")
        for ctrl in ["quad_perm:[1,0,3,2]", "quad_perm:[2,3,0,1]", "row_half_mirror", "row_mirror"]:
            a(f"v_add_f32_dpp v120, v120, v120 {ctrl} row_mask:0xf bank_mask:0xf")
            a("s_nop 1")
        a("v_rcp_f32 v120, v120")
        a("s_waitcnt lgkmcnt(0)")
        for k in range(4): a(f"v_mul_f32 v{122+k}, v{WN}, v{OPV+k}")
        for i in range(1, 8):
            for k in range(4): a(f"v_fmac_f32 v{122+k}, v{WN+i}, v{OPV+4*i+k}")
        for k in range(4): a(f"v_mul_f32 v{122+k}, v{122+k}, v120")
        a("s_mov_b32 exec_hi, 0xffff")
        a("ds_write_b128 v13, v[122:125]")
        a("s_mov_b32 exec_hi, -1")
        a("s_waitcnt lgkmcnt(0)")
        OV = 132
        for i in range(12):
            a(f"ds_read2_b32 {vr(OV+2*i,2)}, v16 offset0:{8*i} offset1:{8*i+96}")
        ACC = 120
        for k in range(8): a(f"v_mov_b32 v{ACC+k}, 0")
        CO = 160
        for p in range(6):
            a(f"s_waitcnt lgkmcnt({10-2*p})")
            a(f"v_add_f32 v{OV+4*p}, v{OV+4*p}, v{OV+4*p+1}")
            a(f"v_add_f32 v{OV+4*p+2}, v{OV+4*p+2}, v{OV+4*p+3}")
            a(f"v_cvt_pk_bf16_f32 v{CO+p}, v{OV+4*p}, v{OV+4*p+2}")
        self.gemv_pairs(WV, 6, CO, ACC)
        self.treduce8(ACC, 128, 118)
        a(f"ds_write_b32 v17, v{ACC} offset:{self.L_C}")
        a("s_waitcnt lgkmcnt(0)")
        a("s_barrier")
        self.stamp(7)
        skip = a.newlabel("cx")
        self.skip_if(f"s_cmp_lg_u32 s{S_W}, 0", skip)
        a("v_lshlrev_b32 v13, 2, v1")
        for w in range(8): a(f"ds_read_b32 v{132+w}, v13 offset:{self.L_C+w*256}")
        a("s_waitcnt lgkmcnt(0)")
        a("v_add_f32 v132, v132, v133\nv_add_f32 v134, v134, v135\nv_add_f32 v136, v136, v137\nv_add_f32 v138, v138, v139")
        a("v_add_f32 v132, v132, v134\nv_add_f32 v136, v136, v138")
        a("v_add_f32 v132, v132, v136")
        a("v_cvt_pk_bf16_f32 v132, v132, v132")
        a("ds_write_b16 v172, v132")
        a("ds_write_b16 v173, v132")
        a("s_waitcnt lgkmcnt(0)")
        a.label(skip)
        for k in range(8): a(f"v_mov_b32 v{ACC+k}, 0")
        a("s_barrier")
        for p in range(6):
            a(f"ds_read_b32 v{CO+p}, v18 offset:{self.L_CB+48*p}")
        a("s_waitcnt lgkmcnt(0)")
        self.gemv_pairs(WO, 6, CO, ACC)
        self.out_reduce_publish(ACC, T+10)
        self.stamp(8)
        a("s_branch L_aend")

        a.label("L_bbranch")
        WG = 20; XB = 84; WD = 160
        a("v_lshlrev_b32 v19, 2, v6")
        a(f"s_lshl_b32 s{T}, s{S_X}, 2")
        a(f"s_add_u32 s{T}, s{T}, s{S_LI}")
        a(f"s_sub_u32 s{T}, s{T}, 12")
        a("v_mul_u32_u24 v10, 43, v1")
        a("v_lshrrev_b32 v10, 8, v10")
        a("v_mul_u32_u24 v11, 6, v10")
        a("v_sub_u32 v11, v1, v11")
        a("v_mul_u32_u24 v12, 3072, v10")
        a("v_lshl_add_u32 v12, v11, 4, v12")
        a("v_cmp_gt_u32 vcc, 60, v1")
        a("v_lshlrev_b32 v13, 1, v10")
        a("v_cndmask_b32 v12, v8, v12, vcc")
        a(f"s_and_b32 s{T+1}, s{S_W}, 3")
        a(f"s_mul_i32 s{T+2}, s{T+1}, 320")
        for i in range(16):
            a(f"buffer_load_ushort v{XB+i}, v13, {srd('X')}, s{T+2} offen offset:{20*i}")
        a(f"s_mul_i32 s{T+2}, s{T+1}, {160*3072}")
        a(f"s_mul_i32 s{T+3}, s{T}, 96")
        a(f"s_add_u32 s{T+2}, s{T+2}, s{T+3}")
        up = a.newlabel("up"); upd = a.newlabel("upd")
        self.skip_if(f"s_cmp_ge_u32 s{S_W}, 4", up)
        for i in range(16):
            a(f"buffer_load_dwordx4 {vr(WG+4*i,4)}, v12, {srd('WG')}, s{T+2} offen{self.NTB}")
            if i >= self.a_win: a(f"s_waitcnt vmcnt({self.a_win})")
            a(f"s_add_u32 s{T+2}, s{T+2}, 30720")
        a(f"s_branch {upd}")
        a.label(up)
        for i in range(16):
            a(f"buffer_load_dwordx4 {vr(WG+4*i,4)}, v12, {srd('WU')}, s{T+2} offen{self.NTB}")
            if i >= self.a_win: a(f"s_waitcnt vmcnt({self.a_win})")
            a(f"s_add_u32 s{T+2}, s{T+2}, 30720")
        a.label(upd)
        a(f"s_mul_i32 s{T+2}, s{T}, {48*1280}")
        for i in range(8):
            a(f"buffer_load_dwordx4 {vr(WD+4*i,4)}, v5, {srd('WD')}, s{T+2} offen{self.NTB}")
            if 16 + i >= self.a_win: a(f"s_waitcnt vmcnt({self.a_win})")
            a(f"s_add_u32 s{T+2}, s{T+2}, 7680")
        ACC = 120
        for k in range(8): a(f"v_mov_b32 v{ACC+k}, 0")
        for i in range(16):
            a(f"s_waitcnt vmcnt({8+15-i})")
            a(f"v_lshlrev_b32 v128, 16, v{XB+i}")
            for k in range(4): a(f"v_dot2c_f32_bf16 v{ACC+2*k}, v{WG+4*i+k}, v{XB+i}")
            for k in range(4): a(f"v_dot2c_f32_bf16 v{ACC+2*k+1}, v{WG+4*i+k}, v128")
        a(f"s_mul_i32 s{T+2}, s{S_W}, 1920")
        a("v_mul_u32_u24 v13, 192, v10")
        a("v_lshl_add_u32 v13, v11, 5, v13")
        a(f"v_add_u32 v13, s{T+2}, v13")
        a("s_mov_b32 exec_hi, 0x0fffffff")
        a(f"ds_write_b128 v13, {vr(ACC,4)} offset:{self.L_R}")
        a(f"ds_write_b128 v13, {vr(ACC+4,4)} offset:{self.L_R+16}")
        a("s_mov_b32 exec_hi, -1")
        a("s_waitcnt lgkmcnt(0)")
        a("s_barrier")
        skip = a.newlabel("bg")
        self.skip_if(f"s_cmp_ge_u32 s{S_W}, 2", skip)
        a("v_cmp_le_u32 vcc, 48, v0")
        a("v_mov_b32 v14, 7488")
        a("v_lshlrev_b32 v13, 2, v0")
        a("v_cndmask_b32 v14, 0, v14, vcc")
        a("v_add_u32 v13, v13, v14")
        a("v_min_u32 v13, 7868, v13")
        for j in range(40):
            a(f"ds_read_b32 v{20+j}, v13 offset:{self.L_R+j*192}")
            if j % 8 == 7: a("s_waitcnt lgkmcnt(0)")
        for j in range(1, 40): a(f"v_add_f32 v20, v20, v{20+j}")
        a("v_lshlrev_b32 v13, 2, v0")
        a(f"ds_write_b32 v13, v20 offset:{self.L_C}")
        a("s_waitcnt lgkmcnt(0)")
        a.label(skip)
        a("s_barrier")
        skip = a.newlabel("bh")
        self.skip_if(f"s_cmp_lg_u32 s{S_W}, 0", skip)
        a("v_lshlrev_b32 v13, 2, v1")
        a(f"ds_read_b32 v20, v13 offset:{self.L_C}")
        a(f"ds_read_b32 v21, v13 offset:{self.L_C+192}")
        a("s_waitcnt lgkmcnt(0)")
        a(f"v_mul_f32 v20, 0x{f32bits(-math.log2(math.e)):08x}, v20")
        a("v_exp_f32 v20, v20")
        a("s_nop 0")
        a("v_add_f32 v20, 1.0, v20")
        a("v_rcp_f32 v20, v20")
        a("s_nop 0")
        a("v_mul_f32 v20, v20, v21")
        a("v_cvt_pk_bf16_f32 v20, v20, v20")
        self.write_pairs(20, 13, 14, 48)
        a("s_waitcnt lgkmcnt(0)")
        a.label(skip)
        for k in range(8): a(f"v_mov_b32 v{ACC+k}, 0")
        a("s_waitcnt vmcnt(0)")
        self.preperm(WD, 4, 128)
        a("s_barrier")
        CO = 100
        for p in range(4):
            a(f"ds_read_b32 v{CO+p}, v19 offset:{self.L_CB+48*p}")
        a("s_waitcnt lgkmcnt(0)")
        self.gemv_pairs(WD, 4, CO, ACC)
        self.out_reduce_publish(ACC, T+10)
        self.stamp(8)
        a.label("L_aend")

    def bset_ids(self):
        a = self.a
        a(f"s_mov_b32 s{S_LB}, s{S_LI}")
        a(f"s_lshl_b32 s{S_BLK}, s{S_X}, 5")
        a(f"s_lshl_b32 s9, s{S_LB}, 1")
        a(f"s_add_u32 s{S_BLK}, s{S_BLK}, s9")
        a(f"s_lshl_b32 s{S_G}, s{S_X}, 1")
        a(f"s_lshr_b32 s9, s{S_LB}, 3")
        a(f"s_add_u32 s{S_G}, s{S_G}, s9")
        a(f"s_and_b32 s{S_S}, s{S_LB}, 7")

    def pv_lane_offsets(self):
        a = self.a
        for n in range(3):
            a(f"v_add_u32 v5, {64*n}, v1")
            a("v_mul_u32_u24 v6, 5462, v5")
            a("v_lshrrev_b32 v6, 16, v6")
            a("v_mul_u32_u24 v7, 12, v6")
            a("v_sub_u32 v7, v5, v7")
            a("v_mul_u32_u24 v6, 1536, v6")
            a(f"v_lshl_add_u32 v{self.PVO+n}, v7, 4, v6")

    def pv_dma(self, kp, ldsbase, nw, w0):
        a = self.a; T = S_T + 8
        per = 48 // nw; rows = 256 // nw
        a(f"s_sub_u32 s{T+2}, s{S_W}, {w0}")
        a(f"s_lshl_b32 s{T}, s{S_G}, 9")
        a(f"s_mul_i32 s{T+1}, s{T+2}, {rows}")
        a(f"s_add_u32 s{T}, s{T}, s{T+1}")
        if kp: a(f"s_add_u32 s{T}, s{T}, 256")
        a(f"s_mul_i32 s{T}, s{T}, 1536")
        a(f"s_mul_i32 s{T+1}, s{S_S}, 192")
        a(f"s_add_u32 s{T}, s{T}, s{T+1}")
        a(f"s_mul_i32 s{T+1}, s{T+2}, {per*1024}")
        a(f"s_add_u32 s{T+1}, s{T+1}, {ldsbase}")
        for n in range(per):
            a(f"s_add_u32 m0, s{T+1}, {n*1024}")
            if n % 3 == 0 and n > 0: a(f"s_add_u32 s{T}, s{T}, {16*1536}")
            else: a("s_nop 0")
            a(f"buffer_load_dwordx4 v{self.PVO+(n%3)}, {srd('CKV')}, s{T} offen{self.NTC} lds")
            if self.pv_win < 63: a(f"s_waitcnt vmcnt({self.pv_win})")

    def s_dma_prep(self):
        a = self.a
        a("v_mov_b32 v216, 0")
        a("v_mov_b32 v219, v1")
        a("v_cmp_le_u32 vcc, 32, v1")
        a("v_add_u32 v5, 64, v1")
        a("v_subrev_u32 v6, 32, v1")
        a("v_cndmask_b32 v217, 0, 1, vcc")
        a("v_cndmask_b32 v220, v5, v6, vcc")
        a("v_mov_b32 v218, 1")
        a("v_add_u32 v221, 32, v1")
        for b in range(3): a(f"v_mul_u32_u24 v{222+b}, 1536, v{216+b}")
        T = S_T + 8
        a(f"s_and_b32 s{T+2}, s{S_W}, 1")
        a(f"s_lshl_b32 s{T+2}, s{T+2}, 3")
        for aa in range(4):
            for b in range(3):
                n = 3*aa + b
                a(f"s_add_u32 s{T+4}, s{T+2}, {2*aa}")
                a(f"v_add_u32 v5, s{T+4}, v{216+b}")
                a(f"v_xor_b32 v5, v5, v{219+b}")
                a(f"v_lshl_add_u32 v{226+n}, v5, 4, v{222+b}")

    def s_dma(self):
        a = self.a; T = S_T + 8
        a(f"s_lshl_b32 s{T}, s{S_X}, 10")
        a(f"s_lshl_b32 s{T+1}, s{S_LB}, 6")
        a(f"s_add_u32 s{T}, s{T}, s{T+1}")
        a(f"s_lshl_b32 s{T+1}, s{S_W}, 3")
        a(f"s_add_u32 s{T}, s{T}, s{T+1}")
        a(f"s_mul_i32 s{T}, s{T}, 1536")
        a(f"s_mul_i32 s{T+3}, s{S_W}, 12288")
        a(f"s_add_u32 s{T+3}, s{T+3}, {self.L_S}")
        for n in range(12):
            a(f"s_add_u32 m0, s{T+3}, {n*1024}")
            if n % 3 == 0 and n > 0: a(f"s_add_u32 s{T}, s{T}, {2*1536}")
            else: a("s_nop 0")
            a(f"buffer_load_dwordx4 v{226+n}, {srd('CKV')}, s{T} offen{self.NTC} lds")
            if n >= self.s_win: a(f"s_waitcnt vmcnt({self.s_win})")
            if self.s_probe and n == self.s_probe-1: a(f"s_waitcnt vmcnt({self.s_probe-1})")

    def bset_clears(self):
        a = self.a; T = S_T + 8
        a("v_subrev_u32 v5, 384, v0")
        a("v_mov_b32 v76, -1\nv_mov_b32 v77, -1\nv_mov_b32 v78, -1\nv_mov_b32 v79, -1")
        a("v_lshlrev_b32 v6, 4, v5")
        a("v_mov_b32 v7, 0x7fffffff")
        a("v_cmp_gt_u32 vcc, 64, v5")
        a(f"s_mul_i32 s{T+2}, s{S_BLK}, {PBS}")
        a("v_cndmask_b32 v8, v7, v6, vcc")
        for base in (WS_PBG, WS_PBL):
            a(f"s_add_u32 s{T+3}, s{T+2}, {base}")
            a(f"buffer_store_dwordx4 v[76:79], v6, {srd('WS')}, s{T+3} offen sc1")
            a(f"buffer_store_dwordx4 v[76:79], v6, {srd('WS')}, s{T+3} offen offset:2048 sc1")
            a(f"s_add_u32 s{T+3}, s{T+3}, 4096")
            a(f"buffer_store_dwordx4 v[76:79], v8, {srd('WS')}, s{T+3} offen sc1")
        a(f"s_lshl_b32 s{T+5}, s{S_S}, 4")
        a(f"s_add_u32 s{T+5}, s{T+5}, s{S_G}")
        a(f"s_mul_i32 s{T+5}, s{T+5}, 384")
        a(f"s_add_u32 s{T+5}, s{T+5}, {WS_OP}")
        a(f"s_mov_b32 s{T+6}, 49152")
        for i in range(6):
            a(f"v_add_u32 v8, {128*i}, v5")
            a("v_mul_u32_u24 v9, 2731, v8")
            a("v_lshrrev_b32 v9, 16, v9")
            a("v_mul_u32_u24 v70, 24, v9")
            a("v_sub_u32 v70, v8, v70")
            a(f"v_mul_lo_u32 v9, v9, s{T+6}")
            a("v_lshl_add_u32 v9, v70, 4, v9")
            a(f"buffer_store_dwordx4 v[76:79], v9, {srd('WS')}, s{T+5} offen sc1")
        a("v_lshlrev_b32 v8, 7, v5")
        a("v_cmp_gt_u32 vcc, 32, v5")
        a(f"s_lshl_b32 s{T+5}, s{S_G}, 3")
        a(f"s_add_u32 s{T+5}, s{T+5}, {WS_ML}")
        a("v_cndmask_b32 v8, v7, v8, vcc")
        a(f"s_cmp_eq_u32 s{S_S}, 0")
        a(f"s_cselect_b32 s{T+5}, s{T+5}, 0x7fffff00")
        a(f"buffer_store_dwordx2 v[76:77], v8, {srd('WS')}, s{T+5} offen sc1")

    def bset_front(self):
        a = self.a; T = S_T
        XV = 10; W0 = 20; ACC = 60
        a(f"v_mov_b32 v5, {self.L_FLAG}")
        for k in range(4): a(f"v_mov_b32 v{6+k}, 0")
        a("ds_write_b128 v5, v[6:9]")
        a("ds_write_b128 v5, v[6:9] offset:16")
        a("ds_write_b128 v5, v[6:9] offset:32")
        skip = a.newlabel("p1l")
        self.skip_if(f"s_cmp_ge_u32 s{S_W}, 6", skip)
        a(f"s_cmp_ge_u32 s{S_W}, 3")
        a(f"s_cselect_b32 s{T}, 1, 0")
        a(f"s_mul_i32 s{T+1}, s{T}, 3")
        a(f"s_sub_u32 s{T+1}, s{S_W}, s{T+1}")
        a(f"s_mul_i32 s{T+2}, s{S_J4}, 160")
        a(f"s_mul_i32 s{T+3}, s{T}, 80")
        a(f"s_add_u32 s{T+2}, s{T+2}, s{T+3}")
        a(f"s_lshl_b32 s{T+3}, s{T+2}, 1")
        a("v_lshlrev_b32 v5, 1, v2")
        a(f"s_mul_i32 s{T+4}, s{T+2}, 12288")
        a(f"s_mul_i32 s{T+5}, s{S_H}, 384")
        a(f"s_add_u32 s{T+4}, s{T+4}, s{T+5}")
        a(f"s_lshl_b32 s{T+5}, s{T+1}, 7")
        a(f"s_add_u32 s{T+4}, s{T+4}, s{T+5}")
        for i in range(10):
            a(f"buffer_load_dwordx4 {vr(W0+4*i,4)}, v4, {srd('WQ')}, s{T+4} offen{self.NTF}")
            if i < 9: a(f"s_add_u32 s{T+4}, s{T+4}, 98304")
        a(f"v_add_u32 v9, s{T+3}, v5")
        a.label(skip)
        nox = a.newlabel("nox")
        self.skip_if(f"s_cmp_lg_u32 s{S_W}, 6", nox)
        a("v_lshlrev_b32 v8, 4, v1")
        a(f"buffer_load_dwordx4 v[20:23], v8, {srd('X')}, 0 offen")
        a(f"buffer_load_dwordx4 v[24:27], v8, {srd('X')}, 0 offen offset:1024")
        a.label(nox)
        self.bset_ids()
        self.pv_lane_offsets()
        self.s_dma_prep()
        nox2 = a.newlabel("nox2")
        self.skip_if(f"s_cmp_lg_u32 s{S_W}, 6", nox2)
        a("s_waitcnt vmcnt(0)")
        a(f"ds_write_b128 v8, v[20:23] offset:{self.L_X}")
        a(f"ds_write_b128 v8, v[24:27] offset:{self.L_X+1024}")
        a.label(nox2)
        a("s_waitcnt lgkmcnt(0)")
        a("s_barrier")
        ldr = a.newlabel("p1ldr"); j = a.newlabel("p1j")
        self.skip_if(f"s_cmp_ge_u32 s{S_W}, 6", ldr)
        a(f"s_lshl_b32 s{T+5}, s{S_H}, 3")
        a(f"s_lshl_b32 s{T+6}, s{S_J4}, 1")
        a(f"s_add_u32 s{T+5}, s{T+5}, s{T+6}")
        a(f"s_add_u32 s{T+5}, s{T+5}, s{T}")
        a(f"s_mul_i32 s{T+5}, s{T+5}, 1536")
        a(f"s_lshl_b32 s{T+6}, s{T+1}, 9")
        a(f"s_add_u32 s{T+5}, s{T+5}, s{T+6}")
        a(f"s_add_u32 s{T+6}, s{T+5}, {WS_QPG}")
        a(f"s_add_u32 s{T+5}, s{T+5}, {WS_QPL}")
        a("v_lshlrev_b32 v5, 6, v3")
        a("v_lshl_add_u32 v5, v2, 3, v5")
        for k in range(8): a(f"v_mov_b32 v{ACC+k}, 0")
        for i in range(10):
            a(f"ds_read_u16 v{XV+i}, v9 offset:{self.L_X+16*i}")
        a("s_waitcnt lgkmcnt(0)")
        a(f"s_add_u32 s{S_EP}, s{S_EP}, 1")
        for i in range(10):
            a(f"s_waitcnt vmcnt({9-i})")
            if i == 9: self.stamp(13)
            a(f"v_lshlrev_b32 v68, 16, v{XV+i}")
            for k in range(4): a(f"v_dot2c_f32_bf16 v{ACC+2*k}, v{W0+4*i+k}, v{XV+i}")
            for k in range(4): a(f"v_dot2c_f32_bf16 v{ACC+2*k+1}, v{W0+4*i+k}, v68")
        self.treduce8(ACC, 68, 69)
        a(f"v_mov_b32 v{ACC+1}, s{S_EP}")
        if self.local:
            a(f"buffer_store_dwordx2 {vr(ACC,2)}, v5, {srd('WS')}, s{T+5} offen")
        a(f"buffer_store_dwordx2 {vr(ACC,2)}, v5, {srd('WS')}, s{T+6} offen sc1")
        self.stamp(1)
        a(f"s_branch {j}")
        a.label(ldr)
        if not self.exp_noclear: self.bset_clears()
        a("s_waitcnt lgkmcnt(0)")
        a(f"s_add_u32 s{S_EP}, s{S_EP}, 1")
        a.label(j)
        a("s_barrier")
        self.s_dma()
        nocf = a.newlabel("nocf")
        self.skip_if(f"s_cmp_lt_u32 s{S_W}, 6", nocf)
        a("s_waitcnt vmcnt(12)")
        a(f"s_lshl_b32 s{T+13}, s2, 1")
        a(f"s_add_u32 s{T+13}, s{T+13}, s{S_W}")
        a(f"s_lshl_b32 s{T+13}, s{T+13}, 2")
        a(f"s_add_u32 s{T+13}, s{T+13}, {WS_CF - 24}")
        a(f"v_mov_b32 v5, s{S_EP}")
        a("v_mov_b32 v6, 0")
        a("s_mov_b64 exec, 1")
        a(f"buffer_store_dword v5, v6, {srd('WS')}, s{T+13} offen sc1")
        a("s_mov_b64 exec, -1")
        a.label(nocf)
        self.stamp(2)

    def bset_s_phase(self):
        a = self.a; T = S_T
        QA = 20; AF = 84; ACC = 180
        a("v_and_b32 v6, 31, v1")
        a("v_lshrrev_b32 v7, 5, v1")
        a("v_and_b32 v8, 15, v6")
        a("v_xor_b32 v8, v8, v7")
        a("v_mul_u32_u24 v6, 1536, v6")
        a(f"v_add_u32 v6, {self.L_S}, v6")
        a(f"s_mul_i32 s{T+2}, s{S_W}, 24")
        for i in range(12):
            a(f"s_add_u32 s{T+3}, s{T+2}, {2*i}")
            a(f"v_xor_b32 v9, s{T+3}, v8")
            a(f"v_lshl_add_u32 v{226+i}, v9, 4, v6")
        a(f"s_lshl_b32 s{T}, s{S_W}, 14")
        a(f"s_add_u32 s{T}, s{T}, {WS_QA}")
        a("v_lshlrev_b32 v5, 4, v1")
        for g in range(4): a(f"s_add_u32 s{T+9+g}, s{T}, {4096*g}")
        a("s_barrier")
        notS0 = a.newlabel("notS0")
        self.skip_if(f"s_cmp_ge_u32 s{S_W}, 4", notS0)
        for n in range(16):
            a(f"buffer_load_dwordx4 {vr(QA+4*n,4)}, v5, {srd('WS')}, s{T+9+n//4} offen offset:{(n%4)*1024} sc1")
        a("s_waitcnt vmcnt(16)")
        a.label(notS0)
        nw = a.newlabel("nw")
        self.skip_if(f"s_cmp_lt_u32 s{S_W}, 4", nw)
        a("s_waitcnt vmcnt(0)")
        a.label(nw)
        a("s_barrier")
        self.stamp(3)
        notS = a.newlabel("notS"); j4 = a.newlabel("j4")
        self.skip_if(f"s_cmp_ge_u32 s{S_W}, 4", notS)
        for i in range(12):
            a(f"ds_read_b128 {vr(AF+4*i,4)}, v{226+i}")
            a(f"ds_read_b128 {vr(AF+48+4*i,4)}, v{226+i} offset:49152")
            if i == 5: a("s_waitcnt lgkmcnt(0)")
        a("s_waitcnt lgkmcnt(0)")
        a("s_barrier")
        self.stamp(21)
        a(f"s_lshl_b32 s{T+2}, s{S_W}, 13")
        a(f"s_add_u32 s{T+2}, s{T+2}, {self.L_RED}")
        a(f"v_add_u32 v10, s{T+2}, v5")
        a(f"s_lshl_b32 s{T+2}, s{S_W}, 10")
        a(f"s_add_u32 s{T+2}, s{T+2}, {self.L_RED}")
        a(f"v_add_u32 v11, s{T+2}, v5")
        a("v_bfe_u32 v12, v1, 4, 1")
        a("v_lshlrev_b32 v12, 10, v12")
        a("v_and_b32 v9, 15, v1")
        a("v_lshl_add_u32 v12, v9, 4, v12")
        a("v_lshrrev_b32 v9, 5, v1")
        a("v_lshl_add_u32 v12, v9, 3, v12")
        a("v_and_b32 v13, 31, v1")
        a("v_lshlrev_b32 v13, 2, v13")
        a("v_mov_b32 v9, 0x7fffffff")
        a("v_cmp_gt_u32 vcc, 32, v1")
        a(f"s_mul_i32 s{T+4}, s{S_BLK}, {PBS}")
        a("v_cndmask_b32 v13, v9, v13, vcc")
        a(f"s_lshl_b32 s{T+3}, s{S_W}, 8")
        a(f"s_add_u32 s{T+5}, s{T+4}, s{T+3}")
        a(f"s_lshl_b32 s{T+3}, s{S_W}, 7")
        a(f"s_add_u32 s{T+6}, s{T+4}, s{T+3}")
        a(f"s_add_u32 s{T+6}, s{T+6}, 2048")
        def qa_issue(g):
            for k in range(4):
                n = 4*g + k
                a(f"buffer_load_dwordx4 {vr(QA+4*n,4)}, v5, {srd('WS')}, s{T+9+g} offen offset:{k*1024} sc1")
        def qa_check(g):
            a(f"v_xor_b32 v6, s{S_EP}, v{QA+16*g+3}")
            for k in range(1, 4):
                a(f"v_xor_b32 v7, s{S_EP}, v{QA+16*g+4*k+3}")
                a("v_or_b32 v6, v6, v7")
            a("v_cmp_ne_u32 vcc, 0, v6")
        self.gpoll(4, qa_issue, qa_check, first_issued=True)
        self.stamp(4)
        self.stamp_val(16, S_CNT)
        for sg in range(4):
            for f in range(3): a(f"v_mov_b32 v{QA+(sg*4+f)*4+3}, v{QA+(sg*4+3)*4+f}")
        a("s_nop 0")
        for i in range(12):
            sg, f = i // 3, i % 3
            B = QA + (sg*4+f)*4
            for kb in range(2):
                c = "0" if i == 0 else vr(ACC+16*kb, 16)
                a(f"v_mfma_f32_32x32x16_bf16 {vr(ACC+16*kb,16)}, {vr(AF+48*kb+4*i,4)}, {vr(B,4)}, {c}")
        noep = a.newlabel("noep")
        a("s_lshl_b32 s9, s2, 3")
        a(f"s_add_u32 s9, s9, s{S_W}")
        self.skip_if(f"s_cmp_lg_u32 s9, {127*8}", noep)
        a(f"v_mov_b32 v6, s{S_EP}")
        a("v_mov_b32 v7, 0")
        a("s_mov_b64 exec, 1")
        a(f"buffer_store_dword v6, v7, {srd('WS')}, 0 offen sc1")
        a("s_mov_b64 exec, -1")
        a.label(noep)
        a("s_nop 7")
        for q in range(4): a(f"ds_write_b128 v10, {vr(ACC+4*q,4)} offset:{q*1024}")
        a("s_nop 3")
        for q in range(4): a(f"ds_write_b128 v10, {vr(ACC+16+4*q,4)} offset:{(4+q)*1024}")
        a("s_waitcnt lgkmcnt(0)")
        self.stamp(8)
        self.lds_signal(16)
        self.lds_wait(16, 20)
        R = 20
        for src in range(4):
            for kb in range(2):
                a(f"ds_read_b128 {vr(R+(src*2+kb)*4,4)}, v11 offset:{src*8192+kb*4096}")
        a(f"s_mov_b32 s{T+3}, 0x{f32bits(192**-0.5*math.log2(math.e)):08x}")
        a("s_waitcnt lgkmcnt(4)")
        for k in range(8): a(f"v_add_f32 v{R+k}, v{R+k}, v{R+8+k}")
        a("s_waitcnt lgkmcnt(0)")
        for k in range(8): a(f"v_add_f32 v{R+16+k}, v{R+16+k}, v{R+24+k}")
        for k in range(8): a(f"v_add_f32 v{R+k}, v{R+k}, v{R+16+k}")
        for k in range(8): a(f"v_mul_f32 v{R+k}, s{T+3}, v{R+k}")
        for kb in range(2):
            a(f"v_max3_f32 v{R+8+kb}, v{R+kb*4}, v{R+kb*4+1}, v{R+kb*4+2}")
        for kb in range(2):
            a(f"v_max_f32 v{R+8+kb}, v{R+8+kb}, v{R+kb*4+3}")
        a(f"v_mov_b32 v{R+10}, v{R+8}")
        a(f"v_mov_b32 v{R+11}, v{R+9}")
        a("s_nop 1")
        a(f"v_permlane32_swap_b32 v{R+8}, v{R+10}")
        a(f"v_permlane32_swap_b32 v{R+9}, v{R+11}")
        a("s_nop 1")
        a(f"v_max_f32 v{R+8}, v{R+8}, v{R+10}")
        a(f"v_max_f32 v{R+9}, v{R+9}, v{R+11}")
        a(f"v_ceil_f32 v{R+8}, v{R+8}")
        a(f"v_ceil_f32 v{R+9}, v{R+9}")
        for kb in range(2):
            for r in range(4): a(f"v_sub_f32 v{R+kb*4+r}, v{R+kb*4+r}, v{R+8+kb}")
        for k in range(8): a(f"v_exp_f32 v{R+k}, v{R+k}")
        a(f"v_min_u32 v{R+8}, 0xfffffffe, v{R+8}")
        a(f"v_min_u32 v{R+9}, 0xfffffffe, v{R+9}")
        P = R + 12
        for kb in range(2):
            a(f"v_cvt_pk_bf16_f32 v{P+kb*2}, v{R+kb*4}, v{R+kb*4+1}")
            a(f"v_cvt_pk_bf16_f32 v{P+kb*2+1}, v{R+kb*4+2}, v{R+kb*4+3}")
        for k in range(4): a(f"v_and_b32 v{P+k}, 0x7fff7fff, v{P+k}")
        paths = ([(WS_PBL, "")] if self.local else []) + [(WS_PBG, " sc1")]
        for base, fl in paths:
            a(f"s_add_u32 s{T+7}, s{T+5}, {base}")
            a(f"s_add_u32 s{T+8}, s{T+6}, {base}")
            a(f"buffer_store_dwordx2 {vr(P,2)}, v12, {srd('WS')}, s{T+7} offen{fl}")
            a(f"buffer_store_dwordx2 {vr(P+2,2)}, v12, {srd('WS')}, s{T+7} offen offset:{PBS}{fl}")
            a(f"buffer_store_dword v{R+8}, v13, {srd('WS')}, s{T+8} offen{fl}")
            a(f"buffer_store_dword v{R+9}, v13, {srd('WS')}, s{T+8} offen offset:{PBS}{fl}")
        self.stamp(5)
        self.lds_wait(32, 60)
        self.stamp(14)
        self.pv_read_frags(self.L_S)
        a(f"s_branch {j4}")
        a.label(notS)
        a("s_barrier")
        self.pv_dma(0, self.L_PA, 4, 4)
        self.pv_dma(1, self.L_S, 4, 4)
        self.stamp(20)
        a("s_waitcnt vmcnt(12)")
        self.lds_signal(0)
        self.lds_wait(0, 20)
        self.stamp(19)
        self.pv_read_frags(self.L_PA)
        nocf = a.newlabel("nocf")
        self.skip_if(f"s_cmp_lg_u32 s{S_W}, 4", nocf)
        self.cf_check(20)
        a.label(nocf)
        a("s_waitcnt vmcnt(0)")
        self.lds_signal(32)
        self.lds_wait(32, 20)
        self.stamp(14)
        a.label(j4)

    def pv_read_frags(self, base):
        a = self.a; T = S_T + 8; AF = 84
        a("v_lshrrev_b32 v6, 4, v1")
        a("v_and_b32 v7, 15, v1")
        a("v_lshrrev_b32 v8, 2, v7")
        a("v_lshl_add_u32 v8, v6, 3, v8")
        a("v_mul_u32_u24 v8, 192, v8")
        a("v_and_b32 v7, 3, v7")
        a("v_lshl_add_u32 v8, v7, 3, v8")
        a(f"s_lshr_b32 s{T}, s{S_W}, 1")
        a(f"s_and_b32 s{T}, s{T}, 1")
        a(f"s_mul_i32 s{T}, s{T}, 96")
        a(f"s_add_u32 s{T}, s{T}, {base}")
        a(f"v_add_u32 v8, s{T}, v8")
        cnt = 0
        for bb in range(8):
            for ct in range(3):
                r = AF + (bb*3+ct)*4; off = bb*6144 + ct*32
                a(f"ds_read_b64_tr_b16 {vr(r,2)}, v8 offset:{off}")
                a(f"ds_read_b64_tr_b16 {vr(r+2,2)}, v8 offset:{off+768}")
                cnt += 2
                if cnt % 12 == 0: a("s_waitcnt lgkmcnt(6)")

    def bset_pv_phase(self):
        a = self.a; T = S_T
        AF = 84; P = 20; MI = 52; DL = 60; ACC = 180; LA = 192; ON = 196
        a(f"s_cmp_lt_u32 s{S_W}, 4")
        a(f"s_cselect_b32 s{T}, 8, 0")
        a(f"s_lshl_b32 s{T+1}, s{S_G}, 4")
        a(f"s_add_u32 s{T+1}, s{T+1}, s{T}")
        a(f"s_and_b32 s{T+2}, s{S_W}, 1")
        a(f"s_mul_i32 s{T+3}, s{T+1}, {PBS}")
        a(f"s_lshl_b32 s{T+4}, s{T+2}, 10")
        a(f"s_add_u32 s{T+3}, s{T+3}, s{T+4}")
        a(f"s_add_u32 s{T+4}, s{T+3}, {WS_PBG}")
        a(f"s_add_u32 s{T+3}, s{T+3}, {WS_PBL}")
        a("v_lshlrev_b32 v5, 4, v1")
        a("v_and_b32 v6, 15, v1")
        a("v_lshlrev_b32 v6, 2, v6")
        a("v_lshrrev_b32 v7, 4, v1")
        a("v_lshl_add_u32 v6, v7, 7, v6")
        a(f"s_mul_i32 s{T+5}, s{T+2}, 960")
        a(f"s_sub_u32 s{T+5}, 2048, s{T+5}")
        a(f"v_add_u32 v6, s{T+5}, v6")
        for k in range(4): a(f"v_mov_b32 v{ON+k}, 0x3f803f80")
        a("v_and_b32 v14, 15, v1")
        a(f"s_mov_b32 s{T+5}, 49152")
        a(f"v_mul_lo_u32 v15, v14, s{T+5}")
        a("v_lshl_add_u32 v15, v7, 4, v15")
        a(f"s_mul_i32 s{T+5}, s{T+2}, {16*49152}")
        a(f"s_lshl_b32 s{T+6}, s{S_S}, 4")
        a(f"s_add_u32 s{T+6}, s{T+6}, s{S_G}")
        a(f"s_mul_i32 s{T+6}, s{T+6}, 384")
        a(f"s_add_u32 s{T+5}, s{T+5}, s{T+6}")
        a(f"s_lshr_b32 s{T+6}, s{S_W}, 1")
        a(f"s_and_b32 s{T+6}, s{T+6}, 1")
        a(f"s_mul_i32 s{T+7}, s{T+6}, 192")
        a(f"s_add_u32 s{T+5}, s{T+5}, s{T+7}")
        a(f"s_add_u32 s{T+5}, s{T+5}, {WS_OP}")
        a("v_lshlrev_b32 v14, 7, v14")
        a("v_mov_b32 v16, 0x7fffffff")
        a("v_cmp_gt_u32 vcc, 16, v1")
        a(f"s_lshl_b32 s{T+8}, s{T+2}, 11")
        a(f"s_lshl_b32 s{T+7}, s{S_G}, 3")
        a(f"s_add_u32 s{T+8}, s{T+8}, s{T+7}")
        a(f"s_add_u32 s{T+8}, s{T+8}, {WS_ML}")
        a("v_cndmask_b32 v14, v16, v14, vcc")
        a(f"s_or_b32 s{T+7}, s{T+6}, s{S_S}")
        a(f"s_cmp_eq_u32 s{T+7}, 0")
        a(f"s_cselect_b32 s{T+8}, s{T+8}, 0x7fffff00")
        a(f"s_and_b32 s{T+9}, s{S_W}, 3")
        a(f"s_lshl_b32 s{T+9}, s{T+9}, 12")
        a(f"s_add_u32 s{T+9}, s{T+9}, {self.L_PR}")
        a(f"v_add_u32 v17, s{T+9}, v5")
        def p_pre():
            if self.local:
                a(f"s_and_b32 s9, s{S_CNT}, {self.lperiod-1}")
                a(f"s_cmp_eq_u32 s9, {self.lperiod-1}")
                a(f"s_cselect_b32 s{S_PB}, s{T+4}, s{T+3}")
            else:
                a(f"s_mov_b32 s{S_PB}, s{T+4}")
        def p_issue(bb):
            a(f"s_add_u32 s9, s{S_PB}, {bb*PBS}")
            a(f"buffer_load_dwordx4 {vr(P+4*bb,4)}, v5, {srd('WS')}, s9 offen sc1")
            a(f"buffer_load_dword v{MI+bb}, v6, {srd('WS')}, s9 offen sc1")
        def p_check(bb):
            a(f"v_or3_b32 v7, v{P+4*bb}, v{P+4*bb+1}, v{P+4*bb+2}")
            a(f"v_or_b32 v7, v7, v{P+4*bb+3}")
            a("v_and_b32 v7, 0x80008000, v7")
            a(f"v_cmp_eq_u32 vcc, -1, v{MI+bb}")
            a("s_nop 1")
            a("v_cndmask_b32 v8, 0, 1, vcc")
            a("v_or_b32 v7, v7, v8")
            a("v_cmp_ne_u32 vcc, 0, v7")
        a("s_waitcnt lgkmcnt(0)")
        self.stamp(15)
        self.gpoll(8, p_issue, p_check, pre=p_pre)
        self.stamp(6)
        self.stamp_val(17, S_CNT)
        a(f"v_max3_f32 v9, v{MI}, v{MI+1}, v{MI+2}")
        a(f"v_max3_f32 v9, v9, v{MI+3}, v{MI+4}")
        a(f"v_max3_f32 v9, v9, v{MI+5}, v{MI+6}")
        a(f"v_max_f32 v9, v9, v{MI+7}")
        a("v_mov_b32 v10, v9")
        a("s_nop 1")
        a("v_permlane16_swap_b32 v9, v10")
        a("s_nop 1")
        a("v_max_f32 v9, v9, v10")
        a("v_mov_b32 v10, v9")
        a("s_nop 1")
        a("v_permlane32_swap_b32 v9, v10")
        a("s_nop 1")
        a("v_max_f32 v9, v9, v10")
        a(f"s_mov_b32 s{T+10}, 0x437f0000")
        a(f"s_mov_b32 s{T+11}, 0x00800080")
        for bb in range(8): a(f"v_sub_f32 v{DL+bb}, v9, v{MI+bb}")
        for bb in range(8): a(f"v_min_f32 v{DL+bb}, s{T+10}, v{DL+bb}")
        for bb in range(8): a(f"v_cvt_u32_f32 v{DL+bb}, v{DL+bb}")
        for bb in range(8): a(f"v_mul_u32_u24 v{DL+bb}, s{T+11}, v{DL+bb}")
        for k in range(4): a(f"v_pk_sub_u16 v{P+k}, v{P+k}, v{DL} clamp")
        for bb in range(8):
            if bb < 7:
                for k in range(4): a(f"v_pk_sub_u16 v{P+4*(bb+1)+k}, v{P+4*(bb+1)+k}, v{DL+bb+1} clamp")
            else:
                a("s_nop 1")
            for ct in range(3):
                c = "0" if bb == 0 else vr(ACC+4*ct, 4)
                a(f"v_mfma_f32_16x16x32_bf16 {vr(ACC+4*ct,4)}, {vr(AF+(bb*3+ct)*4,4)}, {vr(P+4*bb,4)}, {c}")
            c = "0" if bb == 0 else vr(LA, 4)
            a(f"v_mfma_f32_16x16x32_bf16 {vr(LA,4)}, {vr(ON,4)}, {vr(P+4*bb,4)}, {c}")
        a("s_nop 7")
        self.stamp(11)
        kp1 = a.newlabel("kp1")
        self.skip_if(f"s_cmp_lt_u32 s{S_W}, 4", kp1)
        a(f"v_mov_b32 v{LA+1}, v9")
        for ct in range(3): a(f"ds_write_b128 v17, {vr(ACC+4*ct,4)} offset:{ct*1024}")
        a(f"ds_write_b128 v17, {vr(LA,4)} offset:3072")
        a("s_waitcnt lgkmcnt(0)")
        a.label(kp1)
        a("s_barrier")
        self.stamp(12)
        fin = a.newlabel("pvfin")
        self.skip_if(f"s_cmp_ge_u32 s{S_W}, 4", fin)
        O = 20
        for k in range(4): a(f"ds_read_b128 {vr(O+4*k,4)}, v17 offset:{k*1024}")
        a("s_waitcnt lgkmcnt(0)")
        a(f"v_max_f32 v10, v9, v{O+13}")
        a("v_sub_f32 v11, v9, v10")
        a(f"v_sub_f32 v12, v{O+13}, v10")
        a("v_exp_f32 v11, v11")
        a("v_exp_f32 v12, v12")
        a("s_nop 0")
        for k in range(12): a(f"v_mul_f32 v{ACC+k}, v{ACC+k}, v11")
        for k in range(12): a(f"v_fmac_f32 v{ACC+k}, v{O+k}, v12")
        for k in range(12): a(f"v_min_u32 v{ACC+k}, 0xfffffffe, v{ACC+k}")
        if self.exp_linear:
            a(f"s_lshl_b32 s{T+5}, s{S_G}, 3")
            a(f"s_add_u32 s{T+5}, s{T+5}, s{S_S}")
            a(f"s_lshl_b32 s{T+5}, s{T+5}, 2")
            a(f"s_add_u32 s{T+5}, s{T+5}, s{S_W}")
            a(f"s_mul_i32 s{T+5}, s{T+5}, 3072")
            a(f"s_add_u32 s{T+5}, s{T+5}, {WS_OP}")
            for ct in range(3):
                a(f"buffer_store_dwordx4 {vr(ACC+4*ct,4)}, v5, {srd('WS')}, s{T+5} offen offset:{ct*1024} sc1")
        else:
          for ct in range(3):
            a(f"buffer_store_dwordx4 {vr(ACC+4*ct,4)}, v15, {srd('WS')}, s{T+5} offen offset:{ct*64} sc1")
        a(f"v_mul_f32 v{LA}, v{LA}, v11")
        a(f"v_fmac_f32 v{LA}, v{O+12}, v12")
        a(f"v_min_u32 v11, 0xfffffffe, v{LA}")
        a("v_min_u32 v10, 0xfffffffe, v10")
        a(f"buffer_store_dwordx2 v[10:11], v14, {srd('WS')}, s{T+8} offen sc1")
        a.label(fin)
        self.stamp(7)

    def bset_final(self):
        a = self.a; T = S_T
        self.skip_if(f"s_cmp_ge_u32 s{S_LB}, 5", "L_bend")
        a("v_lshlrev_b32 v5, 2, v1")
        for i in range(5):
            a(f"buffer_load_dword v{20+i}, v5, {srd('X')}, 0 offen offset:{256*i}")
            a(f"buffer_load_dword v{25+i}, v5, {srd('GW')}, 0 offen offset:{256*i}")
        a("v_mov_b32 v30, 0")
        a("s_waitcnt vmcnt(0)")
        for i in range(5): a(f"v_dot2c_f32_bf16 v30, v{20+i}, v{25+i}")
        a("s_nop 2")
        for ctrl in ["quad_perm:[1,0,3,2]", "quad_perm:[2,3,0,1]", "row_half_mirror", "row_mirror"]:
            a(f"v_add_f32_dpp v30, v30, v30 {ctrl} row_mask:0xf bank_mask:0xf")
            a("s_nop 1")
        a("v_mov_b32 v31, v30")
        a("s_nop 1")
        a("v_permlane16_swap_b32 v30, v31")
        a("s_nop 1")
        a("v_add_f32 v30, v30, v31")
        a("v_mov_b32 v31, v30")
        a("s_nop 1")
        a("v_permlane32_swap_b32 v30, v31")
        a("s_nop 1")
        a("v_add_f32 v30, v30, v31")
        a(f"v_mul_f32 v30, 0x{f32bits(-math.log2(math.e)):08x}, v30")
        a("v_exp_f32 v30, v30")
        a("s_nop 0")
        a("v_add_f32 v30, 1.0, v30")
        a("v_rcp_f32 v30, v30")
        a("s_nop 0")
        a("v_sub_f32 v31, 1.0, v30")
        a("v_cmp_le_u32 vcc, 48, v1")
        a("s_nop 1")
        a("v_cndmask_b32 v30, v30, v31, vcc")
        a(f"s_mul_i32 s{T}, s{S_X}, 5")
        a(f"s_add_u32 s{T}, s{T}, s{S_LB}")
        a(f"s_lshl_b32 s{T+1}, s{T}, 6")
        a(f"s_add_u32 s{T+1}, s{T+1}, {WS_OUTP}")
        a("v_lshrrev_b32 v6, 2, v0")
        a("v_mul_u32_u24 v6, 2560, v6")
        a("v_and_b32 v7, 3, v0")
        a("v_lshl_add_u32 v6, v7, 4, v6")
        a("v_and_b32 v8, 3, v1")
        a("v_lshlrev_b32 v8, 2, v8")
        a("v_bfe_u32 v9, v1, 5, 1")
        a("v_lshl_add_u32 v8, v9, 1, v8")
        a("v_bfe_u32 v9, v1, 4, 1")
        a("v_add_u32 v8, v8, v9")
        a("v_lshlrev_b32 v8, 2, v8")
        a(f"s_lshl_b32 s{T+2}, s{S_W}, 6")
        a(f"v_add_u32 v10, s{T+2}, v8")
        a("v_and_b32 v11, 15, v1")
        a("v_lshlrev_b32 v12, 2, v11")
        a("v_lshlrev_b32 v11, 1, v11")
        a("v_mov_b32 v9, 0x7fffffff")
        a("v_cmp_gt_u32 vcc, 16, v1")
        a(f"s_lshl_b32 s{T+2}, s{T}, 5")
        a("v_cndmask_b32 v11, v9, v11, vcc")
        l = self.poll_begin()
        a(f"buffer_load_dwordx4 v[32:35], v6, {srd('WS')}, s{T+1} offen sc1")
        a("s_waitcnt vmcnt(0)")
        a("v_max3_u32 v8, v32, v33, v34")
        a("v_max_u32 v8, v8, v35")
        a("v_cmp_eq_u32 vcc, -1, v8")
        a("s_nop 1")
        a("v_cndmask_b32 v8, 0, 1, vcc")
        self.poll_end(l, 8)
        self.stamp(9)
        self.stamp_val(18, S_CNT)
        for k in range(4): a(f"v_mul_f32 v{32+k}, v{32+k}, v30")
        a("s_nop 1")
        a("v_permlane32_swap_b32 v32, v34")
        a("v_permlane32_swap_b32 v33, v35")
        a("s_nop 1")
        a("v_add_f32 v32, v32, v34")
        a("v_add_f32 v33, v33, v35")
        a("s_nop 1")
        a("v_permlane16_swap_b32 v32, v33")
        a("s_nop 1")
        a("v_add_f32 v32, v32, v33")
        a("s_nop 1")
        a("v_add_f32_dpp v32, v32, v32 row_ror:8 row_mask:0xf bank_mask:0xf")
        a("s_nop 1")
        a("v_add_f32_dpp v32, v32, v32 row_ror:4 row_mask:0xf bank_mask:0xf")
        a(f"ds_write_b32 v10, v32 offset:{self.L_F}")
        a("s_waitcnt lgkmcnt(0)")
        a("s_barrier")
        self.skip_if(f"s_cmp_lg_u32 s{S_W}, 0", "L_bend")
        for w in range(8): a(f"ds_read_b32 v{40+w}, v12 offset:{self.L_F+w*64}")
        a("s_waitcnt lgkmcnt(0)")
        a("v_add_f32 v40, v40, v41\nv_add_f32 v42, v42, v43\nv_add_f32 v44, v44, v45\nv_add_f32 v46, v46, v47")
        a("v_add_f32 v40, v40, v42\nv_add_f32 v44, v44, v46")
        a("v_add_f32 v40, v40, v44")
        a("v_cvt_pk_bf16_f32 v40, v40, v40")
        a(f"buffer_store_short v40, v11, {srd('OUT')}, s{T+2} offen")
        self.stamp(10)
        a.label("L_bend")

    def build(self):
        a = self.a
        self.prologue()
        self.aset_front()
        self.aset_back()
        self.stamp_flush()
        a("s_branch L_exit")
        a.label("L_bset")
        self.bset_front()
        self.bset_s_phase()
        self.bset_pv_phase()
        self.bset_final()
        self.stamp_flush()
        a.label("L_exit")
        a("s_endpgm")
        hdr = f"""; generated by dev/gen2.py
; @launch grid=(256,1,1) block=(512,1,1) lds=163840
.amdgcn_target "amdgcn-amd-amdhsa--gfx950"
.text
.globl {NAME}_kernel
.p2align 8
.type {NAME}_kernel,@function
{NAME}_kernel:
"""
        ftr = f""".section .rodata,"a"
.p2align 6
.amdhsa_kernel {NAME}_kernel
  .amdhsa_next_free_vgpr 256
  .amdhsa_next_free_sgpr 102
  .amdhsa_accum_offset 256
  .amdhsa_group_segment_fixed_size 0
  .amdhsa_kernarg_size 112
  .amdhsa_user_sgpr_count 2
  .amdhsa_user_sgpr_kernarg_segment_ptr 1
  .amdhsa_system_sgpr_workgroup_id_x 1
.end_amdhsa_kernel
"""
        return hdr + a.text() + ftr

if __name__ == "__main__":
    out = sys.argv[1] if len(sys.argv) > 1 else "k.s"
    kw = {}
    for arg in sys.argv[2:]:
        if arg == "--stamps": kw["stamps"] = True
        elif arg.startswith("--"):
            k, v = arg[2:].split("="); kw[k] = int(v)
    open(out, "w").write(Gen(**kw).build())
```

```python
import sys, math, struct

NAME = "gated_mix__compressed_kv_cla__glu_gated_glu__decode"

WS_EPOCH = 0
WS_CF    = 0x400
WS_QA    = 0x10000
WS_QPG   = 0x20000
WS_QPL   = 0x80000
WS_PBG   = 0x100000
WS_PBL   = 0x1A0000
WS_ML    = 0x240000
WS_OUTP  = 0x250000
WS_OP    = 0x2A0000
WS_ST    = 0x440000
WS_SIZE  = 0x480000
PBS = 2560

S_W, S_X, S_LI, S_H, S_J4, S_EP = 3, 4, 5, 6, 7, 8
S_LB, S_BLK, S_G, S_S = 10, 11, 12, 13
S_WSCF = 14
SRD = dict(X=16, CKV=20, WQ=24, WUK=28, WUV=32, WO=36, WG=44, WU=48, WD=52, GW=56, OUT=60, WS=64)
SRD_SIZE = dict(X=1280, CKV=12582912, WQ=7864320, WUK=9437184, WUV=9437184, WO=7864320,
                WG=1966080, WU=1966080, WD=1966080, GW=1280, OUT=1280, WS=WS_SIZE)
KARG = dict(X=0, CKV=8, WQ=16, WUK=24, WUV=32, WO=40, WG=56, WU=64, WD=72, GW=80, OUT=88, WS=104)
S_M8 = 72
S_T = 74
S_CNT = 96
S_PB = 97
S_PM = 15
S_STAMP = 98
POLL_LIMIT = 100000

class Asm:
    def __init__(self):
        self.L = []; self.uid = 0
    def __call__(self, s):
        for line in s.strip("\n").split("\n"):
            self.L.append("    " + line.strip())
    def label(self, n): self.L.append(n + ":")
    def newlabel(self, base):
        self.uid += 1
        return f"L_{base}_{self.uid}"
    def text(self): return "\n".join(self.L) + "\n"

def srd(n):
    b = SRD[n]; return f"s[{b}:{b+3}]"
def vr(b, n=1):
    return f"v{b}" if n == 1 else f"v[{b}:{b+n-1}]"
def f32bits(x):
    return struct.unpack("<I", struct.pack("<f", x))[0]

class Gen:
    def __init__(self, stamps=False, code_pf=0, tlb_warm=0, tlb_shift=21, nt_front=False, nt_ckv=False, nt_back=False, local=True, lperiod=8, a_delay=1, qa_ack=1, exp_linear=0, a_win=63, s_win=63, pv_win=63, mlpoll=1, exp_nobulk=0, a_probe=0, s_probe=0, exp_noclear=0, exp_nowuk=0):
        self.a = Asm()
        self.stamps = stamps
        self.NTF = " nt" if nt_front else ""
        self.NTC = " nt" if nt_ckv else ""
        self.NTB = " nt" if nt_back else ""
        self.local = local
        self.a_delay = a_delay
        self.qa_ack = qa_ack
        self.code_pf = code_pf
        self.tlb_warm = tlb_warm; self.tlb_shift = tlb_shift
        self.exp_noclear = exp_noclear; self.exp_nowuk = exp_nowuk
        self.a_probe = a_probe; self.s_probe = s_probe
        self.exp_nobulk = exp_nobulk
        self.a_win = a_win; self.s_win = s_win; self.pv_win = pv_win; self.mlpoll = mlpoll
        self.exp_linear = exp_linear
        self.lperiod = lperiod
        self.L_Q = 0; self.L_QS = 512; self.L_F = 3072; self.L_FLAG = 2048; self.L_X = 4096
        self.L_S = 8192; self.L_PA = 106496; self.L_RED = 57344; self.L_PR = 90112
        self.L_O = 4096; self.L_C = 12288; self.L_CB = 14336; self.L_R = 16384
        self.PVO = 212

    def stamp(self, idx):
        if not self.stamps: return
        a = self.a
        a(f"s_memrealtime s[{S_STAMP}:{S_STAMP+1}]")
        a("s_waitcnt lgkmcnt(0)")
        a(f"v_writelane_b32 v255, s{S_STAMP}, {idx}")
    def stamp_val(self, idx, sreg):
        if not self.stamps: return
        self.a(f"s_add_u32 s9, s{sreg}, 1")
        self.a(f"v_writelane_b32 v255, s9, {idx}")
    def stamp_flush(self):
        if not self.stamps: return
        a = self.a
        a(f"s_lshl_b32 s{S_T+20}, s2, 3")
        a(f"s_add_u32 s{S_T+20}, s{S_T+20}, s{S_W}")
        a(f"s_lshl_b32 s{S_T+20}, s{S_T+20}, 7")
        a(f"s_add_u32 s{S_T+20}, s{S_T+20}, {WS_ST}")
        a("v_lshlrev_b32 v252, 2, v1")
        a("s_mov_b32 exec_lo, -1")
        a("s_mov_b32 exec_hi, 0")
        a(f"buffer_store_dword v255, v252, {srd('WS')}, s{S_T+20} offen")
        a("s_mov_b64 exec, -1")

    def treduce8(self, acc, t0, t1):
        a = self.a
        a("s_nop 2")
        for k in range(4): a(f"v_permlane32_swap_b32 v{acc+k}, v{acc+k+4}")
        a("s_nop 1")
        for k in range(4): a(f"v_add_f32 v{acc+k}, v{acc+k}, v{acc+k+4}")
        a("s_nop 1")
        for k in range(2): a(f"v_permlane16_swap_b32 v{acc+k}, v{acc+k+2}")
        a("s_nop 1")
        for k in range(2): a(f"v_add_f32 v{acc+k}, v{acc+k}, v{acc+k+2}")
        a("s_nop 0")
        a(f"v_cndmask_b32 v{t0}, v{acc}, v{acc+1}, s[{S_M8}:{S_M8+1}]")
        a(f"v_cndmask_b32 v{t1}, v{acc+1}, v{acc}, s[{S_M8}:{S_M8+1}]")
        a("s_nop 1")
        a(f"v_add_f32_dpp v{acc}, v{t1}, v{t0} row_ror:8 row_mask:0xf bank_mask:0xf")

    def skip_if(self, cmp, label):
        self.a(cmp); self.a(f"s_cbranch_scc1 {label}")

    def poll_begin(self, lbase=None, gbase=None):
        a = self.a
        l = a.newlabel("poll")
        a(f"s_mov_b32 s{S_CNT}, 0")
        a.label(l)
        if lbase is not None:
            if self.local:
                a(f"s_and_b32 s9, s{S_CNT}, {self.lperiod-1}")
                a(f"s_cmp_eq_u32 s9, {self.lperiod-1}")
                a(f"s_cselect_b32 s{S_PB}, s{gbase}, s{lbase}")
            else:
                a(f"s_mov_b32 s{S_PB}, s{gbase}")
        return l
    def poll_end(self, l, vbad):
        a = self.a
        ok = a.newlabel("ok")
        a(f"v_cmp_ne_u32 vcc, 0, v{vbad}")
        a(f"s_cbranch_vccz {ok}")
        a(f"s_add_u32 s{S_CNT}, s{S_CNT}, 1")
        a(f"s_cmp_lt_u32 s{S_CNT}, {POLL_LIMIT}")
        a(f"s_cbranch_scc1 {l}")
        a.label(ok)

    def gpoll(self, n, issue, check, pre=None, first_issued=False):
        a = self.a
        top = a.newlabel("gp"); done = a.newlabel("gpd")
        a(f"s_mov_b32 s{S_PM}, {(1<<n)-1}")
        a(f"s_mov_b32 s{S_CNT}, 0")
        if first_issued:
            chk = a.newlabel("gpc")
            a(f"s_branch {chk}")
        a.label(top)
        if pre: pre()
        for i in range(n):
            sk = a.newlabel("gi")
            a(f"s_bitcmp0_b32 s{S_PM}, {i}")
            a(f"s_cbranch_scc1 {sk}")
            issue(i)
            a.label(sk)
        if first_issued: a.label(chk)
        a("s_waitcnt vmcnt(0)")
        for i in range(n):
            sk = a.newlabel("gc")
            a(f"s_bitcmp0_b32 s{S_PM}, {i}")
            a(f"s_cbranch_scc1 {sk}")
            check(i)
            a(f"s_cbranch_vccnz {sk}")
            a(f"s_bitset0_b32 s{S_PM}, {i}")
            a.label(sk)
        a(f"s_cmp_eq_u32 s{S_PM}, 0")
        a(f"s_cbranch_scc1 {done}")
        a(f"s_add_u32 s{S_CNT}, s{S_CNT}, 1")
        a(f"s_cmp_lt_u32 s{S_CNT}, {POLL_LIMIT}")
        a(f"s_cbranch_scc1 {top}")
        a.label(done)

    def lds_signal(self, base, widx_mask=3):
        a = self.a
        a(f"s_and_b32 s9, s{S_W}, {widx_mask}")
        a("s_lshl_b32 s9, s9, 2")
        a(f"s_add_u32 s9, s9, {self.L_FLAG+base}")
        a("v_mov_b32 v6, s9")
        a("v_mov_b32 v7, 1")
        a("ds_write_b32 v6, v7")
    def lds_wait(self, base, vt):
        a = self.a
        a(f"v_mov_b32 v6, {self.L_FLAG+base}")
        l = self.poll_begin()
        a(f"ds_read_b128 {vr(vt,4)}, v6")
        a("s_waitcnt lgkmcnt(0)")
        a(f"v_and_b32 v{vt}, v{vt}, v{vt+1}")
        a(f"v_and_b32 v{vt+2}, v{vt+2}, v{vt+3}")
        a(f"v_and_b32 v{vt}, v{vt}, v{vt+2}")
        a(f"v_xor_b32 v{vt}, 1, v{vt}")
        self.poll_end(l, vt)

    def cf_check(self, vb):
        a = self.a
        a(f"v_lshlrev_b32 v{vb+4}, 4, v1")
        l = self.poll_begin()
        a(f"buffer_load_dwordx4 {vr(vb,4)}, v{vb+4}, {srd('WS')}, s{S_WSCF} offen sc1")
        a("s_waitcnt vmcnt(0)")
        for k in range(4): a(f"v_xor_b32 v{vb+k}, s{S_EP}, v{vb+k}")
        a(f"v_or3_b32 v{vb}, v{vb}, v{vb+1}, v{vb+2}")
        a(f"v_or_b32 v{vb}, v{vb}, v{vb+3}")
        self.poll_end(l, vb)

    def mk_srd(self, n):
        a = self.a; b = SRD[n]
        if n != "WS":
            src = 76 + KARG[n] // 4
            a(f"s_mov_b64 s[{b}:{b+1}], s[{src}:{src+1}]")
        a(f"s_mov_b32 s{b+2}, {SRD_SIZE[n]}")
        a(f"s_mov_b32 s{b+3}, 0x00020000")

    def prologue(self):
        a = self.a; T = S_T
        if self.stamps: a("s_memrealtime s[42:43]")
        a("s_cmp_ge_u32 s2, 256")
        a("s_cbranch_scc1 L_exit")
        a("s_load_dwordx16 s[76:91], s[0:1], 0")
        a("s_load_dwordx8 s[92:99], s[0:1], 64")
        a("s_load_dwordx2 s[64:65], s[0:1], 104")
        a("v_lshrrev_b32 v2, 6, v0")
        a("v_and_b32 v1, 63, v0")
        a(f"v_readfirstlane_b32 s{S_W}, v2")
        a(f"s_lshr_b32 s{S_LI}, s2, 3")
        a(f"s_and_b32 s{S_LI}, s{S_LI}, 15")
        if self.code_pf:
            npf = a.newlabel("npf"); lp = a.newlabel("pfl")
            a(f"s_and_b32 s9, s{S_LI}, 7")
            a("s_lshl_b32 s9, s9, 3")
            a(f"s_add_u32 s9, s9, s{S_W}")
            self.skip_if("s_cmp_lg_u32 s9, 7", npf)
            a("s_getpc_b64 s[40:41]")
            a("v_lshlrev_b32 v252, 4, v1")
            a(f"s_mov_b32 s9, {self.code_pf}")
            a.label(lp)
            a("global_load_dwordx4 v[248:251], v252, s[40:41]")
            a("v_add_u32 v252, 1024, v252")
            a("s_sub_u32 s9, s9, 1")
            a("s_cmp_lg_u32 s9, 0")
            a(f"s_cbranch_scc1 {lp}")
            a.label(npf)
        a(f"s_and_b32 s{S_X}, s2, 7")
        a(f"s_and_b32 s9, s{S_LI}, 3")
        a(f"s_lshl_b32 s{S_H}, s{S_X}, 2")
        a(f"s_add_u32 s{S_H}, s{S_H}, s9")
        a(f"s_lshr_b32 s{S_J4}, s{S_LI}, 2")
        a("v_lshrrev_b32 v2, 3, v1")
        a("v_and_b32 v3, 7, v1")
        a("v_mul_u32_u24 v4, 12288, v2")
        a("v_lshl_add_u32 v4, v3, 4, v4")
        a("s_cmp_lt_u32 s2, 128")
        a("s_cbranch_scc0 L_apre")
        a(f"s_cmp_ge_u32 s{S_W}, 3")
        a("s_cselect_b32 s100, 1, 0")
        a("s_mul_i32 s101, s100, 3")
        a(f"s_sub_u32 s101, s{S_W}, s101")
        a(f"s_mul_i32 s44, s{S_J4}, 160")
        a("s_mul_i32 s45, s100, 80")
        a("s_add_u32 s44, s44, s45")
        a("s_lshl_b32 s46, s44, 1")
        a("s_mul_i32 s44, s44, 12288")
        a(f"s_mul_i32 s45, s{S_H}, 384")
        a("s_add_u32 s44, s44, s45")
        a("s_lshl_b32 s45, s101, 7")
        a("s_add_u32 s44, s44, s45")
        a(f"s_mov_b32 s{SRD['WQ']+2}, {SRD_SIZE['WQ']}")
        a(f"s_mov_b32 s{SRD['WQ']+3}, 0x00020000")
        a("s_waitcnt lgkmcnt(0)")
        a(f"s_mov_b64 s[{SRD['WQ']}:{SRD['WQ']+1}], s[80:81]")
        nl = a.newlabel("bnl")
        self.skip_if(f"s_cmp_ge_u32 s{S_W}, 6", nl)
        for i in range(10):
            a(f"buffer_load_dwordx4 {vr(20+4*i,4)}, v4, {srd('WQ')}, s44 offen{self.NTF}")
            if i < 9: a("s_add_u32 s44, s44, 98304")
        a.label(nl)
        a("s_branch L_pre2")
        a.label("L_apre")
        a(f"s_lshr_b32 s100, s{S_W}, 1")
        a(f"s_and_b32 s101, s{S_W}, 1")
        a(f"s_mul_i32 s44, s{S_J4}, 192")
        a("s_mul_i32 s45, s100, 48")
        a("s_add_u32 s44, s44, s45")
        a("s_lshl_b32 s45, s101, 3")
        a("s_add_u32 s44, s44, s45")
        a("s_mul_i32 s44, s44, 12288")
        a(f"s_mul_i32 s45, s{S_H}, 384")
        a("s_add_u32 s44, s44, s45")
        a(f"s_mov_b32 s{SRD['WUK']+2}, {SRD_SIZE['WUK']}")
        a(f"s_mov_b32 s{SRD['WUK']+3}, 0x00020000")
        a("s_waitcnt lgkmcnt(0)")
        a(f"s_mov_b64 s[{SRD['WUK']}:{SRD['WUK']+1}], s[82:83]")
        for f in range(3):
            for t in range(3):
                a(f"buffer_load_dwordx4 {vr(20+(f*3+t)*4,4)}, v4, {srd('WUK')}, s44 offen offset:{t*128}{self.NTF}")
            if f < 2: a("s_add_u32 s44, s44, 196608")
        a.label("L_pre2")
        a(f"s_load_dword s{S_EP}, s[64:65], {WS_EPOCH}")
        a(f"s_mov_b32 s{T}, s100")
        a(f"s_mov_b32 s{T+1}, s101")
        a(f"s_mov_b32 s{S_PM}, s46")
        for n in SRD: self.mk_srd(n)
        if self.stamps:
            a("v_mov_b32 v255, 0")
            self.stamp(0)
            a("v_writelane_b32 v255, s42, 23")
        a(f"s_mov_b32 s{S_M8}, 0xff00ff00")
        a(f"s_mov_b32 s{S_M8+1}, 0xff00ff00")
        a(f"s_mov_b32 s{S_WSCF}, {WS_CF}")
        a("s_cmp_lt_u32 s2, 128")
        a("s_cbranch_scc0 L_aset")

    def aset_front(self):
        a = self.a; T = S_T
        W0 = 20; QF = 56; ACC = 68
        a(f"s_lshl_b32 s{T+10}, s{S_X}, 4")
        a(f"s_add_u32 s{T+10}, s{T+10}, s{S_LI}")
        a(f"s_mul_i32 s{T+10}, s{T+10}, 2560")
        a(f"s_add_u32 s{T+10}, s{T+10}, {WS_OUTP}")
        a("v_mov_b32 v76, -1\nv_mov_b32 v77, -1\nv_mov_b32 v78, -1\nv_mov_b32 v79, -1")
        a("v_lshlrev_b32 v80, 4, v0")
        a("v_mov_b32 v81, 0x7fffffff")
        a("v_cmp_gt_u32 vcc, 160, v0")
        a("s_nop 1")
        a("v_cndmask_b32 v80, v81, v80, vcc")
        a(f"buffer_store_dwordx4 v[76:79], v80, {srd('WS')}, s{T+10} offen sc1")
        a("v_lshlrev_b32 v5, 2, v1")
        a("v_mov_b32 v6, 0")
        a(f"ds_write_b32 v5, v6 offset:{self.L_CB}")
        a(f"ds_write_b32 v5, v6 offset:{self.L_CB+256}")
        a(f"s_mul_i32 s{T+5}, s{S_H}, {8*1536}")
        a(f"s_add_u32 s{T+6}, s{T+5}, {WS_QPL}")
        a(f"s_add_u32 s{T+5}, s{T+5}, {WS_QPG}")
        a("s_waitcnt vmcnt(0) lgkmcnt(0)")
        a(f"s_add_u32 s{S_EP}, s{S_EP}, 1")
        self.stamp(1)
        skip = a.newlabel("e1skip")
        self.skip_if(f"s_cmp_ge_u32 s{S_W}, 3", skip)
        a("v_lshlrev_b32 v5, 3, v0")
        G = 84
        l = self.poll_begin(T+6, T+5)
        for p in range(8):
            a(f"buffer_load_dwordx2 {vr(G+2*p,2)}, v5, {srd('WS')}, s{S_PB} offen offset:{(p%2)*1536} sc1")
            if p % 2 == 1 and p < 7: a(f"s_add_u32 s{S_PB}, s{S_PB}, 3072")
        a("s_waitcnt vmcnt(0)")
        a(f"v_xor_b32 v6, s{S_EP}, v{G+1}")
        for p in range(1, 8):
            a(f"v_xor_b32 v7, s{S_EP}, v{G+2*p+1}")
            a("v_or_b32 v6, v6, v7")
        self.poll_end(l, 6)
        self.stamp_val(16, S_CNT)
        for p in range(1, 8): a(f"v_add_f32 v{G}, v{G}, v{G+2*p}")
        a(f"v_cvt_pk_bf16_f32 v6, v{G}, v{G}")
        a("v_lshlrev_b32 v7, 1, v0")
        a(f"ds_write_b16 v7, v6 offset:{self.L_Q}")
        a("s_waitcnt lgkmcnt(0)")
        a.label(skip)
        a("v_lshlrev_b32 v5, 4, v3")
        a(f"s_lshl_b32 s{T+7}, s{S_W}, 6")
        a("v_lshlrev_b32 v10, 1, v2")
        a(f"v_add_u32 v10, s{T+7}, v10")
        a("v_lshlrev_b32 v6, 4, v1")
        a("v_mov_b32 v7, 4")
        a("v_cmp_eq_u32 vcc, 3, v1")
        a("v_mov_b32 v8, 12")
        a("v_mov_b32 v9, 16")
        a("v_cndmask_b32 v6, v6, v8, vcc")
        a("v_cndmask_b32 v7, v7, v9, vcc")
        a("v_and_b32 v6, 63, v6")
        a(f"v_add_u32 v11, s{T+7}, v6")
        a("v_add_u32 v12, v11, v7")
        a("v_add_u32 v13, v12, v7")
        a(f"s_lshl_b32 s{T+8}, s{S_J4}, 2")
        a(f"s_add_u32 s{T+8}, s{T+8}, s{T}")
        a(f"s_lshl_b32 s{T+8}, s{T+8}, 12")
        a(f"s_lshl_b32 s{T+9}, s{T+1}, 9")
        a(f"s_add_u32 s{T+8}, s{T+8}, s{T+9}")
        a(f"s_lshl_b32 s{T+9}, s{S_H}, 4")
        a(f"s_add_u32 s{T+8}, s{T+8}, s{T+9}")
        a(f"s_add_u32 s{T+8}, s{T+8}, {WS_QA}")
        a("v_lshlrev_b32 v14, 10, v1")
        a("v_mov_b32 v7, 0x7fffffff")
        a("v_cmp_gt_u32 vcc, 4, v1")
        a(f"v_mov_b32 v75, s{S_EP}")
        a("v_cndmask_b32 v14, v7, v14, vcc")
        for f in range(3): a(f"v_mov_b32 v{ACC+f}, 0")
        a("s_barrier")
        self.stamp(2)
        for t in range(3):
            a(f"ds_read_b128 {vr(QF+4*t,4)}, v5 offset:{self.L_Q + t*128}")
        for t in range(3):
            a(f"s_waitcnt lgkmcnt({2-t})")
            for k in range(4):
                for f in range(3):
                    a(f"v_dot2c_f32_bf16 v{ACC+f}, v{W0+(f*3+t)*4+k}, v{QF+4*t+k}")
        a("s_nop 2")
        for ctrl in ["quad_perm:[1,0,3,2]", "quad_perm:[2,3,0,1]", "row_half_mirror"]:
            for f in range(3):
                a(f"v_add_f32_dpp v{ACC+f}, v{ACC+f}, v{ACC+f} {ctrl} row_mask:0xf bank_mask:0xf")
        for f in range(3): a(f"v_cvt_pk_bf16_f32 v{ACC+f}, v{ACC+f}, v{ACC+f}")
        for f in range(3): a(f"ds_write_b16 v10, v{ACC+f} offset:{self.L_QS + f*16}")
        a("s_waitcnt lgkmcnt(0)")
        a(f"ds_read_b32 v72, v11 offset:{self.L_QS}")
        a(f"ds_read_b32 v73, v12 offset:{self.L_QS}")
        a(f"ds_read_b32 v74, v13 offset:{self.L_QS}")
        a("s_waitcnt lgkmcnt(0)")
        a(f"buffer_store_dwordx4 v[72:75], v14, {srd('WS')}, s{T+8} offen sc1")
        self.stamp(3)
        if self.qa_ack: a("s_waitcnt vmcnt(0)")
        a("s_barrier")

    def wo_lane_offsets(self):
        a = self.a
        a("v_mul_u32_u24 v6, 52429, v0")
        a("v_lshrrev_b32 v6, 22, v6")
        a("v_mul_u32_u24 v7, 80, v6")
        a("v_sub_u32 v7, v0, v7")
        a("v_mul_u32_u24 v5, 1280, v6")
        a("v_lshl_add_u32 v5, v7, 4, v5")
        a("v_mov_b32 v8, 0x7fffffff")
        a("v_cmp_gt_u32 vcc, 480, v0")
        a("s_nop 1")
        a("v_cndmask_b32 v5, v8, v5, vcc")

    def preperm(self, W0, npairs, t0):
        a = self.a
        a("s_mov_b32 s94, 0x05040100")
        a("s_mov_b32 s95, 0x07060302")
        for p in range(npairs):
            for k in range(4):
                r0 = W0 + 8*p + k; r1 = r0 + 4
                a(f"v_perm_b32 v{t0}, v{r1}, v{r0}, s94")
                a(f"v_perm_b32 v{r1}, v{r1}, v{r0}, s95")
                a(f"v_mov_b32 v{r0}, v{t0}")

    def gemv_pairs(self, W0, npairs, CO, ACC):
        a = self.a
        for p in range(npairs):
            for k in range(4):
                a(f"v_dot2c_f32_bf16 v{ACC+2*k}, v{W0+8*p+k}, v{CO+p}")
            for k in range(4):
                a(f"v_dot2c_f32_bf16 v{ACC+2*k+1}, v{W0+8*p+4+k}, v{CO+p}")

    def out_reduce_publish(self, ACC, outp_soff):
        a = self.a
        a("s_nop 2")
        a(f"ds_write_b128 v129, {vr(ACC,4)} offset:{self.L_R}")
        a(f"ds_write_b128 v129, {vr(ACC+4,4)} offset:{self.L_R+16}")
        a("s_waitcnt lgkmcnt(0)")
        a("s_barrier")
        skip = a.newlabel("go")
        self.skip_if(f"s_cmp_ge_u32 s{S_W}, 3", skip)
        R = 132
        for sl in range(6):
            a(f"ds_read_b128 {vr(R+4*sl,4)}, v131 offset:{self.L_R+sl*2560}")
        a("s_waitcnt lgkmcnt(0)")
        for k in range(4):
            a(f"v_add_f32 v{R+k}, v{R+k}, v{R+4+k}")
            a(f"v_add_f32 v{R+8+k}, v{R+8+k}, v{R+12+k}")
            a(f"v_add_f32 v{R+16+k}, v{R+16+k}, v{R+20+k}")
        for k in range(4): a(f"v_add_f32 v{R+k}, v{R+k}, v{R+8+k}")
        for k in range(4): a(f"v_add_f32 v{R+k}, v{R+k}, v{R+16+k}")
        for k in range(4): a(f"v_min_u32 v{R+k}, 0xfffffffe, v{R+k}")
        a(f"buffer_store_dwordx4 {vr(R,4)}, v130, {srd('WS')}, s{outp_soff} offen sc1")
        a.label(skip)

    def write_pairs(self, vsrc, t0, t1, nvalid):
        a = self.a
        a(f"v_lshlrev_b32 v{t0}, 2, v1")
        a(f"v_add_u32 v{t1}, {self.L_CB - 24 + 2}, v{t0}")
        a(f"v_add_u32 v{t0}, {self.L_CB}, v{t0}")
        a(f"v_mov_b32 v{t0+2}, {self.L_CB + 500}")
        a("v_cmp_gt_u32 vcc, 6, v1")
        a("s_nop 1")
        a(f"v_cndmask_b32 v{t1}, v{t1}, v{t0+2}, vcc")
        if nvalid < 64:
            a(f"v_cmp_le_u32 vcc, {nvalid}, v1")
            a("s_nop 1")
            a(f"v_cndmask_b32 v{t1}, v{t1}, v{t0+2}, vcc")
            a(f"v_cndmask_b32 v{t0}, v{t0}, v{t0+2}, vcc")
        a(f"ds_write_b16 v{t0}, v{vsrc}")
        a(f"ds_write_b16 v{t1}, v{vsrc}")

    def out_addr_regs(self):
        a = self.a
        a("v_mul_u32_u24 v129, 2560, v6")
        a("v_lshl_add_u32 v129, v7, 5, v129")
        a("v_lshlrev_b32 v131, 4, v0")
        a("v_mov_b32 v130, 0x7fffffff")
        a("v_cmp_gt_u32 vcc, 160, v0")
        a("s_nop 1")
        a("v_cndmask_b32 v130, v130, v131, vcc")

    def aset_back(self):
        a = self.a; T = S_T
        self.wo_lane_offsets()
        self.out_addr_regs()
        if self.exp_nobulk:
            a(f"s_lshl_b32 s{T+1}, s{S_H}, 7")
            a(f"s_add_u32 s{T+1}, s{T+1}, {WS_ML}")
            a("v_and_b32 v14, 15, v1")
            a("v_lshlrev_b32 v14, 3, v14")
            self.cf_check(132)
            l = self.poll_begin()
            a(f"buffer_load_dwordx2 v[116:117], v14, {srd('WS')}, s{T+1} offen sc1")
            a("s_waitcnt vmcnt(0)")
            a("v_max_u32 v15, v116, v117")
            a("v_cmp_eq_u32 vcc, -1, v15")
            a("s_nop 1")
            a("v_cndmask_b32 v15, 0, 1, vcc")
            a("s_sleep 4")
            self.poll_end(l, 15)
        self.skip_if(f"s_cmp_ge_u32 s{S_LI}, 12", "L_bbranch")
        WV = 20; WO = 68
        a(f"s_mul_i32 s{T}, s{S_W}, {96*12288}")
        a(f"s_mul_i32 s{T+1}, s{S_H}, 384")
        a(f"s_add_u32 s{T}, s{T}, s{T+1}")
        a(f"s_lshl_b32 s{T+1}, s{S_J4}, 7")
        a(f"s_add_u32 s{T}, s{T}, s{T+1}")
        for i in range(12):
            a(f"buffer_load_dwordx4 {vr(WV+4*i,4)}, v4, {srd('WUV')}, s{T} offen{self.NTB}")
            if i >= self.a_win: a(f"s_waitcnt vmcnt({self.a_win})")
            if i < 11: a(f"s_add_u32 s{T}, s{T}, 98304")
        a(f"s_mul_i32 s{T}, s{S_H}, 192")
        a(f"s_lshl_b32 s{T+1}, s{S_J4}, 6")
        a(f"s_add_u32 s{T}, s{T}, s{T+1}")
        a(f"s_mul_i32 s{T}, s{T}, 1280")
        for i in range(10):
            a(f"buffer_load_dwordx4 {vr(WO+4*i,4)}, v5, {srd('WO')}, s{T} offen{self.NTB}")
            if 12 + i >= self.a_win: a(f"s_waitcnt vmcnt({self.a_win})")
            a(f"s_add_u32 s{T}, s{T}, 7680")
        a("v_cmp_gt_u32 vcc, 4, v6")
        a("s_nop 1")
        a("v_cndmask_b32 v9, v8, v5, vcc")
        a(f"buffer_load_dwordx4 {vr(WO+40,4)}, v9, {srd('WO')}, s{T} offen{self.NTB}")
        for k in range(4): a(f"v_mov_b32 v{WO+44+k}, 0")
        self.stamp(4)
        a("v_cmp_le_u32 vcc, 24, v1")
        a("s_nop 1")
        a("v_cndmask_b32 v10, 0, 1, vcc")
        a("v_mul_u32_u24 v11, 24, v10")
        a("v_sub_u32 v11, v1, v11")
        a("v_mul_u32_u24 v12, 384, v10")
        a("v_lshl_add_u32 v12, v11, 4, v12")
        a(f"s_lshl_b32 s{T+2}, s{S_W}, 10")
        a(f"s_add_u32 s{T+2}, s{T+2}, {self.L_O}")
        a(f"v_add_u32 v13, s{T+2}, v12")
        a("v_cmp_gt_u32 vcc, 48, v1")
        a("v_lshlrev_b32 v16, 2, v2")
        a(f"v_add_u32 v16, s{T+2}, v16")
        a("v_cndmask_b32 v12, v8, v12, vcc")
        a(f"s_lshl_b32 s{T}, s{S_H}, 3")
        a(f"s_add_u32 s{T}, s{T}, s{S_W}")
        a(f"s_mul_i32 s{T}, s{T}, {16*384}")
        a(f"s_add_u32 s{T}, s{T}, {WS_OP}")
        a(f"s_lshl_b32 s{T+1}, s{S_H}, 7")
        a(f"s_add_u32 s{T+1}, s{T+1}, {WS_ML}")
        a("v_and_b32 v14, 15, v1")
        a("v_lshlrev_b32 v14, 3, v14")
        a("v_lshlrev_b32 v121, 2, v10")
        a("v_lshlrev_b32 v17, 5, v3")
        a("v_lshl_add_u32 v17, v2, 2, v17")
        a(f"s_lshl_b32 s{T+3}, s{S_W}, 8")
        a(f"v_add_u32 v17, s{T+3}, v17")
        a("v_lshlrev_b32 v18, 2, v6")
        a("v_lshlrev_b32 v172, 2, v1")
        a(f"v_add_u32 v173, {self.L_CB - 24 + 2}, v172")
        a(f"v_add_u32 v172, {self.L_CB}, v172")
        a(f"v_mov_b32 v174, {self.L_CB + 500}")
        a("v_cmp_gt_u32 vcc, 6, v1")
        a("s_nop 1")
        a("v_cndmask_b32 v173, v173, v174, vcc")
        a("s_waitcnt vmcnt(11)")
        self.preperm(WV, 6, 128)
        a("s_waitcnt vmcnt(0)")
        self.preperm(WO, 6, 128)
        self.stamp(5)
        self.cf_check(132)
        OPV = 132
        def e4_issue(i):
            if i == 8:
                a(f"buffer_load_dwordx2 v[116:117], v14, {srd('WS')}, s{T+1} offen sc1")
            else:
                so = T if i < 4 else T+2
                a(f"buffer_load_dwordx4 {vr(OPV+4*i,4)}, v12, {srd('WS')}, s{so} offen offset:{(i%4)*768} sc1")
        def e4_check(i):
            if i == 8:
                a("v_max_u32 v15, v116, v117")
            else:
                a(f"v_max3_u32 v15, v{OPV+4*i}, v{OPV+4*i+1}, v{OPV+4*i+2}")
                a(f"v_max_u32 v15, v15, v{OPV+4*i+3}")
            a("v_cmp_eq_u32 vcc, -1, v15")
        a(f"s_add_u32 s{T+2}, s{T}, 3072")
        if self.mlpoll:
            l = self.poll_begin()
            a(f"buffer_load_dwordx2 v[116:117], v14, {srd('WS')}, s{T+1} offen sc1")
            a("s_waitcnt vmcnt(0)")
            a("v_max_u32 v15, v116, v117")
            a("v_cmp_eq_u32 vcc, -1, v15")
            a("s_nop 1")
            a("v_cndmask_b32 v15, 0, 1, vcc")
            self.poll_end(l, 15)
            self.gpoll(8, e4_issue, e4_check)
        else:
            self.gpoll(9, e4_issue, e4_check)
        self.stamp(6)
        self.stamp_val(17, S_CNT)
        a("v_mov_b32 v118, v116")
        a("s_nop 1")
        for ctrl in ["quad_perm:[1,0,3,2]", "quad_perm:[2,3,0,1]", "row_half_mirror", "row_mirror"]:
            a(f"v_max_f32_dpp v118, v118, v118 {ctrl} row_mask:0xf bank_mask:0xf")
            a("s_nop 1")
        a("v_sub_f32 v119, v116, v118")
        a("v_exp_f32 v119, v119")
        a("s_nop 0")
        a("v_mul_f32 v120, v117, v119")
        WN = 164
        for i in range(8): a(f"ds_bpermute_b32 v{WN+i}, v121, v119 offset:{8*i}")
        for ctrl in ["quad_perm:[1,0,3,2]", "quad_perm:[2,3,0,1]", "row_half_mirror", "row_mirror"]:
            a(f"v_add_f32_dpp v120, v120, v120 {ctrl} row_mask:0xf bank_mask:0xf")
            a("s_nop 1")
        a("v_rcp_f32 v120, v120")
        a("s_waitcnt lgkmcnt(0)")
        for k in range(4): a(f"v_mul_f32 v{122+k}, v{WN}, v{OPV+k}")
        for i in range(1, 8):
            for k in range(4): a(f"v_fmac_f32 v{122+k}, v{WN+i}, v{OPV+4*i+k}")
        for k in range(4): a(f"v_mul_f32 v{122+k}, v{122+k}, v120")
        a("s_mov_b32 exec_hi, 0xffff")
        a("ds_write_b128 v13, v[122:125]")
        a("s_mov_b32 exec_hi, -1")
        a("s_waitcnt lgkmcnt(0)")
        OV = 132
        for i in range(12):
            a(f"ds_read2_b32 {vr(OV+2*i,2)}, v16 offset0:{8*i} offset1:{8*i+96}")
        ACC = 120
        for k in range(8): a(f"v_mov_b32 v{ACC+k}, 0")
        CO = 160
        for p in range(6):
            a(f"s_waitcnt lgkmcnt({10-2*p})")
            a(f"v_add_f32 v{OV+4*p}, v{OV+4*p}, v{OV+4*p+1}")
            a(f"v_add_f32 v{OV+4*p+2}, v{OV+4*p+2}, v{OV+4*p+3}")
            a(f"v_cvt_pk_bf16_f32 v{CO+p}, v{OV+4*p}, v{OV+4*p+2}")
        self.gemv_pairs(WV, 6, CO, ACC)
        self.treduce8(ACC, 128, 118)
        a(f"ds_write_b32 v17, v{ACC} offset:{self.L_C}")
        a("s_waitcnt lgkmcnt(0)")
        a("s_barrier")
        self.stamp(7)
        skip = a.newlabel("cx")
        self.skip_if(f"s_cmp_lg_u32 s{S_W}, 0", skip)
        a("v_lshlrev_b32 v13, 2, v1")
        for w in range(8): a(f"ds_read_b32 v{132+w}, v13 offset:{self.L_C+w*256}")
        a("s_waitcnt lgkmcnt(0)")
        a("v_add_f32 v132, v132, v133\nv_add_f32 v134, v134, v135\nv_add_f32 v136, v136, v137\nv_add_f32 v138, v138, v139")
        a("v_add_f32 v132, v132, v134\nv_add_f32 v136, v136, v138")
        a("v_add_f32 v132, v132, v136")
        a("v_cvt_pk_bf16_f32 v132, v132, v132")
        a("ds_write_b16 v172, v132")
        a("ds_write_b16 v173, v132")
        a("s_waitcnt lgkmcnt(0)")
        a.label(skip)
        for k in range(8): a(f"v_mov_b32 v{ACC+k}, 0")
        a("s_barrier")
        for p in range(6):
            a(f"ds_read_b32 v{CO+p}, v18 offset:{self.L_CB+48*p}")
        a("s_waitcnt lgkmcnt(0)")
        self.gemv_pairs(WO, 6, CO, ACC)
        self.out_reduce_publish(ACC, T+10)
        self.stamp(8)
        a("s_branch L_aend")

        a.label("L_bbranch")
        WG = 20; XB = 84; WD = 160
        a("v_lshlrev_b32 v19, 2, v6")
        a(f"s_lshl_b32 s{T}, s{S_X}, 2")
        a(f"s_add_u32 s{T}, s{T}, s{S_LI}")
        a(f"s_sub_u32 s{T}, s{T}, 12")
        a("v_mul_u32_u24 v10, 43, v1")
        a("v_lshrrev_b32 v10, 8, v10")
        a("v_mul_u32_u24 v11, 6, v10")
        a("v_sub_u32 v11, v1, v11")
        a("v_mul_u32_u24 v12, 3072, v10")
        a("v_lshl_add_u32 v12, v11, 4, v12")
        a("v_cmp_gt_u32 vcc, 60, v1")
        a("v_lshlrev_b32 v13, 1, v10")
        a("v_cndmask_b32 v12, v8, v12, vcc")
        a(f"s_and_b32 s{T+1}, s{S_W}, 3")
        a(f"s_mul_i32 s{T+2}, s{T+1}, 320")
        for i in range(16):
            a(f"buffer_load_ushort v{XB+i}, v13, {srd('X')}, s{T+2} offen offset:{20*i}")
        a(f"s_mul_i32 s{T+2}, s{T+1}, {160*3072}")
        a(f"s_mul_i32 s{T+3}, s{T}, 96")
        a(f"s_add_u32 s{T+2}, s{T+2}, s{T+3}")
        up = a.newlabel("up"); upd = a.newlabel("upd")
        self.skip_if(f"s_cmp_ge_u32 s{S_W}, 4", up)
        for i in range(16):
            a(f"buffer_load_dwordx4 {vr(WG+4*i,4)}, v12, {srd('WG')}, s{T+2} offen{self.NTB}")
            if i >= self.a_win: a(f"s_waitcnt vmcnt({self.a_win})")
            a(f"s_add_u32 s{T+2}, s{T+2}, 30720")
        a(f"s_branch {upd}")
        a.label(up)
        for i in range(16):
            a(f"buffer_load_dwordx4 {vr(WG+4*i,4)}, v12, {srd('WU')}, s{T+2} offen{self.NTB}")
            if i >= self.a_win: a(f"s_waitcnt vmcnt({self.a_win})")
            a(f"s_add_u32 s{T+2}, s{T+2}, 30720")
        a.label(upd)
        a(f"s_mul_i32 s{T+2}, s{T}, {48*1280}")
        for i in range(8):
            a(f"buffer_load_dwordx4 {vr(WD+4*i,4)}, v5, {srd('WD')}, s{T+2} offen{self.NTB}")
            if 16 + i >= self.a_win: a(f"s_waitcnt vmcnt({self.a_win})")
            a(f"s_add_u32 s{T+2}, s{T+2}, 7680")
        ACC = 120
        for k in range(8): a(f"v_mov_b32 v{ACC+k}, 0")
        for i in range(16):
            a(f"s_waitcnt vmcnt({8+15-i})")
            a(f"v_lshlrev_b32 v128, 16, v{XB+i}")
            for k in range(4): a(f"v_dot2c_f32_bf16 v{ACC+2*k}, v{WG+4*i+k}, v{XB+i}")
            for k in range(4): a(f"v_dot2c_f32_bf16 v{ACC+2*k+1}, v{WG+4*i+k}, v128")
        a(f"s_mul_i32 s{T+2}, s{S_W}, 1920")
        a("v_mul_u32_u24 v13, 192, v10")
        a("v_lshl_add_u32 v13, v11, 5, v13")
        a(f"v_add_u32 v13, s{T+2}, v13")
        a("s_mov_b32 exec_hi, 0x0fffffff")
        a(f"ds_write_b128 v13, {vr(ACC,4)} offset:{self.L_R}")
        a(f"ds_write_b128 v13, {vr(ACC+4,4)} offset:{self.L_R+16}")
        a("s_mov_b32 exec_hi, -1")
        a("s_waitcnt lgkmcnt(0)")
        a("s_barrier")
        skip = a.newlabel("bg")
        self.skip_if(f"s_cmp_ge_u32 s{S_W}, 2", skip)
        a("v_cmp_le_u32 vcc, 48, v0")
        a("v_mov_b32 v14, 7488")
        a("v_lshlrev_b32 v13, 2, v0")
        a("v_cndmask_b32 v14, 0, v14, vcc")
        a("v_add_u32 v13, v13, v14")
        a("v_min_u32 v13, 7868, v13")
        for j in range(40):
            a(f"ds_read_b32 v{20+j}, v13 offset:{self.L_R+j*192}")
            if j % 8 == 7: a("s_waitcnt lgkmcnt(0)")
        for j in range(1, 40): a(f"v_add_f32 v20, v20, v{20+j}")
        a("v_lshlrev_b32 v13, 2, v0")
        a(f"ds_write_b32 v13, v20 offset:{self.L_C}")
        a("s_waitcnt lgkmcnt(0)")
        a.label(skip)
        a("s_barrier")
        skip = a.newlabel("bh")
        self.skip_if(f"s_cmp_lg_u32 s{S_W}, 0", skip)
        a("v_lshlrev_b32 v13, 2, v1")
        a(f"ds_read_b32 v20, v13 offset:{self.L_C}")
        a(f"ds_read_b32 v21, v13 offset:{self.L_C+192}")
        a("s_waitcnt lgkmcnt(0)")
        a(f"v_mul_f32 v20, 0x{f32bits(-math.log2(math.e)):08x}, v20")
        a("v_exp_f32 v20, v20")
        a("s_nop 0")
        a("v_add_f32 v20, 1.0, v20")
        a("v_rcp_f32 v20, v20")
        a("s_nop 0")
        a("v_mul_f32 v20, v20, v21")
        a("v_cvt_pk_bf16_f32 v20, v20, v20")
        self.write_pairs(20, 13, 14, 48)
        a("s_waitcnt lgkmcnt(0)")
        a.label(skip)
        for k in range(8): a(f"v_mov_b32 v{ACC+k}, 0")
        a("s_waitcnt vmcnt(0)")
        self.preperm(WD, 4, 128)
        a("s_barrier")
        CO = 100
        for p in range(4):
            a(f"ds_read_b32 v{CO+p}, v19 offset:{self.L_CB+48*p}")
        a("s_waitcnt lgkmcnt(0)")
        self.gemv_pairs(WD, 4, CO, ACC)
        self.out_reduce_publish(ACC, T+10)
        self.stamp(8)
        a.label("L_aend")

    def bset_ids(self):
        a = self.a
        a(f"s_mov_b32 s{S_LB}, s{S_LI}")
        a(f"s_lshl_b32 s{S_BLK}, s{S_X}, 5")
        a(f"s_lshl_b32 s9, s{S_LB}, 1")
        a(f"s_add_u32 s{S_BLK}, s{S_BLK}, s9")
        a(f"s_lshl_b32 s{S_G}, s{S_X}, 1")
        a(f"s_lshr_b32 s9, s{S_LB}, 3")
        a(f"s_add_u32 s{S_G}, s{S_G}, s9")
        a(f"s_and_b32 s{S_S}, s{S_LB}, 7")

    def pv_lane_offsets(self):
        a = self.a
        for n in range(3):
            a(f"v_add_u32 v5, {64*n}, v1")
            a("v_mul_u32_u24 v6, 5462, v5")
            a("v_lshrrev_b32 v6, 16, v6")
            a("v_mul_u32_u24 v7, 12, v6")
            a("v_sub_u32 v7, v5, v7")
            a("v_mul_u32_u24 v6, 1536, v6")
            a(f"v_lshl_add_u32 v{self.PVO+n}, v7, 4, v6")

    def pv_dma(self, kp, ldsbase, nw, w0):
        a = self.a; T = S_T + 8
        per = 48 // nw; rows = 256 // nw
        a(f"s_sub_u32 s{T+2}, s{S_W}, {w0}")
        a(f"s_lshl_b32 s{T}, s{S_G}, 9")
        a(f"s_mul_i32 s{T+1}, s{T+2}, {rows}")
        a(f"s_add_u32 s{T}, s{T}, s{T+1}")
        if kp: a(f"s_add_u32 s{T}, s{T}, 256")
        a(f"s_mul_i32 s{T}, s{T}, 1536")
        a(f"s_mul_i32 s{T+1}, s{S_S}, 192")
        a(f"s_add_u32 s{T}, s{T}, s{T+1}")
        a(f"s_mul_i32 s{T+1}, s{T+2}, {per*1024}")
        a(f"s_add_u32 s{T+1}, s{T+1}, {ldsbase}")
        for n in range(per):
            a(f"s_add_u32 m0, s{T+1}, {n*1024}")
            if n % 3 == 0 and n > 0: a(f"s_add_u32 s{T}, s{T}, {16*1536}")
            else: a("s_nop 0")
            a(f"buffer_load_dwordx4 v{self.PVO+(n%3)}, {srd('CKV')}, s{T} offen{self.NTC} lds")
            if self.pv_win < 63: a(f"s_waitcnt vmcnt({self.pv_win})")

    def s_dma_prep(self):
        a = self.a
        a("v_mov_b32 v216, 0")
        a("v_mov_b32 v219, v1")
        a("v_cmp_le_u32 vcc, 32, v1")
        a("v_add_u32 v5, 64, v1")
        a("v_subrev_u32 v6, 32, v1")
        a("v_cndmask_b32 v217, 0, 1, vcc")
        a("v_cndmask_b32 v220, v5, v6, vcc")
        a("v_mov_b32 v218, 1")
        a("v_add_u32 v221, 32, v1")
        for b in range(3): a(f"v_mul_u32_u24 v{222+b}, 1536, v{216+b}")
        T = S_T + 8
        a(f"s_and_b32 s{T+2}, s{S_W}, 1")
        a(f"s_lshl_b32 s{T+2}, s{T+2}, 3")
        for aa in range(4):
            for b in range(3):
                n = 3*aa + b
                a(f"s_add_u32 s{T+4}, s{T+2}, {2*aa}")
                a(f"v_add_u32 v5, s{T+4}, v{216+b}")
                a(f"v_xor_b32 v5, v5, v{219+b}")
                a(f"v_lshl_add_u32 v{226+n}, v5, 4, v{222+b}")

    def s_dma(self):
        a = self.a; T = S_T + 8
        a(f"s_lshl_b32 s{T}, s{S_X}, 10")
        a(f"s_lshl_b32 s{T+1}, s{S_LB}, 6")
        a(f"s_add_u32 s{T}, s{T}, s{T+1}")
        a(f"s_lshl_b32 s{T+1}, s{S_W}, 3")
        a(f"s_add_u32 s{T}, s{T}, s{T+1}")
        a(f"s_mul_i32 s{T}, s{T}, 1536")
        a(f"s_mul_i32 s{T+3}, s{S_W}, 12288")
        a(f"s_add_u32 s{T+3}, s{T+3}, {self.L_S}")
        for n in range(12):
            a(f"s_add_u32 m0, s{T+3}, {n*1024}")
            if n % 3 == 0 and n > 0: a(f"s_add_u32 s{T}, s{T}, {2*1536}")
            else: a("s_nop 0")
            a(f"buffer_load_dwordx4 v{226+n}, {srd('CKV')}, s{T} offen{self.NTC} lds")
            if n >= self.s_win: a(f"s_waitcnt vmcnt({self.s_win})")
            if self.s_probe and n == self.s_probe-1: a(f"s_waitcnt vmcnt({self.s_probe-1})")

    def bset_clears(self):
        a = self.a; T = S_T + 8
        a("v_subrev_u32 v5, 384, v0")
        a("v_mov_b32 v76, -1\nv_mov_b32 v77, -1\nv_mov_b32 v78, -1\nv_mov_b32 v79, -1")
        a("v_lshlrev_b32 v6, 4, v5")
        a("v_mov_b32 v7, 0x7fffffff")
        a("v_cmp_gt_u32 vcc, 64, v5")
        a(f"s_mul_i32 s{T+2}, s{S_BLK}, {PBS}")
        a("v_cndmask_b32 v8, v7, v6, vcc")
        for base in (WS_PBG, WS_PBL):
            a(f"s_add_u32 s{T+3}, s{T+2}, {base}")
            a(f"buffer_store_dwordx4 v[76:79], v6, {srd('WS')}, s{T+3} offen sc1")
            a(f"buffer_store_dwordx4 v[76:79], v6, {srd('WS')}, s{T+3} offen offset:2048 sc1")
            a(f"s_add_u32 s{T+3}, s{T+3}, 4096")
            a(f"buffer_store_dwordx4 v[76:79], v8, {srd('WS')}, s{T+3} offen sc1")
        a(f"s_lshl_b32 s{T+5}, s{S_S}, 4")
        a(f"s_add_u32 s{T+5}, s{T+5}, s{S_G}")
        a(f"s_mul_i32 s{T+5}, s{T+5}, 384")
        a(f"s_add_u32 s{T+5}, s{T+5}, {WS_OP}")
        a(f"s_mov_b32 s{T+6}, 49152")
        for i in range(6):
            a(f"v_add_u32 v8, {128*i}, v5")
            a("v_mul_u32_u24 v9, 2731, v8")
            a("v_lshrrev_b32 v9, 16, v9")
            a("v_mul_u32_u24 v70, 24, v9")
            a("v_sub_u32 v70, v8, v70")
            a(f"v_mul_lo_u32 v9, v9, s{T+6}")
            a("v_lshl_add_u32 v9, v70, 4, v9")
            a(f"buffer_store_dwordx4 v[76:79], v9, {srd('WS')}, s{T+5} offen sc1")
        a("v_lshlrev_b32 v8, 7, v5")
        a("v_cmp_gt_u32 vcc, 32, v5")
        a(f"s_lshl_b32 s{T+5}, s{S_G}, 3")
        a(f"s_add_u32 s{T+5}, s{T+5}, {WS_ML}")
        a("v_cndmask_b32 v8, v7, v8, vcc")
        a(f"s_cmp_eq_u32 s{S_S}, 0")
        a(f"s_cselect_b32 s{T+5}, s{T+5}, 0x7fffff00")
        a(f"buffer_store_dwordx2 v[76:77], v8, {srd('WS')}, s{T+5} offen sc1")

    def bset_front(self):
        a = self.a; T = S_T
        XV = 10; W0 = 20; ACC = 60
        a(f"v_mov_b32 v5, {self.L_FLAG}")
        for k in range(4): a(f"v_mov_b32 v{6+k}, 0")
        a("ds_write_b128 v5, v[6:9]")
        a("ds_write_b128 v5, v[6:9] offset:16")
        a("ds_write_b128 v5, v[6:9] offset:32")
        a("v_lshlrev_b32 v5, 1, v2")
        a(f"v_add_u32 v9, s{S_PM}, v5")
        nox = a.newlabel("nox")
        self.skip_if(f"s_cmp_lg_u32 s{S_W}, 6", nox)
        a("v_lshlrev_b32 v8, 4, v1")
        a(f"buffer_load_dwordx4 v[20:23], v8, {srd('X')}, 0 offen")
        a(f"buffer_load_dwordx4 v[24:27], v8, {srd('X')}, 0 offen offset:1024")
        a.label(nox)
        self.bset_ids()
        self.pv_lane_offsets()
        self.s_dma_prep()
        nox2 = a.newlabel("nox2")
        self.skip_if(f"s_cmp_lg_u32 s{S_W}, 6", nox2)
        a("s_waitcnt vmcnt(0)")
        a(f"ds_write_b128 v8, v[20:23] offset:{self.L_X}")
        a(f"ds_write_b128 v8, v[24:27] offset:{self.L_X+1024}")
        a.label(nox2)
        a("s_waitcnt lgkmcnt(0)")
        a("s_barrier")
        ldr = a.newlabel("p1ldr"); j = a.newlabel("p1j")
        self.skip_if(f"s_cmp_ge_u32 s{S_W}, 6", ldr)
        a(f"s_lshl_b32 s{T+5}, s{S_H}, 3")
        a(f"s_lshl_b32 s{T+6}, s{S_J4}, 1")
        a(f"s_add_u32 s{T+5}, s{T+5}, s{T+6}")
        a(f"s_add_u32 s{T+5}, s{T+5}, s{T}")
        a(f"s_mul_i32 s{T+5}, s{T+5}, 1536")
        a(f"s_lshl_b32 s{T+6}, s{T+1}, 9")
        a(f"s_add_u32 s{T+5}, s{T+5}, s{T+6}")
        a(f"s_add_u32 s{T+6}, s{T+5}, {WS_QPG}")
        a(f"s_add_u32 s{T+5}, s{T+5}, {WS_QPL}")
        a("v_lshlrev_b32 v5, 6, v3")
        a("v_lshl_add_u32 v5, v2, 3, v5")
        for k in range(8): a(f"v_mov_b32 v{ACC+k}, 0")
        for i in range(10):
            a(f"ds_read_u16 v{XV+i}, v9 offset:{self.L_X+16*i}")
        a("s_waitcnt lgkmcnt(0)")
        a(f"s_add_u32 s{S_EP}, s{S_EP}, 1")
        for i in range(10):
            a(f"s_waitcnt vmcnt({9-i})")
            if i == 9: self.stamp(13)
            a(f"v_lshlrev_b32 v68, 16, v{XV+i}")
            for k in range(4): a(f"v_dot2c_f32_bf16 v{ACC+2*k}, v{W0+4*i+k}, v{XV+i}")
            for k in range(4): a(f"v_dot2c_f32_bf16 v{ACC+2*k+1}, v{W0+4*i+k}, v68")
        self.treduce8(ACC, 68, 69)
        a(f"v_mov_b32 v{ACC+1}, s{S_EP}")
        if self.local:
            a(f"buffer_store_dwordx2 {vr(ACC,2)}, v5, {srd('WS')}, s{T+5} offen")
        a(f"buffer_store_dwordx2 {vr(ACC,2)}, v5, {srd('WS')}, s{T+6} offen sc1")
        self.stamp(1)
        a(f"s_branch {j}")
        a.label(ldr)
        if not self.exp_noclear: self.bset_clears()
        a("s_waitcnt lgkmcnt(0)")
        a(f"s_add_u32 s{S_EP}, s{S_EP}, 1")
        a.label(j)
        a("s_barrier")
        self.s_dma()
        nocf = a.newlabel("nocf")
        self.skip_if(f"s_cmp_lt_u32 s{S_W}, 6", nocf)
        a("s_waitcnt vmcnt(12)")
        a(f"s_lshl_b32 s{T+13}, s2, 1")
        a(f"s_add_u32 s{T+13}, s{T+13}, s{S_W}")
        a(f"s_lshl_b32 s{T+13}, s{T+13}, 2")
        a(f"s_add_u32 s{T+13}, s{T+13}, {WS_CF - 24}")
        a(f"v_mov_b32 v5, s{S_EP}")
        a("v_mov_b32 v6, 0")
        a("s_mov_b64 exec, 1")
        a(f"buffer_store_dword v5, v6, {srd('WS')}, s{T+13} offen sc1")
        a("s_mov_b64 exec, -1")
        a.label(nocf)
        self.stamp(2)

    def bset_s_phase(self):
        a = self.a; T = S_T
        QA = 20; AF = 84; ACC = 180
        a("v_and_b32 v6, 31, v1")
        a("v_lshrrev_b32 v7, 5, v1")
        a("v_and_b32 v8, 15, v6")
        a("v_xor_b32 v8, v8, v7")
        a("v_mul_u32_u24 v6, 1536, v6")
        a(f"v_add_u32 v6, {self.L_S}, v6")
        a(f"s_mul_i32 s{T+2}, s{S_W}, 24")
        for i in range(12):
            a(f"s_add_u32 s{T+3}, s{T+2}, {2*i}")
            a(f"v_xor_b32 v9, s{T+3}, v8")
            a(f"v_lshl_add_u32 v{226+i}, v9, 4, v6")
        a(f"s_lshl_b32 s{T}, s{S_W}, 14")
        a(f"s_add_u32 s{T}, s{T}, {WS_QA}")
        a("v_lshlrev_b32 v5, 4, v1")
        for g in range(4): a(f"s_add_u32 s{T+9+g}, s{T}, {4096*g}")
        a("s_barrier")
        notS0 = a.newlabel("notS0")
        self.skip_if(f"s_cmp_ge_u32 s{S_W}, 4", notS0)
        for n in range(16):
            a(f"buffer_load_dwordx4 {vr(QA+4*n,4)}, v5, {srd('WS')}, s{T+9+n//4} offen offset:{(n%4)*1024} sc1")
        a("s_waitcnt vmcnt(16)")
        a.label(notS0)
        nw = a.newlabel("nw")
        self.skip_if(f"s_cmp_lt_u32 s{S_W}, 4", nw)
        a("s_waitcnt vmcnt(0)")
        a.label(nw)
        a("s_barrier")
        self.stamp(3)
        notS = a.newlabel("notS"); j4 = a.newlabel("j4")
        self.skip_if(f"s_cmp_ge_u32 s{S_W}, 4", notS)
        for i in range(12):
            a(f"ds_read_b128 {vr(AF+4*i,4)}, v{226+i}")
            a(f"ds_read_b128 {vr(AF+48+4*i,4)}, v{226+i} offset:49152")
            if i == 5: a("s_waitcnt lgkmcnt(0)")
        a("s_waitcnt lgkmcnt(0)")
        a("s_barrier")
        self.stamp(21)
        a(f"s_lshl_b32 s{T+2}, s{S_W}, 13")
        a(f"s_add_u32 s{T+2}, s{T+2}, {self.L_RED}")
        a(f"v_add_u32 v10, s{T+2}, v5")
        a(f"s_lshl_b32 s{T+2}, s{S_W}, 10")
        a(f"s_add_u32 s{T+2}, s{T+2}, {self.L_RED}")
        a(f"v_add_u32 v11, s{T+2}, v5")
        a("v_bfe_u32 v12, v1, 4, 1")
        a("v_lshlrev_b32 v12, 10, v12")
        a("v_and_b32 v9, 15, v1")
        a("v_lshl_add_u32 v12, v9, 4, v12")
        a("v_lshrrev_b32 v9, 5, v1")
        a("v_lshl_add_u32 v12, v9, 3, v12")
        a("v_and_b32 v13, 31, v1")
        a("v_lshlrev_b32 v13, 2, v13")
        a("v_mov_b32 v9, 0x7fffffff")
        a("v_cmp_gt_u32 vcc, 32, v1")
        a(f"s_mul_i32 s{T+4}, s{S_BLK}, {PBS}")
        a("v_cndmask_b32 v13, v9, v13, vcc")
        a(f"s_lshl_b32 s{T+3}, s{S_W}, 8")
        a(f"s_add_u32 s{T+5}, s{T+4}, s{T+3}")
        a(f"s_lshl_b32 s{T+3}, s{S_W}, 7")
        a(f"s_add_u32 s{T+6}, s{T+4}, s{T+3}")
        a(f"s_add_u32 s{T+6}, s{T+6}, 2048")
        def qa_issue(g):
            for k in range(4):
                n = 4*g + k
                a(f"buffer_load_dwordx4 {vr(QA+4*n,4)}, v5, {srd('WS')}, s{T+9+g} offen offset:{k*1024} sc1")
        def qa_check(g):
            a(f"v_xor_b32 v6, s{S_EP}, v{QA+16*g+3}")
            for k in range(1, 4):
                a(f"v_xor_b32 v7, s{S_EP}, v{QA+16*g+4*k+3}")
                a("v_or_b32 v6, v6, v7")
            a("v_cmp_ne_u32 vcc, 0, v6")
        self.gpoll(4, qa_issue, qa_check, first_issued=True)
        self.stamp(4)
        self.stamp_val(16, S_CNT)
        for sg in range(4):
            for f in range(3): a(f"v_mov_b32 v{QA+(sg*4+f)*4+3}, v{QA+(sg*4+3)*4+f}")
        a("s_nop 0")
        for i in range(12):
            sg, f = i // 3, i % 3
            B = QA + (sg*4+f)*4
            for kb in range(2):
                c = "0" if i == 0 else vr(ACC+16*kb, 16)
                a(f"v_mfma_f32_32x32x16_bf16 {vr(ACC+16*kb,16)}, {vr(AF+48*kb+4*i,4)}, {vr(B,4)}, {c}")
        noep = a.newlabel("noep")
        a("s_lshl_b32 s9, s2, 3")
        a(f"s_add_u32 s9, s9, s{S_W}")
        self.skip_if(f"s_cmp_lg_u32 s9, {127*8}", noep)
        a(f"v_mov_b32 v6, s{S_EP}")
        a("v_mov_b32 v7, 0")
        a("s_mov_b64 exec, 1")
        a(f"buffer_store_dword v6, v7, {srd('WS')}, 0 offen sc1")
        a("s_mov_b64 exec, -1")
        a.label(noep)
        a("s_nop 7")
        for q in range(4): a(f"ds_write_b128 v10, {vr(ACC+4*q,4)} offset:{q*1024}")
        a("s_nop 3")
        for q in range(4): a(f"ds_write_b128 v10, {vr(ACC+16+4*q,4)} offset:{(4+q)*1024}")
        a("s_waitcnt lgkmcnt(0)")
        self.stamp(8)
        self.lds_signal(16)
        self.lds_wait(16, 20)
        R = 20
        for src in range(4):
            for kb in range(2):
                a(f"ds_read_b128 {vr(R+(src*2+kb)*4,4)}, v11 offset:{src*8192+kb*4096}")
        a(f"s_mov_b32 s{T+3}, 0x{f32bits(192**-0.5*math.log2(math.e)):08x}")
        a("s_waitcnt lgkmcnt(4)")
        for k in range(8): a(f"v_add_f32 v{R+k}, v{R+k}, v{R+8+k}")
        a("s_waitcnt lgkmcnt(0)")
        for k in range(8): a(f"v_add_f32 v{R+16+k}, v{R+16+k}, v{R+24+k}")
        for k in range(8): a(f"v_add_f32 v{R+k}, v{R+k}, v{R+16+k}")
        for k in range(8): a(f"v_mul_f32 v{R+k}, s{T+3}, v{R+k}")
        for kb in range(2):
            a(f"v_max3_f32 v{R+8+kb}, v{R+kb*4}, v{R+kb*4+1}, v{R+kb*4+2}")
        for kb in range(2):
            a(f"v_max_f32 v{R+8+kb}, v{R+8+kb}, v{R+kb*4+3}")
        a(f"v_mov_b32 v{R+10}, v{R+8}")
        a(f"v_mov_b32 v{R+11}, v{R+9}")
        a("s_nop 1")
        a(f"v_permlane32_swap_b32 v{R+8}, v{R+10}")
        a(f"v_permlane32_swap_b32 v{R+9}, v{R+11}")
        a("s_nop 1")
        a(f"v_max_f32 v{R+8}, v{R+8}, v{R+10}")
        a(f"v_max_f32 v{R+9}, v{R+9}, v{R+11}")
        a(f"v_ceil_f32 v{R+8}, v{R+8}")
        a(f"v_ceil_f32 v{R+9}, v{R+9}")
        for kb in range(2):
            for r in range(4): a(f"v_sub_f32 v{R+kb*4+r}, v{R+kb*4+r}, v{R+8+kb}")
        for k in range(8): a(f"v_exp_f32 v{R+k}, v{R+k}")
        a(f"v_min_u32 v{R+8}, 0xfffffffe, v{R+8}")
        a(f"v_min_u32 v{R+9}, 0xfffffffe, v{R+9}")
        P = R + 12
        for kb in range(2):
            a(f"v_cvt_pk_bf16_f32 v{P+kb*2}, v{R+kb*4}, v{R+kb*4+1}")
            a(f"v_cvt_pk_bf16_f32 v{P+kb*2+1}, v{R+kb*4+2}, v{R+kb*4+3}")
        for k in range(4): a(f"v_and_b32 v{P+k}, 0x7fff7fff, v{P+k}")
        paths = ([(WS_PBL, "")] if self.local else []) + [(WS_PBG, " sc1")]
        for base, fl in paths:
            a(f"s_add_u32 s{T+7}, s{T+5}, {base}")
            a(f"s_add_u32 s{T+8}, s{T+6}, {base}")
            a(f"buffer_store_dwordx2 {vr(P,2)}, v12, {srd('WS')}, s{T+7} offen{fl}")
            a(f"buffer_store_dwordx2 {vr(P+2,2)}, v12, {srd('WS')}, s{T+7} offen offset:{PBS}{fl}")
            a(f"buffer_store_dword v{R+8}, v13, {srd('WS')}, s{T+8} offen{fl}")
            a(f"buffer_store_dword v{R+9}, v13, {srd('WS')}, s{T+8} offen offset:{PBS}{fl}")
        self.stamp(5)
        self.lds_wait(32, 60)
        self.stamp(14)
        self.pv_read_frags(self.L_S)
        a(f"s_branch {j4}")
        a.label(notS)
        a("s_barrier")
        self.pv_dma(0, self.L_PA, 4, 4)
        self.pv_dma(1, self.L_S, 4, 4)
        self.stamp(20)
        a("s_waitcnt vmcnt(12)")
        self.lds_signal(0)
        self.lds_wait(0, 20)
        self.stamp(19)
        self.pv_read_frags(self.L_PA)
        nocf = a.newlabel("nocf")
        self.skip_if(f"s_cmp_lg_u32 s{S_W}, 4", nocf)
        self.cf_check(20)
        a.label(nocf)
        a("s_waitcnt vmcnt(0)")
        self.lds_signal(32)
        self.lds_wait(32, 20)
        self.stamp(14)
        a.label(j4)

    def pv_read_frags(self, base):
        a = self.a; T = S_T + 8; AF = 84
        a("v_lshrrev_b32 v6, 4, v1")
        a("v_and_b32 v7, 15, v1")
        a("v_lshrrev_b32 v8, 2, v7")
        a("v_lshl_add_u32 v8, v6, 3, v8")
        a("v_mul_u32_u24 v8, 192, v8")
        a("v_and_b32 v7, 3, v7")
        a("v_lshl_add_u32 v8, v7, 3, v8")
        a(f"s_lshr_b32 s{T}, s{S_W}, 1")
        a(f"s_and_b32 s{T}, s{T}, 1")
        a(f"s_mul_i32 s{T}, s{T}, 96")
        a(f"s_add_u32 s{T}, s{T}, {base}")
        a(f"v_add_u32 v8, s{T}, v8")
        cnt = 0
        for bb in range(8):
            for ct in range(3):
                r = AF + (bb*3+ct)*4; off = bb*6144 + ct*32
                a(f"ds_read_b64_tr_b16 {vr(r,2)}, v8 offset:{off}")
                a(f"ds_read_b64_tr_b16 {vr(r+2,2)}, v8 offset:{off+768}")
                cnt += 2
                if cnt % 12 == 0: a("s_waitcnt lgkmcnt(6)")

    def bset_pv_phase(self):
        a = self.a; T = S_T
        AF = 84; P = 20; MI = 52; DL = 60; ACC = 180; LA = 192; ON = 196
        a(f"s_cmp_lt_u32 s{S_W}, 4")
        a(f"s_cselect_b32 s{T}, 8, 0")
        a(f"s_lshl_b32 s{T+1}, s{S_G}, 4")
        a(f"s_add_u32 s{T+1}, s{T+1}, s{T}")
        a(f"s_and_b32 s{T+2}, s{S_W}, 1")
        a(f"s_mul_i32 s{T+3}, s{T+1}, {PBS}")
        a(f"s_lshl_b32 s{T+4}, s{T+2}, 10")
        a(f"s_add_u32 s{T+3}, s{T+3}, s{T+4}")
        a(f"s_add_u32 s{T+4}, s{T+3}, {WS_PBG}")
        a(f"s_add_u32 s{T+3}, s{T+3}, {WS_PBL}")
        a("v_lshlrev_b32 v5, 4, v1")
        a("v_and_b32 v6, 15, v1")
        a("v_lshlrev_b32 v6, 2, v6")
        a("v_lshrrev_b32 v7, 4, v1")
        a("v_lshl_add_u32 v6, v7, 7, v6")
        a(f"s_mul_i32 s{T+5}, s{T+2}, 960")
        a(f"s_sub_u32 s{T+5}, 2048, s{T+5}")
        a(f"v_add_u32 v6, s{T+5}, v6")
        for k in range(4): a(f"v_mov_b32 v{ON+k}, 0x3f803f80")
        a("v_and_b32 v14, 15, v1")
        a(f"s_mov_b32 s{T+5}, 49152")
        a(f"v_mul_lo_u32 v15, v14, s{T+5}")
        a("v_lshl_add_u32 v15, v7, 4, v15")
        a(f"s_mul_i32 s{T+5}, s{T+2}, {16*49152}")
        a(f"s_lshl_b32 s{T+6}, s{S_S}, 4")
        a(f"s_add_u32 s{T+6}, s{T+6}, s{S_G}")
        a(f"s_mul_i32 s{T+6}, s{T+6}, 384")
        a(f"s_add_u32 s{T+5}, s{T+5}, s{T+6}")
        a(f"s_lshr_b32 s{T+6}, s{S_W}, 1")
        a(f"s_and_b32 s{T+6}, s{T+6}, 1")
        a(f"s_mul_i32 s{T+7}, s{T+6}, 192")
        a(f"s_add_u32 s{T+5}, s{T+5}, s{T+7}")
        a(f"s_add_u32 s{T+5}, s{T+5}, {WS_OP}")
        a("v_lshlrev_b32 v14, 7, v14")
        a("v_mov_b32 v16, 0x7fffffff")
        a("v_cmp_gt_u32 vcc, 16, v1")
        a(f"s_lshl_b32 s{T+8}, s{T+2}, 11")
        a(f"s_lshl_b32 s{T+7}, s{S_G}, 3")
        a(f"s_add_u32 s{T+8}, s{T+8}, s{T+7}")
        a(f"s_add_u32 s{T+8}, s{T+8}, {WS_ML}")
        a("v_cndmask_b32 v14, v16, v14, vcc")
        a(f"s_or_b32 s{T+7}, s{T+6}, s{S_S}")
        a(f"s_cmp_eq_u32 s{T+7}, 0")
        a(f"s_cselect_b32 s{T+8}, s{T+8}, 0x7fffff00")
        a(f"s_and_b32 s{T+9}, s{S_W}, 3")
        a(f"s_lshl_b32 s{T+9}, s{T+9}, 12")
        a(f"s_add_u32 s{T+9}, s{T+9}, {self.L_PR}")
        a(f"v_add_u32 v17, s{T+9}, v5")
        def p_pre():
            if self.local:
                a(f"s_and_b32 s9, s{S_CNT}, {self.lperiod-1}")
                a(f"s_cmp_eq_u32 s9, {self.lperiod-1}")
                a(f"s_cselect_b32 s{S_PB}, s{T+4}, s{T+3}")
            else:
                a(f"s_mov_b32 s{S_PB}, s{T+4}")
        def p_issue(bb):
            a(f"s_add_u32 s9, s{S_PB}, {bb*PBS}")
            a(f"buffer_load_dwordx4 {vr(P+4*bb,4)}, v5, {srd('WS')}, s9 offen sc1")
            a(f"buffer_load_dword v{MI+bb}, v6, {srd('WS')}, s9 offen sc1")
        def p_check(bb):
            a(f"v_or3_b32 v7, v{P+4*bb}, v{P+4*bb+1}, v{P+4*bb+2}")
            a(f"v_or_b32 v7, v7, v{P+4*bb+3}")
            a("v_and_b32 v7, 0x80008000, v7")
            a(f"v_cmp_eq_u32 vcc, -1, v{MI+bb}")
            a("s_nop 1")
            a("v_cndmask_b32 v8, 0, 1, vcc")
            a("v_or_b32 v7, v7, v8")
            a("v_cmp_ne_u32 vcc, 0, v7")
        a("s_waitcnt lgkmcnt(0)")
        self.stamp(15)
        self.gpoll(8, p_issue, p_check, pre=p_pre)
        self.stamp(6)
        self.stamp_val(17, S_CNT)
        a(f"v_max3_f32 v9, v{MI}, v{MI+1}, v{MI+2}")
        a(f"v_max3_f32 v9, v9, v{MI+3}, v{MI+4}")
        a(f"v_max3_f32 v9, v9, v{MI+5}, v{MI+6}")
        a(f"v_max_f32 v9, v9, v{MI+7}")
        a("v_mov_b32 v10, v9")
        a("s_nop 1")
        a("v_permlane16_swap_b32 v9, v10")
        a("s_nop 1")
        a("v_max_f32 v9, v9, v10")
        a("v_mov_b32 v10, v9")
        a("s_nop 1")
        a("v_permlane32_swap_b32 v9, v10")
        a("s_nop 1")
        a("v_max_f32 v9, v9, v10")
        a(f"s_mov_b32 s{T+10}, 0x437f0000")
        a(f"s_mov_b32 s{T+11}, 0x00800080")
        for bb in range(8): a(f"v_sub_f32 v{DL+bb}, v9, v{MI+bb}")
        for bb in range(8): a(f"v_min_f32 v{DL+bb}, s{T+10}, v{DL+bb}")
        for bb in range(8): a(f"v_cvt_u32_f32 v{DL+bb}, v{DL+bb}")
        for bb in range(8): a(f"v_mul_u32_u24 v{DL+bb}, s{T+11}, v{DL+bb}")
        for k in range(4): a(f"v_pk_sub_u16 v{P+k}, v{P+k}, v{DL} clamp")
        for bb in range(8):
            if bb < 7:
                for k in range(4): a(f"v_pk_sub_u16 v{P+4*(bb+1)+k}, v{P+4*(bb+1)+k}, v{DL+bb+1} clamp")
            else:
                a("s_nop 1")
            for ct in range(3):
                c = "0" if bb == 0 else vr(ACC+4*ct, 4)
                a(f"v_mfma_f32_16x16x32_bf16 {vr(ACC+4*ct,4)}, {vr(AF+(bb*3+ct)*4,4)}, {vr(P+4*bb,4)}, {c}")
            c = "0" if bb == 0 else vr(LA, 4)
            a(f"v_mfma_f32_16x16x32_bf16 {vr(LA,4)}, {vr(ON,4)}, {vr(P+4*bb,4)}, {c}")
        a("s_nop 7")
        self.stamp(11)
        kp1 = a.newlabel("kp1")
        self.skip_if(f"s_cmp_lt_u32 s{S_W}, 4", kp1)
        a(f"v_mov_b32 v{LA+1}, v9")
        for ct in range(3): a(f"ds_write_b128 v17, {vr(ACC+4*ct,4)} offset:{ct*1024}")
        a(f"ds_write_b128 v17, {vr(LA,4)} offset:3072")
        a("s_waitcnt lgkmcnt(0)")
        a.label(kp1)
        a("s_barrier")
        self.stamp(12)
        fin = a.newlabel("pvfin")
        self.skip_if(f"s_cmp_ge_u32 s{S_W}, 4", fin)
        O = 20
        for k in range(4): a(f"ds_read_b128 {vr(O+4*k,4)}, v17 offset:{k*1024}")
        a("s_waitcnt lgkmcnt(0)")
        a(f"v_max_f32 v10, v9, v{O+13}")
        a("v_sub_f32 v11, v9, v10")
        a(f"v_sub_f32 v12, v{O+13}, v10")
        a("v_exp_f32 v11, v11")
        a("v_exp_f32 v12, v12")
        a("s_nop 0")
        for k in range(12): a(f"v_mul_f32 v{ACC+k}, v{ACC+k}, v11")
        for k in range(12): a(f"v_fmac_f32 v{ACC+k}, v{O+k}, v12")
        for k in range(12): a(f"v_min_u32 v{ACC+k}, 0xfffffffe, v{ACC+k}")
        if self.exp_linear:
            a(f"s_lshl_b32 s{T+5}, s{S_G}, 3")
            a(f"s_add_u32 s{T+5}, s{T+5}, s{S_S}")
            a(f"s_lshl_b32 s{T+5}, s{T+5}, 2")
            a(f"s_add_u32 s{T+5}, s{T+5}, s{S_W}")
            a(f"s_mul_i32 s{T+5}, s{T+5}, 3072")
            a(f"s_add_u32 s{T+5}, s{T+5}, {WS_OP}")
            for ct in range(3):
                a(f"buffer_store_dwordx4 {vr(ACC+4*ct,4)}, v5, {srd('WS')}, s{T+5} offen offset:{ct*1024} sc1")
        else:
          for ct in range(3):
            a(f"buffer_store_dwordx4 {vr(ACC+4*ct,4)}, v15, {srd('WS')}, s{T+5} offen offset:{ct*64} sc1")
        a(f"v_mul_f32 v{LA}, v{LA}, v11")
        a(f"v_fmac_f32 v{LA}, v{O+12}, v12")
        a(f"v_min_u32 v11, 0xfffffffe, v{LA}")
        a("v_min_u32 v10, 0xfffffffe, v10")
        a(f"buffer_store_dwordx2 v[10:11], v14, {srd('WS')}, s{T+8} offen sc1")
        a.label(fin)
        self.stamp(7)

    def bset_final(self):
        a = self.a; T = S_T
        self.skip_if(f"s_cmp_ge_u32 s{S_LB}, 5", "L_bend")
        a("v_lshlrev_b32 v5, 2, v1")
        for i in range(5):
            a(f"buffer_load_dword v{20+i}, v5, {srd('X')}, 0 offen offset:{256*i}")
            a(f"buffer_load_dword v{25+i}, v5, {srd('GW')}, 0 offen offset:{256*i}")
        a("v_mov_b32 v30, 0")
        a("s_waitcnt vmcnt(0)")
        for i in range(5): a(f"v_dot2c_f32_bf16 v30, v{20+i}, v{25+i}")
        a("s_nop 2")
        for ctrl in ["quad_perm:[1,0,3,2]", "quad_perm:[2,3,0,1]", "row_half_mirror", "row_mirror"]:
            a(f"v_add_f32_dpp v30, v30, v30 {ctrl} row_mask:0xf bank_mask:0xf")
            a("s_nop 1")
        a("v_mov_b32 v31, v30")
        a("s_nop 1")
        a("v_permlane16_swap_b32 v30, v31")
        a("s_nop 1")
        a("v_add_f32 v30, v30, v31")
        a("v_mov_b32 v31, v30")
        a("s_nop 1")
        a("v_permlane32_swap_b32 v30, v31")
        a("s_nop 1")
        a("v_add_f32 v30, v30, v31")
        a(f"v_mul_f32 v30, 0x{f32bits(-math.log2(math.e)):08x}, v30")
        a("v_exp_f32 v30, v30")
        a("s_nop 0")
        a("v_add_f32 v30, 1.0, v30")
        a("v_rcp_f32 v30, v30")
        a("s_nop 0")
        a("v_sub_f32 v31, 1.0, v30")
        a("v_cmp_le_u32 vcc, 48, v1")
        a("s_nop 1")
        a("v_cndmask_b32 v30, v30, v31, vcc")
        a(f"s_mul_i32 s{T}, s{S_X}, 5")
        a(f"s_add_u32 s{T}, s{T}, s{S_LB}")
        a(f"s_lshl_b32 s{T+1}, s{T}, 6")
        a(f"s_add_u32 s{T+1}, s{T+1}, {WS_OUTP}")
        a("v_lshrrev_b32 v6, 2, v0")
        a("v_mul_u32_u24 v6, 2560, v6")
        a("v_and_b32 v7, 3, v0")
        a("v_lshl_add_u32 v6, v7, 4, v6")
        a("v_and_b32 v8, 3, v1")
        a("v_lshlrev_b32 v8, 2, v8")
        a("v_bfe_u32 v9, v1, 5, 1")
        a("v_lshl_add_u32 v8, v9, 1, v8")
        a("v_bfe_u32 v9, v1, 4, 1")
        a("v_add_u32 v8, v8, v9")
        a("v_lshlrev_b32 v8, 2, v8")
        a(f"s_lshl_b32 s{T+2}, s{S_W}, 6")
        a(f"v_add_u32 v10, s{T+2}, v8")
        a("v_and_b32 v11, 15, v1")
        a("v_lshlrev_b32 v12, 2, v11")
        a("v_lshlrev_b32 v11, 1, v11")
        a("v_mov_b32 v9, 0x7fffffff")
        a("v_cmp_gt_u32 vcc, 16, v1")
        a(f"s_lshl_b32 s{T+2}, s{T}, 5")
        a("v_cndmask_b32 v11, v9, v11, vcc")
        l = self.poll_begin()
        a(f"buffer_load_dwordx4 v[32:35], v6, {srd('WS')}, s{T+1} offen sc1")
        a("s_waitcnt vmcnt(0)")
        a("v_max3_u32 v8, v32, v33, v34")
        a("v_max_u32 v8, v8, v35")
        a("v_cmp_eq_u32 vcc, -1, v8")
        a("s_nop 1")
        a("v_cndmask_b32 v8, 0, 1, vcc")
        self.poll_end(l, 8)
        self.stamp(9)
        self.stamp_val(18, S_CNT)
        for k in range(4): a(f"v_mul_f32 v{32+k}, v{32+k}, v30")
        a("s_nop 1")
        a("v_permlane32_swap_b32 v32, v34")
        a("v_permlane32_swap_b32 v33, v35")
        a("s_nop 1")
        a("v_add_f32 v32, v32, v34")
        a("v_add_f32 v33, v33, v35")
        a("s_nop 1")
        a("v_permlane16_swap_b32 v32, v33")
        a("s_nop 1")
        a("v_add_f32 v32, v32, v33")
        a("s_nop 1")
        a("v_add_f32_dpp v32, v32, v32 row_ror:8 row_mask:0xf bank_mask:0xf")
        a("s_nop 1")
        a("v_add_f32_dpp v32, v32, v32 row_ror:4 row_mask:0xf bank_mask:0xf")
        a(f"ds_write_b32 v10, v32 offset:{self.L_F}")
        a("s_waitcnt lgkmcnt(0)")
        a("s_barrier")
        self.skip_if(f"s_cmp_lg_u32 s{S_W}, 0", "L_bend")
        for w in range(8): a(f"ds_read_b32 v{40+w}, v12 offset:{self.L_F+w*64}")
        a("s_waitcnt lgkmcnt(0)")
        a("v_add_f32 v40, v40, v41\nv_add_f32 v42, v42, v43\nv_add_f32 v44, v44, v45\nv_add_f32 v46, v46, v47")
        a("v_add_f32 v40, v40, v42\nv_add_f32 v44, v44, v46")
        a("v_add_f32 v40, v40, v44")
        a("v_cvt_pk_bf16_f32 v40, v40, v40")
        a(f"buffer_store_short v40, v11, {srd('OUT')}, s{T+2} offen")
        self.stamp(10)
        a.label("L_bend")

    def build(self):
        a = self.a
        self.prologue()
        self.bset_front()
        a("s_branch L_bs")
        a.label("L_aset")
        self.aset_front()
        a("s_branch L_aback")
        a.label("L_bs")
        self.bset_s_phase()
        self.bset_pv_phase()
        a("s_branch L_bfin")
        a.label("L_aback")
        self.aset_back()
        self.stamp_flush()
        a("s_branch L_exit")
        a.label("L_bfin")
        self.bset_final()
        self.stamp_flush()
        a.label("L_exit")
        a("s_endpgm")
        hdr = f"""; generated by dev/gen2.py
; @launch grid=(256,1,1) block=(512,1,1) lds=163840
.amdgcn_target "amdgcn-amd-amdhsa--gfx950"
.text
.globl {NAME}_kernel
.p2align 8
.type {NAME}_kernel,@function
{NAME}_kernel:
"""
        ftr = f""".section .rodata,"a"
.p2align 6
.amdhsa_kernel {NAME}_kernel
  .amdhsa_next_free_vgpr 256
  .amdhsa_next_free_sgpr 102
  .amdhsa_accum_offset 256
  .amdhsa_group_segment_fixed_size 0
  .amdhsa_kernarg_size 112
  .amdhsa_user_sgpr_count 2
  .amdhsa_user_sgpr_kernarg_segment_ptr 1
  .amdhsa_system_sgpr_workgroup_id_x 1
.end_amdhsa_kernel
"""
        return hdr + a.text() + ftr

if __name__ == "__main__":
    out = sys.argv[1] if len(sys.argv) > 1 else "k.s"
    kw = {}
    for arg in sys.argv[2:]:
        if arg == "--stamps": kw["stamps"] = True
        elif arg.startswith("--"):
            k, v = arg[2:].split("="); kw[k] = int(v)
    open(out, "w").write(Gen(**kw).build())
```

```python
import sys, math, struct

NAME = "gated_mix__compressed_kv_cla__glu_gated_glu__decode"

WS_EPOCH = 0
WS_CF    = 0x400
WS_QA    = 0x10000
WS_QPG   = 0x20000
WS_QPL   = 0x80000
WS_PBG   = 0x100000
WS_PBL   = 0x1A0000
WS_ML    = 0x240000
WS_OUTP  = 0x250000
WS_OP    = 0x2A0000
WS_ST    = 0x440000
WS_SIZE  = 0x480000
PBS = 2560

S_W, S_X, S_LI, S_H, S_J4, S_EP = 3, 4, 5, 6, 7, 8
S_LB, S_BLK, S_G, S_S = 10, 11, 12, 13
S_WSCF = 14
SRD = dict(X=16, CKV=20, WQ=24, WUK=28, WUV=32, WO=36, WG=44, WU=48, WD=52, GW=56, OUT=60, WS=64)
SRD_SIZE = dict(X=1280, CKV=12582912, WQ=7864320, WUK=9437184, WUV=9437184, WO=7864320,
                WG=1966080, WU=1966080, WD=1966080, GW=1280, OUT=1280, WS=WS_SIZE)
KARG = dict(X=0, CKV=8, WQ=16, WUK=24, WUV=32, WO=40, WG=56, WU=64, WD=72, GW=80, OUT=88, WS=104)
S_M8 = 72
S_T = 74
S_CNT = 96
S_PB = 97
S_PM = 15
S_STAMP = 98
POLL_LIMIT = 100000

class Asm:
    def __init__(self):
        self.L = []; self.uid = 0
    def __call__(self, s):
        for line in s.strip("\n").split("\n"):
            self.L.append("    " + line.strip())
    def label(self, n): self.L.append(n + ":")
    def newlabel(self, base):
        self.uid += 1
        return f"L_{base}_{self.uid}"
    def text(self): return "\n".join(self.L) + "\n"

def srd(n):
    b = SRD[n]; return f"s[{b}:{b+3}]"
def vr(b, n=1):
    return f"v{b}" if n == 1 else f"v[{b}:{b+n-1}]"
def f32bits(x):
    return struct.unpack("<I", struct.pack("<f", x))[0]

class Gen:
    def __init__(self, stamps=False, early_frags=1, fin1=1, masked=1, qa_early=1, code_pf=0, tlb_warm=0, tlb_shift=21, nt_front=False, nt_ckv=False, nt_back=False, local=True, lperiod=8, a_delay=1, qa_ack=1, exp_linear=0, a_win=63, s_win=63, pv_win=63, mlpoll=1, exp_nobulk=0, a_probe=0, s_probe=0, exp_noclear=0, exp_nowuk=0):
        self.a = Asm()
        self.stamps = stamps
        self.NTF = " nt" if nt_front else ""
        self.NTC = " nt" if nt_ckv else ""
        self.NTB = " nt" if nt_back else ""
        self.local = local
        self.a_delay = a_delay
        self.qa_ack = qa_ack
        self.code_pf = code_pf
        self.early_frags = early_frags; self.fin1 = fin1
        self.masked = masked; self.qa_early = qa_early
        self.tlb_warm = tlb_warm; self.tlb_shift = tlb_shift
        self.exp_noclear = exp_noclear; self.exp_nowuk = exp_nowuk
        self.a_probe = a_probe; self.s_probe = s_probe
        self.exp_nobulk = exp_nobulk
        self.a_win = a_win; self.s_win = s_win; self.pv_win = pv_win; self.mlpoll = mlpoll
        self.exp_linear = exp_linear
        self.lperiod = lperiod
        self.L_Q = 0; self.L_QS = 512; self.L_F = 3072; self.L_FLAG = 2048; self.L_X = 4096
        self.L_S = 8192; self.L_PA = 106496; self.L_RED = 57344; self.L_PR = 90112
        self.L_O = 4096; self.L_C = 12288; self.L_CB = 14336; self.L_R = 16384
        self.PVO = 212

    def stamp(self, idx):
        if not self.stamps: return
        a = self.a
        a(f"s_memrealtime s[{S_STAMP}:{S_STAMP+1}]")
        a("s_waitcnt lgkmcnt(0)")
        a(f"v_writelane_b32 v255, s{S_STAMP}, {idx}")
    def stamp_val(self, idx, sreg):
        if not self.stamps: return
        self.a(f"s_add_u32 s9, s{sreg}, 1")
        self.a(f"v_writelane_b32 v255, s9, {idx}")
    def stamp_flush(self):
        if not self.stamps: return
        a = self.a
        a(f"s_lshl_b32 s{S_T+20}, s2, 3")
        a(f"s_add_u32 s{S_T+20}, s{S_T+20}, s{S_W}")
        a(f"s_lshl_b32 s{S_T+20}, s{S_T+20}, 7")
        a(f"s_add_u32 s{S_T+20}, s{S_T+20}, {WS_ST}")
        a("v_lshlrev_b32 v252, 2, v1")
        a("s_mov_b32 exec_lo, -1")
        a("s_mov_b32 exec_hi, 0")
        a(f"buffer_store_dword v255, v252, {srd('WS')}, s{S_T+20} offen")
        a("s_mov_b64 exec, -1")

    def treduce8(self, acc, t0, t1):
        a = self.a
        a("s_nop 2")
        for k in range(4): a(f"v_permlane32_swap_b32 v{acc+k}, v{acc+k+4}")
        a("s_nop 1")
        for k in range(4): a(f"v_add_f32 v{acc+k}, v{acc+k}, v{acc+k+4}")
        a("s_nop 1")
        for k in range(2): a(f"v_permlane16_swap_b32 v{acc+k}, v{acc+k+2}")
        a("s_nop 1")
        for k in range(2): a(f"v_add_f32 v{acc+k}, v{acc+k}, v{acc+k+2}")
        a("s_nop 0")
        a(f"v_cndmask_b32 v{t0}, v{acc}, v{acc+1}, s[{S_M8}:{S_M8+1}]")
        a(f"v_cndmask_b32 v{t1}, v{acc+1}, v{acc}, s[{S_M8}:{S_M8+1}]")
        a("s_nop 1")
        a(f"v_add_f32_dpp v{acc}, v{t1}, v{t0} row_ror:8 row_mask:0xf bank_mask:0xf")

    def skip_if(self, cmp, label):
        self.a(cmp); self.a(f"s_cbranch_scc1 {label}")

    def poll_begin(self, lbase=None, gbase=None):
        a = self.a
        l = a.newlabel("poll")
        a(f"s_mov_b32 s{S_CNT}, 0")
        a.label(l)
        if lbase is not None:
            if self.local:
                a(f"s_and_b32 s9, s{S_CNT}, {self.lperiod-1}")
                a(f"s_cmp_eq_u32 s9, {self.lperiod-1}")
                a(f"s_cselect_b32 s{S_PB}, s{gbase}, s{lbase}")
            else:
                a(f"s_mov_b32 s{S_PB}, s{gbase}")
        return l
    def poll_end(self, l, vbad):
        a = self.a
        ok = a.newlabel("ok")
        a(f"v_cmp_ne_u32 vcc, 0, v{vbad}")
        a(f"s_cbranch_vccz {ok}")
        a(f"s_add_u32 s{S_CNT}, s{S_CNT}, 1")
        a(f"s_cmp_lt_u32 s{S_CNT}, {POLL_LIMIT}")
        a(f"s_cbranch_scc1 {l}")
        a.label(ok)

    def gpoll(self, n, issue, check, pre=None, first_issued=False, masks=None):
        a = self.a
        top = a.newlabel("gp"); done = a.newlabel("gpd")
        if not self.masked: masks = None
        a(f"s_mov_b32 s{S_PM}, {(1<<n)-1}")
        a(f"s_mov_b32 s{S_CNT}, 0")
        if masks:
            for m in masks: a(f"s_mov_b64 s[{m}:{m+1}], -1")
        if first_issued:
            chk = a.newlabel("gpc")
            a(f"s_branch {chk}")
        a.label(top)
        if pre: pre()
        for i in range(n):
            sk = a.newlabel("gi")
            a(f"s_bitcmp0_b32 s{S_PM}, {i}")
            a(f"s_cbranch_scc1 {sk}")
            if masks: a(f"s_mov_b64 exec, s[{masks[i]}:{masks[i]+1}]")
            issue(i)
            a.label(sk)
        if masks: a("s_mov_b64 exec, -1")
        if first_issued: a.label(chk)
        a("s_waitcnt vmcnt(0)")
        for i in range(n):
            sk = a.newlabel("gc")
            a(f"s_bitcmp0_b32 s{S_PM}, {i}")
            a(f"s_cbranch_scc1 {sk}")
            check(i)
            if masks: a(f"s_mov_b64 s[{masks[i]}:{masks[i]+1}], vcc")
            a(f"s_cbranch_vccnz {sk}")
            a(f"s_bitset0_b32 s{S_PM}, {i}")
            a.label(sk)
        a(f"s_cmp_eq_u32 s{S_PM}, 0")
        a(f"s_cbranch_scc1 {done}")
        a(f"s_add_u32 s{S_CNT}, s{S_CNT}, 1")
        a(f"s_cmp_lt_u32 s{S_CNT}, {POLL_LIMIT}")
        a(f"s_cbranch_scc1 {top}")
        a.label(done)

    def lds_signal(self, base, widx_mask=3):
        a = self.a
        a(f"s_and_b32 s9, s{S_W}, {widx_mask}")
        a("s_lshl_b32 s9, s9, 2")
        a(f"s_add_u32 s9, s9, {self.L_FLAG+base}")
        a("v_mov_b32 v6, s9")
        a("v_mov_b32 v7, 1")
        a("ds_write_b32 v6, v7")
    def lds_wait(self, base, vt):
        a = self.a
        a(f"v_mov_b32 v6, {self.L_FLAG+base}")
        l = self.poll_begin()
        a(f"ds_read_b128 {vr(vt,4)}, v6")
        a("s_waitcnt lgkmcnt(0)")
        a(f"v_and_b32 v{vt}, v{vt}, v{vt+1}")
        a(f"v_and_b32 v{vt+2}, v{vt+2}, v{vt+3}")
        a(f"v_and_b32 v{vt}, v{vt}, v{vt+2}")
        a(f"v_xor_b32 v{vt}, 1, v{vt}")
        self.poll_end(l, vt)

    def cf_check(self, vb):
        a = self.a
        a(f"v_lshlrev_b32 v{vb+4}, 4, v1")
        l = self.poll_begin()
        a(f"buffer_load_dwordx4 {vr(vb,4)}, v{vb+4}, {srd('WS')}, s{S_WSCF} offen sc1")
        a("s_waitcnt vmcnt(0)")
        for k in range(4): a(f"v_xor_b32 v{vb+k}, s{S_EP}, v{vb+k}")
        a(f"v_or3_b32 v{vb}, v{vb}, v{vb+1}, v{vb+2}")
        a(f"v_or_b32 v{vb}, v{vb}, v{vb+3}")
        self.poll_end(l, vb)

    def mk_srd(self, n):
        a = self.a; b = SRD[n]
        if n != "WS":
            src = 76 + KARG[n] // 4
            a(f"s_mov_b64 s[{b}:{b+1}], s[{src}:{src+1}]")
        a(f"s_mov_b32 s{b+2}, {SRD_SIZE[n]}")
        a(f"s_mov_b32 s{b+3}, 0x00020000")

    def prologue(self):
        a = self.a; T = S_T
        if self.stamps: a("s_memrealtime s[42:43]")
        a("s_cmp_ge_u32 s2, 256")
        a("s_cbranch_scc1 L_exit")
        a("s_load_dwordx16 s[76:91], s[0:1], 0")
        a("s_load_dwordx8 s[92:99], s[0:1], 64")
        a("s_load_dwordx2 s[64:65], s[0:1], 104")
        a("v_lshrrev_b32 v2, 6, v0")
        a("v_and_b32 v1, 63, v0")
        a(f"v_readfirstlane_b32 s{S_W}, v2")
        a(f"s_lshr_b32 s{S_LI}, s2, 3")
        a(f"s_and_b32 s{S_LI}, s{S_LI}, 15")
        if self.code_pf:
            npf = a.newlabel("npf"); lp = a.newlabel("pfl")
            a(f"s_and_b32 s9, s{S_LI}, 7")
            a("s_lshl_b32 s9, s9, 3")
            a(f"s_add_u32 s9, s9, s{S_W}")
            self.skip_if("s_cmp_lg_u32 s9, 7", npf)
            a("s_getpc_b64 s[40:41]")
            a("v_lshlrev_b32 v252, 4, v1")
            a(f"s_mov_b32 s9, {self.code_pf}")
            a.label(lp)
            a("global_load_dwordx4 v[248:251], v252, s[40:41]")
            a("v_add_u32 v252, 1024, v252")
            a("s_sub_u32 s9, s9, 1")
            a("s_cmp_lg_u32 s9, 0")
            a(f"s_cbranch_scc1 {lp}")
            a.label(npf)
        a(f"s_and_b32 s{S_X}, s2, 7")
        a(f"s_and_b32 s9, s{S_LI}, 3")
        a(f"s_lshl_b32 s{S_H}, s{S_X}, 2")
        a(f"s_add_u32 s{S_H}, s{S_H}, s9")
        a(f"s_lshr_b32 s{S_J4}, s{S_LI}, 2")
        a("v_lshrrev_b32 v2, 3, v1")
        a("v_and_b32 v3, 7, v1")
        a("v_mul_u32_u24 v4, 12288, v2")
        a("v_lshl_add_u32 v4, v3, 4, v4")
        a("s_cmp_lt_u32 s2, 128")
        a("s_cbranch_scc0 L_apre")
        a(f"s_cmp_ge_u32 s{S_W}, 3")
        a("s_cselect_b32 s100, 1, 0")
        a("s_mul_i32 s101, s100, 3")
        a(f"s_sub_u32 s101, s{S_W}, s101")
        a(f"s_mul_i32 s44, s{S_J4}, 160")
        a("s_mul_i32 s45, s100, 80")
        a("s_add_u32 s44, s44, s45")
        a("s_lshl_b32 s46, s44, 1")
        a("s_mul_i32 s44, s44, 12288")
        a(f"s_mul_i32 s45, s{S_H}, 384")
        a("s_add_u32 s44, s44, s45")
        a("s_lshl_b32 s45, s101, 7")
        a("s_add_u32 s44, s44, s45")
        a(f"s_mov_b32 s{SRD['WQ']+2}, {SRD_SIZE['WQ']}")
        a(f"s_mov_b32 s{SRD['WQ']+3}, 0x00020000")
        a("s_waitcnt lgkmcnt(0)")
        a(f"s_mov_b64 s[{SRD['WQ']}:{SRD['WQ']+1}], s[80:81]")
        nl = a.newlabel("bnl")
        self.skip_if(f"s_cmp_ge_u32 s{S_W}, 6", nl)
        for i in range(10):
            a(f"buffer_load_dwordx4 {vr(20+4*i,4)}, v4, {srd('WQ')}, s44 offen{self.NTF}")
            if i < 9: a("s_add_u32 s44, s44, 98304")
        a.label(nl)
        a("s_branch L_pre2")
        a.label("L_apre")
        a(f"s_lshr_b32 s100, s{S_W}, 1")
        a(f"s_and_b32 s101, s{S_W}, 1")
        a(f"s_mul_i32 s44, s{S_J4}, 192")
        a("s_mul_i32 s45, s100, 48")
        a("s_add_u32 s44, s44, s45")
        a("s_lshl_b32 s45, s101, 3")
        a("s_add_u32 s44, s44, s45")
        a("s_mul_i32 s44, s44, 12288")
        a(f"s_mul_i32 s45, s{S_H}, 384")
        a("s_add_u32 s44, s44, s45")
        a(f"s_mov_b32 s{SRD['WUK']+2}, {SRD_SIZE['WUK']}")
        a(f"s_mov_b32 s{SRD['WUK']+3}, 0x00020000")
        a("s_waitcnt lgkmcnt(0)")
        a(f"s_mov_b64 s[{SRD['WUK']}:{SRD['WUK']+1}], s[82:83]")
        for f in range(3):
            for t in range(3):
                a(f"buffer_load_dwordx4 {vr(20+(f*3+t)*4,4)}, v4, {srd('WUK')}, s44 offen offset:{t*128}{self.NTF}")
            if f < 2: a("s_add_u32 s44, s44, 196608")
        a.label("L_pre2")
        a(f"s_load_dword s{S_EP}, s[64:65], {WS_EPOCH}")
        a(f"s_mov_b32 s{T}, s100")
        a(f"s_mov_b32 s{T+1}, s101")
        a(f"s_mov_b32 s{S_PM}, s46")
        for n in SRD: self.mk_srd(n)
        if self.stamps:
            a("v_mov_b32 v255, 0")
            self.stamp(0)
            a("v_writelane_b32 v255, s42, 23")
        a(f"s_mov_b32 s{S_M8}, 0xff00ff00")
        a(f"s_mov_b32 s{S_M8+1}, 0xff00ff00")
        a(f"s_mov_b32 s{S_WSCF}, {WS_CF}")
        a("s_cmp_lt_u32 s2, 128")
        a("s_cbranch_scc0 L_aset")

    def aset_front(self):
        a = self.a; T = S_T
        W0 = 20; QF = 56; ACC = 68
        a(f"s_lshl_b32 s{T+10}, s{S_X}, 4")
        a(f"s_add_u32 s{T+10}, s{T+10}, s{S_LI}")
        a(f"s_mul_i32 s{T+10}, s{T+10}, 2560")
        a(f"s_add_u32 s{T+10}, s{T+10}, {WS_OUTP}")
        a("v_mov_b32 v76, -1\nv_mov_b32 v77, -1\nv_mov_b32 v78, -1\nv_mov_b32 v79, -1")
        a("v_lshlrev_b32 v80, 4, v0")
        a("v_mov_b32 v81, 0x7fffffff")
        a("v_cmp_gt_u32 vcc, 160, v0")
        a("s_nop 1")
        a("v_cndmask_b32 v80, v81, v80, vcc")
        a(f"buffer_store_dwordx4 v[76:79], v80, {srd('WS')}, s{T+10} offen sc1")
        a("v_lshlrev_b32 v5, 2, v1")
        a("v_mov_b32 v6, 0")
        a(f"ds_write_b32 v5, v6 offset:{self.L_CB}")
        a(f"ds_write_b32 v5, v6 offset:{self.L_CB+256}")
        a(f"s_mul_i32 s{T+5}, s{S_H}, {8*1536}")
        a(f"s_add_u32 s{T+6}, s{T+5}, {WS_QPL}")
        a(f"s_add_u32 s{T+5}, s{T+5}, {WS_QPG}")
        a("s_waitcnt vmcnt(0) lgkmcnt(0)")
        a(f"s_add_u32 s{S_EP}, s{S_EP}, 1")
        self.stamp(1)
        skip = a.newlabel("e1skip")
        self.skip_if(f"s_cmp_ge_u32 s{S_W}, 3", skip)
        a("v_lshlrev_b32 v5, 3, v0")
        G = 84
        l = self.poll_begin(T+6, T+5)
        for p in range(8):
            a(f"buffer_load_dwordx2 {vr(G+2*p,2)}, v5, {srd('WS')}, s{S_PB} offen offset:{(p%2)*1536} sc1")
            if p % 2 == 1 and p < 7: a(f"s_add_u32 s{S_PB}, s{S_PB}, 3072")
        a("s_waitcnt vmcnt(0)")
        a(f"v_xor_b32 v6, s{S_EP}, v{G+1}")
        for p in range(1, 8):
            a(f"v_xor_b32 v7, s{S_EP}, v{G+2*p+1}")
            a("v_or_b32 v6, v6, v7")
        self.poll_end(l, 6)
        self.stamp_val(16, S_CNT)
        for p in range(1, 8): a(f"v_add_f32 v{G}, v{G}, v{G+2*p}")
        a(f"v_cvt_pk_bf16_f32 v6, v{G}, v{G}")
        a("v_lshlrev_b32 v7, 1, v0")
        a(f"ds_write_b16 v7, v6 offset:{self.L_Q}")
        a("s_waitcnt lgkmcnt(0)")
        a.label(skip)
        a("v_lshlrev_b32 v5, 4, v3")
        a(f"s_lshl_b32 s{T+7}, s{S_W}, 6")
        a("v_lshlrev_b32 v10, 1, v2")
        a(f"v_add_u32 v10, s{T+7}, v10")
        a("v_lshlrev_b32 v6, 4, v1")
        a("v_mov_b32 v7, 4")
        a("v_cmp_eq_u32 vcc, 3, v1")
        a("v_mov_b32 v8, 12")
        a("v_mov_b32 v9, 16")
        a("v_cndmask_b32 v6, v6, v8, vcc")
        a("v_cndmask_b32 v7, v7, v9, vcc")
        a("v_and_b32 v6, 63, v6")
        a(f"v_add_u32 v11, s{T+7}, v6")
        a("v_add_u32 v12, v11, v7")
        a("v_add_u32 v13, v12, v7")
        a(f"s_lshl_b32 s{T+8}, s{S_J4}, 2")
        a(f"s_add_u32 s{T+8}, s{T+8}, s{T}")
        a(f"s_lshl_b32 s{T+8}, s{T+8}, 12")
        a(f"s_lshl_b32 s{T+9}, s{T+1}, 9")
        a(f"s_add_u32 s{T+8}, s{T+8}, s{T+9}")
        a(f"s_lshl_b32 s{T+9}, s{S_H}, 4")
        a(f"s_add_u32 s{T+8}, s{T+8}, s{T+9}")
        a(f"s_add_u32 s{T+8}, s{T+8}, {WS_QA}")
        a("v_lshlrev_b32 v14, 10, v1")
        a("v_mov_b32 v7, 0x7fffffff")
        a("v_cmp_gt_u32 vcc, 4, v1")
        a(f"v_mov_b32 v75, s{S_EP}")
        a("v_cndmask_b32 v14, v7, v14, vcc")
        for f in range(3): a(f"v_mov_b32 v{ACC+f}, 0")
        a("s_barrier")
        self.stamp(2)
        for t in range(3):
            a(f"ds_read_b128 {vr(QF+4*t,4)}, v5 offset:{self.L_Q + t*128}")
        for t in range(3):
            a(f"s_waitcnt lgkmcnt({2-t})")
            for k in range(4):
                for f in range(3):
                    a(f"v_dot2c_f32_bf16 v{ACC+f}, v{W0+(f*3+t)*4+k}, v{QF+4*t+k}")
        a("s_nop 2")
        for ctrl in ["quad_perm:[1,0,3,2]", "quad_perm:[2,3,0,1]", "row_half_mirror"]:
            for f in range(3):
                a(f"v_add_f32_dpp v{ACC+f}, v{ACC+f}, v{ACC+f} {ctrl} row_mask:0xf bank_mask:0xf")
        for f in range(3): a(f"v_cvt_pk_bf16_f32 v{ACC+f}, v{ACC+f}, v{ACC+f}")
        for f in range(3): a(f"ds_write_b16 v10, v{ACC+f} offset:{self.L_QS + f*16}")
        a("s_waitcnt lgkmcnt(0)")
        a(f"ds_read_b32 v72, v11 offset:{self.L_QS}")
        a(f"ds_read_b32 v73, v12 offset:{self.L_QS}")
        a(f"ds_read_b32 v74, v13 offset:{self.L_QS}")
        a("s_waitcnt lgkmcnt(0)")
        a(f"buffer_store_dwordx4 v[72:75], v14, {srd('WS')}, s{T+8} offen sc1")
        self.stamp(3)
        if self.qa_ack: a("s_waitcnt vmcnt(0)")
        a("s_barrier")

    def wo_lane_offsets(self):
        a = self.a
        a("v_mul_u32_u24 v6, 52429, v0")
        a("v_lshrrev_b32 v6, 22, v6")
        a("v_mul_u32_u24 v7, 80, v6")
        a("v_sub_u32 v7, v0, v7")
        a("v_mul_u32_u24 v5, 1280, v6")
        a("v_lshl_add_u32 v5, v7, 4, v5")
        a("v_mov_b32 v8, 0x7fffffff")
        a("v_cmp_gt_u32 vcc, 480, v0")
        a("s_nop 1")
        a("v_cndmask_b32 v5, v8, v5, vcc")

    def preperm(self, W0, npairs, t0):
        a = self.a
        a("s_mov_b32 s94, 0x05040100")
        a("s_mov_b32 s95, 0x07060302")
        for p in range(npairs):
            for k in range(4):
                r0 = W0 + 8*p + k; r1 = r0 + 4
                a(f"v_perm_b32 v{t0}, v{r1}, v{r0}, s94")
                a(f"v_perm_b32 v{r1}, v{r1}, v{r0}, s95")
                a(f"v_mov_b32 v{r0}, v{t0}")

    def gemv_pairs(self, W0, npairs, CO, ACC):
        a = self.a
        for p in range(npairs):
            for k in range(4):
                a(f"v_dot2c_f32_bf16 v{ACC+2*k}, v{W0+8*p+k}, v{CO+p}")
            for k in range(4):
                a(f"v_dot2c_f32_bf16 v{ACC+2*k+1}, v{W0+8*p+4+k}, v{CO+p}")

    def out_reduce_publish(self, ACC, outp_soff):
        a = self.a
        a("s_nop 2")
        a(f"ds_write_b128 v129, {vr(ACC,4)} offset:{self.L_R}")
        a(f"ds_write_b128 v129, {vr(ACC+4,4)} offset:{self.L_R+16}")
        a("s_waitcnt lgkmcnt(0)")
        a("s_barrier")
        skip = a.newlabel("go")
        self.skip_if(f"s_cmp_ge_u32 s{S_W}, 3", skip)
        R = 132
        for sl in range(6):
            a(f"ds_read_b128 {vr(R+4*sl,4)}, v131 offset:{self.L_R+sl*2560}")
        a("s_waitcnt lgkmcnt(0)")
        for k in range(4):
            a(f"v_add_f32 v{R+k}, v{R+k}, v{R+4+k}")
            a(f"v_add_f32 v{R+8+k}, v{R+8+k}, v{R+12+k}")
            a(f"v_add_f32 v{R+16+k}, v{R+16+k}, v{R+20+k}")
        for k in range(4): a(f"v_add_f32 v{R+k}, v{R+k}, v{R+8+k}")
        for k in range(4): a(f"v_add_f32 v{R+k}, v{R+k}, v{R+16+k}")
        for k in range(4): a(f"v_min_u32 v{R+k}, 0xfffffffe, v{R+k}")
        a(f"buffer_store_dwordx4 {vr(R,4)}, v130, {srd('WS')}, s{outp_soff} offen sc1")
        a.label(skip)

    def write_pairs(self, vsrc, t0, t1, nvalid):
        a = self.a
        a(f"v_lshlrev_b32 v{t0}, 2, v1")
        a(f"v_add_u32 v{t1}, {self.L_CB - 24 + 2}, v{t0}")
        a(f"v_add_u32 v{t0}, {self.L_CB}, v{t0}")
        a(f"v_mov_b32 v{t0+2}, {self.L_CB + 500}")
        a("v_cmp_gt_u32 vcc, 6, v1")
        a("s_nop 1")
        a(f"v_cndmask_b32 v{t1}, v{t1}, v{t0+2}, vcc")
        if nvalid < 64:
            a(f"v_cmp_le_u32 vcc, {nvalid}, v1")
            a("s_nop 1")
            a(f"v_cndmask_b32 v{t1}, v{t1}, v{t0+2}, vcc")
            a(f"v_cndmask_b32 v{t0}, v{t0}, v{t0+2}, vcc")
        a(f"ds_write_b16 v{t0}, v{vsrc}")
        a(f"ds_write_b16 v{t1}, v{vsrc}")

    def out_addr_regs(self):
        a = self.a
        a("v_mul_u32_u24 v129, 2560, v6")
        a("v_lshl_add_u32 v129, v7, 5, v129")
        a("v_lshlrev_b32 v131, 4, v0")
        a("v_mov_b32 v130, 0x7fffffff")
        a("v_cmp_gt_u32 vcc, 160, v0")
        a("s_nop 1")
        a("v_cndmask_b32 v130, v130, v131, vcc")

    def aset_back(self):
        a = self.a; T = S_T
        self.wo_lane_offsets()
        self.out_addr_regs()
        if self.exp_nobulk:
            a(f"s_lshl_b32 s{T+1}, s{S_H}, 7")
            a(f"s_add_u32 s{T+1}, s{T+1}, {WS_ML}")
            a("v_and_b32 v14, 15, v1")
            a("v_lshlrev_b32 v14, 3, v14")
            self.cf_check(132)
            l = self.poll_begin()
            a(f"buffer_load_dwordx2 v[116:117], v14, {srd('WS')}, s{T+1} offen sc1")
            a("s_waitcnt vmcnt(0)")
            a("v_max_u32 v15, v116, v117")
            a("v_cmp_eq_u32 vcc, -1, v15")
            a("s_nop 1")
            a("v_cndmask_b32 v15, 0, 1, vcc")
            a("s_sleep 4")
            self.poll_end(l, 15)
        self.skip_if(f"s_cmp_ge_u32 s{S_LI}, 12", "L_bbranch")
        WV = 20; WO = 68
        a(f"s_mul_i32 s{T}, s{S_W}, {96*12288}")
        a(f"s_mul_i32 s{T+1}, s{S_H}, 384")
        a(f"s_add_u32 s{T}, s{T}, s{T+1}")
        a(f"s_lshl_b32 s{T+1}, s{S_J4}, 7")
        a(f"s_add_u32 s{T}, s{T}, s{T+1}")
        for i in range(12):
            a(f"buffer_load_dwordx4 {vr(WV+4*i,4)}, v4, {srd('WUV')}, s{T} offen{self.NTB}")
            if i >= self.a_win: a(f"s_waitcnt vmcnt({self.a_win})")
            if i < 11: a(f"s_add_u32 s{T}, s{T}, 98304")
        a(f"s_mul_i32 s{T}, s{S_H}, 192")
        a(f"s_lshl_b32 s{T+1}, s{S_J4}, 6")
        a(f"s_add_u32 s{T}, s{T}, s{T+1}")
        a(f"s_mul_i32 s{T}, s{T}, 1280")
        for i in range(10):
            a(f"buffer_load_dwordx4 {vr(WO+4*i,4)}, v5, {srd('WO')}, s{T} offen{self.NTB}")
            if 12 + i >= self.a_win: a(f"s_waitcnt vmcnt({self.a_win})")
            a(f"s_add_u32 s{T}, s{T}, 7680")
        a("v_cmp_gt_u32 vcc, 4, v6")
        a("s_nop 1")
        a("v_cndmask_b32 v9, v8, v5, vcc")
        a(f"buffer_load_dwordx4 {vr(WO+40,4)}, v9, {srd('WO')}, s{T} offen{self.NTB}")
        for k in range(4): a(f"v_mov_b32 v{WO+44+k}, 0")
        self.stamp(4)
        a("v_cmp_le_u32 vcc, 24, v1")
        a("s_nop 1")
        a("v_cndmask_b32 v10, 0, 1, vcc")
        a("v_mul_u32_u24 v11, 24, v10")
        a("v_sub_u32 v11, v1, v11")
        a("v_mul_u32_u24 v12, 384, v10")
        a("v_lshl_add_u32 v12, v11, 4, v12")
        a(f"s_lshl_b32 s{T+2}, s{S_W}, 10")
        a(f"s_add_u32 s{T+2}, s{T+2}, {self.L_O}")
        a(f"v_add_u32 v13, s{T+2}, v12")
        a("v_cmp_gt_u32 vcc, 48, v1")
        a("v_lshlrev_b32 v16, 2, v2")
        a(f"v_add_u32 v16, s{T+2}, v16")
        a("v_cndmask_b32 v12, v8, v12, vcc")
        a(f"s_lshl_b32 s{T}, s{S_H}, 3")
        a(f"s_add_u32 s{T}, s{T}, s{S_W}")
        a(f"s_mul_i32 s{T}, s{T}, {16*384}")
        a(f"s_add_u32 s{T}, s{T}, {WS_OP}")
        a(f"s_lshl_b32 s{T+1}, s{S_H}, 7")
        a(f"s_add_u32 s{T+1}, s{T+1}, {WS_ML}")
        a("v_and_b32 v14, 15, v1")
        a("v_lshlrev_b32 v14, 3, v14")
        a("v_lshlrev_b32 v121, 2, v10")
        a("v_lshlrev_b32 v17, 5, v3")
        a("v_lshl_add_u32 v17, v2, 2, v17")
        a(f"s_lshl_b32 s{T+3}, s{S_W}, 8")
        a(f"v_add_u32 v17, s{T+3}, v17")
        a("v_lshlrev_b32 v18, 2, v6")
        a("v_lshlrev_b32 v172, 2, v1")
        a(f"v_add_u32 v173, {self.L_CB - 24 + 2}, v172")
        a(f"v_add_u32 v172, {self.L_CB}, v172")
        a(f"v_mov_b32 v174, {self.L_CB + 500}")
        a("v_cmp_gt_u32 vcc, 6, v1")
        a("s_nop 1")
        a("v_cndmask_b32 v173, v173, v174, vcc")
        a("s_waitcnt vmcnt(11)")
        self.preperm(WV, 6, 128)
        a("s_waitcnt vmcnt(0)")
        self.preperm(WO, 6, 128)
        self.stamp(5)
        self.cf_check(132)
        OPV = 132
        def e4_issue(i):
            if i == 8:
                a(f"buffer_load_dwordx2 v[116:117], v14, {srd('WS')}, s{T+1} offen sc1")
            else:
                so = T if i < 4 else T+2
                a(f"buffer_load_dwordx4 {vr(OPV+4*i,4)}, v12, {srd('WS')}, s{so} offen offset:{(i%4)*768} sc1")
        def e4_check(i):
            if i == 8:
                a("v_max_u32 v15, v116, v117")
            else:
                a(f"v_max3_u32 v15, v{OPV+4*i}, v{OPV+4*i+1}, v{OPV+4*i+2}")
                a(f"v_max_u32 v15, v15, v{OPV+4*i+3}")
            a("v_cmp_eq_u32 vcc, -1, v15")
        a(f"s_add_u32 s{T+2}, s{T}, 3072")
        if self.mlpoll == 1:
            l = self.poll_begin()
            a(f"buffer_load_dwordx2 v[116:117], v14, {srd('WS')}, s{T+1} offen sc1")
            a("s_waitcnt vmcnt(0)")
            a("v_max_u32 v15, v116, v117")
            a("v_cmp_eq_u32 vcc, -1, v15")
            a("s_nop 1")
            a("v_cndmask_b32 v15, 0, 1, vcc")
            self.poll_end(l, 15)
            self.gpoll(8, e4_issue, e4_check, masks=[20,22,24,26,28,30,44,46])
        elif self.mlpoll == 2:
            l = a.newlabel("mla"); ok = a.newlabel("mlo")
            a(f"s_mov_b32 s{S_CNT}, 0")
            a.label(l)
            a(f"buffer_load_dwordx2 v[116:117], v14, {srd('WS')}, s{T+1} offen sc1")
            a("s_waitcnt vmcnt(0)")
            a("v_max_u32 v15, v116, v117")
            a("v_cmp_ne_u32 vcc, -1, v15")
            a(f"s_cbranch_vccnz {ok}")
            a("s_sleep 2")
            a(f"s_add_u32 s{S_CNT}, s{S_CNT}, 1")
            a(f"s_cmp_lt_u32 s{S_CNT}, {POLL_LIMIT}")
            a(f"s_cbranch_scc1 {l}")
            a.label(ok)
            self.gpoll(9, e4_issue, e4_check, masks=[20,22,24,26,28,30,44,46,48])
        else:
            self.gpoll(9, e4_issue, e4_check)
        self.stamp(6)
        self.stamp_val(17, S_CNT)
        a("v_mov_b32 v118, v116")
        a("s_nop 1")
        for ctrl in ["quad_perm:[1,0,3,2]", "quad_perm:[2,3,0,1]", "row_half_mirror", "row_mirror"]:
            a(f"v_max_f32_dpp v118, v118, v118 {ctrl} row_mask:0xf bank_mask:0xf")
            a("s_nop 1")
        a("v_sub_f32 v119, v116, v118")
        a("v_exp_f32 v119, v119")
        a("s_nop 0")
        a("v_mul_f32 v120, v117, v119")
        WN = 164
        for i in range(8): a(f"ds_bpermute_b32 v{WN+i}, v121, v119 offset:{8*i}")
        for ctrl in ["quad_perm:[1,0,3,2]", "quad_perm:[2,3,0,1]", "row_half_mirror", "row_mirror"]:
            a(f"v_add_f32_dpp v120, v120, v120 {ctrl} row_mask:0xf bank_mask:0xf")
            a("s_nop 1")
        a("v_rcp_f32 v120, v120")
        a("s_waitcnt lgkmcnt(0)")
        for k in range(4): a(f"v_mul_f32 v{122+k}, v{WN}, v{OPV+k}")
        for i in range(1, 8):
            for k in range(4): a(f"v_fmac_f32 v{122+k}, v{WN+i}, v{OPV+4*i+k}")
        for k in range(4): a(f"v_mul_f32 v{122+k}, v{122+k}, v120")
        a("s_mov_b32 exec_hi, 0xffff")
        a("ds_write_b128 v13, v[122:125]")
        a("s_mov_b32 exec_hi, -1")
        a("s_waitcnt lgkmcnt(0)")
        OV = 132
        for i in range(12):
            a(f"ds_read2_b32 {vr(OV+2*i,2)}, v16 offset0:{8*i} offset1:{8*i+96}")
        ACC = 120
        for k in range(8): a(f"v_mov_b32 v{ACC+k}, 0")
        CO = 160
        for p in range(6):
            a(f"s_waitcnt lgkmcnt({10-2*p})")
            a(f"v_add_f32 v{OV+4*p}, v{OV+4*p}, v{OV+4*p+1}")
            a(f"v_add_f32 v{OV+4*p+2}, v{OV+4*p+2}, v{OV+4*p+3}")
            a(f"v_cvt_pk_bf16_f32 v{CO+p}, v{OV+4*p}, v{OV+4*p+2}")
        self.gemv_pairs(WV, 6, CO, ACC)
        self.treduce8(ACC, 128, 118)
        a(f"ds_write_b32 v17, v{ACC} offset:{self.L_C}")
        a("s_waitcnt lgkmcnt(0)")
        a("s_barrier")
        self.stamp(7)
        skip = a.newlabel("cx")
        self.skip_if(f"s_cmp_lg_u32 s{S_W}, 0", skip)
        a("v_lshlrev_b32 v13, 2, v1")
        for w in range(8): a(f"ds_read_b32 v{132+w}, v13 offset:{self.L_C+w*256}")
        a("s_waitcnt lgkmcnt(0)")
        a("v_add_f32 v132, v132, v133\nv_add_f32 v134, v134, v135\nv_add_f32 v136, v136, v137\nv_add_f32 v138, v138, v139")
        a("v_add_f32 v132, v132, v134\nv_add_f32 v136, v136, v138")
        a("v_add_f32 v132, v132, v136")
        a("v_cvt_pk_bf16_f32 v132, v132, v132")
        a("ds_write_b16 v172, v132")
        a("ds_write_b16 v173, v132")
        a("s_waitcnt lgkmcnt(0)")
        a.label(skip)
        for k in range(8): a(f"v_mov_b32 v{ACC+k}, 0")
        a("s_barrier")
        for p in range(6):
            a(f"ds_read_b32 v{CO+p}, v18 offset:{self.L_CB+48*p}")
        a("s_waitcnt lgkmcnt(0)")
        self.gemv_pairs(WO, 6, CO, ACC)
        self.out_reduce_publish(ACC, T+10)
        self.stamp(8)
        a("s_branch L_aend")

        a.label("L_bbranch")
        WG = 20; XB = 84; WD = 160
        a("v_lshlrev_b32 v19, 2, v6")
        a(f"s_lshl_b32 s{T}, s{S_X}, 2")
        a(f"s_add_u32 s{T}, s{T}, s{S_LI}")
        a(f"s_sub_u32 s{T}, s{T}, 12")
        a("v_mul_u32_u24 v10, 43, v1")
        a("v_lshrrev_b32 v10, 8, v10")
        a("v_mul_u32_u24 v11, 6, v10")
        a("v_sub_u32 v11, v1, v11")
        a("v_mul_u32_u24 v12, 3072, v10")
        a("v_lshl_add_u32 v12, v11, 4, v12")
        a("v_cmp_gt_u32 vcc, 60, v1")
        a("v_lshlrev_b32 v13, 1, v10")
        a("v_cndmask_b32 v12, v8, v12, vcc")
        a(f"s_and_b32 s{T+1}, s{S_W}, 3")
        a(f"s_mul_i32 s{T+2}, s{T+1}, 320")
        for i in range(16):
            a(f"buffer_load_ushort v{XB+i}, v13, {srd('X')}, s{T+2} offen offset:{20*i}")
        a(f"s_mul_i32 s{T+2}, s{T+1}, {160*3072}")
        a(f"s_mul_i32 s{T+3}, s{T}, 96")
        a(f"s_add_u32 s{T+2}, s{T+2}, s{T+3}")
        up = a.newlabel("up"); upd = a.newlabel("upd")
        self.skip_if(f"s_cmp_ge_u32 s{S_W}, 4", up)
        for i in range(16):
            a(f"buffer_load_dwordx4 {vr(WG+4*i,4)}, v12, {srd('WG')}, s{T+2} offen{self.NTB}")
            if i >= self.a_win: a(f"s_waitcnt vmcnt({self.a_win})")
            a(f"s_add_u32 s{T+2}, s{T+2}, 30720")
        a(f"s_branch {upd}")
        a.label(up)
        for i in range(16):
            a(f"buffer_load_dwordx4 {vr(WG+4*i,4)}, v12, {srd('WU')}, s{T+2} offen{self.NTB}")
            if i >= self.a_win: a(f"s_waitcnt vmcnt({self.a_win})")
            a(f"s_add_u32 s{T+2}, s{T+2}, 30720")
        a.label(upd)
        a(f"s_mul_i32 s{T+2}, s{T}, {48*1280}")
        for i in range(8):
            a(f"buffer_load_dwordx4 {vr(WD+4*i,4)}, v5, {srd('WD')}, s{T+2} offen{self.NTB}")
            if 16 + i >= self.a_win: a(f"s_waitcnt vmcnt({self.a_win})")
            a(f"s_add_u32 s{T+2}, s{T+2}, 7680")
        ACC = 120
        for k in range(8): a(f"v_mov_b32 v{ACC+k}, 0")
        for i in range(16):
            a(f"s_waitcnt vmcnt({8+15-i})")
            a(f"v_lshlrev_b32 v128, 16, v{XB+i}")
            for k in range(4): a(f"v_dot2c_f32_bf16 v{ACC+2*k}, v{WG+4*i+k}, v{XB+i}")
            for k in range(4): a(f"v_dot2c_f32_bf16 v{ACC+2*k+1}, v{WG+4*i+k}, v128")
        a(f"s_mul_i32 s{T+2}, s{S_W}, 1920")
        a("v_mul_u32_u24 v13, 192, v10")
        a("v_lshl_add_u32 v13, v11, 5, v13")
        a(f"v_add_u32 v13, s{T+2}, v13")
        a("s_mov_b32 exec_hi, 0x0fffffff")
        a(f"ds_write_b128 v13, {vr(ACC,4)} offset:{self.L_R}")
        a(f"ds_write_b128 v13, {vr(ACC+4,4)} offset:{self.L_R+16}")
        a("s_mov_b32 exec_hi, -1")
        a("s_waitcnt lgkmcnt(0)")
        a("s_barrier")
        skip = a.newlabel("bg")
        self.skip_if(f"s_cmp_ge_u32 s{S_W}, 2", skip)
        a("v_cmp_le_u32 vcc, 48, v0")
        a("v_mov_b32 v14, 7488")
        a("v_lshlrev_b32 v13, 2, v0")
        a("v_cndmask_b32 v14, 0, v14, vcc")
        a("v_add_u32 v13, v13, v14")
        a("v_min_u32 v13, 7868, v13")
        for j in range(40):
            a(f"ds_read_b32 v{20+j}, v13 offset:{self.L_R+j*192}")
            if j % 8 == 7: a("s_waitcnt lgkmcnt(0)")
        for j in range(1, 40): a(f"v_add_f32 v20, v20, v{20+j}")
        a("v_lshlrev_b32 v13, 2, v0")
        a(f"ds_write_b32 v13, v20 offset:{self.L_C}")
        a("s_waitcnt lgkmcnt(0)")
        a.label(skip)
        a("s_barrier")
        skip = a.newlabel("bh")
        self.skip_if(f"s_cmp_lg_u32 s{S_W}, 0", skip)
        a("v_lshlrev_b32 v13, 2, v1")
        a(f"ds_read_b32 v20, v13 offset:{self.L_C}")
        a(f"ds_read_b32 v21, v13 offset:{self.L_C+192}")
        a("s_waitcnt lgkmcnt(0)")
        a(f"v_mul_f32 v20, 0x{f32bits(-math.log2(math.e)):08x}, v20")
        a("v_exp_f32 v20, v20")
        a("s_nop 0")
        a("v_add_f32 v20, 1.0, v20")
        a("v_rcp_f32 v20, v20")
        a("s_nop 0")
        a("v_mul_f32 v20, v20, v21")
        a("v_cvt_pk_bf16_f32 v20, v20, v20")
        self.write_pairs(20, 13, 14, 48)
        a("s_waitcnt lgkmcnt(0)")
        a.label(skip)
        for k in range(8): a(f"v_mov_b32 v{ACC+k}, 0")
        a("s_waitcnt vmcnt(0)")
        self.preperm(WD, 4, 128)
        a("s_barrier")
        CO = 100
        for p in range(4):
            a(f"ds_read_b32 v{CO+p}, v19 offset:{self.L_CB+48*p}")
        a("s_waitcnt lgkmcnt(0)")
        self.gemv_pairs(WD, 4, CO, ACC)
        self.out_reduce_publish(ACC, T+10)
        self.stamp(8)
        a.label("L_aend")

    def bset_ids(self):
        a = self.a
        a(f"s_mov_b32 s{S_LB}, s{S_LI}")
        a(f"s_lshl_b32 s{S_BLK}, s{S_X}, 5")
        a(f"s_lshl_b32 s9, s{S_LB}, 1")
        a(f"s_add_u32 s{S_BLK}, s{S_BLK}, s9")
        a(f"s_lshl_b32 s{S_G}, s{S_X}, 1")
        a(f"s_lshr_b32 s9, s{S_LB}, 3")
        a(f"s_add_u32 s{S_G}, s{S_G}, s9")
        a(f"s_and_b32 s{S_S}, s{S_LB}, 7")

    def pv_lane_offsets(self):
        a = self.a
        for n in range(3):
            a(f"v_add_u32 v5, {64*n}, v1")
            a("v_mul_u32_u24 v6, 5462, v5")
            a("v_lshrrev_b32 v6, 16, v6")
            a("v_mul_u32_u24 v7, 12, v6")
            a("v_sub_u32 v7, v5, v7")
            a("v_mul_u32_u24 v6, 1536, v6")
            a(f"v_lshl_add_u32 v{self.PVO+n}, v7, 4, v6")

    def pv_dma(self, kp, ldsbase, nw, w0):
        a = self.a; T = S_T + 8
        per = 48 // nw; rows = 256 // nw
        a(f"s_sub_u32 s{T+2}, s{S_W}, {w0}")
        a(f"s_lshl_b32 s{T}, s{S_G}, 9")
        a(f"s_mul_i32 s{T+1}, s{T+2}, {rows}")
        a(f"s_add_u32 s{T}, s{T}, s{T+1}")
        if kp: a(f"s_add_u32 s{T}, s{T}, 256")
        a(f"s_mul_i32 s{T}, s{T}, 1536")
        a(f"s_mul_i32 s{T+1}, s{S_S}, 192")
        a(f"s_add_u32 s{T}, s{T}, s{T+1}")
        a(f"s_mul_i32 s{T+1}, s{T+2}, {per*1024}")
        a(f"s_add_u32 s{T+1}, s{T+1}, {ldsbase}")
        for n in range(per):
            a(f"s_add_u32 m0, s{T+1}, {n*1024}")
            if n % 3 == 0 and n > 0: a(f"s_add_u32 s{T}, s{T}, {16*1536}")
            else: a("s_nop 0")
            a(f"buffer_load_dwordx4 v{self.PVO+(n%3)}, {srd('CKV')}, s{T} offen{self.NTC} lds")
            if self.pv_win < 63: a(f"s_waitcnt vmcnt({self.pv_win})")

    def s_dma_prep(self):
        a = self.a
        a("v_mov_b32 v216, 0")
        a("v_mov_b32 v219, v1")
        a("v_cmp_le_u32 vcc, 32, v1")
        a("v_add_u32 v5, 64, v1")
        a("v_subrev_u32 v6, 32, v1")
        a("v_cndmask_b32 v217, 0, 1, vcc")
        a("v_cndmask_b32 v220, v5, v6, vcc")
        a("v_mov_b32 v218, 1")
        a("v_add_u32 v221, 32, v1")
        for b in range(3): a(f"v_mul_u32_u24 v{222+b}, 1536, v{216+b}")
        T = S_T + 8
        a(f"s_and_b32 s{T+2}, s{S_W}, 1")
        a(f"s_lshl_b32 s{T+2}, s{T+2}, 3")
        for aa in range(4):
            for b in range(3):
                n = 3*aa + b
                a(f"s_add_u32 s{T+4}, s{T+2}, {2*aa}")
                a(f"v_add_u32 v5, s{T+4}, v{216+b}")
                a(f"v_xor_b32 v5, v5, v{219+b}")
                a(f"v_lshl_add_u32 v{226+n}, v5, 4, v{222+b}")

    def s_dma(self):
        a = self.a; T = S_T + 8
        a(f"s_lshl_b32 s{T}, s{S_X}, 10")
        a(f"s_lshl_b32 s{T+1}, s{S_LB}, 6")
        a(f"s_add_u32 s{T}, s{T}, s{T+1}")
        a(f"s_lshl_b32 s{T+1}, s{S_W}, 3")
        a(f"s_add_u32 s{T}, s{T}, s{T+1}")
        a(f"s_mul_i32 s{T}, s{T}, 1536")
        a(f"s_mul_i32 s{T+3}, s{S_W}, 12288")
        a(f"s_add_u32 s{T+3}, s{T+3}, {self.L_S}")
        for n in range(12):
            a(f"s_add_u32 m0, s{T+3}, {n*1024}")
            if n % 3 == 0 and n > 0: a(f"s_add_u32 s{T}, s{T}, {2*1536}")
            else: a("s_nop 0")
            a(f"buffer_load_dwordx4 v{226+n}, {srd('CKV')}, s{T} offen{self.NTC} lds")
            if n >= self.s_win: a(f"s_waitcnt vmcnt({self.s_win})")
            if self.s_probe and n == self.s_probe-1: a(f"s_waitcnt vmcnt({self.s_probe-1})")

    def bset_clears(self):
        a = self.a; T = S_T + 8
        a("v_subrev_u32 v5, 384, v0")
        a("v_mov_b32 v76, -1\nv_mov_b32 v77, -1\nv_mov_b32 v78, -1\nv_mov_b32 v79, -1")
        a("v_lshlrev_b32 v6, 4, v5")
        a("v_mov_b32 v7, 0x7fffffff")
        a("v_cmp_gt_u32 vcc, 64, v5")
        a(f"s_mul_i32 s{T+2}, s{S_BLK}, {PBS}")
        a("v_cndmask_b32 v8, v7, v6, vcc")
        for base in (WS_PBG, WS_PBL):
            a(f"s_add_u32 s{T+3}, s{T+2}, {base}")
            a(f"buffer_store_dwordx4 v[76:79], v6, {srd('WS')}, s{T+3} offen sc1")
            a(f"buffer_store_dwordx4 v[76:79], v6, {srd('WS')}, s{T+3} offen offset:2048 sc1")
            a(f"s_add_u32 s{T+3}, s{T+3}, 4096")
            a(f"buffer_store_dwordx4 v[76:79], v8, {srd('WS')}, s{T+3} offen sc1")
        a(f"s_lshl_b32 s{T+5}, s{S_S}, 4")
        a(f"s_add_u32 s{T+5}, s{T+5}, s{S_G}")
        a(f"s_mul_i32 s{T+5}, s{T+5}, 384")
        a(f"s_add_u32 s{T+5}, s{T+5}, {WS_OP}")
        a(f"s_mov_b32 s{T+6}, 49152")
        for i in range(6):
            a(f"v_add_u32 v8, {128*i}, v5")
            a("v_mul_u32_u24 v9, 2731, v8")
            a("v_lshrrev_b32 v9, 16, v9")
            a("v_mul_u32_u24 v70, 24, v9")
            a("v_sub_u32 v70, v8, v70")
            a(f"v_mul_lo_u32 v9, v9, s{T+6}")
            a("v_lshl_add_u32 v9, v70, 4, v9")
            a(f"buffer_store_dwordx4 v[76:79], v9, {srd('WS')}, s{T+5} offen sc1")
        a("v_lshlrev_b32 v8, 7, v5")
        a("v_cmp_gt_u32 vcc, 32, v5")
        a(f"s_lshl_b32 s{T+5}, s{S_G}, 3")
        a(f"s_add_u32 s{T+5}, s{T+5}, {WS_ML}")
        a("v_cndmask_b32 v8, v7, v8, vcc")
        a(f"s_cmp_eq_u32 s{S_S}, 0")
        a(f"s_cselect_b32 s{T+5}, s{T+5}, 0x7fffff00")
        a(f"buffer_store_dwordx2 v[76:77], v8, {srd('WS')}, s{T+5} offen sc1")

    def bset_front(self):
        a = self.a; T = S_T
        XV = 10; W0 = 20; ACC = 60
        a(f"v_mov_b32 v5, {self.L_FLAG}")
        for k in range(4): a(f"v_mov_b32 v{6+k}, 0")
        a("ds_write_b128 v5, v[6:9]")
        a("ds_write_b128 v5, v[6:9] offset:16")
        a("ds_write_b128 v5, v[6:9] offset:32")
        a("ds_write_b128 v5, v[6:9] offset:48")
        a("v_lshlrev_b32 v5, 1, v2")
        a(f"v_add_u32 v9, s{S_PM}, v5")
        nox = a.newlabel("nox")
        self.skip_if(f"s_cmp_lg_u32 s{S_W}, 6", nox)
        a("v_lshlrev_b32 v8, 4, v1")
        a(f"buffer_load_dwordx4 v[20:23], v8, {srd('X')}, 0 offen")
        a(f"buffer_load_dwordx4 v[24:27], v8, {srd('X')}, 0 offen offset:1024")
        a.label(nox)
        self.bset_ids()
        self.pv_lane_offsets()
        self.s_dma_prep()
        nox2 = a.newlabel("nox2")
        self.skip_if(f"s_cmp_lg_u32 s{S_W}, 6", nox2)
        a("s_waitcnt vmcnt(0)")
        a(f"ds_write_b128 v8, v[20:23] offset:{self.L_X}")
        a(f"ds_write_b128 v8, v[24:27] offset:{self.L_X+1024}")
        a.label(nox2)
        a("s_waitcnt lgkmcnt(0)")
        a("s_barrier")
        ldr = a.newlabel("p1ldr"); j = a.newlabel("p1j")
        self.skip_if(f"s_cmp_ge_u32 s{S_W}, 6", ldr)
        a(f"s_lshl_b32 s{T+5}, s{S_H}, 3")
        a(f"s_lshl_b32 s{T+6}, s{S_J4}, 1")
        a(f"s_add_u32 s{T+5}, s{T+5}, s{T+6}")
        a(f"s_add_u32 s{T+5}, s{T+5}, s{T}")
        a(f"s_mul_i32 s{T+5}, s{T+5}, 1536")
        a(f"s_lshl_b32 s{T+6}, s{T+1}, 9")
        a(f"s_add_u32 s{T+5}, s{T+5}, s{T+6}")
        a(f"s_add_u32 s{T+6}, s{T+5}, {WS_QPG}")
        a(f"s_add_u32 s{T+5}, s{T+5}, {WS_QPL}")
        a("v_lshlrev_b32 v5, 6, v3")
        a("v_lshl_add_u32 v5, v2, 3, v5")
        for k in range(8): a(f"v_mov_b32 v{ACC+k}, 0")
        for i in range(10):
            a(f"ds_read_u16 v{XV+i}, v9 offset:{self.L_X+16*i}")
        a("s_waitcnt lgkmcnt(0)")
        a(f"s_add_u32 s{S_EP}, s{S_EP}, 1")
        for i in range(10):
            a(f"s_waitcnt vmcnt({9-i})")
            if i == 9: self.stamp(13)
            a(f"v_lshlrev_b32 v68, 16, v{XV+i}")
            for k in range(4): a(f"v_dot2c_f32_bf16 v{ACC+2*k}, v{W0+4*i+k}, v{XV+i}")
            for k in range(4): a(f"v_dot2c_f32_bf16 v{ACC+2*k+1}, v{W0+4*i+k}, v68")
        self.treduce8(ACC, 68, 69)
        a(f"v_mov_b32 v{ACC+1}, s{S_EP}")
        if self.local:
            a(f"buffer_store_dwordx2 {vr(ACC,2)}, v5, {srd('WS')}, s{T+5} offen")
        a(f"buffer_store_dwordx2 {vr(ACC,2)}, v5, {srd('WS')}, s{T+6} offen sc1")
        self.stamp(1)
        a(f"s_branch {j}")
        a.label(ldr)
        if not self.exp_noclear: self.bset_clears()
        a("s_waitcnt lgkmcnt(0)")
        a(f"s_add_u32 s{S_EP}, s{S_EP}, 1")
        a.label(j)
        a("s_barrier")
        self.s_dma()
        nocf = a.newlabel("nocf")
        self.skip_if(f"s_cmp_lt_u32 s{S_W}, 6", nocf)
        a("s_waitcnt vmcnt(12)")
        a(f"s_lshl_b32 s{T+13}, s2, 1")
        a(f"s_add_u32 s{T+13}, s{T+13}, s{S_W}")
        a(f"s_lshl_b32 s{T+13}, s{T+13}, 2")
        a(f"s_add_u32 s{T+13}, s{T+13}, {WS_CF - 24}")
        a(f"v_mov_b32 v5, s{S_EP}")
        a("v_mov_b32 v6, 0")
        a("s_mov_b64 exec, 1")
        a(f"buffer_store_dword v5, v6, {srd('WS')}, s{T+13} offen sc1")
        a("s_mov_b64 exec, -1")
        a.label(nocf)
        self.stamp(2)

    def bset_s_phase(self):
        a = self.a; T = S_T
        QA = 20; AF = 84; ACC = 180
        a("v_and_b32 v6, 31, v1")
        a("v_lshrrev_b32 v7, 5, v1")
        a("v_and_b32 v8, 15, v6")
        a("v_xor_b32 v8, v8, v7")
        a("v_mul_u32_u24 v6, 1536, v6")
        a(f"v_add_u32 v6, {self.L_S}, v6")
        a(f"s_mul_i32 s{T+2}, s{S_W}, 24")
        for i in range(12):
            a(f"s_add_u32 s{T+3}, s{T+2}, {2*i}")
            a(f"v_xor_b32 v9, s{T+3}, v8")
            a(f"v_lshl_add_u32 v{226+i}, v9, 4, v6")
        a(f"s_lshl_b32 s{T}, s{S_W}, 14")
        a(f"s_add_u32 s{T}, s{T}, {WS_QA}")
        a("v_lshlrev_b32 v5, 4, v1")
        for g in range(4): a(f"s_add_u32 s{T+9+g}, s{T}, {4096*g}")
        def qa_first():
            for n in range(16):
                a(f"buffer_load_dwordx4 {vr(QA+4*n,4)}, v5, {srd('WS')}, s{T+9+n//4} offen offset:{(n%4)*1024} sc1")
        if self.qa_early:
            a("s_barrier")
            notS0 = a.newlabel("notS0")
            self.skip_if(f"s_cmp_ge_u32 s{S_W}, 4", notS0)
            qa_first()
            a("s_waitcnt vmcnt(16)")
            a.label(notS0)
            nw = a.newlabel("nw")
            self.skip_if(f"s_cmp_lt_u32 s{S_W}, 4", nw)
            a("s_waitcnt vmcnt(0)")
            a.label(nw)
        else:
            a("s_waitcnt vmcnt(0)")
        a("s_barrier")
        self.stamp(3)
        notS = a.newlabel("notS"); j4 = a.newlabel("j4")
        self.skip_if(f"s_cmp_ge_u32 s{S_W}, 4", notS)
        if not self.qa_early: qa_first()
        for i in range(12):
            a(f"ds_read_b128 {vr(AF+4*i,4)}, v{226+i}")
            a(f"ds_read_b128 {vr(AF+48+4*i,4)}, v{226+i} offset:49152")
            if i == 5: a("s_waitcnt lgkmcnt(0)")
        a("s_waitcnt lgkmcnt(0)")
        a("s_barrier")
        self.stamp(21)
        a(f"s_lshl_b32 s{T+2}, s{S_W}, 13")
        a(f"s_add_u32 s{T+2}, s{T+2}, {self.L_RED}")
        a(f"v_add_u32 v10, s{T+2}, v5")
        a(f"s_lshl_b32 s{T+2}, s{S_W}, 10")
        a(f"s_add_u32 s{T+2}, s{T+2}, {self.L_RED}")
        a(f"v_add_u32 v11, s{T+2}, v5")
        a("v_bfe_u32 v12, v1, 4, 1")
        a("v_lshlrev_b32 v12, 10, v12")
        a("v_and_b32 v9, 15, v1")
        a("v_lshl_add_u32 v12, v9, 4, v12")
        a("v_lshrrev_b32 v9, 5, v1")
        a("v_lshl_add_u32 v12, v9, 3, v12")
        a("v_and_b32 v13, 31, v1")
        a("v_lshlrev_b32 v13, 2, v13")
        a("v_mov_b32 v9, 0x7fffffff")
        a("v_cmp_gt_u32 vcc, 32, v1")
        a(f"s_mul_i32 s{T+4}, s{S_BLK}, {PBS}")
        a("v_cndmask_b32 v13, v9, v13, vcc")
        a(f"s_lshl_b32 s{T+3}, s{S_W}, 8")
        a(f"s_add_u32 s{T+5}, s{T+4}, s{T+3}")
        a(f"s_lshl_b32 s{T+3}, s{S_W}, 7")
        a(f"s_add_u32 s{T+6}, s{T+4}, s{T+3}")
        a(f"s_add_u32 s{T+6}, s{T+6}, 2048")
        def qa_issue(g):
            for k in range(4):
                n = 4*g + k
                a(f"buffer_load_dwordx4 {vr(QA+4*n,4)}, v5, {srd('WS')}, s{T+9+g} offen offset:{k*1024} sc1")
        def qa_check(g):
            a(f"v_xor_b32 v6, s{S_EP}, v{QA+16*g+3}")
            for k in range(1, 4):
                a(f"v_xor_b32 v7, s{S_EP}, v{QA+16*g+4*k+3}")
                a("v_or_b32 v6, v6, v7")
            a("v_cmp_ne_u32 vcc, 0, v6")
        self.gpoll(4, qa_issue, qa_check, first_issued=True, masks=[24,26,28,30])
        self.stamp(4)
        self.stamp_val(16, S_CNT)
        for sg in range(4):
            for f in range(3): a(f"v_mov_b32 v{QA+(sg*4+f)*4+3}, v{QA+(sg*4+3)*4+f}")
        a("s_nop 0")
        for i in range(12):
            sg, f = i // 3, i % 3
            B = QA + (sg*4+f)*4
            for kb in range(2):
                c = "0" if i == 0 else vr(ACC+16*kb, 16)
                a(f"v_mfma_f32_32x32x16_bf16 {vr(ACC+16*kb,16)}, {vr(AF+48*kb+4*i,4)}, {vr(B,4)}, {c}")
        noep = a.newlabel("noep")
        a("s_lshl_b32 s9, s2, 3")
        a(f"s_add_u32 s9, s9, s{S_W}")
        self.skip_if(f"s_cmp_lg_u32 s9, {127*8}", noep)
        a(f"v_mov_b32 v6, s{S_EP}")
        a("v_mov_b32 v7, 0")
        a("s_mov_b64 exec, 1")
        a(f"buffer_store_dword v6, v7, {srd('WS')}, 0 offen sc1")
        a("s_mov_b64 exec, -1")
        a.label(noep)
        a("s_nop 7")
        for q in range(4): a(f"ds_write_b128 v10, {vr(ACC+4*q,4)} offset:{q*1024}")
        a("s_nop 3")
        for q in range(4): a(f"ds_write_b128 v10, {vr(ACC+16+4*q,4)} offset:{(4+q)*1024}")
        a("s_waitcnt lgkmcnt(0)")
        self.stamp(8)
        self.lds_signal(16)
        self.lds_wait(16, 20)
        R = 20
        for src in range(4):
            for kb in range(2):
                a(f"ds_read_b128 {vr(R+(src*2+kb)*4,4)}, v11 offset:{src*8192+kb*4096}")
        a(f"s_mov_b32 s{T+3}, 0x{f32bits(192**-0.5*math.log2(math.e)):08x}")
        a("s_waitcnt lgkmcnt(4)")
        for k in range(8): a(f"v_add_f32 v{R+k}, v{R+k}, v{R+8+k}")
        a("s_waitcnt lgkmcnt(0)")
        reads = []
        if self.early_frags:
            self.lds_wait(32, 60)
            self.stamp(14)
            reads = self.pv_read_frags(self.L_S, defer=True)
        def v(ins):
            a(ins)
            if reads: a(reads.pop(0))
        for k in range(8): v(f"v_add_f32 v{R+16+k}, v{R+16+k}, v{R+24+k}")
        for k in range(8): v(f"v_add_f32 v{R+k}, v{R+k}, v{R+16+k}")
        for k in range(8): v(f"v_mul_f32 v{R+k}, s{T+3}, v{R+k}")
        for kb in range(2):
            v(f"v_max3_f32 v{R+8+kb}, v{R+kb*4}, v{R+kb*4+1}, v{R+kb*4+2}")
        for kb in range(2):
            v(f"v_max_f32 v{R+8+kb}, v{R+8+kb}, v{R+kb*4+3}")
        a(f"v_mov_b32 v{R+10}, v{R+8}")
        a(f"v_mov_b32 v{R+11}, v{R+9}")
        a("s_nop 1")
        a(f"v_permlane32_swap_b32 v{R+8}, v{R+10}")
        a(f"v_permlane32_swap_b32 v{R+9}, v{R+11}")
        a("s_nop 1")
        a(f"v_max_f32 v{R+8}, v{R+8}, v{R+10}")
        a(f"v_max_f32 v{R+9}, v{R+9}, v{R+11}")
        a(f"v_ceil_f32 v{R+8}, v{R+8}")
        a(f"v_ceil_f32 v{R+9}, v{R+9}")
        for kb in range(2):
            for r in range(4): v(f"v_sub_f32 v{R+kb*4+r}, v{R+kb*4+r}, v{R+8+kb}")
        for k in range(8): v(f"v_exp_f32 v{R+k}, v{R+k}")
        a(f"v_min_u32 v{R+8}, 0xfffffffe, v{R+8}")
        a(f"v_min_u32 v{R+9}, 0xfffffffe, v{R+9}")
        P = R + 12
        for kb in range(2):
            a(f"v_cvt_pk_bf16_f32 v{P+kb*2}, v{R+kb*4}, v{R+kb*4+1}")
            a(f"v_cvt_pk_bf16_f32 v{P+kb*2+1}, v{R+kb*4+2}, v{R+kb*4+3}")
        for k in range(4): a(f"v_and_b32 v{P+k}, 0x7fff7fff, v{P+k}")
        paths = ([(WS_PBL, "")] if self.local else []) + [(WS_PBG, " sc1")]
        for base, fl in paths:
            a(f"s_add_u32 s{T+7}, s{T+5}, {base}")
            a(f"s_add_u32 s{T+8}, s{T+6}, {base}")
            a(f"buffer_store_dwordx2 {vr(P,2)}, v12, {srd('WS')}, s{T+7} offen{fl}")
            a(f"buffer_store_dwordx2 {vr(P+2,2)}, v12, {srd('WS')}, s{T+7} offen offset:{PBS}{fl}")
            a(f"buffer_store_dword v{R+8}, v13, {srd('WS')}, s{T+8} offen{fl}")
            a(f"buffer_store_dword v{R+9}, v13, {srd('WS')}, s{T+8} offen offset:{PBS}{fl}")
        self.stamp(5)
        for r in reads: a(r)
        if not self.early_frags:
            self.lds_wait(32, 60)
            self.stamp(14)
            self.pv_read_frags(self.L_S)
        a(f"s_branch {j4}")
        a.label(notS)
        a("s_barrier")
        self.pv_dma(0, self.L_PA, 4, 4)
        self.pv_dma(1, self.L_S, 4, 4)
        self.stamp(20)
        a("s_waitcnt vmcnt(12)")
        self.lds_signal(0)
        self.lds_wait(0, 20)
        self.stamp(19)
        self.pv_read_frags(self.L_PA)
        a("s_waitcnt vmcnt(0)")
        self.lds_signal(32)
        nocf = a.newlabel("nocf")
        self.skip_if(f"s_cmp_lg_u32 s{S_W}, 4", nocf)
        self.cf_check(20)
        a(f"v_mov_b32 v6, {self.L_FLAG+48}")
        a("v_mov_b32 v7, 1")
        a("ds_write_b32 v6, v7")
        a.label(nocf)
        self.stamp(14)
        a.label(j4)

    def pv_read_frags(self, base, defer=False):
        a = self.a; T = S_T + 8; AF = 84
        a("v_lshrrev_b32 v14, 4, v1")
        a("v_and_b32 v15, 15, v1")
        a("v_lshrrev_b32 v16, 2, v15")
        a("v_lshl_add_u32 v16, v14, 3, v16")
        a("v_mul_u32_u24 v16, 192, v16")
        a("v_and_b32 v15, 3, v15")
        a("v_lshl_add_u32 v16, v15, 3, v16")
        a(f"s_lshr_b32 s9, s{S_W}, 1")
        a("s_and_b32 s9, s9, 1")
        a("s_mul_i32 s9, s9, 96")
        a(f"s_add_u32 s9, s9, {base}")
        a("v_add_u32 v16, s9, v16")
        reads = []
        for bb in range(8):
            for ct in range(3):
                r = AF + (bb*3+ct)*4; off = bb*6144 + ct*32
                reads.append(f"ds_read_b64_tr_b16 {vr(r,2)}, v16 offset:{off}")
                reads.append(f"ds_read_b64_tr_b16 {vr(r+2,2)}, v16 offset:{off+768}")
        if defer: return reads
        for n, r in enumerate(reads):
            a(r)
            if n % 12 == 11: a("s_waitcnt lgkmcnt(6)")

    def bset_pv_phase(self):
        a = self.a; T = S_T
        AF = 84; P = 20; MI = 52; DL = 60; ACC = 180; LA = 192; ON = 196
        a(f"s_cmp_lt_u32 s{S_W}, 4")
        a(f"s_cselect_b32 s{T}, 8, 0")
        a(f"s_lshl_b32 s{T+1}, s{S_G}, 4")
        a(f"s_add_u32 s{T+1}, s{T+1}, s{T}")
        a(f"s_and_b32 s{T+2}, s{S_W}, 1")
        a(f"s_mul_i32 s{T+3}, s{T+1}, {PBS}")
        a(f"s_lshl_b32 s{T+4}, s{T+2}, 10")
        a(f"s_add_u32 s{T+3}, s{T+3}, s{T+4}")
        a(f"s_add_u32 s{T+4}, s{T+3}, {WS_PBG}")
        a(f"s_add_u32 s{T+3}, s{T+3}, {WS_PBL}")
        a("v_lshlrev_b32 v5, 4, v1")
        a("v_and_b32 v6, 15, v1")
        a("v_lshlrev_b32 v6, 2, v6")
        a("v_lshrrev_b32 v7, 4, v1")
        a("v_lshl_add_u32 v6, v7, 7, v6")
        a(f"s_mul_i32 s{T+5}, s{T+2}, 960")
        a(f"s_sub_u32 s{T+5}, 2048, s{T+5}")
        a(f"v_add_u32 v6, s{T+5}, v6")
        for k in range(4): a(f"v_mov_b32 v{ON+k}, 0x3f803f80")
        a("v_and_b32 v14, 15, v1")
        a(f"s_mov_b32 s{T+5}, 49152")
        a(f"v_mul_lo_u32 v15, v14, s{T+5}")
        a("v_lshl_add_u32 v15, v7, 4, v15")
        a(f"s_mul_i32 s{T+5}, s{T+2}, {16*49152}")
        a(f"s_lshl_b32 s{T+6}, s{S_S}, 4")
        a(f"s_add_u32 s{T+6}, s{T+6}, s{S_G}")
        a(f"s_mul_i32 s{T+6}, s{T+6}, 384")
        a(f"s_add_u32 s{T+5}, s{T+5}, s{T+6}")
        a(f"s_lshr_b32 s{T+6}, s{S_W}, 1")
        a(f"s_and_b32 s{T+6}, s{T+6}, 1")
        a(f"s_mul_i32 s{T+7}, s{T+6}, 192")
        a(f"s_add_u32 s{T+5}, s{T+5}, s{T+7}")
        a(f"s_add_u32 s{T+5}, s{T+5}, {WS_OP}")
        a("v_lshlrev_b32 v14, 7, v14")
        a("v_mov_b32 v16, 0x7fffffff")
        a("v_cmp_gt_u32 vcc, 16, v1")
        a(f"s_lshl_b32 s{T+8}, s{T+2}, 11")
        a(f"s_lshl_b32 s{T+7}, s{S_G}, 3")
        a(f"s_add_u32 s{T+8}, s{T+8}, s{T+7}")
        a(f"s_add_u32 s{T+8}, s{T+8}, {WS_ML}")
        a("v_cndmask_b32 v14, v16, v14, vcc")
        a(f"s_or_b32 s{T+7}, s{T+6}, s{S_S}")
        a(f"s_cmp_eq_u32 s{T+7}, 0")
        a(f"s_cselect_b32 s{T+8}, s{T+8}, 0x7fffff00")
        a(f"s_and_b32 s{T+9}, s{S_W}, 3")
        a(f"s_lshl_b32 s{T+9}, s{T+9}, 12")
        a(f"s_add_u32 s{T+9}, s{T+9}, {self.L_PR}")
        a(f"v_add_u32 v17, s{T+9}, v5")
        def p_pre():
            if self.local:
                a(f"s_and_b32 s9, s{S_CNT}, {self.lperiod-1}")
                a(f"s_cmp_eq_u32 s9, {self.lperiod-1}")
                a(f"s_cselect_b32 s{S_PB}, s{T+4}, s{T+3}")
            else:
                a(f"s_mov_b32 s{S_PB}, s{T+4}")
        def p_issue(bb):
            a(f"s_add_u32 s9, s{S_PB}, {bb*PBS}")
            a(f"buffer_load_dwordx4 {vr(P+4*bb,4)}, v5, {srd('WS')}, s9 offen sc1")
            a(f"buffer_load_dword v{MI+bb}, v6, {srd('WS')}, s9 offen sc1")
        def p_check(bb):
            a(f"v_or3_b32 v7, v{P+4*bb}, v{P+4*bb+1}, v{P+4*bb+2}")
            a(f"v_or_b32 v7, v7, v{P+4*bb+3}")
            a("v_and_b32 v7, 0x80008000, v7")
            a(f"v_cmp_eq_u32 vcc, -1, v{MI+bb}")
            a("s_nop 1")
            a("v_cndmask_b32 v8, 0, 1, vcc")
            a("v_or_b32 v7, v7, v8")
            a("v_cmp_ne_u32 vcc, 0, v7")
        a(f"v_mov_b32 v7, {self.L_FLAG+48}")
        l = self.poll_begin()
        a("ds_read_b32 v8, v7")
        a("s_waitcnt lgkmcnt(0)")
        a("v_xor_b32 v8, 1, v8")
        self.poll_end(l, 8)
        self.stamp(15)
        self.gpoll(8, p_issue, p_check, pre=p_pre, masks=[24,26,28,30,32,34,36,38])
        self.stamp(6)
        self.stamp_val(17, S_CNT)
        a(f"v_max3_f32 v9, v{MI}, v{MI+1}, v{MI+2}")
        a(f"v_max3_f32 v9, v9, v{MI+3}, v{MI+4}")
        a(f"v_max3_f32 v9, v9, v{MI+5}, v{MI+6}")
        a(f"v_max_f32 v9, v9, v{MI+7}")
        a("v_mov_b32 v10, v9")
        a("s_nop 1")
        a("v_permlane16_swap_b32 v9, v10")
        a("s_nop 1")
        a("v_max_f32 v9, v9, v10")
        a("v_mov_b32 v10, v9")
        a("s_nop 1")
        a("v_permlane32_swap_b32 v9, v10")
        a("s_nop 1")
        a("v_max_f32 v9, v9, v10")
        a(f"s_mov_b32 s{T+10}, 0x437f0000")
        a(f"s_mov_b32 s{T+11}, 0x00800080")
        for bb in range(8): a(f"v_sub_f32 v{DL+bb}, v9, v{MI+bb}")
        for bb in range(8): a(f"v_min_f32 v{DL+bb}, s{T+10}, v{DL+bb}")
        for bb in range(8): a(f"v_cvt_u32_f32 v{DL+bb}, v{DL+bb}")
        for bb in range(8): a(f"v_mul_u32_u24 v{DL+bb}, s{T+11}, v{DL+bb}")
        for k in range(4): a(f"v_pk_sub_u16 v{P+k}, v{P+k}, v{DL} clamp")
        for bb in range(8):
            if bb < 7:
                for k in range(4): a(f"v_pk_sub_u16 v{P+4*(bb+1)+k}, v{P+4*(bb+1)+k}, v{DL+bb+1} clamp")
            else:
                a("s_nop 1")
            for ct in range(3):
                c = "0" if bb == 0 else vr(ACC+4*ct, 4)
                a(f"v_mfma_f32_16x16x32_bf16 {vr(ACC+4*ct,4)}, {vr(AF+(bb*3+ct)*4,4)}, {vr(P+4*bb,4)}, {c}")
            c = "0" if bb == 0 else vr(LA, 4)
            a(f"v_mfma_f32_16x16x32_bf16 {vr(LA,4)}, {vr(ON,4)}, {vr(P+4*bb,4)}, {c}")
        a("s_nop 7")
        self.stamp(11)
        kp1 = a.newlabel("kp1")
        self.skip_if(f"s_cmp_lt_u32 s{S_W}, 4", kp1)
        a(f"v_mov_b32 v{LA+1}, v9")
        for ct in range(3): a(f"ds_write_b128 v17, {vr(ACC+4*ct,4)} offset:{ct*1024}")
        a(f"ds_write_b128 v17, {vr(LA,4)} offset:3072")
        a("s_waitcnt lgkmcnt(0)")
        a.label(kp1)
        a("s_barrier")
        self.stamp(12)
        fin = a.newlabel("pvfin")
        self.skip_if(f"s_cmp_ge_u32 s{S_W}, 4", fin)
        O = 20
        for k in range(4): a(f"ds_read_b128 {vr(O+4*k,4)}, v17 offset:{k*1024}")
        a("s_waitcnt lgkmcnt(0)")
        a(f"v_max_f32 v10, v9, v{O+13}")
        a("v_sub_f32 v11, v9, v10")
        a(f"v_sub_f32 v12, v{O+13}, v10")
        a("v_exp_f32 v11, v11")
        a("v_exp_f32 v12, v12")
        a("s_nop 0")
        for k in range(12): a(f"v_mul_f32 v{ACC+k}, v{ACC+k}, v11")
        for k in range(12): a(f"v_fmac_f32 v{ACC+k}, v{O+k}, v12")
        for k in range(12): a(f"v_min_u32 v{ACC+k}, 0xfffffffe, v{ACC+k}")
        if self.exp_linear:
            a(f"s_lshl_b32 s{T+5}, s{S_G}, 3")
            a(f"s_add_u32 s{T+5}, s{T+5}, s{S_S}")
            a(f"s_lshl_b32 s{T+5}, s{T+5}, 2")
            a(f"s_add_u32 s{T+5}, s{T+5}, s{S_W}")
            a(f"s_mul_i32 s{T+5}, s{T+5}, 3072")
            a(f"s_add_u32 s{T+5}, s{T+5}, {WS_OP}")
            for ct in range(3):
                a(f"buffer_store_dwordx4 {vr(ACC+4*ct,4)}, v5, {srd('WS')}, s{T+5} offen offset:{ct*1024} sc1")
        else:
          for ct in range(3):
            a(f"buffer_store_dwordx4 {vr(ACC+4*ct,4)}, v15, {srd('WS')}, s{T+5} offen offset:{ct*64} sc1")
        a(f"v_mul_f32 v{LA}, v{LA}, v11")
        a(f"v_fmac_f32 v{LA}, v{O+12}, v12")
        a(f"v_min_u32 v11, 0xfffffffe, v{LA}")
        a("v_min_u32 v10, 0xfffffffe, v10")
        a(f"buffer_store_dwordx2 v[10:11], v14, {srd('WS')}, s{T+8} offen sc1")
        a.label(fin)
        self.stamp(7)

    def bset_final(self):
        a = self.a; T = S_T
        self.skip_if(f"s_cmp_ge_u32 s{S_LB}, 5", "L_bend")
        self.skip_if(f"s_cmp_lg_u32 s{S_W}, 0", "L_bend")
        a("v_lshlrev_b32 v5, 2, v1")
        for i in range(5):
            a(f"buffer_load_dword v{20+i}, v5, {srd('X')}, 0 offen offset:{256*i}")
            a(f"buffer_load_dword v{25+i}, v5, {srd('GW')}, 0 offen offset:{256*i}")
        a("v_mov_b32 v30, 0")
        a(f"s_mul_i32 s{T}, s{S_X}, 5")
        a(f"s_add_u32 s{T}, s{T}, s{S_LB}")
        a(f"s_lshl_b32 s{T+1}, s{T}, 6")
        a(f"s_add_u32 s{T+1}, s{T+1}, {WS_OUTP}")
        a("v_lshrrev_b32 v6, 2, v1")
        a("v_mul_u32_u24 v6, 2560, v6")
        a("v_and_b32 v7, 3, v1")
        a("v_lshl_add_u32 v6, v7, 4, v6")
        a("v_lshlrev_b32 v8, 2, v7")
        a("v_bfe_u32 v9, v1, 5, 1")
        a("v_lshl_add_u32 v8, v9, 1, v8")
        a("v_bfe_u32 v9, v1, 4, 1")
        a("v_add_u32 v8, v8, v9")
        a("v_lshlrev_b32 v11, 1, v8")
        a("v_and_b32 v9, 12, v1")
        a("v_mov_b32 v10, 0x7fffffff")
        a("v_cmp_eq_u32 vcc, 0, v9")
        a(f"s_lshl_b32 s{T+2}, s{T}, 5")
        a("v_cndmask_b32 v11, v10, v11, vcc")
        a("s_waitcnt vmcnt(0)")
        for i in range(5): a(f"v_dot2c_f32_bf16 v30, v{20+i}, v{25+i}")
        a("s_nop 2")
        for ctrl in ["quad_perm:[1,0,3,2]", "quad_perm:[2,3,0,1]", "row_half_mirror", "row_mirror"]:
            a(f"v_add_f32_dpp v30, v30, v30 {ctrl} row_mask:0xf bank_mask:0xf")
            a("s_nop 1")
        a("v_mov_b32 v31, v30")
        a("s_nop 1")
        a("v_permlane16_swap_b32 v30, v31")
        a("s_nop 1")
        a("v_add_f32 v30, v30, v31")
        a("v_mov_b32 v31, v30")
        a("s_nop 1")
        a("v_permlane32_swap_b32 v30, v31")
        a("s_nop 1")
        a("v_add_f32 v30, v30, v31")
        a(f"v_mul_f32 v30, 0x{f32bits(-math.log2(math.e)):08x}, v30")
        a("v_exp_f32 v30, v30")
        a("s_nop 0")
        a("v_add_f32 v30, 1.0, v30")
        a("v_rcp_f32 v30, v30")
        a("s_nop 0")
        a("v_sub_f32 v31, 1.0, v30")
        a("v_cmp_le_u32 vcc, 48, v1")
        a("s_nop 1")
        a("v_cndmask_b32 v30, v30, v31, vcc")
        O = 32
        for i in range(8): a(f"s_add_u32 s{T+3+i}, s{T+1}, {i*16*2560}")
        def f_issue(i):
            a(f"buffer_load_dwordx4 {vr(O+4*i,4)}, v6, {srd('WS')}, s{T+3+i} offen sc1")
        def f_check(i):
            a(f"v_max3_u32 v8, v{O+4*i}, v{O+4*i+1}, v{O+4*i+2}")
            a(f"v_max_u32 v8, v8, v{O+4*i+3}")
            a("v_cmp_eq_u32 vcc, -1, v8")
        self.gpoll(8, f_issue, f_check, masks=[24,26,28,30,32,34,36,38])
        self.stamp(9)
        self.stamp_val(18, S_CNT)
        for k in range(4):
            a(f"v_add_f32 v{O+k}, v{O+k}, v{O+4+k}")
            a(f"v_add_f32 v{O+8+k}, v{O+8+k}, v{O+12+k}")
            a(f"v_add_f32 v{O+16+k}, v{O+16+k}, v{O+20+k}")
            a(f"v_add_f32 v{O+24+k}, v{O+24+k}, v{O+28+k}")
        for k in range(4):
            a(f"v_add_f32 v{O+k}, v{O+k}, v{O+8+k}")
            a(f"v_add_f32 v{O+16+k}, v{O+16+k}, v{O+24+k}")
        for k in range(4): a(f"v_add_f32 v{O+k}, v{O+k}, v{O+16+k}")
        for k in range(4): a(f"v_mul_f32 v{O+k}, v{O+k}, v30")
        a("s_nop 1")
        a("v_permlane32_swap_b32 v32, v34")
        a("v_permlane32_swap_b32 v33, v35")
        a("s_nop 1")
        a("v_add_f32 v32, v32, v34")
        a("v_add_f32 v33, v33, v35")
        a("s_nop 1")
        a("v_permlane16_swap_b32 v32, v33")
        a("s_nop 1")
        a("v_add_f32 v32, v32, v33")
        a("s_nop 1")
        a("v_add_f32_dpp v32, v32, v32 row_ror:8 row_mask:0xf bank_mask:0xf")
        a("s_nop 1")
        a("v_add_f32_dpp v32, v32, v32 row_ror:4 row_mask:0xf bank_mask:0xf")
        a("s_nop 0")
        a("v_cvt_pk_bf16_f32 v32, v32, v32")
        a(f"buffer_store_short v32, v11, {srd('OUT')}, s{T+2} offen")
        self.stamp(10)
        a.label("L_bend")

    def build(self):
        a = self.a
        self.prologue()
        self.bset_front()
        a("s_branch L_bs")
        a.label("L_aset")
        self.aset_front()
        a("s_branch L_aback")
        a.label("L_bs")
        self.bset_s_phase()
        self.bset_pv_phase()
        a("s_branch L_bfin")
        a.label("L_aback")
        self.aset_back()
        self.stamp_flush()
        a("s_branch L_exit")
        a.label("L_bfin")
        self.bset_final()
        self.stamp_flush()
        a.label("L_exit")
        a("s_endpgm")
        hdr = f"""; generated by dev/gen2.py
; @launch grid=(256,1,1) block=(512,1,1) lds=163840
.amdgcn_target "amdgcn-amd-amdhsa--gfx950"
.text
.globl {NAME}_kernel
.p2align 8
.type {NAME}_kernel,@function
{NAME}_kernel:
"""
        ftr = f""".section .rodata,"a"
.p2align 6
.amdhsa_kernel {NAME}_kernel
  .amdhsa_next_free_vgpr 256
  .amdhsa_next_free_sgpr 102
  .amdhsa_accum_offset 256
  .amdhsa_group_segment_fixed_size 0
  .amdhsa_kernarg_size 112
  .amdhsa_user_sgpr_count 2
  .amdhsa_user_sgpr_kernarg_segment_ptr 1
  .amdhsa_system_sgpr_workgroup_id_x 1
.end_amdhsa_kernel
"""
        return hdr + a.text() + ftr

if __name__ == "__main__":
    out = sys.argv[1] if len(sys.argv) > 1 else "k.s"
    kw = {}
    for arg in sys.argv[2:]:
        if arg == "--stamps": kw["stamps"] = True
        elif arg.startswith("--"):
            k, v = arg[2:].split("="); kw[k] = int(v)
    open(out, "w").write(Gen(**kw).build())
```

```python
import sys, math, struct

NAME = "gated_mix__compressed_kv_cla__glu_gated_glu__decode"

WS_EPOCH = 0
WS_CF    = 0x400
WS_QA    = 0x10000
WS_QPG   = 0x20000
WS_QPL   = 0x80000
WS_PBG   = 0x100000
WS_PBL   = 0x1A0000
WS_ML    = 0x240000
WS_OUTP  = 0x250000
WS_OP    = 0x2A0000
WS_ST    = 0x440000
WS_SIZE  = 0x480000
PBS = 2560

S_W, S_X, S_LI, S_H, S_J4, S_EP = 3, 4, 5, 6, 7, 8
S_LB, S_BLK, S_G, S_S = 10, 11, 12, 13
S_WSCF = 14
SRD = dict(X=16, CKV=20, WQ=24, WUK=28, WUV=32, WO=36, WG=44, WU=48, WD=52, GW=56, OUT=60, WS=64)
SRD_SIZE = dict(X=1280, CKV=12582912, WQ=7864320, WUK=9437184, WUV=9437184, WO=7864320,
                WG=1966080, WU=1966080, WD=1966080, GW=1280, OUT=1280, WS=WS_SIZE)
KARG = dict(X=0, CKV=8, WQ=16, WUK=24, WUV=32, WO=40, WG=56, WU=64, WD=72, GW=80, OUT=88, WS=104)
S_M8 = 72
S_T = 74
S_CNT = 96
S_PB = 97
S_PM = 15
S_STAMP = 98
POLL_LIMIT = 100000

class Asm:
    def __init__(self):
        self.L = []; self.uid = 0
    def __call__(self, s):
        for line in s.strip("\n").split("\n"):
            self.L.append("    " + line.strip())
    def label(self, n): self.L.append(n + ":")
    def newlabel(self, base):
        self.uid += 1
        return f"L_{base}_{self.uid}"
    def text(self):
        import re
        out = []
        for line in self.L:
            t = line.strip()
            if t.startswith("v_cndmask") and t.endswith("vcc"):
                st = 0; k = len(out) - 1; found = False
                while k >= 0 and st < 2:
                    p = out[k].strip()
                    if p.endswith(":"): break
                    if p.startswith("v_cmp") and "vcc" in p:
                        found = True; break
                    m = re.match(r"s_nop (\d+)", p)
                    st += int(m.group(1)) + 1 if m else 1
                    k -= 1
                if found and st < 2:
                    out.append(f"    s_nop {1 - st}")
            out.append(line)
        return "\n".join(out) + "\n"

def srd(n):
    b = SRD[n]; return f"s[{b}:{b+3}]"
def vr(b, n=1):
    return f"v{b}" if n == 1 else f"v[{b}:{b+n-1}]"
def f32bits(x):
    return struct.unpack("<I", struct.pack("<f", x))[0]

class Gen:
    def __init__(self, stamps=False, s_trig=0, wq_pf=0, sde=0, sde_win=24, perm=0, qa_order=0, early_frags=0, fin1=1, masked=1, qa_early=0, code_pf=17, tlb_warm=0, tlb_shift=21, nt_front=False, nt_ckv=False, nt_back=False, local=True, lperiod=8, a_delay=1, qa_ack=0, exp_linear=0, a_win=63, s_win=63, pv_win=63, mlpoll=2, exp_nobulk=0, a_probe=0, s_probe=0, exp_noclear=0, exp_nowuk=0):
        self.a = Asm()
        self.stamps = stamps
        self.NTF = " nt" if nt_front else ""
        self.NTC = " nt" if nt_ckv else ""
        self.NTB = " nt" if nt_back else ""
        self.local = local
        self.a_delay = a_delay
        self.qa_ack = qa_ack
        self.code_pf = code_pf
        self.s_trig = s_trig
        self.wq_pf = wq_pf
        self.sde = sde; self.sde_win = sde_win
        self.perm = perm
        self.qa_order = qa_order
        self.early_frags = early_frags; self.fin1 = fin1
        self.masked = masked; self.qa_early = qa_early
        self.tlb_warm = tlb_warm; self.tlb_shift = tlb_shift
        self.exp_noclear = exp_noclear; self.exp_nowuk = exp_nowuk
        self.a_probe = a_probe; self.s_probe = s_probe
        self.exp_nobulk = exp_nobulk
        self.a_win = a_win; self.s_win = s_win; self.pv_win = pv_win; self.mlpoll = mlpoll
        self.exp_linear = exp_linear
        self.lperiod = lperiod
        self.L_Q = 0; self.L_QS = 512; self.L_F = 3072; self.L_FLAG = 2048; self.L_X = 4096
        self.L_S = 8192; self.L_PA = 106496; self.L_RED = 57344; self.L_PR = 90112
        self.L_O = 4096; self.L_C = 12288; self.L_CB = 14336; self.L_R = 16384
        self.PVO = 212

    def stamp(self, idx):
        if not self.stamps: return
        a = self.a
        a(f"s_memrealtime s[{S_STAMP}:{S_STAMP+1}]")
        a("s_waitcnt lgkmcnt(0)")
        a(f"v_writelane_b32 v255, s{S_STAMP}, {idx}")
    def stamp_val(self, idx, sreg):
        if not self.stamps: return
        self.a(f"s_add_u32 s9, s{sreg}, 1")
        self.a(f"v_writelane_b32 v255, s9, {idx}")
    def stamp_flush(self):
        if not self.stamps: return
        a = self.a
        a(f"s_lshl_b32 s{S_T+20}, s2, 3")
        a(f"s_add_u32 s{S_T+20}, s{S_T+20}, s{S_W}")
        a(f"s_lshl_b32 s{S_T+20}, s{S_T+20}, 7")
        a(f"s_add_u32 s{S_T+20}, s{S_T+20}, {WS_ST}")
        a("v_lshlrev_b32 v252, 2, v1")
        a("s_mov_b32 exec_lo, -1")
        a("s_mov_b32 exec_hi, 0")
        a(f"buffer_store_dword v255, v252, {srd('WS')}, s{S_T+20} offen")
        a("s_mov_b64 exec, -1")

    def treduce8(self, acc, t0, t1):
        a = self.a
        a("s_nop 2")
        for k in range(4): a(f"v_permlane32_swap_b32 v{acc+k}, v{acc+k+4}")
        a("s_nop 1")
        for k in range(4): a(f"v_add_f32 v{acc+k}, v{acc+k}, v{acc+k+4}")
        a("s_nop 1")
        for k in range(2): a(f"v_permlane16_swap_b32 v{acc+k}, v{acc+k+2}")
        a("s_nop 1")
        for k in range(2): a(f"v_add_f32 v{acc+k}, v{acc+k}, v{acc+k+2}")
        a("s_nop 0")
        a(f"v_cndmask_b32 v{t0}, v{acc}, v{acc+1}, s[{S_M8}:{S_M8+1}]")
        a(f"v_cndmask_b32 v{t1}, v{acc+1}, v{acc}, s[{S_M8}:{S_M8+1}]")
        a("s_nop 1")
        a(f"v_add_f32_dpp v{acc}, v{t1}, v{t0} row_ror:8 row_mask:0xf bank_mask:0xf")

    def skip_if(self, cmp, label):
        self.a(cmp); self.a(f"s_cbranch_scc1 {label}")

    def poll_begin(self, lbase=None, gbase=None):
        a = self.a
        l = a.newlabel("poll")
        a(f"s_mov_b32 s{S_CNT}, 0")
        a.label(l)
        if lbase is not None:
            if self.local:
                a(f"s_and_b32 s9, s{S_CNT}, {self.lperiod-1}")
                a(f"s_cmp_eq_u32 s9, {self.lperiod-1}")
                a(f"s_cselect_b32 s{S_PB}, s{gbase}, s{lbase}")
            else:
                a(f"s_mov_b32 s{S_PB}, s{gbase}")
        return l
    def poll_end(self, l, vbad):
        a = self.a
        ok = a.newlabel("ok")
        a(f"v_cmp_ne_u32 vcc, 0, v{vbad}")
        a(f"s_cbranch_vccz {ok}")
        a(f"s_add_u32 s{S_CNT}, s{S_CNT}, 1")
        a(f"s_cmp_lt_u32 s{S_CNT}, {POLL_LIMIT}")
        a(f"s_cbranch_scc1 {l}")
        a.label(ok)

    def gpoll(self, n, issue, check, pre=None, first_issued=False, masks=None):
        a = self.a
        top = a.newlabel("gp"); done = a.newlabel("gpd")
        if not self.masked: masks = None
        a(f"s_mov_b32 s{S_PM}, {(1<<n)-1}")
        a(f"s_mov_b32 s{S_CNT}, 0")
        if masks:
            for m in masks: a(f"s_mov_b64 s[{m}:{m+1}], -1")
        if first_issued:
            chk = a.newlabel("gpc")
            a(f"s_branch {chk}")
        a.label(top)
        if pre: pre()
        for i in range(n):
            sk = a.newlabel("gi")
            a(f"s_bitcmp0_b32 s{S_PM}, {i}")
            a(f"s_cbranch_scc1 {sk}")
            if masks: a(f"s_mov_b64 exec, s[{masks[i]}:{masks[i]+1}]")
            issue(i)
            a.label(sk)
        if masks: a("s_mov_b64 exec, -1")
        if first_issued: a.label(chk)
        a("s_waitcnt vmcnt(0)")
        for i in range(n):
            sk = a.newlabel("gc")
            a(f"s_bitcmp0_b32 s{S_PM}, {i}")
            a(f"s_cbranch_scc1 {sk}")
            check(i)
            if masks: a(f"s_mov_b64 s[{masks[i]}:{masks[i]+1}], vcc")
            a(f"s_cbranch_vccnz {sk}")
            a(f"s_bitset0_b32 s{S_PM}, {i}")
            a.label(sk)
        a(f"s_cmp_eq_u32 s{S_PM}, 0")
        a(f"s_cbranch_scc1 {done}")
        a(f"s_add_u32 s{S_CNT}, s{S_CNT}, 1")
        a(f"s_cmp_lt_u32 s{S_CNT}, {POLL_LIMIT}")
        a(f"s_cbranch_scc1 {top}")
        a.label(done)

    def lds_signal(self, base, widx_mask=3):
        a = self.a
        a(f"s_and_b32 s9, s{S_W}, {widx_mask}")
        a("s_lshl_b32 s9, s9, 2")
        a(f"s_add_u32 s9, s9, {self.L_FLAG+base}")
        a("v_mov_b32 v6, s9")
        a("v_mov_b32 v7, 1")
        a("ds_write_b32 v6, v7")
    def lds_wait(self, base, vt):
        a = self.a
        a(f"v_mov_b32 v6, {self.L_FLAG+base}")
        l = self.poll_begin()
        a(f"ds_read_b128 {vr(vt,4)}, v6")
        a("s_waitcnt lgkmcnt(0)")
        a(f"v_and_b32 v{vt}, v{vt}, v{vt+1}")
        a(f"v_and_b32 v{vt+2}, v{vt+2}, v{vt+3}")
        a(f"v_and_b32 v{vt}, v{vt}, v{vt+2}")
        a(f"v_xor_b32 v{vt}, 1, v{vt}")
        self.poll_end(l, vt)

    def cf_check(self, vb):
        a = self.a
        a(f"v_lshlrev_b32 v{vb+4}, 4, v1")
        l = self.poll_begin()
        a(f"buffer_load_dwordx4 {vr(vb,4)}, v{vb+4}, {srd('WS')}, s{S_WSCF} offen sc1")
        a("s_waitcnt vmcnt(0)")
        for k in range(4): a(f"v_xor_b32 v{vb+k}, s{S_EP}, v{vb+k}")
        a(f"v_or3_b32 v{vb}, v{vb}, v{vb+1}, v{vb+2}")
        a(f"v_or_b32 v{vb}, v{vb}, v{vb+3}")
        self.poll_end(l, vb)

    def mk_srd(self, n):
        a = self.a; b = SRD[n]
        if n != "WS":
            src = 76 + KARG[n] // 4
            a(f"s_mov_b64 s[{b}:{b+1}], s[{src}:{src+1}]")
        a(f"s_mov_b32 s{b+2}, {SRD_SIZE[n]}")
        a(f"s_mov_b32 s{b+3}, 0x00020000")

    def prologue(self):
        a = self.a; T = S_T
        if self.stamps: a("s_memrealtime s[42:43]")
        a("s_cmp_ge_u32 s2, 256")
        a("s_cbranch_scc1 L_exit")
        if self.perm == 1:
            a("s_lshr_b32 s3, s2, 3")
            a("s_and_b32 s2, s2, 7")
            a("s_lshl_b32 s2, s2, 5")
            a("s_or_b32 s2, s2, s3")
        elif self.perm:
            a(f"s_mul_i32 s2, s2, {self.perm}")
            a("s_and_b32 s2, s2, 255")
        a("s_load_dwordx16 s[76:91], s[0:1], 0")
        a("s_load_dwordx8 s[92:99], s[0:1], 64")
        a("s_load_dwordx2 s[64:65], s[0:1], 104")
        a("v_lshrrev_b32 v2, 6, v0")
        a("v_and_b32 v1, 63, v0")
        a(f"v_readfirstlane_b32 s{S_W}, v2")
        a(f"s_lshr_b32 s{S_LI}, s2, 3")
        a(f"s_and_b32 s{S_LI}, s{S_LI}, 15")
        if self.code_pf:
            npf = a.newlabel("npf"); lp = a.newlabel("pfl")
            a(f"s_and_b32 s9, s{S_LI}, 7")
            a("s_lshl_b32 s9, s9, 3")
            a(f"s_add_u32 s9, s9, s{S_W}")
            self.skip_if("s_cmp_lg_u32 s9, 7", npf)
            a("s_getpc_b64 s[40:41]")
            a("v_lshlrev_b32 v252, 4, v1")
            a(f"s_mov_b32 s9, {self.code_pf}")
            a.label(lp)
            a("global_load_dwordx4 v[248:251], v252, s[40:41]")
            a("v_add_u32 v252, 1024, v252")
            a("s_sub_u32 s9, s9, 1")
            a("s_cmp_lg_u32 s9, 0")
            a(f"s_cbranch_scc1 {lp}")
            a.label(npf)
        a(f"s_and_b32 s{S_X}, s2, 7")
        a(f"s_and_b32 s9, s{S_LI}, 3")
        a(f"s_lshl_b32 s{S_H}, s{S_X}, 2")
        a(f"s_add_u32 s{S_H}, s{S_H}, s9")
        a(f"s_lshr_b32 s{S_J4}, s{S_LI}, 2")
        a("v_lshrrev_b32 v2, 3, v1")
        a("v_and_b32 v3, 7, v1")
        a("v_mul_u32_u24 v4, 12288, v2")
        a("v_lshl_add_u32 v4, v3, 4, v4")
        a("s_cmp_lt_u32 s2, 128")
        a("s_cbranch_scc0 L_apre")
        a(f"s_cmp_ge_u32 s{S_W}, 3")
        a("s_cselect_b32 s100, 1, 0")
        a("s_mul_i32 s101, s100, 3")
        a(f"s_sub_u32 s101, s{S_W}, s101")
        a(f"s_mul_i32 s44, s{S_J4}, 160")
        a("s_mul_i32 s45, s100, 80")
        a("s_add_u32 s44, s44, s45")
        a("s_lshl_b32 s46, s44, 1")
        a("s_mul_i32 s44, s44, 12288")
        a(f"s_mul_i32 s45, s{S_H}, 384")
        a("s_add_u32 s44, s44, s45")
        a("s_lshl_b32 s45, s101, 7")
        a("s_add_u32 s44, s44, s45")
        a(f"s_mov_b32 s{SRD['WQ']+2}, {SRD_SIZE['WQ']}")
        a(f"s_mov_b32 s{SRD['WQ']+3}, 0x00020000")
        a("s_waitcnt lgkmcnt(0)")
        a(f"s_mov_b64 s[{SRD['WQ']}:{SRD['WQ']+1}], s[80:81]")
        nl = a.newlabel("bnl")
        self.skip_if(f"s_cmp_ge_u32 s{S_W}, 6", nl)
        for i in range(10):
            a(f"buffer_load_dwordx4 {vr(20+4*i,4)}, v4, {srd('WQ')}, s44 offen{self.NTF}")
            if i < 9: a("s_add_u32 s44, s44, 98304")
        a.label(nl)
        a("s_branch L_pre2")
        a.label("L_apre")
        a(f"s_lshr_b32 s100, s{S_W}, 1")
        a(f"s_and_b32 s101, s{S_W}, 1")
        a(f"s_mul_i32 s44, s{S_J4}, 192")
        a("s_mul_i32 s45, s100, 48")
        a("s_add_u32 s44, s44, s45")
        a("s_lshl_b32 s45, s101, 3")
        a("s_add_u32 s44, s44, s45")
        a("s_mul_i32 s44, s44, 12288")
        a(f"s_mul_i32 s45, s{S_H}, 384")
        a("s_add_u32 s44, s44, s45")
        a(f"s_mov_b32 s{SRD['WUK']+2}, {SRD_SIZE['WUK']}")
        a(f"s_mov_b32 s{SRD['WUK']+3}, 0x00020000")
        a("s_waitcnt lgkmcnt(0)")
        a(f"s_mov_b64 s[{SRD['WUK']}:{SRD['WUK']+1}], s[82:83]")
        if self.wq_pf:
            a(f"s_mov_b64 s[{SRD['WQ']}:{SRD['WQ']+1}], s[80:81]")
            a(f"s_mov_b32 s{SRD['WQ']+2}, {SRD_SIZE['WQ']}")
            a(f"s_mov_b32 s{SRD['WQ']+3}, 0x00020000")
            a(f"s_mul_i32 s46, s{S_J4}, 160")
            a(f"s_lshl_b32 s47, s{S_W}, 3")
            a("s_add_u32 s46, s46, s47")
            a(f"s_add_u32 s46, s46, 80")
            a("s_mul_i32 s46, s46, 12288")
            a("s_add_u32 s46, s46, s45")
            for t in range(3):
                a(f"buffer_load_dwordx4 v[100:103], v4, {srd('WQ')}, s46 offen offset:{t*128}")
            a(f"s_add_u32 s46, s46, {64*12288}")
            npf2 = a.newlabel("npf2")
            self.skip_if(f"s_cmp_ge_u32 s{S_W}, 2", npf2)
            for t in range(3):
                a(f"buffer_load_dwordx4 v[100:103], v4, {srd('WQ')}, s46 offen offset:{t*128}")
            a.label(npf2)
            if self.wq_pf == 3: a("s_waitcnt vmcnt(0)")
        for f in range(3):
            for t in range(3):
                a(f"buffer_load_dwordx4 {vr(20+(f*3+t)*4,4)}, v4, {srd('WUK')}, s44 offen offset:{t*128}{self.NTF}")
            if f < 2: a("s_add_u32 s44, s44, 196608")
        a.label("L_pre2")
        a(f"s_load_dword s{S_EP}, s[64:65], {WS_EPOCH}")
        a(f"s_mov_b32 s{T}, s100")
        a(f"s_mov_b32 s{T+1}, s101")
        a(f"s_mov_b32 s{S_PM}, s46")
        for n in SRD: self.mk_srd(n)
        if self.stamps:
            a("v_mov_b32 v255, 0")
            self.stamp(0)
            a("v_writelane_b32 v255, s42, 23")
        a(f"s_mov_b32 s{S_M8}, 0xff00ff00")
        a(f"s_mov_b32 s{S_M8+1}, 0xff00ff00")
        a(f"s_mov_b32 s{S_WSCF}, {WS_CF}")
        a("s_cmp_lt_u32 s2, 128")
        a("s_cbranch_scc0 L_aset")

    def aset_front(self):
        a = self.a; T = S_T
        W0 = 20; QF = 56; ACC = 68
        a(f"s_lshl_b32 s{T+10}, s{S_X}, 4")
        a(f"s_add_u32 s{T+10}, s{T+10}, s{S_LI}")
        a(f"s_mul_i32 s{T+10}, s{T+10}, 2560")
        a(f"s_add_u32 s{T+10}, s{T+10}, {WS_OUTP}")
        a("v_mov_b32 v76, -1\nv_mov_b32 v77, -1\nv_mov_b32 v78, -1\nv_mov_b32 v79, -1")
        a("v_lshlrev_b32 v80, 4, v0")
        a("v_mov_b32 v81, 0x7fffffff")
        a("v_cmp_gt_u32 vcc, 160, v0")
        a("s_nop 1")
        a("v_cndmask_b32 v80, v81, v80, vcc")
        a(f"buffer_store_dwordx4 v[76:79], v80, {srd('WS')}, s{T+10} offen sc1")
        a("v_lshlrev_b32 v5, 2, v1")
        a("v_mov_b32 v6, 0")
        a(f"ds_write_b32 v5, v6 offset:{self.L_CB}")
        a(f"ds_write_b32 v5, v6 offset:{self.L_CB+256}")
        a(f"s_mul_i32 s{T+5}, s{S_H}, {8*1536}")
        a(f"s_add_u32 s{T+6}, s{T+5}, {WS_QPL}")
        a(f"s_add_u32 s{T+5}, s{T+5}, {WS_QPG}")
        a("s_waitcnt vmcnt(0) lgkmcnt(0)")
        a(f"s_add_u32 s{S_EP}, s{S_EP}, 1")
        self.stamp(1)
        skip = a.newlabel("e1skip")
        self.skip_if(f"s_cmp_ge_u32 s{S_W}, 3", skip)
        a("v_lshlrev_b32 v5, 3, v0")
        G = 84
        l = self.poll_begin(T+6, T+5)
        for p in range(8):
            a(f"buffer_load_dwordx2 {vr(G+2*p,2)}, v5, {srd('WS')}, s{S_PB} offen offset:{(p%2)*1536} sc1")
            if p % 2 == 1 and p < 7: a(f"s_add_u32 s{S_PB}, s{S_PB}, 3072")
        a("s_waitcnt vmcnt(0)")
        a(f"v_xor_b32 v6, s{S_EP}, v{G+1}")
        for p in range(1, 8):
            a(f"v_xor_b32 v7, s{S_EP}, v{G+2*p+1}")
            a("v_or_b32 v6, v6, v7")
        self.poll_end(l, 6)
        self.stamp_val(16, S_CNT)
        for p in range(1, 8): a(f"v_add_f32 v{G}, v{G}, v{G+2*p}")
        a(f"v_cvt_pk_bf16_f32 v6, v{G}, v{G}")
        a("v_lshlrev_b32 v7, 1, v0")
        a(f"ds_write_b16 v7, v6 offset:{self.L_Q}")
        a("s_waitcnt lgkmcnt(0)")
        a.label(skip)
        a("v_lshlrev_b32 v5, 4, v3")
        a(f"s_lshl_b32 s{T+7}, s{S_W}, 6")
        a("v_lshlrev_b32 v10, 1, v2")
        a(f"v_add_u32 v10, s{T+7}, v10")
        a("v_lshlrev_b32 v6, 4, v1")
        a("v_mov_b32 v7, 4")
        a("v_cmp_eq_u32 vcc, 3, v1")
        a("v_mov_b32 v8, 12")
        a("v_mov_b32 v9, 16")
        a("v_cndmask_b32 v6, v6, v8, vcc")
        a("v_cndmask_b32 v7, v7, v9, vcc")
        a("v_and_b32 v6, 63, v6")
        a(f"v_add_u32 v11, s{T+7}, v6")
        a("v_add_u32 v12, v11, v7")
        a("v_add_u32 v13, v12, v7")
        a(f"s_lshl_b32 s{T+8}, s{S_J4}, 2")
        a(f"s_add_u32 s{T+8}, s{T+8}, s{T}")
        a(f"s_lshl_b32 s{T+8}, s{T+8}, 12")
        a(f"s_lshl_b32 s{T+9}, s{T+1}, 9")
        a(f"s_add_u32 s{T+8}, s{T+8}, s{T+9}")
        a(f"s_lshl_b32 s{T+9}, s{S_H}, 4")
        a(f"s_add_u32 s{T+8}, s{T+8}, s{T+9}")
        a(f"s_add_u32 s{T+8}, s{T+8}, {WS_QA}")
        a("v_lshlrev_b32 v14, 10, v1")
        a("v_mov_b32 v7, 0x7fffffff")
        a("v_cmp_gt_u32 vcc, 4, v1")
        a(f"v_mov_b32 v75, s{S_EP}")
        a("v_cndmask_b32 v14, v7, v14, vcc")
        for f in range(3): a(f"v_mov_b32 v{ACC+f}, 0")
        a("s_barrier")
        self.stamp(2)
        for t in range(3):
            a(f"ds_read_b128 {vr(QF+4*t,4)}, v5 offset:{self.L_Q + t*128}")
        for t in range(3):
            a(f"s_waitcnt lgkmcnt({2-t})")
            for k in range(4):
                for f in range(3):
                    a(f"v_dot2c_f32_bf16 v{ACC+f}, v{W0+(f*3+t)*4+k}, v{QF+4*t+k}")
        a("s_nop 2")
        for ctrl in ["quad_perm:[1,0,3,2]", "quad_perm:[2,3,0,1]", "row_half_mirror"]:
            for f in range(3):
                a(f"v_add_f32_dpp v{ACC+f}, v{ACC+f}, v{ACC+f} {ctrl} row_mask:0xf bank_mask:0xf")
        for f in range(3): a(f"v_cvt_pk_bf16_f32 v{ACC+f}, v{ACC+f}, v{ACC+f}")
        for f in range(3): a(f"ds_write_b16 v10, v{ACC+f} offset:{self.L_QS + f*16}")
        a("s_waitcnt lgkmcnt(0)")
        a(f"ds_read_b32 v72, v11 offset:{self.L_QS}")
        a(f"ds_read_b32 v73, v12 offset:{self.L_QS}")
        a(f"ds_read_b32 v74, v13 offset:{self.L_QS}")
        a("s_waitcnt lgkmcnt(0)")
        a(f"buffer_store_dwordx4 v[72:75], v14, {srd('WS')}, s{T+8} offen sc1")
        self.stamp(3)
        if self.qa_ack: a("s_waitcnt vmcnt(0)")
        a("s_barrier")

    def wo_lane_offsets(self):
        a = self.a
        a("v_mul_u32_u24 v6, 52429, v0")
        a("v_lshrrev_b32 v6, 22, v6")
        a("v_mul_u32_u24 v7, 80, v6")
        a("v_sub_u32 v7, v0, v7")
        a("v_mul_u32_u24 v5, 1280, v6")
        a("v_lshl_add_u32 v5, v7, 4, v5")
        a("v_mov_b32 v8, 0x7fffffff")
        a("v_cmp_gt_u32 vcc, 480, v0")
        a("s_nop 1")
        a("v_cndmask_b32 v5, v8, v5, vcc")

    def preperm(self, W0, npairs, t0):
        a = self.a
        a("s_mov_b32 s94, 0x05040100")
        a("s_mov_b32 s95, 0x07060302")
        for p in range(npairs):
            for k in range(4):
                r0 = W0 + 8*p + k; r1 = r0 + 4
                a(f"v_perm_b32 v{t0}, v{r1}, v{r0}, s94")
                a(f"v_perm_b32 v{r1}, v{r1}, v{r0}, s95")
                a(f"v_mov_b32 v{r0}, v{t0}")

    def gemv_pairs(self, W0, npairs, CO, ACC):
        a = self.a
        for p in range(npairs):
            for k in range(4):
                a(f"v_dot2c_f32_bf16 v{ACC+2*k}, v{W0+8*p+k}, v{CO+p}")
            for k in range(4):
                a(f"v_dot2c_f32_bf16 v{ACC+2*k+1}, v{W0+8*p+4+k}, v{CO+p}")

    def out_reduce_publish(self, ACC, outp_soff):
        a = self.a
        a("s_nop 2")
        a(f"ds_write_b128 v129, {vr(ACC,4)} offset:{self.L_R}")
        a(f"ds_write_b128 v129, {vr(ACC+4,4)} offset:{self.L_R+16}")
        a("s_waitcnt lgkmcnt(0)")
        a("s_barrier")
        skip = a.newlabel("go")
        self.skip_if(f"s_cmp_ge_u32 s{S_W}, 3", skip)
        R = 132
        for sl in range(6):
            a(f"ds_read_b128 {vr(R+4*sl,4)}, v131 offset:{self.L_R+sl*2560}")
        a("s_waitcnt lgkmcnt(0)")
        for k in range(4):
            a(f"v_add_f32 v{R+k}, v{R+k}, v{R+4+k}")
            a(f"v_add_f32 v{R+8+k}, v{R+8+k}, v{R+12+k}")
            a(f"v_add_f32 v{R+16+k}, v{R+16+k}, v{R+20+k}")
        for k in range(4): a(f"v_add_f32 v{R+k}, v{R+k}, v{R+8+k}")
        for k in range(4): a(f"v_add_f32 v{R+k}, v{R+k}, v{R+16+k}")
        for k in range(4): a(f"v_min_u32 v{R+k}, 0xfffffffe, v{R+k}")
        a(f"buffer_store_dwordx4 {vr(R,4)}, v130, {srd('WS')}, s{outp_soff} offen sc1")
        a.label(skip)

    def write_pairs(self, vsrc, t0, t1, nvalid):
        a = self.a
        a(f"v_lshlrev_b32 v{t0}, 2, v1")
        a(f"v_add_u32 v{t1}, {self.L_CB - 24 + 2}, v{t0}")
        a(f"v_add_u32 v{t0}, {self.L_CB}, v{t0}")
        a(f"v_mov_b32 v{t0+2}, {self.L_CB + 500}")
        a("v_cmp_gt_u32 vcc, 6, v1")
        a("s_nop 1")
        a(f"v_cndmask_b32 v{t1}, v{t1}, v{t0+2}, vcc")
        if nvalid < 64:
            a(f"v_cmp_le_u32 vcc, {nvalid}, v1")
            a("s_nop 1")
            a(f"v_cndmask_b32 v{t1}, v{t1}, v{t0+2}, vcc")
            a(f"v_cndmask_b32 v{t0}, v{t0}, v{t0+2}, vcc")
        a(f"ds_write_b16 v{t0}, v{vsrc}")
        a(f"ds_write_b16 v{t1}, v{vsrc}")

    def out_addr_regs(self):
        a = self.a
        a("v_mul_u32_u24 v129, 2560, v6")
        a("v_lshl_add_u32 v129, v7, 5, v129")
        a("v_lshlrev_b32 v131, 4, v0")
        a("v_mov_b32 v130, 0x7fffffff")
        a("v_cmp_gt_u32 vcc, 160, v0")
        a("s_nop 1")
        a("v_cndmask_b32 v130, v130, v131, vcc")

    def aset_back(self):
        a = self.a; T = S_T
        self.wo_lane_offsets()
        self.out_addr_regs()
        if self.exp_nobulk:
            a(f"s_lshl_b32 s{T+1}, s{S_H}, 7")
            a(f"s_add_u32 s{T+1}, s{T+1}, {WS_ML}")
            a("v_and_b32 v14, 15, v1")
            a("v_lshlrev_b32 v14, 3, v14")
            self.cf_check(132)
            l = self.poll_begin()
            a(f"buffer_load_dwordx2 v[116:117], v14, {srd('WS')}, s{T+1} offen sc1")
            a("s_waitcnt vmcnt(0)")
            a("v_max_u32 v15, v116, v117")
            a("v_cmp_eq_u32 vcc, -1, v15")
            a("s_nop 1")
            a("v_cndmask_b32 v15, 0, 1, vcc")
            a("s_sleep 4")
            self.poll_end(l, 15)
        self.skip_if(f"s_cmp_ge_u32 s{S_LI}, 12", "L_bbranch")
        WV = 20; WO = 68
        a(f"s_mul_i32 s{T}, s{S_W}, {96*12288}")
        a(f"s_mul_i32 s{T+1}, s{S_H}, 384")
        a(f"s_add_u32 s{T}, s{T}, s{T+1}")
        a(f"s_lshl_b32 s{T+1}, s{S_J4}, 7")
        a(f"s_add_u32 s{T}, s{T}, s{T+1}")
        for i in range(12):
            a(f"buffer_load_dwordx4 {vr(WV+4*i,4)}, v4, {srd('WUV')}, s{T} offen{self.NTB}")
            if i >= self.a_win: a(f"s_waitcnt vmcnt({self.a_win})")
            if i < 11: a(f"s_add_u32 s{T}, s{T}, 98304")
        a(f"s_mul_i32 s{T}, s{S_H}, 192")
        a(f"s_lshl_b32 s{T+1}, s{S_J4}, 6")
        a(f"s_add_u32 s{T}, s{T}, s{T+1}")
        a(f"s_mul_i32 s{T}, s{T}, 1280")
        for i in range(10):
            a(f"buffer_load_dwordx4 {vr(WO+4*i,4)}, v5, {srd('WO')}, s{T} offen{self.NTB}")
            if 12 + i >= self.a_win: a(f"s_waitcnt vmcnt({self.a_win})")
            a(f"s_add_u32 s{T}, s{T}, 7680")
        a("v_cmp_gt_u32 vcc, 4, v6")
        a("s_nop 1")
        a("v_cndmask_b32 v9, v8, v5, vcc")
        a(f"buffer_load_dwordx4 {vr(WO+40,4)}, v9, {srd('WO')}, s{T} offen{self.NTB}")
        for k in range(4): a(f"v_mov_b32 v{WO+44+k}, 0")
        self.stamp(4)
        a("v_cmp_le_u32 vcc, 24, v1")
        a("s_nop 1")
        a("v_cndmask_b32 v10, 0, 1, vcc")
        a("v_mul_u32_u24 v11, 24, v10")
        a("v_sub_u32 v11, v1, v11")
        a("v_mul_u32_u24 v12, 384, v10")
        a("v_lshl_add_u32 v12, v11, 4, v12")
        a(f"s_lshl_b32 s{T+2}, s{S_W}, 10")
        a(f"s_add_u32 s{T+2}, s{T+2}, {self.L_O}")
        a(f"v_add_u32 v13, s{T+2}, v12")
        a("v_cmp_gt_u32 vcc, 48, v1")
        a("v_lshlrev_b32 v16, 2, v2")
        a(f"v_add_u32 v16, s{T+2}, v16")
        a("v_cndmask_b32 v12, v8, v12, vcc")
        a(f"s_lshl_b32 s{T}, s{S_H}, 3")
        a(f"s_add_u32 s{T}, s{T}, s{S_W}")
        a(f"s_mul_i32 s{T}, s{T}, {16*384}")
        a(f"s_add_u32 s{T}, s{T}, {WS_OP}")
        a(f"s_lshl_b32 s{T+1}, s{S_H}, 7")
        a(f"s_add_u32 s{T+1}, s{T+1}, {WS_ML}")
        a("v_and_b32 v14, 15, v1")
        a("v_lshlrev_b32 v14, 3, v14")
        a("v_lshlrev_b32 v121, 2, v10")
        a("v_lshlrev_b32 v17, 5, v3")
        a("v_lshl_add_u32 v17, v2, 2, v17")
        a(f"s_lshl_b32 s{T+3}, s{S_W}, 8")
        a(f"v_add_u32 v17, s{T+3}, v17")
        a("v_lshlrev_b32 v18, 2, v6")
        a("v_lshlrev_b32 v172, 2, v1")
        a(f"v_add_u32 v173, {self.L_CB - 24 + 2}, v172")
        a(f"v_add_u32 v172, {self.L_CB}, v172")
        a(f"v_mov_b32 v174, {self.L_CB + 500}")
        a("v_cmp_gt_u32 vcc, 6, v1")
        a("s_nop 1")
        a("v_cndmask_b32 v173, v173, v174, vcc")
        a("s_waitcnt vmcnt(11)")
        self.preperm(WV, 6, 128)
        a("s_waitcnt vmcnt(0)")
        self.preperm(WO, 6, 128)
        self.stamp(5)
        self.cf_check(132)
        OPV = 132
        def e4_issue(i):
            if i == 8:
                a(f"buffer_load_dwordx2 v[116:117], v14, {srd('WS')}, s{T+1} offen sc1")
            else:
                so = T if i < 4 else T+2
                a(f"buffer_load_dwordx4 {vr(OPV+4*i,4)}, v12, {srd('WS')}, s{so} offen offset:{(i%4)*768} sc1")
        def e4_check(i):
            if i == 8:
                a("v_max_u32 v15, v116, v117")
            else:
                a(f"v_max3_u32 v15, v{OPV+4*i}, v{OPV+4*i+1}, v{OPV+4*i+2}")
                a(f"v_max_u32 v15, v15, v{OPV+4*i+3}")
            a("v_cmp_eq_u32 vcc, -1, v15")
        a(f"s_add_u32 s{T+2}, s{T}, 3072")
        if self.mlpoll == 1:
            l = self.poll_begin()
            a(f"buffer_load_dwordx2 v[116:117], v14, {srd('WS')}, s{T+1} offen sc1")
            a("s_waitcnt vmcnt(0)")
            a("v_max_u32 v15, v116, v117")
            a("v_cmp_eq_u32 vcc, -1, v15")
            a("s_nop 1")
            a("v_cndmask_b32 v15, 0, 1, vcc")
            self.poll_end(l, 15)
            self.gpoll(8, e4_issue, e4_check, masks=[20,22,24,26,28,30,44,46])
        elif self.mlpoll == 2:
            l = a.newlabel("mla"); ok = a.newlabel("mlo")
            a(f"s_mov_b32 s{S_CNT}, 0")
            a.label(l)
            a(f"buffer_load_dwordx2 v[116:117], v14, {srd('WS')}, s{T+1} offen sc1")
            a("s_waitcnt vmcnt(0)")
            a("v_max_u32 v15, v116, v117")
            a("v_cmp_ne_u32 vcc, -1, v15")
            a(f"s_cbranch_vccnz {ok}")
            a("s_sleep 2")
            a(f"s_add_u32 s{S_CNT}, s{S_CNT}, 1")
            a(f"s_cmp_lt_u32 s{S_CNT}, {POLL_LIMIT}")
            a(f"s_cbranch_scc1 {l}")
            a.label(ok)
            self.gpoll(9, e4_issue, e4_check, masks=[20,22,24,26,28,30,44,46,48])
        else:
            self.gpoll(9, e4_issue, e4_check)
        self.stamp(6)
        self.stamp_val(17, S_CNT)
        a("v_mov_b32 v118, v116")
        a("s_nop 1")
        for ctrl in ["quad_perm:[1,0,3,2]", "quad_perm:[2,3,0,1]", "row_half_mirror", "row_mirror"]:
            a(f"v_max_f32_dpp v118, v118, v118 {ctrl} row_mask:0xf bank_mask:0xf")
            a("s_nop 1")
        a("v_sub_f32 v119, v116, v118")
        a("v_exp_f32 v119, v119")
        a("s_nop 0")
        a("v_mul_f32 v120, v117, v119")
        WN = 164
        for i in range(8): a(f"ds_bpermute_b32 v{WN+i}, v121, v119 offset:{8*i}")
        for ctrl in ["quad_perm:[1,0,3,2]", "quad_perm:[2,3,0,1]", "row_half_mirror", "row_mirror"]:
            a(f"v_add_f32_dpp v120, v120, v120 {ctrl} row_mask:0xf bank_mask:0xf")
            a("s_nop 1")
        a("v_rcp_f32 v120, v120")
        a("s_waitcnt lgkmcnt(0)")
        for k in range(4): a(f"v_mul_f32 v{122+k}, v{WN}, v{OPV+k}")
        for i in range(1, 8):
            for k in range(4): a(f"v_fmac_f32 v{122+k}, v{WN+i}, v{OPV+4*i+k}")
        for k in range(4): a(f"v_mul_f32 v{122+k}, v{122+k}, v120")
        a("s_mov_b32 exec_hi, 0xffff")
        a("ds_write_b128 v13, v[122:125]")
        a("s_mov_b32 exec_hi, -1")
        a("s_waitcnt lgkmcnt(0)")
        OV = 132
        for i in range(12):
            a(f"ds_read2_b32 {vr(OV+2*i,2)}, v16 offset0:{8*i} offset1:{8*i+96}")
        ACC = 120
        for k in range(8): a(f"v_mov_b32 v{ACC+k}, 0")
        CO = 160
        for p in range(6):
            a(f"s_waitcnt lgkmcnt({10-2*p})")
            a(f"v_add_f32 v{OV+4*p}, v{OV+4*p}, v{OV+4*p+1}")
            a(f"v_add_f32 v{OV+4*p+2}, v{OV+4*p+2}, v{OV+4*p+3}")
            a(f"v_cvt_pk_bf16_f32 v{CO+p}, v{OV+4*p}, v{OV+4*p+2}")
        self.gemv_pairs(WV, 6, CO, ACC)
        self.treduce8(ACC, 128, 118)
        a(f"ds_write_b32 v17, v{ACC} offset:{self.L_C}")
        a("s_waitcnt lgkmcnt(0)")
        a("s_barrier")
        self.stamp(7)
        skip = a.newlabel("cx")
        self.skip_if(f"s_cmp_lg_u32 s{S_W}, 0", skip)
        a("v_lshlrev_b32 v13, 2, v1")
        for w in range(8): a(f"ds_read_b32 v{132+w}, v13 offset:{self.L_C+w*256}")
        a("s_waitcnt lgkmcnt(0)")
        a("v_add_f32 v132, v132, v133\nv_add_f32 v134, v134, v135\nv_add_f32 v136, v136, v137\nv_add_f32 v138, v138, v139")
        a("v_add_f32 v132, v132, v134\nv_add_f32 v136, v136, v138")
        a("v_add_f32 v132, v132, v136")
        a("v_cvt_pk_bf16_f32 v132, v132, v132")
        a("ds_write_b16 v172, v132")
        a("ds_write_b16 v173, v132")
        a("s_waitcnt lgkmcnt(0)")
        a.label(skip)
        for k in range(8): a(f"v_mov_b32 v{ACC+k}, 0")
        a("s_barrier")
        for p in range(6):
            a(f"ds_read_b32 v{CO+p}, v18 offset:{self.L_CB+48*p}")
        a("s_waitcnt lgkmcnt(0)")
        self.gemv_pairs(WO, 6, CO, ACC)
        self.out_reduce_publish(ACC, T+10)
        self.stamp(8)
        a("s_branch L_aend")

        a.label("L_bbranch")
        WG = 20; XB = 84; WD = 160
        a("v_lshlrev_b32 v19, 2, v6")
        a(f"s_lshl_b32 s{T}, s{S_X}, 2")
        a(f"s_add_u32 s{T}, s{T}, s{S_LI}")
        a(f"s_sub_u32 s{T}, s{T}, 12")
        a("v_mul_u32_u24 v10, 43, v1")
        a("v_lshrrev_b32 v10, 8, v10")
        a("v_mul_u32_u24 v11, 6, v10")
        a("v_sub_u32 v11, v1, v11")
        a("v_mul_u32_u24 v12, 3072, v10")
        a("v_lshl_add_u32 v12, v11, 4, v12")
        a("v_cmp_gt_u32 vcc, 60, v1")
        a("v_lshlrev_b32 v13, 1, v10")
        a("v_cndmask_b32 v12, v8, v12, vcc")
        a(f"s_and_b32 s{T+1}, s{S_W}, 3")
        a(f"s_mul_i32 s{T+2}, s{T+1}, 320")
        for i in range(16):
            a(f"buffer_load_ushort v{XB+i}, v13, {srd('X')}, s{T+2} offen offset:{20*i}")
        a(f"s_mul_i32 s{T+2}, s{T+1}, {160*3072}")
        a(f"s_mul_i32 s{T+3}, s{T}, 96")
        a(f"s_add_u32 s{T+2}, s{T+2}, s{T+3}")
        up = a.newlabel("up"); upd = a.newlabel("upd")
        self.skip_if(f"s_cmp_ge_u32 s{S_W}, 4", up)
        for i in range(16):
            a(f"buffer_load_dwordx4 {vr(WG+4*i,4)}, v12, {srd('WG')}, s{T+2} offen{self.NTB}")
            if i >= self.a_win: a(f"s_waitcnt vmcnt({self.a_win})")
            a(f"s_add_u32 s{T+2}, s{T+2}, 30720")
        a(f"s_branch {upd}")
        a.label(up)
        for i in range(16):
            a(f"buffer_load_dwordx4 {vr(WG+4*i,4)}, v12, {srd('WU')}, s{T+2} offen{self.NTB}")
            if i >= self.a_win: a(f"s_waitcnt vmcnt({self.a_win})")
            a(f"s_add_u32 s{T+2}, s{T+2}, 30720")
        a.label(upd)
        a(f"s_mul_i32 s{T+2}, s{T}, {48*1280}")
        for i in range(8):
            a(f"buffer_load_dwordx4 {vr(WD+4*i,4)}, v5, {srd('WD')}, s{T+2} offen{self.NTB}")
            if 16 + i >= self.a_win: a(f"s_waitcnt vmcnt({self.a_win})")
            a(f"s_add_u32 s{T+2}, s{T+2}, 7680")
        ACC = 120
        for k in range(8): a(f"v_mov_b32 v{ACC+k}, 0")
        for i in range(16):
            a(f"s_waitcnt vmcnt({8+15-i})")
            a(f"v_lshlrev_b32 v128, 16, v{XB+i}")
            for k in range(4): a(f"v_dot2c_f32_bf16 v{ACC+2*k}, v{WG+4*i+k}, v{XB+i}")
            for k in range(4): a(f"v_dot2c_f32_bf16 v{ACC+2*k+1}, v{WG+4*i+k}, v128")
        a(f"s_mul_i32 s{T+2}, s{S_W}, 1920")
        a("v_mul_u32_u24 v13, 192, v10")
        a("v_lshl_add_u32 v13, v11, 5, v13")
        a(f"v_add_u32 v13, s{T+2}, v13")
        a("s_mov_b32 exec_hi, 0x0fffffff")
        a(f"ds_write_b128 v13, {vr(ACC,4)} offset:{self.L_R}")
        a(f"ds_write_b128 v13, {vr(ACC+4,4)} offset:{self.L_R+16}")
        a("s_mov_b32 exec_hi, -1")
        a("s_waitcnt lgkmcnt(0)")
        a("s_barrier")
        skip = a.newlabel("bg")
        self.skip_if(f"s_cmp_ge_u32 s{S_W}, 2", skip)
        a("v_cmp_le_u32 vcc, 48, v0")
        a("v_mov_b32 v14, 7488")
        a("v_lshlrev_b32 v13, 2, v0")
        a("v_cndmask_b32 v14, 0, v14, vcc")
        a("v_add_u32 v13, v13, v14")
        a("v_min_u32 v13, 7868, v13")
        for j in range(40):
            a(f"ds_read_b32 v{20+j}, v13 offset:{self.L_R+j*192}")
            if j % 8 == 7: a("s_waitcnt lgkmcnt(0)")
        for j in range(1, 40): a(f"v_add_f32 v20, v20, v{20+j}")
        a("v_lshlrev_b32 v13, 2, v0")
        a(f"ds_write_b32 v13, v20 offset:{self.L_C}")
        a("s_waitcnt lgkmcnt(0)")
        a.label(skip)
        a("s_barrier")
        skip = a.newlabel("bh")
        self.skip_if(f"s_cmp_lg_u32 s{S_W}, 0", skip)
        a("v_lshlrev_b32 v13, 2, v1")
        a(f"ds_read_b32 v20, v13 offset:{self.L_C}")
        a(f"ds_read_b32 v21, v13 offset:{self.L_C+192}")
        a("s_waitcnt lgkmcnt(0)")
        a(f"v_mul_f32 v20, 0x{f32bits(-math.log2(math.e)):08x}, v20")
        a("v_exp_f32 v20, v20")
        a("s_nop 0")
        a("v_add_f32 v20, 1.0, v20")
        a("v_rcp_f32 v20, v20")
        a("s_nop 0")
        a("v_mul_f32 v20, v20, v21")
        a("v_cvt_pk_bf16_f32 v20, v20, v20")
        self.write_pairs(20, 13, 14, 48)
        a("s_waitcnt lgkmcnt(0)")
        a.label(skip)
        for k in range(8): a(f"v_mov_b32 v{ACC+k}, 0")
        a("s_waitcnt vmcnt(0)")
        self.preperm(WD, 4, 128)
        a("s_barrier")
        CO = 100
        for p in range(4):
            a(f"ds_read_b32 v{CO+p}, v19 offset:{self.L_CB+48*p}")
        a("s_waitcnt lgkmcnt(0)")
        self.gemv_pairs(WD, 4, CO, ACC)
        self.out_reduce_publish(ACC, T+10)
        self.stamp(8)
        a.label("L_aend")

    def bset_ids(self):
        a = self.a
        a(f"s_mov_b32 s{S_LB}, s{S_LI}")
        a(f"s_lshl_b32 s{S_BLK}, s{S_X}, 5")
        a(f"s_lshl_b32 s9, s{S_LB}, 1")
        a(f"s_add_u32 s{S_BLK}, s{S_BLK}, s9")
        a(f"s_lshl_b32 s{S_G}, s{S_X}, 1")
        a(f"s_lshr_b32 s9, s{S_LB}, 3")
        a(f"s_add_u32 s{S_G}, s{S_G}, s9")
        a(f"s_and_b32 s{S_S}, s{S_LB}, 7")

    def pv_lane_offsets(self):
        a = self.a
        for n in range(3):
            a(f"v_add_u32 v5, {64*n}, v1")
            a("v_mul_u32_u24 v6, 5462, v5")
            a("v_lshrrev_b32 v6, 16, v6")
            a("v_mul_u32_u24 v7, 12, v6")
            a("v_sub_u32 v7, v5, v7")
            a("v_mul_u32_u24 v6, 1536, v6")
            a(f"v_lshl_add_u32 v{self.PVO+n}, v7, 4, v6")

    def pv_dma(self, kp, ldsbase, nw, w0):
        a = self.a; T = S_T + 8
        per = 48 // nw; rows = 256 // nw
        a(f"s_sub_u32 s{T+2}, s{S_W}, {w0}")
        a(f"s_lshl_b32 s{T}, s{S_G}, 9")
        a(f"s_mul_i32 s{T+1}, s{T+2}, {rows}")
        a(f"s_add_u32 s{T}, s{T}, s{T+1}")
        if kp: a(f"s_add_u32 s{T}, s{T}, 256")
        a(f"s_mul_i32 s{T}, s{T}, 1536")
        a(f"s_mul_i32 s{T+1}, s{S_S}, 192")
        a(f"s_add_u32 s{T}, s{T}, s{T+1}")
        a(f"s_mul_i32 s{T+1}, s{T+2}, {per*1024}")
        a(f"s_add_u32 s{T+1}, s{T+1}, {ldsbase}")
        for n in range(per):
            a(f"s_add_u32 m0, s{T+1}, {n*1024}")
            if n % 3 == 0 and n > 0: a(f"s_add_u32 s{T}, s{T}, {16*1536}")
            else: a("s_nop 0")
            a(f"buffer_load_dwordx4 v{self.PVO+(n%3)}, {srd('CKV')}, s{T} offen{self.NTC} lds")
            if self.pv_win < 63: a(f"s_waitcnt vmcnt({self.pv_win})")

    def s_dma_prep(self):
        a = self.a
        a("v_mov_b32 v216, 0")
        a("v_mov_b32 v219, v1")
        a("v_cmp_le_u32 vcc, 32, v1")
        a("v_add_u32 v5, 64, v1")
        a("v_subrev_u32 v6, 32, v1")
        a("v_cndmask_b32 v217, 0, 1, vcc")
        a("v_cndmask_b32 v220, v5, v6, vcc")
        a("v_mov_b32 v218, 1")
        a("v_add_u32 v221, 32, v1")
        for b in range(3): a(f"v_mul_u32_u24 v{222+b}, 1536, v{216+b}")
        T = S_T + 8
        a(f"s_and_b32 s{T+2}, s{S_W}, 1")
        a(f"s_lshl_b32 s{T+2}, s{T+2}, 3")
        for aa in range(4):
            for b in range(3):
                n = 3*aa + b
                a(f"s_add_u32 s{T+4}, s{T+2}, {2*aa}")
                a(f"v_add_u32 v5, s{T+4}, v{216+b}")
                a(f"v_xor_b32 v5, v5, v{219+b}")
                a(f"v_lshl_add_u32 v{226+n}, v5, 4, v{222+b}")

    def s_dma(self):
        a = self.a; T = S_T + 8
        a(f"s_lshl_b32 s{T}, s{S_X}, 10")
        a(f"s_lshl_b32 s{T+1}, s{S_LB}, 6")
        a(f"s_add_u32 s{T}, s{T}, s{T+1}")
        a(f"s_lshl_b32 s{T+1}, s{S_W}, 3")
        a(f"s_add_u32 s{T}, s{T}, s{T+1}")
        a(f"s_mul_i32 s{T}, s{T}, 1536")
        a(f"s_mul_i32 s{T+3}, s{S_W}, 12288")
        a(f"s_add_u32 s{T+3}, s{T+3}, {self.L_S}")
        for n in range(12):
            a(f"s_add_u32 m0, s{T+3}, {n*1024}")
            if n % 3 == 0 and n > 0: a(f"s_add_u32 s{T}, s{T}, {2*1536}")
            else: a("s_nop 0")
            a(f"buffer_load_dwordx4 v{226+n}, {srd('CKV')}, s{T} offen{self.NTC} lds")
            if n >= self.s_win: a(f"s_waitcnt vmcnt({self.s_win})")
            if self.s_probe and n == self.s_probe-1: a(f"s_waitcnt vmcnt({self.s_probe-1})")

    def s_dma_early(self):
        a = self.a; T = S_T + 8
        a(f"s_sub_u32 s{T+2}, s{S_W}, 6")
        a(f"s_lshl_b32 s{T}, s{S_X}, 10")
        a(f"s_lshl_b32 s{T+1}, s{S_LB}, 6")
        a(f"s_add_u32 s{T}, s{T}, s{T+1}")
        a(f"s_lshl_b32 s{T+1}, s{T+2}, 5")
        a(f"s_add_u32 s{T}, s{T}, s{T+1}")
        a(f"s_mul_i32 s{T}, s{T}, 1536")
        a(f"s_mul_i32 s{T+3}, s{T+2}, 49152")
        a(f"s_add_u32 s{T+3}, s{T+3}, {self.L_S}")
        for aa in range(16):
            for b in range(3):
                n = 3*aa + b
                a(f"v_add_u32 v5, {(2*aa) & 15}, v{216+b}")
                a(f"v_xor_b32 v5, v5, v{219+b}")
                a(f"v_lshl_add_u32 v5, v5, 4, v{222+b}")
                a(f"s_add_u32 m0, s{T+3}, {n*1024}")
                a(f"s_add_u32 s{T+5}, s{T}, {2*aa*1536}")
                a(f"buffer_load_dwordx4 v5, {srd('CKV')}, s{T+5} offen{self.NTC} lds")
                if n >= self.sde_win: a(f"s_waitcnt vmcnt({self.sde_win})")

    def bset_clears(self):
        a = self.a; T = S_T + 8
        a("v_subrev_u32 v5, 384, v0")
        a("v_mov_b32 v76, -1\nv_mov_b32 v77, -1\nv_mov_b32 v78, -1\nv_mov_b32 v79, -1")
        a("v_lshlrev_b32 v6, 4, v5")
        a("v_mov_b32 v7, 0x7fffffff")
        a("v_cmp_gt_u32 vcc, 64, v5")
        a(f"s_mul_i32 s{T+2}, s{S_BLK}, {PBS}")
        a("v_cndmask_b32 v8, v7, v6, vcc")
        for base in (WS_PBG, WS_PBL):
            a(f"s_add_u32 s{T+3}, s{T+2}, {base}")
            a(f"buffer_store_dwordx4 v[76:79], v6, {srd('WS')}, s{T+3} offen sc1")
            a(f"buffer_store_dwordx4 v[76:79], v6, {srd('WS')}, s{T+3} offen offset:2048 sc1")
            a(f"s_add_u32 s{T+3}, s{T+3}, 4096")
            a(f"buffer_store_dwordx4 v[76:79], v8, {srd('WS')}, s{T+3} offen sc1")
        a(f"s_lshl_b32 s{T+5}, s{S_S}, 4")
        a(f"s_add_u32 s{T+5}, s{T+5}, s{S_G}")
        a(f"s_mul_i32 s{T+5}, s{T+5}, 384")
        a(f"s_add_u32 s{T+5}, s{T+5}, {WS_OP}")
        a(f"s_mov_b32 s{T+6}, 49152")
        for i in range(6):
            a(f"v_add_u32 v8, {128*i}, v5")
            a("v_mul_u32_u24 v9, 2731, v8")
            a("v_lshrrev_b32 v9, 16, v9")
            a("v_mul_u32_u24 v70, 24, v9")
            a("v_sub_u32 v70, v8, v70")
            a(f"v_mul_lo_u32 v9, v9, s{T+6}")
            a("v_lshl_add_u32 v9, v70, 4, v9")
            a(f"buffer_store_dwordx4 v[76:79], v9, {srd('WS')}, s{T+5} offen sc1")
        a("v_lshlrev_b32 v8, 7, v5")
        a("v_cmp_gt_u32 vcc, 32, v5")
        a(f"s_lshl_b32 s{T+5}, s{S_G}, 3")
        a(f"s_add_u32 s{T+5}, s{T+5}, {WS_ML}")
        a("v_cndmask_b32 v8, v7, v8, vcc")
        a(f"s_cmp_eq_u32 s{S_S}, 0")
        a(f"s_cselect_b32 s{T+5}, s{T+5}, 0x7fffff00")
        a(f"buffer_store_dwordx2 v[76:77], v8, {srd('WS')}, s{T+5} offen sc1")

    def bset_front(self):
        a = self.a; T = S_T
        XV = 10; W0 = 20; ACC = 60
        a(f"v_mov_b32 v5, {self.L_FLAG}")
        for k in range(4): a(f"v_mov_b32 v{6+k}, 0")
        a("ds_write_b128 v5, v[6:9]")
        a("ds_write_b128 v5, v[6:9] offset:16")
        a("ds_write_b128 v5, v[6:9] offset:32")
        a("ds_write_b128 v5, v[6:9] offset:48")
        a("ds_write_b128 v5, v[6:9] offset:64")
        a("v_lshlrev_b32 v5, 1, v2")
        a(f"v_add_u32 v9, s{S_PM}, v5")
        nox = a.newlabel("nox")
        self.skip_if(f"s_cmp_lg_u32 s{S_W}, 6", nox)
        a("v_lshlrev_b32 v8, 4, v1")
        a(f"buffer_load_dwordx4 v[20:23], v8, {srd('X')}, 0 offen")
        a(f"buffer_load_dwordx4 v[24:27], v8, {srd('X')}, 0 offen offset:1024")
        a.label(nox)
        self.bset_ids()
        self.pv_lane_offsets()
        self.s_dma_prep()
        nox2 = a.newlabel("nox2")
        self.skip_if(f"s_cmp_lg_u32 s{S_W}, 6", nox2)
        a("s_waitcnt vmcnt(0)")
        a(f"ds_write_b128 v8, v[20:23] offset:{self.L_X}")
        a(f"ds_write_b128 v8, v[24:27] offset:{self.L_X+1024}")
        a.label(nox2)
        a("s_waitcnt lgkmcnt(0)")
        a("s_barrier")
        ldr = a.newlabel("p1ldr"); j = a.newlabel("p1j")
        self.skip_if(f"s_cmp_ge_u32 s{S_W}, 6", ldr)
        a(f"s_lshl_b32 s{T+5}, s{S_H}, 3")
        a(f"s_lshl_b32 s{T+6}, s{S_J4}, 1")
        a(f"s_add_u32 s{T+5}, s{T+5}, s{T+6}")
        a(f"s_add_u32 s{T+5}, s{T+5}, s{T}")
        a(f"s_mul_i32 s{T+5}, s{T+5}, 1536")
        a(f"s_lshl_b32 s{T+6}, s{T+1}, 9")
        a(f"s_add_u32 s{T+5}, s{T+5}, s{T+6}")
        a(f"s_add_u32 s{T+6}, s{T+5}, {WS_QPG}")
        a(f"s_add_u32 s{T+5}, s{T+5}, {WS_QPL}")
        a("v_lshlrev_b32 v5, 6, v3")
        a("v_lshl_add_u32 v5, v2, 3, v5")
        for k in range(8): a(f"v_mov_b32 v{ACC+k}, 0")
        for i in range(10):
            a(f"ds_read_u16 v{XV+i}, v9 offset:{self.L_X+16*i}")
        a("s_waitcnt lgkmcnt(0)")
        a(f"s_add_u32 s{S_EP}, s{S_EP}, 1")
        for i in range(10):
            a(f"s_waitcnt vmcnt({9-i})")
            if i == 9: self.stamp(13)
            a(f"v_lshlrev_b32 v68, 16, v{XV+i}")
            for k in range(4): a(f"v_dot2c_f32_bf16 v{ACC+2*k}, v{W0+4*i+k}, v{XV+i}")
            for k in range(4): a(f"v_dot2c_f32_bf16 v{ACC+2*k+1}, v{W0+4*i+k}, v68")
        self.treduce8(ACC, 68, 69)
        a(f"v_mov_b32 v{ACC+1}, s{S_EP}")
        if self.local:
            a(f"buffer_store_dwordx2 {vr(ACC,2)}, v5, {srd('WS')}, s{T+5} offen")
        a(f"buffer_store_dwordx2 {vr(ACC,2)}, v5, {srd('WS')}, s{T+6} offen sc1")
        self.stamp(1)
        a(f"s_branch {j}")
        a.label(ldr)
        if not self.exp_noclear: self.bset_clears()
        a("s_waitcnt lgkmcnt(0)")
        a(f"s_add_u32 s{S_EP}, s{S_EP}, 1")
        def cf_store():
            a(f"s_lshl_b32 s{T+13}, s2, 1")
            a(f"s_add_u32 s{T+13}, s{T+13}, s{S_W}")
            a(f"s_lshl_b32 s{T+13}, s{T+13}, 2")
            a(f"s_add_u32 s{T+13}, s{T+13}, {WS_CF - 24}")
            a(f"v_mov_b32 v5, s{S_EP}")
            a("v_mov_b32 v6, 0")
            a("s_mov_b64 exec, 1")
            a(f"buffer_store_dword v5, v6, {srd('WS')}, s{T+13} offen sc1")
            a("s_mov_b64 exec, -1")
        nocf = a.newlabel("nocf")
        if self.s_trig:
            notr = a.newlabel("notr")
            self.skip_if(f"s_cmp_lg_u32 s{S_W}, 7", notr)
            a(f"s_mul_i32 s{T+5}, s{S_H}, {8*1536}")
            a(f"s_add_u32 s{T+6}, s{T+5}, {WS_QPL}")
            a(f"s_add_u32 s{T+5}, s{T+5}, {WS_QPG}")
            a("v_and_b32 v5, 7, v1")
            a("v_mul_u32_u24 v5, 1536, v5")
            l = self.poll_begin(T+6, T+5)
            a(f"buffer_load_dwordx2 v[20:21], v5, {srd('WS')}, s{S_PB} offen sc1")
            a("s_waitcnt vmcnt(0)")
            a(f"v_xor_b32 v20, s{S_EP}, v21")
            self.poll_end(l, 20)
            if self.s_trig == 2:
                a(f"s_lshl_b32 s{T+5}, s{S_H}, 4")
                a(f"s_add_u32 s{T+5}, s{T+5}, {WS_QA}")
                a("v_mov_b32 v5, 0")
                l = self.poll_begin()
                a(f"buffer_load_dwordx4 v[20:23], v5, {srd('WS')}, s{T+5} offen sc1")
                a("s_waitcnt vmcnt(0)")
                a(f"v_xor_b32 v20, s{S_EP}, v23")
                self.poll_end(l, 20)
            a.label(notr)
        if self.sde:
            self.s_dma_early()
            cf_store()
            a.label(j)
        else:
            a.label(j)
            a("s_barrier")
            self.s_dma()
            self.skip_if(f"s_cmp_lt_u32 s{S_W}, 6", nocf)
            a("s_waitcnt vmcnt(12)")
            cf_store()
        a.label(nocf)
        self.stamp(2)

    def bset_s_phase(self):
        a = self.a; T = S_T
        QA = 20; AF = 84; ACC = 180
        a("v_and_b32 v6, 31, v1")
        a("v_lshrrev_b32 v7, 5, v1")
        a("v_and_b32 v8, 15, v6")
        a("v_xor_b32 v8, v8, v7")
        a("v_mul_u32_u24 v6, 1536, v6")
        a(f"v_add_u32 v6, {self.L_S}, v6")
        a(f"s_mul_i32 s{T+2}, s{S_W}, 24")
        for i in range(12):
            a(f"s_add_u32 s{T+3}, s{T+2}, {2*i}")
            a(f"v_xor_b32 v9, s{T+3}, v8")
            a(f"v_lshl_add_u32 v{226+i}, v9, 4, v6")
        a(f"s_lshl_b32 s{T}, s{S_W}, 14")
        a(f"s_add_u32 s{T}, s{T}, {WS_QA}")
        a("v_lshlrev_b32 v5, 4, v1")
        for g in range(4): a(f"s_add_u32 s{T+9+g}, s{T}, {4096*g}")
        def qa_first():
            for n in range(16):
                a(f"buffer_load_dwordx4 {vr(QA+4*n,4)}, v5, {srd('WS')}, s{T+9+n//4} offen offset:{(n%4)*1024} sc1")
        if self.qa_early:
            a("s_barrier")
            notS0 = a.newlabel("notS0")
            self.skip_if(f"s_cmp_ge_u32 s{S_W}, 4", notS0)
            qa_first()
            a("s_waitcnt vmcnt(16)")
            a.label(notS0)
            nw = a.newlabel("nw")
            self.skip_if(f"s_cmp_lt_u32 s{S_W}, 4", nw)
            a("s_waitcnt vmcnt(0)")
            a.label(nw)
        else:
            a("s_waitcnt vmcnt(0)")
        a("s_barrier")
        self.stamp(3)
        notS = a.newlabel("notS"); j4 = a.newlabel("j4")
        self.skip_if(f"s_cmp_ge_u32 s{S_W}, 4", notS)
        if not self.qa_early and not self.qa_order: qa_first()
        for i in range(12):
            a(f"ds_read_b128 {vr(AF+4*i,4)}, v{226+i}")
            a(f"ds_read_b128 {vr(AF+48+4*i,4)}, v{226+i} offset:49152")
            if i == 5: a("s_waitcnt lgkmcnt(0)")
        a("s_waitcnt lgkmcnt(0)")
        a("s_barrier")
        self.stamp(21)
        if self.qa_order:
            qa_first()
            if self.qa_order == 2: self.lds_signal(64)
        a(f"s_lshl_b32 s{T+2}, s{S_W}, 13")
        a(f"s_add_u32 s{T+2}, s{T+2}, {self.L_RED}")
        a(f"v_add_u32 v10, s{T+2}, v5")
        a(f"s_lshl_b32 s{T+2}, s{S_W}, 10")
        a(f"s_add_u32 s{T+2}, s{T+2}, {self.L_RED}")
        a(f"v_add_u32 v11, s{T+2}, v5")
        a("v_bfe_u32 v12, v1, 4, 1")
        a("v_lshlrev_b32 v12, 10, v12")
        a("v_and_b32 v9, 15, v1")
        a("v_lshl_add_u32 v12, v9, 4, v12")
        a("v_lshrrev_b32 v9, 5, v1")
        a("v_lshl_add_u32 v12, v9, 3, v12")
        a("v_and_b32 v13, 31, v1")
        a("v_lshlrev_b32 v13, 2, v13")
        a("v_mov_b32 v9, 0x7fffffff")
        a("v_cmp_gt_u32 vcc, 32, v1")
        a(f"s_mul_i32 s{T+4}, s{S_BLK}, {PBS}")
        a("v_cndmask_b32 v13, v9, v13, vcc")
        a(f"s_lshl_b32 s{T+3}, s{S_W}, 8")
        a(f"s_add_u32 s{T+5}, s{T+4}, s{T+3}")
        a(f"s_lshl_b32 s{T+3}, s{S_W}, 7")
        a(f"s_add_u32 s{T+6}, s{T+4}, s{T+3}")
        a(f"s_add_u32 s{T+6}, s{T+6}, 2048")
        def qa_issue(g):
            for k in range(4):
                n = 4*g + k
                a(f"buffer_load_dwordx4 {vr(QA+4*n,4)}, v5, {srd('WS')}, s{T+9+g} offen offset:{k*1024} sc1")
        def qa_check(g):
            a(f"v_xor_b32 v6, s{S_EP}, v{QA+16*g+3}")
            for k in range(1, 4):
                a(f"v_xor_b32 v7, s{S_EP}, v{QA+16*g+4*k+3}")
                a("v_or_b32 v6, v6, v7")
            a("v_cmp_ne_u32 vcc, 0, v6")
        self.gpoll(4, qa_issue, qa_check, first_issued=True, masks=[24,26,28,30])
        self.stamp(4)
        self.stamp_val(16, S_CNT)
        for sg in range(4):
            for f in range(3): a(f"v_mov_b32 v{QA+(sg*4+f)*4+3}, v{QA+(sg*4+3)*4+f}")
        a("s_nop 0")
        for i in range(12):
            sg, f = i // 3, i % 3
            B = QA + (sg*4+f)*4
            for kb in range(2):
                c = "0" if i == 0 else vr(ACC+16*kb, 16)
                a(f"v_mfma_f32_32x32x16_bf16 {vr(ACC+16*kb,16)}, {vr(AF+48*kb+4*i,4)}, {vr(B,4)}, {c}")
        a("s_nop 3")
        a("s_nop 7")
        for q in range(4): a(f"ds_write_b128 v10, {vr(ACC+4*q,4)} offset:{q*1024}")
        a("s_nop 3")
        for q in range(4): a(f"ds_write_b128 v10, {vr(ACC+16+4*q,4)} offset:{(4+q)*1024}")
        a("s_waitcnt lgkmcnt(0)")
        self.stamp(8)
        self.lds_signal(16)
        self.lds_wait(16, 20)
        R = 20
        for src in range(4):
            for kb in range(2):
                a(f"ds_read_b128 {vr(R+(src*2+kb)*4,4)}, v11 offset:{src*8192+kb*4096}")
        a(f"s_mov_b32 s{T+3}, 0x{f32bits(192**-0.5*math.log2(math.e)):08x}")
        a("s_waitcnt lgkmcnt(4)")
        for k in range(8): a(f"v_add_f32 v{R+k}, v{R+k}, v{R+8+k}")
        a("s_waitcnt lgkmcnt(0)")
        reads = []
        if self.early_frags:
            self.lds_wait(32, 60)
            self.stamp(14)
            reads = self.pv_read_frags(self.L_S, defer=True)
        def v(ins):
            a(ins)
            if reads: a(reads.pop(0))
        for k in range(8): v(f"v_add_f32 v{R+16+k}, v{R+16+k}, v{R+24+k}")
        for k in range(8): v(f"v_add_f32 v{R+k}, v{R+k}, v{R+16+k}")
        for k in range(8): v(f"v_mul_f32 v{R+k}, s{T+3}, v{R+k}")
        for kb in range(2):
            v(f"v_max3_f32 v{R+8+kb}, v{R+kb*4}, v{R+kb*4+1}, v{R+kb*4+2}")
        for kb in range(2):
            v(f"v_max_f32 v{R+8+kb}, v{R+8+kb}, v{R+kb*4+3}")
        a(f"v_mov_b32 v{R+10}, v{R+8}")
        a(f"v_mov_b32 v{R+11}, v{R+9}")
        a("s_nop 1")
        a(f"v_permlane32_swap_b32 v{R+8}, v{R+10}")
        a(f"v_permlane32_swap_b32 v{R+9}, v{R+11}")
        a("s_nop 1")
        a(f"v_max_f32 v{R+8}, v{R+8}, v{R+10}")
        a(f"v_max_f32 v{R+9}, v{R+9}, v{R+11}")
        a(f"v_ceil_f32 v{R+8}, v{R+8}")
        a(f"v_ceil_f32 v{R+9}, v{R+9}")
        for kb in range(2):
            for r in range(4): v(f"v_sub_f32 v{R+kb*4+r}, v{R+kb*4+r}, v{R+8+kb}")
        for k in range(8): v(f"v_exp_f32 v{R+k}, v{R+k}")
        a(f"v_min_u32 v{R+8}, 0xfffffffe, v{R+8}")
        a(f"v_min_u32 v{R+9}, 0xfffffffe, v{R+9}")
        P = R + 12
        for kb in range(2):
            a(f"v_cvt_pk_bf16_f32 v{P+kb*2}, v{R+kb*4}, v{R+kb*4+1}")
            a(f"v_cvt_pk_bf16_f32 v{P+kb*2+1}, v{R+kb*4+2}, v{R+kb*4+3}")
        for k in range(4): a(f"v_and_b32 v{P+k}, 0x7fff7fff, v{P+k}")
        paths = ([(WS_PBL, "")] if self.local else []) + [(WS_PBG, " sc1")]
        for base, fl in paths:
            a(f"s_add_u32 s{T+7}, s{T+5}, {base}")
            a(f"s_add_u32 s{T+8}, s{T+6}, {base}")
            a(f"buffer_store_dwordx2 {vr(P,2)}, v12, {srd('WS')}, s{T+7} offen{fl}")
            a(f"buffer_store_dwordx2 {vr(P+2,2)}, v12, {srd('WS')}, s{T+7} offen offset:{PBS}{fl}")
            a(f"buffer_store_dword v{R+8}, v13, {srd('WS')}, s{T+8} offen{fl}")
            a(f"buffer_store_dword v{R+9}, v13, {srd('WS')}, s{T+8} offen offset:{PBS}{fl}")
        self.stamp(5)
        for r in reads: a(r)
        if not self.early_frags:
            self.lds_wait(32, 60)
            self.stamp(14)
            self.pv_read_frags(self.L_S)
        a(f"s_branch {j4}")
        a.label(notS)
        a("s_barrier")
        if self.qa_order == 2: self.lds_wait(64, 20)
        self.pv_dma(0, self.L_PA, 4, 4)
        self.pv_dma(1, self.L_S, 4, 4)
        self.stamp(20)
        a("s_waitcnt vmcnt(12)")
        self.lds_signal(0)
        self.lds_wait(0, 20)
        self.stamp(19)
        self.pv_read_frags(self.L_PA)
        a("s_waitcnt vmcnt(0)")
        self.lds_signal(32)
        nocf = a.newlabel("nocf")
        self.skip_if(f"s_cmp_lg_u32 s{S_W}, 4", nocf)
        self.cf_check(20)
        a(f"v_mov_b32 v6, {self.L_FLAG+48}")
        a("v_mov_b32 v7, 1")
        a("ds_write_b32 v6, v7")
        a.label(nocf)
        self.stamp(14)
        a.label(j4)

    def pv_read_frags(self, base, defer=False):
        a = self.a; T = S_T + 8; AF = 84
        a("v_lshrrev_b32 v14, 4, v1")
        a("v_and_b32 v15, 15, v1")
        a("v_lshrrev_b32 v16, 2, v15")
        a("v_lshl_add_u32 v16, v14, 3, v16")
        a("v_mul_u32_u24 v16, 192, v16")
        a("v_and_b32 v15, 3, v15")
        a("v_lshl_add_u32 v16, v15, 3, v16")
        a(f"s_lshr_b32 s9, s{S_W}, 1")
        a("s_and_b32 s9, s9, 1")
        a("s_mul_i32 s9, s9, 96")
        a(f"s_add_u32 s9, s9, {base}")
        a("v_add_u32 v16, s9, v16")
        reads = []
        for bb in range(8):
            for ct in range(3):
                r = AF + (bb*3+ct)*4; off = bb*6144 + ct*32
                reads.append(f"ds_read_b64_tr_b16 {vr(r,2)}, v16 offset:{off}")
                reads.append(f"ds_read_b64_tr_b16 {vr(r+2,2)}, v16 offset:{off+768}")
        if defer: return reads
        for n, r in enumerate(reads):
            a(r)
            if n % 12 == 11: a("s_waitcnt lgkmcnt(6)")

    def bset_pv_phase(self):
        a = self.a; T = S_T
        AF = 84; P = 20; MI = 52; DL = 60; ACC = 180; LA = 192; ON = 196
        a(f"s_cmp_lt_u32 s{S_W}, 4")
        a(f"s_cselect_b32 s{T}, 8, 0")
        a(f"s_lshl_b32 s{T+1}, s{S_G}, 4")
        a(f"s_add_u32 s{T+1}, s{T+1}, s{T}")
        a(f"s_and_b32 s{T+2}, s{S_W}, 1")
        a(f"s_mul_i32 s{T+3}, s{T+1}, {PBS}")
        a(f"s_lshl_b32 s{T+4}, s{T+2}, 10")
        a(f"s_add_u32 s{T+3}, s{T+3}, s{T+4}")
        a(f"s_add_u32 s{T+4}, s{T+3}, {WS_PBG}")
        a(f"s_add_u32 s{T+3}, s{T+3}, {WS_PBL}")
        a("v_lshlrev_b32 v5, 4, v1")
        a("v_and_b32 v6, 15, v1")
        a("v_lshlrev_b32 v6, 2, v6")
        a("v_lshrrev_b32 v7, 4, v1")
        a("v_lshl_add_u32 v6, v7, 7, v6")
        a(f"s_mul_i32 s{T+5}, s{T+2}, 960")
        a(f"s_sub_u32 s{T+5}, 2048, s{T+5}")
        a(f"v_add_u32 v6, s{T+5}, v6")
        for k in range(4): a(f"v_mov_b32 v{ON+k}, 0x3f803f80")
        a("v_and_b32 v14, 15, v1")
        a(f"s_mov_b32 s{T+5}, 49152")
        a(f"v_mul_lo_u32 v15, v14, s{T+5}")
        a("v_lshl_add_u32 v15, v7, 4, v15")
        a(f"s_mul_i32 s{T+5}, s{T+2}, {16*49152}")
        a(f"s_lshl_b32 s{T+6}, s{S_S}, 4")
        a(f"s_add_u32 s{T+6}, s{T+6}, s{S_G}")
        a(f"s_mul_i32 s{T+6}, s{T+6}, 384")
        a(f"s_add_u32 s{T+5}, s{T+5}, s{T+6}")
        a(f"s_lshr_b32 s{T+6}, s{S_W}, 1")
        a(f"s_and_b32 s{T+6}, s{T+6}, 1")
        a(f"s_mul_i32 s{T+7}, s{T+6}, 192")
        a(f"s_add_u32 s{T+5}, s{T+5}, s{T+7}")
        a(f"s_add_u32 s{T+5}, s{T+5}, {WS_OP}")
        a("v_lshlrev_b32 v14, 7, v14")
        a("v_mov_b32 v16, 0x7fffffff")
        a("v_cmp_gt_u32 vcc, 16, v1")
        a(f"s_lshl_b32 s{T+8}, s{T+2}, 11")
        a(f"s_lshl_b32 s{T+7}, s{S_G}, 3")
        a(f"s_add_u32 s{T+8}, s{T+8}, s{T+7}")
        a(f"s_add_u32 s{T+8}, s{T+8}, {WS_ML}")
        a("v_cndmask_b32 v14, v16, v14, vcc")
        a(f"s_or_b32 s{T+7}, s{T+6}, s{S_S}")
        a(f"s_cmp_eq_u32 s{T+7}, 0")
        a(f"s_cselect_b32 s{T+8}, s{T+8}, 0x7fffff00")
        a(f"s_and_b32 s{T+9}, s{S_W}, 3")
        a(f"s_lshl_b32 s{T+9}, s{T+9}, 12")
        a(f"s_add_u32 s{T+9}, s{T+9}, {self.L_PR}")
        a(f"v_add_u32 v17, s{T+9}, v5")
        def p_pre():
            if self.local:
                a(f"s_and_b32 s9, s{S_CNT}, {self.lperiod-1}")
                a(f"s_cmp_eq_u32 s9, {self.lperiod-1}")
                a(f"s_cselect_b32 s{S_PB}, s{T+4}, s{T+3}")
            else:
                a(f"s_mov_b32 s{S_PB}, s{T+4}")
        def p_issue(bb):
            a(f"s_add_u32 s9, s{S_PB}, {bb*PBS}")
            a(f"buffer_load_dwordx4 {vr(P+4*bb,4)}, v5, {srd('WS')}, s9 offen sc1")
            a(f"buffer_load_dword v{MI+bb}, v6, {srd('WS')}, s9 offen sc1")
        def p_check(bb):
            a(f"v_or3_b32 v7, v{P+4*bb}, v{P+4*bb+1}, v{P+4*bb+2}")
            a(f"v_or_b32 v7, v7, v{P+4*bb+3}")
            a("v_and_b32 v7, 0x80008000, v7")
            a(f"v_cmp_eq_u32 vcc, -1, v{MI+bb}")
            a("s_nop 1")
            a("v_cndmask_b32 v8, 0, 1, vcc")
            a("v_or_b32 v7, v7, v8")
            a("v_cmp_ne_u32 vcc, 0, v7")
        a(f"v_mov_b32 v7, {self.L_FLAG+48}")
        l = self.poll_begin()
        a("ds_read_b32 v8, v7")
        a("s_waitcnt lgkmcnt(0)")
        a("v_xor_b32 v8, 1, v8")
        self.poll_end(l, 8)
        self.stamp(15)
        self.gpoll(8, p_issue, p_check, pre=p_pre, masks=[24,26,28,30,32,34,36,38])
        self.stamp(6)
        self.stamp_val(17, S_CNT)
        a(f"v_max3_f32 v9, v{MI}, v{MI+1}, v{MI+2}")
        a(f"v_max3_f32 v9, v9, v{MI+3}, v{MI+4}")
        a(f"v_max3_f32 v9, v9, v{MI+5}, v{MI+6}")
        a(f"v_max_f32 v9, v9, v{MI+7}")
        a("v_mov_b32 v10, v9")
        a("s_nop 1")
        a("v_permlane16_swap_b32 v9, v10")
        a("s_nop 1")
        a("v_max_f32 v9, v9, v10")
        a("v_mov_b32 v10, v9")
        a("s_nop 1")
        a("v_permlane32_swap_b32 v9, v10")
        a("s_nop 1")
        a("v_max_f32 v9, v9, v10")
        a(f"s_mov_b32 s{T+10}, 0x437f0000")
        a(f"s_mov_b32 s{T+11}, 0x00800080")
        for bb in range(8): a(f"v_sub_f32 v{DL+bb}, v9, v{MI+bb}")
        for bb in range(8): a(f"v_min_f32 v{DL+bb}, s{T+10}, v{DL+bb}")
        for bb in range(8): a(f"v_cvt_u32_f32 v{DL+bb}, v{DL+bb}")
        for bb in range(8): a(f"v_mul_u32_u24 v{DL+bb}, s{T+11}, v{DL+bb}")
        for k in range(4): a(f"v_pk_sub_u16 v{P+k}, v{P+k}, v{DL} clamp")
        for bb in range(8):
            if bb < 7:
                for k in range(4): a(f"v_pk_sub_u16 v{P+4*(bb+1)+k}, v{P+4*(bb+1)+k}, v{DL+bb+1} clamp")
            else:
                a("s_nop 1")
            for ct in range(3):
                c = "0" if bb == 0 else vr(ACC+4*ct, 4)
                a(f"v_mfma_f32_16x16x32_bf16 {vr(ACC+4*ct,4)}, {vr(AF+(bb*3+ct)*4,4)}, {vr(P+4*bb,4)}, {c}")
            c = "0" if bb == 0 else vr(LA, 4)
            a(f"v_mfma_f32_16x16x32_bf16 {vr(LA,4)}, {vr(ON,4)}, {vr(P+4*bb,4)}, {c}")
        a("s_nop 7")
        self.stamp(11)
        kp1 = a.newlabel("kp1")
        self.skip_if(f"s_cmp_lt_u32 s{S_W}, 4", kp1)
        a(f"v_mov_b32 v{LA+1}, v9")
        for ct in range(3): a(f"ds_write_b128 v17, {vr(ACC+4*ct,4)} offset:{ct*1024}")
        a(f"ds_write_b128 v17, {vr(LA,4)} offset:3072")
        a("s_waitcnt lgkmcnt(0)")
        a.label(kp1)
        a("s_barrier")
        self.stamp(12)
        fin = a.newlabel("pvfin")
        self.skip_if(f"s_cmp_ge_u32 s{S_W}, 4", fin)
        O = 20
        for k in range(4): a(f"ds_read_b128 {vr(O+4*k,4)}, v17 offset:{k*1024}")
        a("s_waitcnt lgkmcnt(0)")
        a(f"v_max_f32 v10, v9, v{O+13}")
        a("v_sub_f32 v11, v9, v10")
        a(f"v_sub_f32 v12, v{O+13}, v10")
        a("v_exp_f32 v11, v11")
        a("v_exp_f32 v12, v12")
        a("s_nop 0")
        for k in range(12): a(f"v_mul_f32 v{ACC+k}, v{ACC+k}, v11")
        for k in range(12): a(f"v_fmac_f32 v{ACC+k}, v{O+k}, v12")
        for k in range(12): a(f"v_min_u32 v{ACC+k}, 0xfffffffe, v{ACC+k}")
        if self.exp_linear:
            a(f"s_lshl_b32 s{T+5}, s{S_G}, 3")
            a(f"s_add_u32 s{T+5}, s{T+5}, s{S_S}")
            a(f"s_lshl_b32 s{T+5}, s{T+5}, 2")
            a(f"s_add_u32 s{T+5}, s{T+5}, s{S_W}")
            a(f"s_mul_i32 s{T+5}, s{T+5}, 3072")
            a(f"s_add_u32 s{T+5}, s{T+5}, {WS_OP}")
            for ct in range(3):
                a(f"buffer_store_dwordx4 {vr(ACC+4*ct,4)}, v5, {srd('WS')}, s{T+5} offen offset:{ct*1024} sc1")
        else:
          for ct in range(3):
            a(f"buffer_store_dwordx4 {vr(ACC+4*ct,4)}, v15, {srd('WS')}, s{T+5} offen offset:{ct*64} sc1")
        a(f"v_mul_f32 v{LA}, v{LA}, v11")
        a(f"v_fmac_f32 v{LA}, v{O+12}, v12")
        a(f"v_min_u32 v11, 0xfffffffe, v{LA}")
        a("v_min_u32 v10, 0xfffffffe, v10")
        a(f"buffer_store_dwordx2 v[10:11], v14, {srd('WS')}, s{T+8} offen sc1")
        a.label(fin)
        self.stamp(7)

    def bset_final(self):
        a = self.a; T = S_T
        self.skip_if(f"s_cmp_ge_u32 s{S_LB}, 5", "L_bend")
        self.skip_if(f"s_cmp_lg_u32 s{S_W}, 0", "L_bend")
        a("v_lshlrev_b32 v5, 2, v1")
        for i in range(5):
            a(f"buffer_load_dword v{20+i}, v5, {srd('X')}, 0 offen offset:{256*i}")
            a(f"buffer_load_dword v{25+i}, v5, {srd('GW')}, 0 offen offset:{256*i}")
        a("v_mov_b32 v30, 0")
        a(f"s_mul_i32 s{T}, s{S_X}, 5")
        a(f"s_add_u32 s{T}, s{T}, s{S_LB}")
        a(f"s_lshl_b32 s{T+1}, s{T}, 6")
        a(f"s_add_u32 s{T+1}, s{T+1}, {WS_OUTP}")
        a("v_lshrrev_b32 v6, 2, v1")
        a("v_mul_u32_u24 v6, 2560, v6")
        a("v_and_b32 v7, 3, v1")
        a("v_lshl_add_u32 v6, v7, 4, v6")
        a("v_lshlrev_b32 v8, 2, v7")
        a("v_bfe_u32 v9, v1, 5, 1")
        a("v_lshl_add_u32 v8, v9, 1, v8")
        a("v_bfe_u32 v9, v1, 4, 1")
        a("v_add_u32 v8, v8, v9")
        a("v_lshlrev_b32 v11, 1, v8")
        a("v_and_b32 v9, 12, v1")
        a("v_mov_b32 v10, 0x7fffffff")
        a("v_cmp_eq_u32 vcc, 0, v9")
        a(f"s_lshl_b32 s{T+2}, s{T}, 5")
        a("v_cndmask_b32 v11, v10, v11, vcc")
        a("s_waitcnt vmcnt(0)")
        for i in range(5): a(f"v_dot2c_f32_bf16 v30, v{20+i}, v{25+i}")
        a("s_nop 2")
        for ctrl in ["quad_perm:[1,0,3,2]", "quad_perm:[2,3,0,1]", "row_half_mirror", "row_mirror"]:
            a(f"v_add_f32_dpp v30, v30, v30 {ctrl} row_mask:0xf bank_mask:0xf")
            a("s_nop 1")
        a("v_mov_b32 v31, v30")
        a("s_nop 1")
        a("v_permlane16_swap_b32 v30, v31")
        a("s_nop 1")
        a("v_add_f32 v30, v30, v31")
        a("v_mov_b32 v31, v30")
        a("s_nop 1")
        a("v_permlane32_swap_b32 v30, v31")
        a("s_nop 1")
        a("v_add_f32 v30, v30, v31")
        a(f"v_mul_f32 v30, 0x{f32bits(-math.log2(math.e)):08x}, v30")
        a("v_exp_f32 v30, v30")
        a("s_nop 0")
        a("v_add_f32 v30, 1.0, v30")
        a("v_rcp_f32 v30, v30")
        a("s_nop 0")
        a("v_sub_f32 v31, 1.0, v30")
        a("v_cmp_le_u32 vcc, 48, v1")
        a("s_nop 1")
        a("v_cndmask_b32 v30, v30, v31, vcc")
        O = 32
        for i in range(8): a(f"s_add_u32 s{T+3+i}, s{T+1}, {i*16*2560}")
        def f_issue(i):
            a(f"buffer_load_dwordx4 {vr(O+4*i,4)}, v6, {srd('WS')}, s{T+3+i} offen sc1")
        def f_check(i):
            a(f"v_max3_u32 v8, v{O+4*i}, v{O+4*i+1}, v{O+4*i+2}")
            a(f"v_max_u32 v8, v8, v{O+4*i+3}")
            a("v_cmp_eq_u32 vcc, -1, v8")
        self.gpoll(8, f_issue, f_check, masks=[24,26,28,30,32,34,36,38])
        self.stamp(9)
        self.stamp_val(18, S_CNT)
        for k in range(4):
            a(f"v_add_f32 v{O+k}, v{O+k}, v{O+4+k}")
            a(f"v_add_f32 v{O+8+k}, v{O+8+k}, v{O+12+k}")
            a(f"v_add_f32 v{O+16+k}, v{O+16+k}, v{O+20+k}")
            a(f"v_add_f32 v{O+24+k}, v{O+24+k}, v{O+28+k}")
        for k in range(4):
            a(f"v_add_f32 v{O+k}, v{O+k}, v{O+8+k}")
            a(f"v_add_f32 v{O+16+k}, v{O+16+k}, v{O+24+k}")
        for k in range(4): a(f"v_add_f32 v{O+k}, v{O+k}, v{O+16+k}")
        for k in range(4): a(f"v_mul_f32 v{O+k}, v{O+k}, v30")
        a("s_nop 1")
        a("v_permlane32_swap_b32 v32, v34")
        a("v_permlane32_swap_b32 v33, v35")
        a("s_nop 1")
        a("v_add_f32 v32, v32, v34")
        a("v_add_f32 v33, v33, v35")
        a("s_nop 1")
        a("v_permlane16_swap_b32 v32, v33")
        a("s_nop 1")
        a("v_add_f32 v32, v32, v33")
        a("s_nop 1")
        a("v_add_f32_dpp v32, v32, v32 row_ror:8 row_mask:0xf bank_mask:0xf")
        a("s_nop 1")
        a("v_add_f32_dpp v32, v32, v32 row_ror:4 row_mask:0xf bank_mask:0xf")
        a("s_nop 0")
        a("v_cvt_pk_bf16_f32 v32, v32, v32")
        a(f"buffer_store_short v32, v11, {srd('OUT')}, s{T+2} offen")
        noep = a.newlabel("noep")
        self.skip_if(f"s_cmp_lg_u32 s{T}, 0", noep)
        a(f"v_mov_b32 v6, s{S_EP}")
        a("v_mov_b32 v7, 0")
        a("s_mov_b64 exec, 1")
        a(f"buffer_store_dword v6, v7, {srd('WS')}, 0 offen sc1")
        a("s_mov_b64 exec, -1")
        a.label(noep)
        self.stamp(10)
        a.label("L_bend")

    def build(self):
        a = self.a
        self.prologue()
        self.bset_front()
        a("s_branch L_bs")
        a.label("L_aset")
        self.aset_front()
        a("s_branch L_aback")
        a.label("L_bs")
        self.bset_s_phase()
        self.bset_pv_phase()
        a("s_branch L_bfin")
        a.label("L_aback")
        self.aset_back()
        self.stamp_flush()
        a("s_branch L_exit")
        a.label("L_bfin")
        self.bset_final()
        self.stamp_flush()
        a.label("L_exit")
        a("s_endpgm")
        hdr = f"""; generated by dev/gen2.py
; @launch grid=(256,1,1) block=(512,1,1) lds=163840
.amdgcn_target "amdgcn-amd-amdhsa--gfx950"
.text
.globl {NAME}_kernel
.p2align 8
.type {NAME}_kernel,@function
{NAME}_kernel:
"""
        ftr = f""".section .rodata,"a"
.p2align 6
.amdhsa_kernel {NAME}_kernel
  .amdhsa_next_free_vgpr 256
  .amdhsa_next_free_sgpr 102
  .amdhsa_accum_offset 256
  .amdhsa_group_segment_fixed_size 0
  .amdhsa_kernarg_size 112
  .amdhsa_user_sgpr_count 2
  .amdhsa_user_sgpr_kernarg_segment_ptr 1
  .amdhsa_system_sgpr_workgroup_id_x 1
.end_amdhsa_kernel
"""
        return hdr + a.text() + ftr

if __name__ == "__main__":
    out = sys.argv[1] if len(sys.argv) > 1 else "k.s"
    kw = {}
    for arg in sys.argv[2:]:
        if arg == "--stamps": kw["stamps"] = True
        elif arg.startswith("--"):
            k, v = arg[2:].split("="); kw[k] = int(v)
    open(out, "w").write(Gen(**kw).build())
```

```python
import sys, math, struct

NAME = "gated_mix__compressed_kv_cla__glu_gated_glu__decode"

WS_EPOCH = 0
WS_CF    = 0x400
WS_QA    = 0x10000
WS_QPG   = 0x20000
WS_QPL   = 0x80000
WS_PBG   = 0x100000
WS_PBL   = 0x1A0000
WS_ML    = 0x240000
WS_OUTP  = 0x250000
WS_OP    = 0x2A0000
WS_ST    = 0x440000
WS_SIZE  = 0x480000
PBS = 2560

S_W, S_X, S_LI, S_H, S_J4, S_EP = 3, 4, 5, 6, 7, 8
S_LB, S_BLK, S_G, S_S = 10, 11, 12, 13
S_WSCF = 14
SRD = dict(X=16, CKV=20, WQ=24, WUK=28, WUV=32, WO=36, WG=44, WU=48, WD=52, GW=56, OUT=60, WS=64)
SRD_SIZE = dict(X=1280, CKV=12582912, WQ=7864320, WUK=9437184, WUV=9437184, WO=7864320,
                WG=1966080, WU=1966080, WD=1966080, GW=1280, OUT=1280, WS=WS_SIZE)
KARG = dict(X=0, CKV=8, WQ=16, WUK=24, WUV=32, WO=40, WG=56, WU=64, WD=72, GW=80, OUT=88, WS=104)
S_M8 = 72
S_T = 74
S_CNT = 96
S_PB = 97
S_PM = 15
S_STAMP = 98
POLL_LIMIT = 100000

class Asm:
    def __init__(self):
        self.L = []; self.uid = 0
    def __call__(self, s):
        for line in s.strip("\n").split("\n"):
            self.L.append("    " + line.strip())
    def label(self, n): self.L.append(n + ":")
    def newlabel(self, base):
        self.uid += 1
        return f"L_{base}_{self.uid}"
    def text(self):
        import re
        out = []
        for line in self.L:
            t = line.strip()
            if t.startswith("v_cndmask") and t.endswith("vcc"):
                st = 0; k = len(out) - 1; found = False
                while k >= 0 and st < 2:
                    p = out[k].strip()
                    if p.endswith(":"): break
                    if p.startswith("v_cmp") and "vcc" in p:
                        found = True; break
                    m = re.match(r"s_nop (\d+)", p)
                    st += int(m.group(1)) + 1 if m else 1
                    k -= 1
                if found and st < 2:
                    out.append(f"    s_nop {1 - st}")
            out.append(line)
        return "\n".join(out) + "\n"

def srd(n):
    b = SRD[n]; return f"s[{b}:{b+3}]"
def vr(b, n=1):
    return f"v{b}" if n == 1 else f"v[{b}:{b+n-1}]"
def f32bits(x):
    return struct.unpack("<I", struct.pack("<f", x))[0]

class Gen:
    def __init__(self, stamps=False, dbgout=0, s_trig=0, wq_pf=0, sde=0, sde_win=24, perm=0, qa_order=0, early_frags=0, fin1=1, masked=1, qa_early=0, code_pf=17, tlb_warm=0, tlb_shift=21, nt_front=False, nt_ckv=False, nt_back=False, local=True, lperiod=8, a_delay=1, qa_ack=0, exp_linear=0, a_win=63, s_win=63, pv_win=63, mlpoll=2, exp_nobulk=0, a_probe=0, s_probe=0, exp_noclear=0, exp_nowuk=0):
        self.a = Asm()
        self.stamps = stamps
        self.NTF = " nt" if nt_front else ""
        self.NTC = " nt" if nt_ckv else ""
        self.NTB = " nt" if nt_back else ""
        self.local = local
        self.a_delay = a_delay
        self.qa_ack = qa_ack
        self.code_pf = code_pf
        self.dbgout = dbgout
        self.s_trig = s_trig
        self.wq_pf = wq_pf
        self.sde = sde; self.sde_win = sde_win
        self.perm = perm
        self.qa_order = qa_order
        self.early_frags = early_frags; self.fin1 = fin1
        self.masked = masked; self.qa_early = qa_early
        self.tlb_warm = tlb_warm; self.tlb_shift = tlb_shift
        self.exp_noclear = exp_noclear; self.exp_nowuk = exp_nowuk
        self.a_probe = a_probe; self.s_probe = s_probe
        self.exp_nobulk = exp_nobulk
        self.a_win = a_win; self.s_win = s_win; self.pv_win = pv_win; self.mlpoll = mlpoll
        self.exp_linear = exp_linear
        self.lperiod = lperiod
        self.L_Q = 0; self.L_QS = 512; self.L_F = 3072; self.L_FLAG = 2048; self.L_X = 4096
        self.L_S = 8192; self.L_PA = 106496; self.L_RED = 57344; self.L_PR = 90112
        self.L_O = 4096; self.L_C = 12288; self.L_CB = 14336; self.L_R = 16384
        self.PVO = 212

    def stamp(self, idx):
        if not self.stamps: return
        a = self.a
        a(f"s_memrealtime s[{S_STAMP}:{S_STAMP+1}]")
        a("s_waitcnt lgkmcnt(0)")
        a(f"v_writelane_b32 v255, s{S_STAMP}, {idx}")
    def stamp_val(self, idx, sreg):
        if not self.stamps: return
        self.a(f"s_add_u32 s9, s{sreg}, 1")
        self.a(f"v_writelane_b32 v255, s9, {idx}")
    def stamp_flush(self):
        if not self.stamps: return
        a = self.a
        if self.dbgout:
            sk = a.newlabel("dbo")
            a(f"s_and_b32 s9, s2, 127")
            a(f"s_lshl_b32 s9, s9, 3")
            a(f"s_add_u32 s9, s9, s{S_W}")
            self.skip_if(f"s_cmp_lg_u32 s9, {(self.dbgout-1)*8}", sk)
            a("s_load_dwordx2 s[40:41], s[0:1], 96")
            a("s_mov_b32 s42, 256")
            a("s_mov_b32 s43, 0x00020000")
            selB = [23, 13, 4, 5, 6, 7, 9, 10]; selA = [23, 2, 3, 5, 6, 7, 8, 8]
            a("s_cmp_lt_u32 s2, 128")
            a("s_cselect_b32 s9, 0, 32")
            for k in range(8):
                a(f"v_readlane_b32 s44, v255, {selB[k]}")
                a(f"v_readlane_b32 s45, v255, {selA[k]}")
                a("s_cmp_lt_u32 s2, 128")
                a("s_cselect_b32 s44, s44, s45")
                a(f"v_writelane_b32 v252, s44, {k}")
            a("v_lshlrev_b32 v253, 2, v1")
            a("v_add_u32 v253, s9, v253")
            a("s_waitcnt lgkmcnt(0)")
            a("s_mov_b64 exec, 0xff")
            a("buffer_store_dword v252, v253, s[40:43], 0 offen")
            a("s_mov_b64 exec, -1")
            a.label(sk)
            return
        a(f"s_lshl_b32 s{S_T+20}, s2, 3")
        a(f"s_add_u32 s{S_T+20}, s{S_T+20}, s{S_W}")
        a(f"s_lshl_b32 s{S_T+20}, s{S_T+20}, 7")
        a(f"s_add_u32 s{S_T+20}, s{S_T+20}, {WS_ST}")
        a("v_lshlrev_b32 v252, 2, v1")
        a("s_mov_b32 exec_lo, -1")
        a("s_mov_b32 exec_hi, 0")
        a(f"buffer_store_dword v255, v252, {srd('WS')}, s{S_T+20} offen")
        a("s_mov_b64 exec, -1")

    def treduce8(self, acc, t0, t1):
        a = self.a
        a("s_nop 2")
        for k in range(4): a(f"v_permlane32_swap_b32 v{acc+k}, v{acc+k+4}")
        a("s_nop 1")
        for k in range(4): a(f"v_add_f32 v{acc+k}, v{acc+k}, v{acc+k+4}")
        a("s_nop 1")
        for k in range(2): a(f"v_permlane16_swap_b32 v{acc+k}, v{acc+k+2}")
        a("s_nop 1")
        for k in range(2): a(f"v_add_f32 v{acc+k}, v{acc+k}, v{acc+k+2}")
        a("s_nop 0")
        a(f"v_cndmask_b32 v{t0}, v{acc}, v{acc+1}, s[{S_M8}:{S_M8+1}]")
        a(f"v_cndmask_b32 v{t1}, v{acc+1}, v{acc}, s[{S_M8}:{S_M8+1}]")
        a("s_nop 1")
        a(f"v_add_f32_dpp v{acc}, v{t1}, v{t0} row_ror:8 row_mask:0xf bank_mask:0xf")

    def skip_if(self, cmp, label):
        self.a(cmp); self.a(f"s_cbranch_scc1 {label}")

    def poll_begin(self, lbase=None, gbase=None):
        a = self.a
        l = a.newlabel("poll")
        a(f"s_mov_b32 s{S_CNT}, 0")
        a.label(l)
        if lbase is not None:
            if self.local:
                a(f"s_and_b32 s9, s{S_CNT}, {self.lperiod-1}")
                a(f"s_cmp_eq_u32 s9, {self.lperiod-1}")
                a(f"s_cselect_b32 s{S_PB}, s{gbase}, s{lbase}")
            else:
                a(f"s_mov_b32 s{S_PB}, s{gbase}")
        return l
    def poll_end(self, l, vbad):
        a = self.a
        ok = a.newlabel("ok")
        a(f"v_cmp_ne_u32 vcc, 0, v{vbad}")
        a(f"s_cbranch_vccz {ok}")
        a(f"s_add_u32 s{S_CNT}, s{S_CNT}, 1")
        a(f"s_cmp_lt_u32 s{S_CNT}, {POLL_LIMIT}")
        a(f"s_cbranch_scc1 {l}")
        a.label(ok)

    def gpoll(self, n, issue, check, pre=None, first_issued=False, masks=None):
        a = self.a
        top = a.newlabel("gp"); done = a.newlabel("gpd")
        if not self.masked: masks = None
        a(f"s_mov_b32 s{S_PM}, {(1<<n)-1}")
        a(f"s_mov_b32 s{S_CNT}, 0")
        if masks:
            for m in masks: a(f"s_mov_b64 s[{m}:{m+1}], -1")
        if first_issued:
            chk = a.newlabel("gpc")
            a(f"s_branch {chk}")
        a.label(top)
        if pre: pre()
        for i in range(n):
            sk = a.newlabel("gi")
            a(f"s_bitcmp0_b32 s{S_PM}, {i}")
            a(f"s_cbranch_scc1 {sk}")
            if masks: a(f"s_mov_b64 exec, s[{masks[i]}:{masks[i]+1}]")
            issue(i)
            a.label(sk)
        if masks: a("s_mov_b64 exec, -1")
        if first_issued: a.label(chk)
        a("s_waitcnt vmcnt(0)")
        for i in range(n):
            sk = a.newlabel("gc")
            a(f"s_bitcmp0_b32 s{S_PM}, {i}")
            a(f"s_cbranch_scc1 {sk}")
            check(i)
            if masks: a(f"s_mov_b64 s[{masks[i]}:{masks[i]+1}], vcc")
            a(f"s_cbranch_vccnz {sk}")
            a(f"s_bitset0_b32 s{S_PM}, {i}")
            a.label(sk)
        a(f"s_cmp_eq_u32 s{S_PM}, 0")
        a(f"s_cbranch_scc1 {done}")
        a(f"s_add_u32 s{S_CNT}, s{S_CNT}, 1")
        a(f"s_cmp_lt_u32 s{S_CNT}, {POLL_LIMIT}")
        a(f"s_cbranch_scc1 {top}")
        a.label(done)

    def lds_signal(self, base, widx_mask=3):
        a = self.a
        a(f"s_and_b32 s9, s{S_W}, {widx_mask}")
        a("s_lshl_b32 s9, s9, 2")
        a(f"s_add_u32 s9, s9, {self.L_FLAG+base}")
        a("v_mov_b32 v6, s9")
        a("v_mov_b32 v7, 1")
        a("ds_write_b32 v6, v7")
    def lds_wait(self, base, vt):
        a = self.a
        a(f"v_mov_b32 v6, {self.L_FLAG+base}")
        l = self.poll_begin()
        a(f"ds_read_b128 {vr(vt,4)}, v6")
        a("s_waitcnt lgkmcnt(0)")
        a(f"v_and_b32 v{vt}, v{vt}, v{vt+1}")
        a(f"v_and_b32 v{vt+2}, v{vt+2}, v{vt+3}")
        a(f"v_and_b32 v{vt}, v{vt}, v{vt+2}")
        a(f"v_xor_b32 v{vt}, 1, v{vt}")
        self.poll_end(l, vt)

    def cf_check(self, vb):
        a = self.a
        a(f"v_lshlrev_b32 v{vb+4}, 4, v1")
        l = self.poll_begin()
        a(f"buffer_load_dwordx4 {vr(vb,4)}, v{vb+4}, {srd('WS')}, s{S_WSCF} offen sc1")
        a("s_waitcnt vmcnt(0)")
        for k in range(4): a(f"v_xor_b32 v{vb+k}, s{S_EP}, v{vb+k}")
        a(f"v_or3_b32 v{vb}, v{vb}, v{vb+1}, v{vb+2}")
        a(f"v_or_b32 v{vb}, v{vb}, v{vb+3}")
        self.poll_end(l, vb)

    def mk_srd(self, n):
        a = self.a; b = SRD[n]
        if n != "WS":
            src = 76 + KARG[n] // 4
            a(f"s_mov_b64 s[{b}:{b+1}], s[{src}:{src+1}]")
        a(f"s_mov_b32 s{b+2}, {SRD_SIZE[n]}")
        a(f"s_mov_b32 s{b+3}, 0x00020000")

    def prologue(self):
        a = self.a; T = S_T
        if self.stamps: a("s_memrealtime s[42:43]")
        a("s_cmp_ge_u32 s2, 256")
        a("s_cbranch_scc1 L_exit")
        if self.perm == 1:
            a("s_lshr_b32 s3, s2, 3")
            a("s_and_b32 s2, s2, 7")
            a("s_lshl_b32 s2, s2, 5")
            a("s_or_b32 s2, s2, s3")
        elif self.perm:
            a(f"s_mul_i32 s2, s2, {self.perm}")
            a("s_and_b32 s2, s2, 255")
        a("s_load_dwordx16 s[76:91], s[0:1], 0")
        a("s_load_dwordx8 s[92:99], s[0:1], 64")
        a("s_load_dwordx2 s[64:65], s[0:1], 104")
        a("v_lshrrev_b32 v2, 6, v0")
        a("v_and_b32 v1, 63, v0")
        a(f"v_readfirstlane_b32 s{S_W}, v2")
        a(f"s_lshr_b32 s{S_LI}, s2, 3")
        a(f"s_and_b32 s{S_LI}, s{S_LI}, 15")
        if self.code_pf:
            npf = a.newlabel("npf"); lp = a.newlabel("pfl")
            a(f"s_and_b32 s9, s{S_LI}, 7")
            a("s_lshl_b32 s9, s9, 3")
            a(f"s_add_u32 s9, s9, s{S_W}")
            self.skip_if("s_cmp_lg_u32 s9, 7", npf)
            a("s_getpc_b64 s[40:41]")
            a("v_lshlrev_b32 v252, 4, v1")
            a(f"s_mov_b32 s9, {self.code_pf}")
            a.label(lp)
            a("global_load_dwordx4 v[248:251], v252, s[40:41]")
            a("v_add_u32 v252, 1024, v252")
            a("s_sub_u32 s9, s9, 1")
            a("s_cmp_lg_u32 s9, 0")
            a(f"s_cbranch_scc1 {lp}")
            a.label(npf)
        a(f"s_and_b32 s{S_X}, s2, 7")
        a(f"s_and_b32 s9, s{S_LI}, 3")
        a(f"s_lshl_b32 s{S_H}, s{S_X}, 2")
        a(f"s_add_u32 s{S_H}, s{S_H}, s9")
        a(f"s_lshr_b32 s{S_J4}, s{S_LI}, 2")
        a("v_lshrrev_b32 v2, 3, v1")
        a("v_and_b32 v3, 7, v1")
        a("v_mul_u32_u24 v4, 12288, v2")
        a("v_lshl_add_u32 v4, v3, 4, v4")
        a("s_cmp_lt_u32 s2, 128")
        a("s_cbranch_scc0 L_apre")
        a(f"s_cmp_ge_u32 s{S_W}, 3")
        a("s_cselect_b32 s100, 1, 0")
        a("s_mul_i32 s101, s100, 3")
        a(f"s_sub_u32 s101, s{S_W}, s101")
        a(f"s_mul_i32 s44, s{S_J4}, 160")
        a("s_mul_i32 s45, s100, 80")
        a("s_add_u32 s44, s44, s45")
        a("s_lshl_b32 s46, s44, 1")
        a("s_mul_i32 s44, s44, 12288")
        a(f"s_mul_i32 s45, s{S_H}, 384")
        a("s_add_u32 s44, s44, s45")
        a("s_lshl_b32 s45, s101, 7")
        a("s_add_u32 s44, s44, s45")
        a(f"s_mov_b32 s{SRD['WQ']+2}, {SRD_SIZE['WQ']}")
        a(f"s_mov_b32 s{SRD['WQ']+3}, 0x00020000")
        a("s_waitcnt lgkmcnt(0)")
        a(f"s_mov_b64 s[{SRD['WQ']}:{SRD['WQ']+1}], s[80:81]")
        nl = a.newlabel("bnl")
        self.skip_if(f"s_cmp_ge_u32 s{S_W}, 6", nl)
        for i in range(10):
            a(f"buffer_load_dwordx4 {vr(20+4*i,4)}, v4, {srd('WQ')}, s44 offen{self.NTF}")
            if i < 9: a("s_add_u32 s44, s44, 98304")
        a.label(nl)
        a("s_branch L_pre2")
        a.label("L_apre")
        a(f"s_lshr_b32 s100, s{S_W}, 1")
        a(f"s_and_b32 s101, s{S_W}, 1")
        a(f"s_mul_i32 s44, s{S_J4}, 192")
        a("s_mul_i32 s45, s100, 48")
        a("s_add_u32 s44, s44, s45")
        a("s_lshl_b32 s45, s101, 3")
        a("s_add_u32 s44, s44, s45")
        a("s_mul_i32 s44, s44, 12288")
        a(f"s_mul_i32 s45, s{S_H}, 384")
        a("s_add_u32 s44, s44, s45")
        a(f"s_mov_b32 s{SRD['WUK']+2}, {SRD_SIZE['WUK']}")
        a(f"s_mov_b32 s{SRD['WUK']+3}, 0x00020000")
        a("s_waitcnt lgkmcnt(0)")
        a(f"s_mov_b64 s[{SRD['WUK']}:{SRD['WUK']+1}], s[82:83]")
        if self.wq_pf:
            a(f"s_mov_b64 s[{SRD['WQ']}:{SRD['WQ']+1}], s[80:81]")
            a(f"s_mov_b32 s{SRD['WQ']+2}, {SRD_SIZE['WQ']}")
            a(f"s_mov_b32 s{SRD['WQ']+3}, 0x00020000")
            a(f"s_mul_i32 s46, s{S_J4}, 160")
            a(f"s_lshl_b32 s47, s{S_W}, 3")
            a("s_add_u32 s46, s46, s47")
            a(f"s_add_u32 s46, s46, 80")
            a("s_mul_i32 s46, s46, 12288")
            a("s_add_u32 s46, s46, s45")
            for t in range(3):
                a(f"buffer_load_dwordx4 v[100:103], v4, {srd('WQ')}, s46 offen offset:{t*128}")
            a(f"s_add_u32 s46, s46, {64*12288}")
            npf2 = a.newlabel("npf2")
            self.skip_if(f"s_cmp_ge_u32 s{S_W}, 2", npf2)
            for t in range(3):
                a(f"buffer_load_dwordx4 v[100:103], v4, {srd('WQ')}, s46 offen offset:{t*128}")
            a.label(npf2)
            if self.wq_pf == 3: a("s_waitcnt vmcnt(0)")
        for f in range(3):
            for t in range(3):
                a(f"buffer_load_dwordx4 {vr(20+(f*3+t)*4,4)}, v4, {srd('WUK')}, s44 offen offset:{t*128}{self.NTF}")
            if f < 2: a("s_add_u32 s44, s44, 196608")
        a.label("L_pre2")
        a(f"s_load_dword s{S_EP}, s[64:65], {WS_EPOCH}")
        a(f"s_mov_b32 s{T}, s100")
        a(f"s_mov_b32 s{T+1}, s101")
        a(f"s_mov_b32 s{S_PM}, s46")
        for n in SRD: self.mk_srd(n)
        if self.stamps:
            a("v_mov_b32 v255, 0")
            self.stamp(0)
            a("v_writelane_b32 v255, s42, 23")
        a(f"s_mov_b32 s{S_M8}, 0xff00ff00")
        a(f"s_mov_b32 s{S_M8+1}, 0xff00ff00")
        a(f"s_mov_b32 s{S_WSCF}, {WS_CF}")
        a("s_cmp_lt_u32 s2, 128")
        a("s_cbranch_scc0 L_aset")

    def aset_front(self):
        a = self.a; T = S_T
        W0 = 20; QF = 56; ACC = 68
        a(f"s_lshl_b32 s{T+10}, s{S_X}, 4")
        a(f"s_add_u32 s{T+10}, s{T+10}, s{S_LI}")
        a(f"s_mul_i32 s{T+10}, s{T+10}, 2560")
        a(f"s_add_u32 s{T+10}, s{T+10}, {WS_OUTP}")
        a("v_mov_b32 v76, -1\nv_mov_b32 v77, -1\nv_mov_b32 v78, -1\nv_mov_b32 v79, -1")
        a("v_lshlrev_b32 v80, 4, v0")
        a("v_mov_b32 v81, 0x7fffffff")
        a("v_cmp_gt_u32 vcc, 160, v0")
        a("s_nop 1")
        a("v_cndmask_b32 v80, v81, v80, vcc")
        a(f"buffer_store_dwordx4 v[76:79], v80, {srd('WS')}, s{T+10} offen sc1")
        a("v_lshlrev_b32 v5, 2, v1")
        a("v_mov_b32 v6, 0")
        a(f"ds_write_b32 v5, v6 offset:{self.L_CB}")
        a(f"ds_write_b32 v5, v6 offset:{self.L_CB+256}")
        a(f"s_mul_i32 s{T+5}, s{S_H}, {8*1536}")
        a(f"s_add_u32 s{T+6}, s{T+5}, {WS_QPL}")
        a(f"s_add_u32 s{T+5}, s{T+5}, {WS_QPG}")
        a("s_waitcnt vmcnt(0) lgkmcnt(0)")
        a(f"s_add_u32 s{S_EP}, s{S_EP}, 1")
        self.stamp(1)
        skip = a.newlabel("e1skip")
        self.skip_if(f"s_cmp_ge_u32 s{S_W}, 3", skip)
        a("v_lshlrev_b32 v5, 3, v0")
        G = 84
        l = self.poll_begin(T+6, T+5)
        for p in range(8):
            a(f"buffer_load_dwordx2 {vr(G+2*p,2)}, v5, {srd('WS')}, s{S_PB} offen offset:{(p%2)*1536} sc1")
            if p % 2 == 1 and p < 7: a(f"s_add_u32 s{S_PB}, s{S_PB}, 3072")
        a("s_waitcnt vmcnt(0)")
        a(f"v_xor_b32 v6, s{S_EP}, v{G+1}")
        for p in range(1, 8):
            a(f"v_xor_b32 v7, s{S_EP}, v{G+2*p+1}")
            a("v_or_b32 v6, v6, v7")
        self.poll_end(l, 6)
        self.stamp_val(16, S_CNT)
        for p in range(1, 8): a(f"v_add_f32 v{G}, v{G}, v{G+2*p}")
        a(f"v_cvt_pk_bf16_f32 v6, v{G}, v{G}")
        a("v_lshlrev_b32 v7, 1, v0")
        a(f"ds_write_b16 v7, v6 offset:{self.L_Q}")
        a("s_waitcnt lgkmcnt(0)")
        a.label(skip)
        a("v_lshlrev_b32 v5, 4, v3")
        a(f"s_lshl_b32 s{T+7}, s{S_W}, 6")
        a("v_lshlrev_b32 v10, 1, v2")
        a(f"v_add_u32 v10, s{T+7}, v10")
        a("v_lshlrev_b32 v6, 4, v1")
        a("v_mov_b32 v7, 4")
        a("v_cmp_eq_u32 vcc, 3, v1")
        a("v_mov_b32 v8, 12")
        a("v_mov_b32 v9, 16")
        a("v_cndmask_b32 v6, v6, v8, vcc")
        a("v_cndmask_b32 v7, v7, v9, vcc")
        a("v_and_b32 v6, 63, v6")
        a(f"v_add_u32 v11, s{T+7}, v6")
        a("v_add_u32 v12, v11, v7")
        a("v_add_u32 v13, v12, v7")
        a(f"s_lshl_b32 s{T+8}, s{S_J4}, 2")
        a(f"s_add_u32 s{T+8}, s{T+8}, s{T}")
        a(f"s_lshl_b32 s{T+8}, s{T+8}, 12")
        a(f"s_lshl_b32 s{T+9}, s{T+1}, 9")
        a(f"s_add_u32 s{T+8}, s{T+8}, s{T+9}")
        a(f"s_lshl_b32 s{T+9}, s{S_H}, 4")
        a(f"s_add_u32 s{T+8}, s{T+8}, s{T+9}")
        a(f"s_add_u32 s{T+8}, s{T+8}, {WS_QA}")
        a("v_lshlrev_b32 v14, 10, v1")
        a("v_mov_b32 v7, 0x7fffffff")
        a("v_cmp_gt_u32 vcc, 4, v1")
        a(f"v_mov_b32 v75, s{S_EP}")
        a("v_cndmask_b32 v14, v7, v14, vcc")
        for f in range(3): a(f"v_mov_b32 v{ACC+f}, 0")
        a("s_barrier")
        self.stamp(2)
        for t in range(3):
            a(f"ds_read_b128 {vr(QF+4*t,4)}, v5 offset:{self.L_Q + t*128}")
        for t in range(3):
            a(f"s_waitcnt lgkmcnt({2-t})")
            for k in range(4):
                for f in range(3):
                    a(f"v_dot2c_f32_bf16 v{ACC+f}, v{W0+(f*3+t)*4+k}, v{QF+4*t+k}")
        a("s_nop 2")
        for ctrl in ["quad_perm:[1,0,3,2]", "quad_perm:[2,3,0,1]", "row_half_mirror"]:
            for f in range(3):
                a(f"v_add_f32_dpp v{ACC+f}, v{ACC+f}, v{ACC+f} {ctrl} row_mask:0xf bank_mask:0xf")
        for f in range(3): a(f"v_cvt_pk_bf16_f32 v{ACC+f}, v{ACC+f}, v{ACC+f}")
        for f in range(3): a(f"ds_write_b16 v10, v{ACC+f} offset:{self.L_QS + f*16}")
        a("s_waitcnt lgkmcnt(0)")
        a(f"ds_read_b32 v72, v11 offset:{self.L_QS}")
        a(f"ds_read_b32 v73, v12 offset:{self.L_QS}")
        a(f"ds_read_b32 v74, v13 offset:{self.L_QS}")
        a("s_waitcnt lgkmcnt(0)")
        a(f"buffer_store_dwordx4 v[72:75], v14, {srd('WS')}, s{T+8} offen sc1")
        self.stamp(3)
        if self.qa_ack: a("s_waitcnt vmcnt(0)")
        a("s_barrier")

    def wo_lane_offsets(self):
        a = self.a
        a("v_mul_u32_u24 v6, 52429, v0")
        a("v_lshrrev_b32 v6, 22, v6")
        a("v_mul_u32_u24 v7, 80, v6")
        a("v_sub_u32 v7, v0, v7")
        a("v_mul_u32_u24 v5, 1280, v6")
        a("v_lshl_add_u32 v5, v7, 4, v5")
        a("v_mov_b32 v8, 0x7fffffff")
        a("v_cmp_gt_u32 vcc, 480, v0")
        a("s_nop 1")
        a("v_cndmask_b32 v5, v8, v5, vcc")

    def preperm(self, W0, npairs, t0):
        a = self.a
        a("s_mov_b32 s94, 0x05040100")
        a("s_mov_b32 s95, 0x07060302")
        for p in range(npairs):
            for k in range(4):
                r0 = W0 + 8*p + k; r1 = r0 + 4
                a(f"v_perm_b32 v{t0}, v{r1}, v{r0}, s94")
                a(f"v_perm_b32 v{r1}, v{r1}, v{r0}, s95")
                a(f"v_mov_b32 v{r0}, v{t0}")

    def gemv_pairs(self, W0, npairs, CO, ACC):
        a = self.a
        for p in range(npairs):
            for k in range(4):
                a(f"v_dot2c_f32_bf16 v{ACC+2*k}, v{W0+8*p+k}, v{CO+p}")
            for k in range(4):
                a(f"v_dot2c_f32_bf16 v{ACC+2*k+1}, v{W0+8*p+4+k}, v{CO+p}")

    def out_reduce_publish(self, ACC, outp_soff):
        a = self.a
        a("s_nop 2")
        a(f"ds_write_b128 v129, {vr(ACC,4)} offset:{self.L_R}")
        a(f"ds_write_b128 v129, {vr(ACC+4,4)} offset:{self.L_R+16}")
        a("s_waitcnt lgkmcnt(0)")
        a("s_barrier")
        skip = a.newlabel("go")
        self.skip_if(f"s_cmp_ge_u32 s{S_W}, 3", skip)
        R = 132
        for sl in range(6):
            a(f"ds_read_b128 {vr(R+4*sl,4)}, v131 offset:{self.L_R+sl*2560}")
        a("s_waitcnt lgkmcnt(0)")
        for k in range(4):
            a(f"v_add_f32 v{R+k}, v{R+k}, v{R+4+k}")
            a(f"v_add_f32 v{R+8+k}, v{R+8+k}, v{R+12+k}")
            a(f"v_add_f32 v{R+16+k}, v{R+16+k}, v{R+20+k}")
        for k in range(4): a(f"v_add_f32 v{R+k}, v{R+k}, v{R+8+k}")
        for k in range(4): a(f"v_add_f32 v{R+k}, v{R+k}, v{R+16+k}")
        for k in range(4): a(f"v_min_u32 v{R+k}, 0xfffffffe, v{R+k}")
        a(f"buffer_store_dwordx4 {vr(R,4)}, v130, {srd('WS')}, s{outp_soff} offen sc1")
        a.label(skip)

    def write_pairs(self, vsrc, t0, t1, nvalid):
        a = self.a
        a(f"v_lshlrev_b32 v{t0}, 2, v1")
        a(f"v_add_u32 v{t1}, {self.L_CB - 24 + 2}, v{t0}")
        a(f"v_add_u32 v{t0}, {self.L_CB}, v{t0}")
        a(f"v_mov_b32 v{t0+2}, {self.L_CB + 500}")
        a("v_cmp_gt_u32 vcc, 6, v1")
        a("s_nop 1")
        a(f"v_cndmask_b32 v{t1}, v{t1}, v{t0+2}, vcc")
        if nvalid < 64:
            a(f"v_cmp_le_u32 vcc, {nvalid}, v1")
            a("s_nop 1")
            a(f"v_cndmask_b32 v{t1}, v{t1}, v{t0+2}, vcc")
            a(f"v_cndmask_b32 v{t0}, v{t0}, v{t0+2}, vcc")
        a(f"ds_write_b16 v{t0}, v{vsrc}")
        a(f"ds_write_b16 v{t1}, v{vsrc}")

    def out_addr_regs(self):
        a = self.a
        a("v_mul_u32_u24 v129, 2560, v6")
        a("v_lshl_add_u32 v129, v7, 5, v129")
        a("v_lshlrev_b32 v131, 4, v0")
        a("v_mov_b32 v130, 0x7fffffff")
        a("v_cmp_gt_u32 vcc, 160, v0")
        a("s_nop 1")
        a("v_cndmask_b32 v130, v130, v131, vcc")

    def aset_back(self):
        a = self.a; T = S_T
        self.wo_lane_offsets()
        self.out_addr_regs()
        if self.exp_nobulk:
            a(f"s_lshl_b32 s{T+1}, s{S_H}, 7")
            a(f"s_add_u32 s{T+1}, s{T+1}, {WS_ML}")
            a("v_and_b32 v14, 15, v1")
            a("v_lshlrev_b32 v14, 3, v14")
            self.cf_check(132)
            l = self.poll_begin()
            a(f"buffer_load_dwordx2 v[116:117], v14, {srd('WS')}, s{T+1} offen sc1")
            a("s_waitcnt vmcnt(0)")
            a("v_max_u32 v15, v116, v117")
            a("v_cmp_eq_u32 vcc, -1, v15")
            a("s_nop 1")
            a("v_cndmask_b32 v15, 0, 1, vcc")
            a("s_sleep 4")
            self.poll_end(l, 15)
        self.skip_if(f"s_cmp_ge_u32 s{S_LI}, 12", "L_bbranch")
        WV = 20; WO = 68
        a(f"s_mul_i32 s{T}, s{S_W}, {96*12288}")
        a(f"s_mul_i32 s{T+1}, s{S_H}, 384")
        a(f"s_add_u32 s{T}, s{T}, s{T+1}")
        a(f"s_lshl_b32 s{T+1}, s{S_J4}, 7")
        a(f"s_add_u32 s{T}, s{T}, s{T+1}")
        for i in range(12):
            a(f"buffer_load_dwordx4 {vr(WV+4*i,4)}, v4, {srd('WUV')}, s{T} offen{self.NTB}")
            if i >= self.a_win: a(f"s_waitcnt vmcnt({self.a_win})")
            if i < 11: a(f"s_add_u32 s{T}, s{T}, 98304")
        a(f"s_mul_i32 s{T}, s{S_H}, 192")
        a(f"s_lshl_b32 s{T+1}, s{S_J4}, 6")
        a(f"s_add_u32 s{T}, s{T}, s{T+1}")
        a(f"s_mul_i32 s{T}, s{T}, 1280")
        for i in range(10):
            a(f"buffer_load_dwordx4 {vr(WO+4*i,4)}, v5, {srd('WO')}, s{T} offen{self.NTB}")
            if 12 + i >= self.a_win: a(f"s_waitcnt vmcnt({self.a_win})")
            a(f"s_add_u32 s{T}, s{T}, 7680")
        a("v_cmp_gt_u32 vcc, 4, v6")
        a("s_nop 1")
        a("v_cndmask_b32 v9, v8, v5, vcc")
        a(f"buffer_load_dwordx4 {vr(WO+40,4)}, v9, {srd('WO')}, s{T} offen{self.NTB}")
        for k in range(4): a(f"v_mov_b32 v{WO+44+k}, 0")
        self.stamp(4)
        a("v_cmp_le_u32 vcc, 24, v1")
        a("s_nop 1")
        a("v_cndmask_b32 v10, 0, 1, vcc")
        a("v_mul_u32_u24 v11, 24, v10")
        a("v_sub_u32 v11, v1, v11")
        a("v_mul_u32_u24 v12, 384, v10")
        a("v_lshl_add_u32 v12, v11, 4, v12")
        a(f"s_lshl_b32 s{T+2}, s{S_W}, 10")
        a(f"s_add_u32 s{T+2}, s{T+2}, {self.L_O}")
        a(f"v_add_u32 v13, s{T+2}, v12")
        a("v_cmp_gt_u32 vcc, 48, v1")
        a("v_lshlrev_b32 v16, 2, v2")
        a(f"v_add_u32 v16, s{T+2}, v16")
        a("v_cndmask_b32 v12, v8, v12, vcc")
        a(f"s_lshl_b32 s{T}, s{S_H}, 3")
        a(f"s_add_u32 s{T}, s{T}, s{S_W}")
        a(f"s_mul_i32 s{T}, s{T}, {16*384}")
        a(f"s_add_u32 s{T}, s{T}, {WS_OP}")
        a(f"s_lshl_b32 s{T+1}, s{S_H}, 7")
        a(f"s_add_u32 s{T+1}, s{T+1}, {WS_ML}")
        a("v_and_b32 v14, 15, v1")
        a("v_lshlrev_b32 v14, 3, v14")
        a("v_lshlrev_b32 v121, 2, v10")
        a("v_lshlrev_b32 v17, 5, v3")
        a("v_lshl_add_u32 v17, v2, 2, v17")
        a(f"s_lshl_b32 s{T+3}, s{S_W}, 8")
        a(f"v_add_u32 v17, s{T+3}, v17")
        a("v_lshlrev_b32 v18, 2, v6")
        a("v_lshlrev_b32 v172, 2, v1")
        a(f"v_add_u32 v173, {self.L_CB - 24 + 2}, v172")
        a(f"v_add_u32 v172, {self.L_CB}, v172")
        a(f"v_mov_b32 v174, {self.L_CB + 500}")
        a("v_cmp_gt_u32 vcc, 6, v1")
        a("s_nop 1")
        a("v_cndmask_b32 v173, v173, v174, vcc")
        a("s_waitcnt vmcnt(11)")
        self.preperm(WV, 6, 128)
        a("s_waitcnt vmcnt(0)")
        self.preperm(WO, 6, 128)
        self.stamp(5)
        self.cf_check(132)
        OPV = 132
        def e4_issue(i):
            if i == 8:
                a(f"buffer_load_dwordx2 v[116:117], v14, {srd('WS')}, s{T+1} offen sc1")
            else:
                so = T if i < 4 else T+2
                a(f"buffer_load_dwordx4 {vr(OPV+4*i,4)}, v12, {srd('WS')}, s{so} offen offset:{(i%4)*768} sc1")
        def e4_check(i):
            if i == 8:
                a("v_max_u32 v15, v116, v117")
            else:
                a(f"v_max3_u32 v15, v{OPV+4*i}, v{OPV+4*i+1}, v{OPV+4*i+2}")
                a(f"v_max_u32 v15, v15, v{OPV+4*i+3}")
            a("v_cmp_eq_u32 vcc, -1, v15")
        a(f"s_add_u32 s{T+2}, s{T}, 3072")
        if self.mlpoll == 1:
            l = self.poll_begin()
            a(f"buffer_load_dwordx2 v[116:117], v14, {srd('WS')}, s{T+1} offen sc1")
            a("s_waitcnt vmcnt(0)")
            a("v_max_u32 v15, v116, v117")
            a("v_cmp_eq_u32 vcc, -1, v15")
            a("s_nop 1")
            a("v_cndmask_b32 v15, 0, 1, vcc")
            self.poll_end(l, 15)
            self.gpoll(8, e4_issue, e4_check, masks=[20,22,24,26,28,30,44,46])
        elif self.mlpoll == 2:
            l = a.newlabel("mla"); ok = a.newlabel("mlo")
            a(f"s_mov_b32 s{S_CNT}, 0")
            a.label(l)
            a(f"buffer_load_dwordx2 v[116:117], v14, {srd('WS')}, s{T+1} offen sc1")
            a("s_waitcnt vmcnt(0)")
            a("v_max_u32 v15, v116, v117")
            a("v_cmp_ne_u32 vcc, -1, v15")
            a(f"s_cbranch_vccnz {ok}")
            a("s_sleep 2")
            a(f"s_add_u32 s{S_CNT}, s{S_CNT}, 1")
            a(f"s_cmp_lt_u32 s{S_CNT}, {POLL_LIMIT}")
            a(f"s_cbranch_scc1 {l}")
            a.label(ok)
            self.gpoll(9, e4_issue, e4_check, masks=[20,22,24,26,28,30,44,46,48])
        else:
            self.gpoll(9, e4_issue, e4_check)
        self.stamp(6)
        self.stamp_val(17, S_CNT)
        a("v_mov_b32 v118, v116")
        a("s_nop 1")
        for ctrl in ["quad_perm:[1,0,3,2]", "quad_perm:[2,3,0,1]", "row_half_mirror", "row_mirror"]:
            a(f"v_max_f32_dpp v118, v118, v118 {ctrl} row_mask:0xf bank_mask:0xf")
            a("s_nop 1")
        a("v_sub_f32 v119, v116, v118")
        a("v_exp_f32 v119, v119")
        a("s_nop 0")
        a("v_mul_f32 v120, v117, v119")
        WN = 164
        for i in range(8): a(f"ds_bpermute_b32 v{WN+i}, v121, v119 offset:{8*i}")
        for ctrl in ["quad_perm:[1,0,3,2]", "quad_perm:[2,3,0,1]", "row_half_mirror", "row_mirror"]:
            a(f"v_add_f32_dpp v120, v120, v120 {ctrl} row_mask:0xf bank_mask:0xf")
            a("s_nop 1")
        a("v_rcp_f32 v120, v120")
        a("s_waitcnt lgkmcnt(0)")
        for k in range(4): a(f"v_mul_f32 v{122+k}, v{WN}, v{OPV+k}")
        for i in range(1, 8):
            for k in range(4): a(f"v_fmac_f32 v{122+k}, v{WN+i}, v{OPV+4*i+k}")
        for k in range(4): a(f"v_mul_f32 v{122+k}, v{122+k}, v120")
        a("s_mov_b32 exec_hi, 0xffff")
        a("ds_write_b128 v13, v[122:125]")
        a("s_mov_b32 exec_hi, -1")
        a("s_waitcnt lgkmcnt(0)")
        OV = 132
        for i in range(12):
            a(f"ds_read2_b32 {vr(OV+2*i,2)}, v16 offset0:{8*i} offset1:{8*i+96}")
        ACC = 120
        for k in range(8): a(f"v_mov_b32 v{ACC+k}, 0")
        CO = 160
        for p in range(6):
            a(f"s_waitcnt lgkmcnt({10-2*p})")
            a(f"v_add_f32 v{OV+4*p}, v{OV+4*p}, v{OV+4*p+1}")
            a(f"v_add_f32 v{OV+4*p+2}, v{OV+4*p+2}, v{OV+4*p+3}")
            a(f"v_cvt_pk_bf16_f32 v{CO+p}, v{OV+4*p}, v{OV+4*p+2}")
        self.gemv_pairs(WV, 6, CO, ACC)
        self.treduce8(ACC, 128, 118)
        a(f"ds_write_b32 v17, v{ACC} offset:{self.L_C}")
        a("s_waitcnt lgkmcnt(0)")
        a("s_barrier")
        self.stamp(7)
        skip = a.newlabel("cx")
        self.skip_if(f"s_cmp_lg_u32 s{S_W}, 0", skip)
        a("v_lshlrev_b32 v13, 2, v1")
        for w in range(8): a(f"ds_read_b32 v{132+w}, v13 offset:{self.L_C+w*256}")
        a("s_waitcnt lgkmcnt(0)")
        a("v_add_f32 v132, v132, v133\nv_add_f32 v134, v134, v135\nv_add_f32 v136, v136, v137\nv_add_f32 v138, v138, v139")
        a("v_add_f32 v132, v132, v134\nv_add_f32 v136, v136, v138")
        a("v_add_f32 v132, v132, v136")
        a("v_cvt_pk_bf16_f32 v132, v132, v132")
        a("ds_write_b16 v172, v132")
        a("ds_write_b16 v173, v132")
        a("s_waitcnt lgkmcnt(0)")
        a.label(skip)
        for k in range(8): a(f"v_mov_b32 v{ACC+k}, 0")
        a("s_barrier")
        for p in range(6):
            a(f"ds_read_b32 v{CO+p}, v18 offset:{self.L_CB+48*p}")
        a("s_waitcnt lgkmcnt(0)")
        self.gemv_pairs(WO, 6, CO, ACC)
        self.out_reduce_publish(ACC, T+10)
        self.stamp(8)
        a("s_branch L_aend")

        a.label("L_bbranch")
        WG = 20; XB = 84; WD = 160
        a("v_lshlrev_b32 v19, 2, v6")
        a(f"s_lshl_b32 s{T}, s{S_X}, 2")
        a(f"s_add_u32 s{T}, s{T}, s{S_LI}")
        a(f"s_sub_u32 s{T}, s{T}, 12")
        a("v_mul_u32_u24 v10, 43, v1")
        a("v_lshrrev_b32 v10, 8, v10")
        a("v_mul_u32_u24 v11, 6, v10")
        a("v_sub_u32 v11, v1, v11")
        a("v_mul_u32_u24 v12, 3072, v10")
        a("v_lshl_add_u32 v12, v11, 4, v12")
        a("v_cmp_gt_u32 vcc, 60, v1")
        a("v_lshlrev_b32 v13, 1, v10")
        a("v_cndmask_b32 v12, v8, v12, vcc")
        a(f"s_and_b32 s{T+1}, s{S_W}, 3")
        a(f"s_mul_i32 s{T+2}, s{T+1}, 320")
        for i in range(16):
            a(f"buffer_load_ushort v{XB+i}, v13, {srd('X')}, s{T+2} offen offset:{20*i}")
        a(f"s_mul_i32 s{T+2}, s{T+1}, {160*3072}")
        a(f"s_mul_i32 s{T+3}, s{T}, 96")
        a(f"s_add_u32 s{T+2}, s{T+2}, s{T+3}")
        up = a.newlabel("up"); upd = a.newlabel("upd")
        self.skip_if(f"s_cmp_ge_u32 s{S_W}, 4", up)
        for i in range(16):
            a(f"buffer_load_dwordx4 {vr(WG+4*i,4)}, v12, {srd('WG')}, s{T+2} offen{self.NTB}")
            if i >= self.a_win: a(f"s_waitcnt vmcnt({self.a_win})")
            a(f"s_add_u32 s{T+2}, s{T+2}, 30720")
        a(f"s_branch {upd}")
        a.label(up)
        for i in range(16):
            a(f"buffer_load_dwordx4 {vr(WG+4*i,4)}, v12, {srd('WU')}, s{T+2} offen{self.NTB}")
            if i >= self.a_win: a(f"s_waitcnt vmcnt({self.a_win})")
            a(f"s_add_u32 s{T+2}, s{T+2}, 30720")
        a.label(upd)
        a(f"s_mul_i32 s{T+2}, s{T}, {48*1280}")
        for i in range(8):
            a(f"buffer_load_dwordx4 {vr(WD+4*i,4)}, v5, {srd('WD')}, s{T+2} offen{self.NTB}")
            if 16 + i >= self.a_win: a(f"s_waitcnt vmcnt({self.a_win})")
            a(f"s_add_u32 s{T+2}, s{T+2}, 7680")
        ACC = 120
        for k in range(8): a(f"v_mov_b32 v{ACC+k}, 0")
        for i in range(16):
            a(f"s_waitcnt vmcnt({8+15-i})")
            a(f"v_lshlrev_b32 v128, 16, v{XB+i}")
            for k in range(4): a(f"v_dot2c_f32_bf16 v{ACC+2*k}, v{WG+4*i+k}, v{XB+i}")
            for k in range(4): a(f"v_dot2c_f32_bf16 v{ACC+2*k+1}, v{WG+4*i+k}, v128")
        a(f"s_mul_i32 s{T+2}, s{S_W}, 1920")
        a("v_mul_u32_u24 v13, 192, v10")
        a("v_lshl_add_u32 v13, v11, 5, v13")
        a(f"v_add_u32 v13, s{T+2}, v13")
        a("s_mov_b32 exec_hi, 0x0fffffff")
        a(f"ds_write_b128 v13, {vr(ACC,4)} offset:{self.L_R}")
        a(f"ds_write_b128 v13, {vr(ACC+4,4)} offset:{self.L_R+16}")
        a("s_mov_b32 exec_hi, -1")
        a("s_waitcnt lgkmcnt(0)")
        a("s_barrier")
        skip = a.newlabel("bg")
        self.skip_if(f"s_cmp_ge_u32 s{S_W}, 2", skip)
        a("v_cmp_le_u32 vcc, 48, v0")
        a("v_mov_b32 v14, 7488")
        a("v_lshlrev_b32 v13, 2, v0")
        a("v_cndmask_b32 v14, 0, v14, vcc")
        a("v_add_u32 v13, v13, v14")
        a("v_min_u32 v13, 7868, v13")
        for j in range(40):
            a(f"ds_read_b32 v{20+j}, v13 offset:{self.L_R+j*192}")
            if j % 8 == 7: a("s_waitcnt lgkmcnt(0)")
        for j in range(1, 40): a(f"v_add_f32 v20, v20, v{20+j}")
        a("v_lshlrev_b32 v13, 2, v0")
        a(f"ds_write_b32 v13, v20 offset:{self.L_C}")
        a("s_waitcnt lgkmcnt(0)")
        a.label(skip)
        a("s_barrier")
        skip = a.newlabel("bh")
        self.skip_if(f"s_cmp_lg_u32 s{S_W}, 0", skip)
        a("v_lshlrev_b32 v13, 2, v1")
        a(f"ds_read_b32 v20, v13 offset:{self.L_C}")
        a(f"ds_read_b32 v21, v13 offset:{self.L_C+192}")
        a("s_waitcnt lgkmcnt(0)")
        a(f"v_mul_f32 v20, 0x{f32bits(-math.log2(math.e)):08x}, v20")
        a("v_exp_f32 v20, v20")
        a("s_nop 0")
        a("v_add_f32 v20, 1.0, v20")
        a("v_rcp_f32 v20, v20")
        a("s_nop 0")
        a("v_mul_f32 v20, v20, v21")
        a("v_cvt_pk_bf16_f32 v20, v20, v20")
        self.write_pairs(20, 13, 14, 48)
        a("s_waitcnt lgkmcnt(0)")
        a.label(skip)
        for k in range(8): a(f"v_mov_b32 v{ACC+k}, 0")
        a("s_waitcnt vmcnt(0)")
        self.preperm(WD, 4, 128)
        a("s_barrier")
        CO = 100
        for p in range(4):
            a(f"ds_read_b32 v{CO+p}, v19 offset:{self.L_CB+48*p}")
        a("s_waitcnt lgkmcnt(0)")
        self.gemv_pairs(WD, 4, CO, ACC)
        self.out_reduce_publish(ACC, T+10)
        self.stamp(8)
        a.label("L_aend")

    def bset_ids(self):
        a = self.a
        a(f"s_mov_b32 s{S_LB}, s{S_LI}")
        a(f"s_lshl_b32 s{S_BLK}, s{S_X}, 5")
        a(f"s_lshl_b32 s9, s{S_LB}, 1")
        a(f"s_add_u32 s{S_BLK}, s{S_BLK}, s9")
        a(f"s_lshl_b32 s{S_G}, s{S_X}, 1")
        a(f"s_lshr_b32 s9, s{S_LB}, 3")
        a(f"s_add_u32 s{S_G}, s{S_G}, s9")
        a(f"s_and_b32 s{S_S}, s{S_LB}, 7")

    def pv_lane_offsets(self):
        a = self.a
        for n in range(3):
            a(f"v_add_u32 v5, {64*n}, v1")
            a("v_mul_u32_u24 v6, 5462, v5")
            a("v_lshrrev_b32 v6, 16, v6")
            a("v_mul_u32_u24 v7, 12, v6")
            a("v_sub_u32 v7, v5, v7")
            a("v_mul_u32_u24 v6, 1536, v6")
            a(f"v_lshl_add_u32 v{self.PVO+n}, v7, 4, v6")

    def pv_dma(self, kp, ldsbase, nw, w0):
        a = self.a; T = S_T + 8
        per = 48 // nw; rows = 256 // nw
        a(f"s_sub_u32 s{T+2}, s{S_W}, {w0}")
        a(f"s_lshl_b32 s{T}, s{S_G}, 9")
        a(f"s_mul_i32 s{T+1}, s{T+2}, {rows}")
        a(f"s_add_u32 s{T}, s{T}, s{T+1}")
        if kp: a(f"s_add_u32 s{T}, s{T}, 256")
        a(f"s_mul_i32 s{T}, s{T}, 1536")
        a(f"s_mul_i32 s{T+1}, s{S_S}, 192")
        a(f"s_add_u32 s{T}, s{T}, s{T+1}")
        a(f"s_mul_i32 s{T+1}, s{T+2}, {per*1024}")
        a(f"s_add_u32 s{T+1}, s{T+1}, {ldsbase}")
        for n in range(per):
            a(f"s_add_u32 m0, s{T+1}, {n*1024}")
            if n % 3 == 0 and n > 0: a(f"s_add_u32 s{T}, s{T}, {16*1536}")
            else: a("s_nop 0")
            a(f"buffer_load_dwordx4 v{self.PVO+(n%3)}, {srd('CKV')}, s{T} offen{self.NTC} lds")
            if self.pv_win < 63: a(f"s_waitcnt vmcnt({self.pv_win})")

    def s_dma_prep(self):
        a = self.a
        a("v_mov_b32 v216, 0")
        a("v_mov_b32 v219, v1")
        a("v_cmp_le_u32 vcc, 32, v1")
        a("v_add_u32 v5, 64, v1")
        a("v_subrev_u32 v6, 32, v1")
        a("v_cndmask_b32 v217, 0, 1, vcc")
        a("v_cndmask_b32 v220, v5, v6, vcc")
        a("v_mov_b32 v218, 1")
        a("v_add_u32 v221, 32, v1")
        for b in range(3): a(f"v_mul_u32_u24 v{222+b}, 1536, v{216+b}")
        T = S_T + 8
        a(f"s_and_b32 s{T+2}, s{S_W}, 1")
        a(f"s_lshl_b32 s{T+2}, s{T+2}, 3")
        for aa in range(4):
            for b in range(3):
                n = 3*aa + b
                a(f"s_add_u32 s{T+4}, s{T+2}, {2*aa}")
                a(f"v_add_u32 v5, s{T+4}, v{216+b}")
                a(f"v_xor_b32 v5, v5, v{219+b}")
                a(f"v_lshl_add_u32 v{226+n}, v5, 4, v{222+b}")

    def s_dma(self):
        a = self.a; T = S_T + 8
        a(f"s_lshl_b32 s{T}, s{S_X}, 10")
        a(f"s_lshl_b32 s{T+1}, s{S_LB}, 6")
        a(f"s_add_u32 s{T}, s{T}, s{T+1}")
        a(f"s_lshl_b32 s{T+1}, s{S_W}, 3")
        a(f"s_add_u32 s{T}, s{T}, s{T+1}")
        a(f"s_mul_i32 s{T}, s{T}, 1536")
        a(f"s_mul_i32 s{T+3}, s{S_W}, 12288")
        a(f"s_add_u32 s{T+3}, s{T+3}, {self.L_S}")
        for n in range(12):
            a(f"s_add_u32 m0, s{T+3}, {n*1024}")
            if n % 3 == 0 and n > 0: a(f"s_add_u32 s{T}, s{T}, {2*1536}")
            else: a("s_nop 0")
            a(f"buffer_load_dwordx4 v{226+n}, {srd('CKV')}, s{T} offen{self.NTC} lds")
            if n >= self.s_win: a(f"s_waitcnt vmcnt({self.s_win})")
            if self.s_probe and n == self.s_probe-1: a(f"s_waitcnt vmcnt({self.s_probe-1})")

    def s_dma_early(self):
        a = self.a; T = S_T + 8
        a(f"s_sub_u32 s{T+2}, s{S_W}, 6")
        a(f"s_lshl_b32 s{T}, s{S_X}, 10")
        a(f"s_lshl_b32 s{T+1}, s{S_LB}, 6")
        a(f"s_add_u32 s{T}, s{T}, s{T+1}")
        a(f"s_lshl_b32 s{T+1}, s{T+2}, 5")
        a(f"s_add_u32 s{T}, s{T}, s{T+1}")
        a(f"s_mul_i32 s{T}, s{T}, 1536")
        a(f"s_mul_i32 s{T+3}, s{T+2}, 49152")
        a(f"s_add_u32 s{T+3}, s{T+3}, {self.L_S}")
        for aa in range(16):
            for b in range(3):
                n = 3*aa + b
                a(f"v_add_u32 v5, {(2*aa) & 15}, v{216+b}")
                a(f"v_xor_b32 v5, v5, v{219+b}")
                a(f"v_lshl_add_u32 v5, v5, 4, v{222+b}")
                a(f"s_add_u32 m0, s{T+3}, {n*1024}")
                a(f"s_add_u32 s{T+5}, s{T}, {2*aa*1536}")
                a(f"buffer_load_dwordx4 v5, {srd('CKV')}, s{T+5} offen{self.NTC} lds")
                if n >= self.sde_win: a(f"s_waitcnt vmcnt({self.sde_win})")

    def bset_clears(self):
        a = self.a; T = S_T + 8
        a("v_subrev_u32 v5, 384, v0")
        a("v_mov_b32 v76, -1\nv_mov_b32 v77, -1\nv_mov_b32 v78, -1\nv_mov_b32 v79, -1")
        a("v_lshlrev_b32 v6, 4, v5")
        a("v_mov_b32 v7, 0x7fffffff")
        a("v_cmp_gt_u32 vcc, 64, v5")
        a(f"s_mul_i32 s{T+2}, s{S_BLK}, {PBS}")
        a("v_cndmask_b32 v8, v7, v6, vcc")
        for base in (WS_PBG, WS_PBL):
            a(f"s_add_u32 s{T+3}, s{T+2}, {base}")
            a(f"buffer_store_dwordx4 v[76:79], v6, {srd('WS')}, s{T+3} offen sc1")
            a(f"buffer_store_dwordx4 v[76:79], v6, {srd('WS')}, s{T+3} offen offset:2048 sc1")
            a(f"s_add_u32 s{T+3}, s{T+3}, 4096")
            a(f"buffer_store_dwordx4 v[76:79], v8, {srd('WS')}, s{T+3} offen sc1")
        a(f"s_lshl_b32 s{T+5}, s{S_S}, 4")
        a(f"s_add_u32 s{T+5}, s{T+5}, s{S_G}")
        a(f"s_mul_i32 s{T+5}, s{T+5}, 384")
        a(f"s_add_u32 s{T+5}, s{T+5}, {WS_OP}")
        a(f"s_mov_b32 s{T+6}, 49152")
        for i in range(6):
            a(f"v_add_u32 v8, {128*i}, v5")
            a("v_mul_u32_u24 v9, 2731, v8")
            a("v_lshrrev_b32 v9, 16, v9")
            a("v_mul_u32_u24 v70, 24, v9")
            a("v_sub_u32 v70, v8, v70")
            a(f"v_mul_lo_u32 v9, v9, s{T+6}")
            a("v_lshl_add_u32 v9, v70, 4, v9")
            a(f"buffer_store_dwordx4 v[76:79], v9, {srd('WS')}, s{T+5} offen sc1")
        a("v_lshlrev_b32 v8, 7, v5")
        a("v_cmp_gt_u32 vcc, 32, v5")
        a(f"s_lshl_b32 s{T+5}, s{S_G}, 3")
        a(f"s_add_u32 s{T+5}, s{T+5}, {WS_ML}")
        a("v_cndmask_b32 v8, v7, v8, vcc")
        a(f"s_cmp_eq_u32 s{S_S}, 0")
        a(f"s_cselect_b32 s{T+5}, s{T+5}, 0x7fffff00")
        a(f"buffer_store_dwordx2 v[76:77], v8, {srd('WS')}, s{T+5} offen sc1")

    def bset_front(self):
        a = self.a; T = S_T
        XV = 10; W0 = 20; ACC = 60
        a(f"v_mov_b32 v5, {self.L_FLAG}")
        for k in range(4): a(f"v_mov_b32 v{6+k}, 0")
        a("ds_write_b128 v5, v[6:9]")
        a("ds_write_b128 v5, v[6:9] offset:16")
        a("ds_write_b128 v5, v[6:9] offset:32")
        a("ds_write_b128 v5, v[6:9] offset:48")
        a("ds_write_b128 v5, v[6:9] offset:64")
        a("v_lshlrev_b32 v5, 1, v2")
        a(f"v_add_u32 v9, s{S_PM}, v5")
        nox = a.newlabel("nox")
        self.skip_if(f"s_cmp_lg_u32 s{S_W}, 6", nox)
        a("v_lshlrev_b32 v8, 4, v1")
        a(f"buffer_load_dwordx4 v[20:23], v8, {srd('X')}, 0 offen")
        a(f"buffer_load_dwordx4 v[24:27], v8, {srd('X')}, 0 offen offset:1024")
        a.label(nox)
        self.bset_ids()
        self.pv_lane_offsets()
        self.s_dma_prep()
        nox2 = a.newlabel("nox2")
        self.skip_if(f"s_cmp_lg_u32 s{S_W}, 6", nox2)
        a("s_waitcnt vmcnt(0)")
        a(f"ds_write_b128 v8, v[20:23] offset:{self.L_X}")
        a(f"ds_write_b128 v8, v[24:27] offset:{self.L_X+1024}")
        a.label(nox2)
        a("s_waitcnt lgkmcnt(0)")
        a("s_barrier")
        ldr = a.newlabel("p1ldr"); j = a.newlabel("p1j")
        self.skip_if(f"s_cmp_ge_u32 s{S_W}, 6", ldr)
        a(f"s_lshl_b32 s{T+5}, s{S_H}, 3")
        a(f"s_lshl_b32 s{T+6}, s{S_J4}, 1")
        a(f"s_add_u32 s{T+5}, s{T+5}, s{T+6}")
        a(f"s_add_u32 s{T+5}, s{T+5}, s{T}")
        a(f"s_mul_i32 s{T+5}, s{T+5}, 1536")
        a(f"s_lshl_b32 s{T+6}, s{T+1}, 9")
        a(f"s_add_u32 s{T+5}, s{T+5}, s{T+6}")
        a(f"s_add_u32 s{T+6}, s{T+5}, {WS_QPG}")
        a(f"s_add_u32 s{T+5}, s{T+5}, {WS_QPL}")
        a("v_lshlrev_b32 v5, 6, v3")
        a("v_lshl_add_u32 v5, v2, 3, v5")
        for k in range(8): a(f"v_mov_b32 v{ACC+k}, 0")
        for i in range(10):
            a(f"ds_read_u16 v{XV+i}, v9 offset:{self.L_X+16*i}")
        a("s_waitcnt lgkmcnt(0)")
        a(f"s_add_u32 s{S_EP}, s{S_EP}, 1")
        for i in range(10):
            a(f"s_waitcnt vmcnt({9-i})")
            if i == 9: self.stamp(13)
            a(f"v_lshlrev_b32 v68, 16, v{XV+i}")
            for k in range(4): a(f"v_dot2c_f32_bf16 v{ACC+2*k}, v{W0+4*i+k}, v{XV+i}")
            for k in range(4): a(f"v_dot2c_f32_bf16 v{ACC+2*k+1}, v{W0+4*i+k}, v68")
        self.treduce8(ACC, 68, 69)
        a(f"v_mov_b32 v{ACC+1}, s{S_EP}")
        if self.local:
            a(f"buffer_store_dwordx2 {vr(ACC,2)}, v5, {srd('WS')}, s{T+5} offen")
        a(f"buffer_store_dwordx2 {vr(ACC,2)}, v5, {srd('WS')}, s{T+6} offen sc1")
        self.stamp(1)
        a(f"s_branch {j}")
        a.label(ldr)
        if not self.exp_noclear: self.bset_clears()
        a("s_waitcnt lgkmcnt(0)")
        a(f"s_add_u32 s{S_EP}, s{S_EP}, 1")
        def cf_store():
            a(f"s_lshl_b32 s{T+13}, s2, 1")
            a(f"s_add_u32 s{T+13}, s{T+13}, s{S_W}")
            a(f"s_lshl_b32 s{T+13}, s{T+13}, 2")
            a(f"s_add_u32 s{T+13}, s{T+13}, {WS_CF - 24}")
            a(f"v_mov_b32 v5, s{S_EP}")
            a("v_mov_b32 v6, 0")
            a("s_mov_b64 exec, 1")
            a(f"buffer_store_dword v5, v6, {srd('WS')}, s{T+13} offen sc1")
            a("s_mov_b64 exec, -1")
        nocf = a.newlabel("nocf")
        if self.s_trig:
            notr = a.newlabel("notr")
            self.skip_if(f"s_cmp_lg_u32 s{S_W}, 7", notr)
            a(f"s_mul_i32 s{T+5}, s{S_H}, {8*1536}")
            a(f"s_add_u32 s{T+6}, s{T+5}, {WS_QPL}")
            a(f"s_add_u32 s{T+5}, s{T+5}, {WS_QPG}")
            a("v_and_b32 v5, 7, v1")
            a("v_mul_u32_u24 v5, 1536, v5")
            l = self.poll_begin(T+6, T+5)
            a(f"buffer_load_dwordx2 v[20:21], v5, {srd('WS')}, s{S_PB} offen sc1")
            a("s_waitcnt vmcnt(0)")
            a(f"v_xor_b32 v20, s{S_EP}, v21")
            self.poll_end(l, 20)
            if self.s_trig == 2:
                a(f"s_lshl_b32 s{T+5}, s{S_H}, 4")
                a(f"s_add_u32 s{T+5}, s{T+5}, {WS_QA}")
                a("v_mov_b32 v5, 0")
                l = self.poll_begin()
                a(f"buffer_load_dwordx4 v[20:23], v5, {srd('WS')}, s{T+5} offen sc1")
                a("s_waitcnt vmcnt(0)")
                a(f"v_xor_b32 v20, s{S_EP}, v23")
                self.poll_end(l, 20)
            a.label(notr)
        if self.sde:
            self.s_dma_early()
            cf_store()
            a.label(j)
        else:
            a.label(j)
            a("s_barrier")
            self.s_dma()
            self.skip_if(f"s_cmp_lt_u32 s{S_W}, 6", nocf)
            a("s_waitcnt vmcnt(12)")
            cf_store()
        a.label(nocf)
        self.stamp(2)

    def bset_s_phase(self):
        a = self.a; T = S_T
        QA = 20; AF = 84; ACC = 180
        a("v_and_b32 v6, 31, v1")
        a("v_lshrrev_b32 v7, 5, v1")
        a("v_and_b32 v8, 15, v6")
        a("v_xor_b32 v8, v8, v7")
        a("v_mul_u32_u24 v6, 1536, v6")
        a(f"v_add_u32 v6, {self.L_S}, v6")
        a(f"s_mul_i32 s{T+2}, s{S_W}, 24")
        for i in range(12):
            a(f"s_add_u32 s{T+3}, s{T+2}, {2*i}")
            a(f"v_xor_b32 v9, s{T+3}, v8")
            a(f"v_lshl_add_u32 v{226+i}, v9, 4, v6")
        a(f"s_lshl_b32 s{T}, s{S_W}, 14")
        a(f"s_add_u32 s{T}, s{T}, {WS_QA}")
        a("v_lshlrev_b32 v5, 4, v1")
        for g in range(4): a(f"s_add_u32 s{T+9+g}, s{T}, {4096*g}")
        def qa_first():
            for n in range(16):
                a(f"buffer_load_dwordx4 {vr(QA+4*n,4)}, v5, {srd('WS')}, s{T+9+n//4} offen offset:{(n%4)*1024} sc1")
        if self.qa_early:
            a("s_barrier")
            notS0 = a.newlabel("notS0")
            self.skip_if(f"s_cmp_ge_u32 s{S_W}, 4", notS0)
            qa_first()
            a("s_waitcnt vmcnt(16)")
            a.label(notS0)
            nw = a.newlabel("nw")
            self.skip_if(f"s_cmp_lt_u32 s{S_W}, 4", nw)
            a("s_waitcnt vmcnt(0)")
            a.label(nw)
        else:
            a("s_waitcnt vmcnt(0)")
        a("s_barrier")
        self.stamp(3)
        notS = a.newlabel("notS"); j4 = a.newlabel("j4")
        self.skip_if(f"s_cmp_ge_u32 s{S_W}, 4", notS)
        if not self.qa_early and not self.qa_order: qa_first()
        for i in range(12):
            a(f"ds_read_b128 {vr(AF+4*i,4)}, v{226+i}")
            a(f"ds_read_b128 {vr(AF+48+4*i,4)}, v{226+i} offset:49152")
            if i == 5: a("s_waitcnt lgkmcnt(0)")
        a("s_waitcnt lgkmcnt(0)")
        a("s_barrier")
        self.stamp(21)
        if self.qa_order:
            qa_first()
            if self.qa_order == 2: self.lds_signal(64)
        a(f"s_lshl_b32 s{T+2}, s{S_W}, 13")
        a(f"s_add_u32 s{T+2}, s{T+2}, {self.L_RED}")
        a(f"v_add_u32 v10, s{T+2}, v5")
        a(f"s_lshl_b32 s{T+2}, s{S_W}, 10")
        a(f"s_add_u32 s{T+2}, s{T+2}, {self.L_RED}")
        a(f"v_add_u32 v11, s{T+2}, v5")
        a("v_bfe_u32 v12, v1, 4, 1")
        a("v_lshlrev_b32 v12, 10, v12")
        a("v_and_b32 v9, 15, v1")
        a("v_lshl_add_u32 v12, v9, 4, v12")
        a("v_lshrrev_b32 v9, 5, v1")
        a("v_lshl_add_u32 v12, v9, 3, v12")
        a("v_and_b32 v13, 31, v1")
        a("v_lshlrev_b32 v13, 2, v13")
        a("v_mov_b32 v9, 0x7fffffff")
        a("v_cmp_gt_u32 vcc, 32, v1")
        a(f"s_mul_i32 s{T+4}, s{S_BLK}, {PBS}")
        a("v_cndmask_b32 v13, v9, v13, vcc")
        a(f"s_lshl_b32 s{T+3}, s{S_W}, 8")
        a(f"s_add_u32 s{T+5}, s{T+4}, s{T+3}")
        a(f"s_lshl_b32 s{T+3}, s{S_W}, 7")
        a(f"s_add_u32 s{T+6}, s{T+4}, s{T+3}")
        a(f"s_add_u32 s{T+6}, s{T+6}, 2048")
        def qa_issue(g):
            for k in range(4):
                n = 4*g + k
                a(f"buffer_load_dwordx4 {vr(QA+4*n,4)}, v5, {srd('WS')}, s{T+9+g} offen offset:{k*1024} sc1")
        def qa_check(g):
            a(f"v_xor_b32 v6, s{S_EP}, v{QA+16*g+3}")
            for k in range(1, 4):
                a(f"v_xor_b32 v7, s{S_EP}, v{QA+16*g+4*k+3}")
                a("v_or_b32 v6, v6, v7")
            a("v_cmp_ne_u32 vcc, 0, v6")
        self.gpoll(4, qa_issue, qa_check, first_issued=True, masks=[24,26,28,30])
        self.stamp(4)
        self.stamp_val(16, S_CNT)
        for sg in range(4):
            for f in range(3): a(f"v_mov_b32 v{QA+(sg*4+f)*4+3}, v{QA+(sg*4+3)*4+f}")
        a("s_nop 0")
        for i in range(12):
            sg, f = i // 3, i % 3
            B = QA + (sg*4+f)*4
            for kb in range(2):
                c = "0" if i == 0 else vr(ACC+16*kb, 16)
                a(f"v_mfma_f32_32x32x16_bf16 {vr(ACC+16*kb,16)}, {vr(AF+48*kb+4*i,4)}, {vr(B,4)}, {c}")
        a("s_nop 3")
        a("s_nop 7")
        for q in range(4): a(f"ds_write_b128 v10, {vr(ACC+4*q,4)} offset:{q*1024}")
        a("s_nop 3")
        for q in range(4): a(f"ds_write_b128 v10, {vr(ACC+16+4*q,4)} offset:{(4+q)*1024}")
        a("s_waitcnt lgkmcnt(0)")
        self.stamp(8)
        self.lds_signal(16)
        self.lds_wait(16, 20)
        R = 20
        for src in range(4):
            for kb in range(2):
                a(f"ds_read_b128 {vr(R+(src*2+kb)*4,4)}, v11 offset:{src*8192+kb*4096}")
        a(f"s_mov_b32 s{T+3}, 0x{f32bits(192**-0.5*math.log2(math.e)):08x}")
        a("s_waitcnt lgkmcnt(4)")
        for k in range(8): a(f"v_add_f32 v{R+k}, v{R+k}, v{R+8+k}")
        a("s_waitcnt lgkmcnt(0)")
        reads = []
        if self.early_frags:
            self.lds_wait(32, 60)
            self.stamp(14)
            reads = self.pv_read_frags(self.L_S, defer=True)
        def v(ins):
            a(ins)
            if reads: a(reads.pop(0))
        for k in range(8): v(f"v_add_f32 v{R+16+k}, v{R+16+k}, v{R+24+k}")
        for k in range(8): v(f"v_add_f32 v{R+k}, v{R+k}, v{R+16+k}")
        for k in range(8): v(f"v_mul_f32 v{R+k}, s{T+3}, v{R+k}")
        for kb in range(2):
            v(f"v_max3_f32 v{R+8+kb}, v{R+kb*4}, v{R+kb*4+1}, v{R+kb*4+2}")
        for kb in range(2):
            v(f"v_max_f32 v{R+8+kb}, v{R+8+kb}, v{R+kb*4+3}")
        a(f"v_mov_b32 v{R+10}, v{R+8}")
        a(f"v_mov_b32 v{R+11}, v{R+9}")
        a("s_nop 1")
        a(f"v_permlane32_swap_b32 v{R+8}, v{R+10}")
        a(f"v_permlane32_swap_b32 v{R+9}, v{R+11}")
        a("s_nop 1")
        a(f"v_max_f32 v{R+8}, v{R+8}, v{R+10}")
        a(f"v_max_f32 v{R+9}, v{R+9}, v{R+11}")
        a(f"v_ceil_f32 v{R+8}, v{R+8}")
        a(f"v_ceil_f32 v{R+9}, v{R+9}")
        for kb in range(2):
            for r in range(4): v(f"v_sub_f32 v{R+kb*4+r}, v{R+kb*4+r}, v{R+8+kb}")
        for k in range(8): v(f"v_exp_f32 v{R+k}, v{R+k}")
        a(f"v_min_u32 v{R+8}, 0xfffffffe, v{R+8}")
        a(f"v_min_u32 v{R+9}, 0xfffffffe, v{R+9}")
        P = R + 12
        for kb in range(2):
            a(f"v_cvt_pk_bf16_f32 v{P+kb*2}, v{R+kb*4}, v{R+kb*4+1}")
            a(f"v_cvt_pk_bf16_f32 v{P+kb*2+1}, v{R+kb*4+2}, v{R+kb*4+3}")
        for k in range(4): a(f"v_and_b32 v{P+k}, 0x7fff7fff, v{P+k}")
        paths = ([(WS_PBL, "")] if self.local else []) + [(WS_PBG, " sc1")]
        for base, fl in paths:
            a(f"s_add_u32 s{T+7}, s{T+5}, {base}")
            a(f"s_add_u32 s{T+8}, s{T+6}, {base}")
            a(f"buffer_store_dwordx2 {vr(P,2)}, v12, {srd('WS')}, s{T+7} offen{fl}")
            a(f"buffer_store_dwordx2 {vr(P+2,2)}, v12, {srd('WS')}, s{T+7} offen offset:{PBS}{fl}")
            a(f"buffer_store_dword v{R+8}, v13, {srd('WS')}, s{T+8} offen{fl}")
            a(f"buffer_store_dword v{R+9}, v13, {srd('WS')}, s{T+8} offen offset:{PBS}{fl}")
        self.stamp(5)
        for r in reads: a(r)
        if not self.early_frags:
            self.lds_wait(32, 60)
            self.stamp(14)
            self.pv_read_frags(self.L_S)
        a(f"s_branch {j4}")
        a.label(notS)
        a("s_barrier")
        if self.qa_order == 2: self.lds_wait(64, 20)
        self.pv_dma(0, self.L_PA, 4, 4)
        self.pv_dma(1, self.L_S, 4, 4)
        self.stamp(20)
        a("s_waitcnt vmcnt(12)")
        self.lds_signal(0)
        self.lds_wait(0, 20)
        self.stamp(19)
        self.pv_read_frags(self.L_PA)
        a("s_waitcnt vmcnt(0)")
        self.lds_signal(32)
        nocf = a.newlabel("nocf")
        self.skip_if(f"s_cmp_lg_u32 s{S_W}, 4", nocf)
        self.cf_check(20)
        a(f"v_mov_b32 v6, {self.L_FLAG+48}")
        a("v_mov_b32 v7, 1")
        a("ds_write_b32 v6, v7")
        a.label(nocf)
        self.stamp(14)
        a.label(j4)

    def pv_read_frags(self, base, defer=False):
        a = self.a; T = S_T + 8; AF = 84
        a("v_lshrrev_b32 v14, 4, v1")
        a("v_and_b32 v15, 15, v1")
        a("v_lshrrev_b32 v16, 2, v15")
        a("v_lshl_add_u32 v16, v14, 3, v16")
        a("v_mul_u32_u24 v16, 192, v16")
        a("v_and_b32 v15, 3, v15")
        a("v_lshl_add_u32 v16, v15, 3, v16")
        a(f"s_lshr_b32 s9, s{S_W}, 1")
        a("s_and_b32 s9, s9, 1")
        a("s_mul_i32 s9, s9, 96")
        a(f"s_add_u32 s9, s9, {base}")
        a("v_add_u32 v16, s9, v16")
        reads = []
        for bb in range(8):
            for ct in range(3):
                r = AF + (bb*3+ct)*4; off = bb*6144 + ct*32
                reads.append(f"ds_read_b64_tr_b16 {vr(r,2)}, v16 offset:{off}")
                reads.append(f"ds_read_b64_tr_b16 {vr(r+2,2)}, v16 offset:{off+768}")
        if defer: return reads
        for n, r in enumerate(reads):
            a(r)
            if n % 12 == 11: a("s_waitcnt lgkmcnt(6)")

    def bset_pv_phase(self):
        a = self.a; T = S_T
        AF = 84; P = 20; MI = 52; DL = 60; ACC = 180; LA = 192; ON = 196
        a(f"s_cmp_lt_u32 s{S_W}, 4")
        a(f"s_cselect_b32 s{T}, 8, 0")
        a(f"s_lshl_b32 s{T+1}, s{S_G}, 4")
        a(f"s_add_u32 s{T+1}, s{T+1}, s{T}")
        a(f"s_and_b32 s{T+2}, s{S_W}, 1")
        a(f"s_mul_i32 s{T+3}, s{T+1}, {PBS}")
        a(f"s_lshl_b32 s{T+4}, s{T+2}, 10")
        a(f"s_add_u32 s{T+3}, s{T+3}, s{T+4}")
        a(f"s_add_u32 s{T+4}, s{T+3}, {WS_PBG}")
        a(f"s_add_u32 s{T+3}, s{T+3}, {WS_PBL}")
        a("v_lshlrev_b32 v5, 4, v1")
        a("v_and_b32 v6, 15, v1")
        a("v_lshlrev_b32 v6, 2, v6")
        a("v_lshrrev_b32 v7, 4, v1")
        a("v_lshl_add_u32 v6, v7, 7, v6")
        a(f"s_mul_i32 s{T+5}, s{T+2}, 960")
        a(f"s_sub_u32 s{T+5}, 2048, s{T+5}")
        a(f"v_add_u32 v6, s{T+5}, v6")
        for k in range(4): a(f"v_mov_b32 v{ON+k}, 0x3f803f80")
        a("v_and_b32 v14, 15, v1")
        a(f"s_mov_b32 s{T+5}, 49152")
        a(f"v_mul_lo_u32 v15, v14, s{T+5}")
        a("v_lshl_add_u32 v15, v7, 4, v15")
        a(f"s_mul_i32 s{T+5}, s{T+2}, {16*49152}")
        a(f"s_lshl_b32 s{T+6}, s{S_S}, 4")
        a(f"s_add_u32 s{T+6}, s{T+6}, s{S_G}")
        a(f"s_mul_i32 s{T+6}, s{T+6}, 384")
        a(f"s_add_u32 s{T+5}, s{T+5}, s{T+6}")
        a(f"s_lshr_b32 s{T+6}, s{S_W}, 1")
        a(f"s_and_b32 s{T+6}, s{T+6}, 1")
        a(f"s_mul_i32 s{T+7}, s{T+6}, 192")
        a(f"s_add_u32 s{T+5}, s{T+5}, s{T+7}")
        a(f"s_add_u32 s{T+5}, s{T+5}, {WS_OP}")
        a("v_lshlrev_b32 v14, 7, v14")
        a("v_mov_b32 v16, 0x7fffffff")
        a("v_cmp_gt_u32 vcc, 16, v1")
        a(f"s_lshl_b32 s{T+8}, s{T+2}, 11")
        a(f"s_lshl_b32 s{T+7}, s{S_G}, 3")
        a(f"s_add_u32 s{T+8}, s{T+8}, s{T+7}")
        a(f"s_add_u32 s{T+8}, s{T+8}, {WS_ML}")
        a("v_cndmask_b32 v14, v16, v14, vcc")
        a(f"s_or_b32 s{T+7}, s{T+6}, s{S_S}")
        a(f"s_cmp_eq_u32 s{T+7}, 0")
        a(f"s_cselect_b32 s{T+8}, s{T+8}, 0x7fffff00")
        a(f"s_and_b32 s{T+9}, s{S_W}, 3")
        a(f"s_lshl_b32 s{T+9}, s{T+9}, 12")
        a(f"s_add_u32 s{T+9}, s{T+9}, {self.L_PR}")
        a(f"v_add_u32 v17, s{T+9}, v5")
        def p_pre():
            if self.local:
                a(f"s_and_b32 s9, s{S_CNT}, {self.lperiod-1}")
                a(f"s_cmp_eq_u32 s9, {self.lperiod-1}")
                a(f"s_cselect_b32 s{S_PB}, s{T+4}, s{T+3}")
            else:
                a(f"s_mov_b32 s{S_PB}, s{T+4}")
        def p_issue(bb):
            a(f"s_add_u32 s9, s{S_PB}, {bb*PBS}")
            a(f"buffer_load_dwordx4 {vr(P+4*bb,4)}, v5, {srd('WS')}, s9 offen sc1")
            a(f"buffer_load_dword v{MI+bb}, v6, {srd('WS')}, s9 offen sc1")
        def p_check(bb):
            a(f"v_or3_b32 v7, v{P+4*bb}, v{P+4*bb+1}, v{P+4*bb+2}")
            a(f"v_or_b32 v7, v7, v{P+4*bb+3}")
            a("v_and_b32 v7, 0x80008000, v7")
            a(f"v_cmp_eq_u32 vcc, -1, v{MI+bb}")
            a("s_nop 1")
            a("v_cndmask_b32 v8, 0, 1, vcc")
            a("v_or_b32 v7, v7, v8")
            a("v_cmp_ne_u32 vcc, 0, v7")
        a(f"v_mov_b32 v7, {self.L_FLAG+48}")
        l = self.poll_begin()
        a("ds_read_b32 v8, v7")
        a("s_waitcnt lgkmcnt(0)")
        a("v_xor_b32 v8, 1, v8")
        self.poll_end(l, 8)
        self.stamp(15)
        self.gpoll(8, p_issue, p_check, pre=p_pre, masks=[24,26,28,30,32,34,36,38])
        self.stamp(6)
        self.stamp_val(17, S_CNT)
        a(f"v_max3_f32 v9, v{MI}, v{MI+1}, v{MI+2}")
        a(f"v_max3_f32 v9, v9, v{MI+3}, v{MI+4}")
        a(f"v_max3_f32 v9, v9, v{MI+5}, v{MI+6}")
        a(f"v_max_f32 v9, v9, v{MI+7}")
        a("v_mov_b32 v10, v9")
        a("s_nop 1")
        a("v_permlane16_swap_b32 v9, v10")
        a("s_nop 1")
        a("v_max_f32 v9, v9, v10")
        a("v_mov_b32 v10, v9")
        a("s_nop 1")
        a("v_permlane32_swap_b32 v9, v10")
        a("s_nop 1")
        a("v_max_f32 v9, v9, v10")
        a(f"s_mov_b32 s{T+10}, 0x437f0000")
        a(f"s_mov_b32 s{T+11}, 0x00800080")
        for bb in range(8): a(f"v_sub_f32 v{DL+bb}, v9, v{MI+bb}")
        for bb in range(8): a(f"v_min_f32 v{DL+bb}, s{T+10}, v{DL+bb}")
        for bb in range(8): a(f"v_cvt_u32_f32 v{DL+bb}, v{DL+bb}")
        for bb in range(8): a(f"v_mul_u32_u24 v{DL+bb}, s{T+11}, v{DL+bb}")
        for k in range(4): a(f"v_pk_sub_u16 v{P+k}, v{P+k}, v{DL} clamp")
        for bb in range(8):
            if bb < 7:
                for k in range(4): a(f"v_pk_sub_u16 v{P+4*(bb+1)+k}, v{P+4*(bb+1)+k}, v{DL+bb+1} clamp")
            else:
                a("s_nop 1")
            for ct in range(3):
                c = "0" if bb == 0 else vr(ACC+4*ct, 4)
                a(f"v_mfma_f32_16x16x32_bf16 {vr(ACC+4*ct,4)}, {vr(AF+(bb*3+ct)*4,4)}, {vr(P+4*bb,4)}, {c}")
            c = "0" if bb == 0 else vr(LA, 4)
            a(f"v_mfma_f32_16x16x32_bf16 {vr(LA,4)}, {vr(ON,4)}, {vr(P+4*bb,4)}, {c}")
        a("s_nop 7")
        self.stamp(11)
        kp1 = a.newlabel("kp1")
        self.skip_if(f"s_cmp_lt_u32 s{S_W}, 4", kp1)
        a(f"v_mov_b32 v{LA+1}, v9")
        for ct in range(3): a(f"ds_write_b128 v17, {vr(ACC+4*ct,4)} offset:{ct*1024}")
        a(f"ds_write_b128 v17, {vr(LA,4)} offset:3072")
        a("s_waitcnt lgkmcnt(0)")
        a.label(kp1)
        a("s_barrier")
        self.stamp(12)
        fin = a.newlabel("pvfin")
        self.skip_if(f"s_cmp_ge_u32 s{S_W}, 4", fin)
        O = 20
        for k in range(4): a(f"ds_read_b128 {vr(O+4*k,4)}, v17 offset:{k*1024}")
        a("s_waitcnt lgkmcnt(0)")
        a(f"v_max_f32 v10, v9, v{O+13}")
        a("v_sub_f32 v11, v9, v10")
        a(f"v_sub_f32 v12, v{O+13}, v10")
        a("v_exp_f32 v11, v11")
        a("v_exp_f32 v12, v12")
        a("s_nop 0")
        for k in range(12): a(f"v_mul_f32 v{ACC+k}, v{ACC+k}, v11")
        for k in range(12): a(f"v_fmac_f32 v{ACC+k}, v{O+k}, v12")
        for k in range(12): a(f"v_min_u32 v{ACC+k}, 0xfffffffe, v{ACC+k}")
        if self.exp_linear:
            a(f"s_lshl_b32 s{T+5}, s{S_G}, 3")
            a(f"s_add_u32 s{T+5}, s{T+5}, s{S_S}")
            a(f"s_lshl_b32 s{T+5}, s{T+5}, 2")
            a(f"s_add_u32 s{T+5}, s{T+5}, s{S_W}")
            a(f"s_mul_i32 s{T+5}, s{T+5}, 3072")
            a(f"s_add_u32 s{T+5}, s{T+5}, {WS_OP}")
            for ct in range(3):
                a(f"buffer_store_dwordx4 {vr(ACC+4*ct,4)}, v5, {srd('WS')}, s{T+5} offen offset:{ct*1024} sc1")
        else:
          for ct in range(3):
            a(f"buffer_store_dwordx4 {vr(ACC+4*ct,4)}, v15, {srd('WS')}, s{T+5} offen offset:{ct*64} sc1")
        a(f"v_mul_f32 v{LA}, v{LA}, v11")
        a(f"v_fmac_f32 v{LA}, v{O+12}, v12")
        a(f"v_min_u32 v11, 0xfffffffe, v{LA}")
        a("v_min_u32 v10, 0xfffffffe, v10")
        a(f"buffer_store_dwordx2 v[10:11], v14, {srd('WS')}, s{T+8} offen sc1")
        a.label(fin)
        self.stamp(7)

    def bset_final(self):
        a = self.a; T = S_T
        self.skip_if(f"s_cmp_ge_u32 s{S_LB}, 5", "L_bend")
        self.skip_if(f"s_cmp_lg_u32 s{S_W}, 0", "L_bend")
        a("v_lshlrev_b32 v5, 2, v1")
        for i in range(5):
            a(f"buffer_load_dword v{20+i}, v5, {srd('X')}, 0 offen offset:{256*i}")
            a(f"buffer_load_dword v{25+i}, v5, {srd('GW')}, 0 offen offset:{256*i}")
        a("v_mov_b32 v30, 0")
        a(f"s_mul_i32 s{T}, s{S_X}, 5")
        a(f"s_add_u32 s{T}, s{T}, s{S_LB}")
        a(f"s_lshl_b32 s{T+1}, s{T}, 6")
        a(f"s_add_u32 s{T+1}, s{T+1}, {WS_OUTP}")
        a("v_lshrrev_b32 v6, 2, v1")
        a("v_mul_u32_u24 v6, 2560, v6")
        a("v_and_b32 v7, 3, v1")
        a("v_lshl_add_u32 v6, v7, 4, v6")
        a("v_lshlrev_b32 v8, 2, v7")
        a("v_bfe_u32 v9, v1, 5, 1")
        a("v_lshl_add_u32 v8, v9, 1, v8")
        a("v_bfe_u32 v9, v1, 4, 1")
        a("v_add_u32 v8, v8, v9")
        a("v_lshlrev_b32 v11, 1, v8")
        a("v_and_b32 v9, 12, v1")
        a("v_mov_b32 v10, 0x7fffffff")
        a("v_cmp_eq_u32 vcc, 0, v9")
        a(f"s_lshl_b32 s{T+2}, s{T}, 5")
        a("v_cndmask_b32 v11, v10, v11, vcc")
        a("s_waitcnt vmcnt(0)")
        for i in range(5): a(f"v_dot2c_f32_bf16 v30, v{20+i}, v{25+i}")
        a("s_nop 2")
        for ctrl in ["quad_perm:[1,0,3,2]", "quad_perm:[2,3,0,1]", "row_half_mirror", "row_mirror"]:
            a(f"v_add_f32_dpp v30, v30, v30 {ctrl} row_mask:0xf bank_mask:0xf")
            a("s_nop 1")
        a("v_mov_b32 v31, v30")
        a("s_nop 1")
        a("v_permlane16_swap_b32 v30, v31")
        a("s_nop 1")
        a("v_add_f32 v30, v30, v31")
        a("v_mov_b32 v31, v30")
        a("s_nop 1")
        a("v_permlane32_swap_b32 v30, v31")
        a("s_nop 1")
        a("v_add_f32 v30, v30, v31")
        a(f"v_mul_f32 v30, 0x{f32bits(-math.log2(math.e)):08x}, v30")
        a("v_exp_f32 v30, v30")
        a("s_nop 0")
        a("v_add_f32 v30, 1.0, v30")
        a("v_rcp_f32 v30, v30")
        a("s_nop 0")
        a("v_sub_f32 v31, 1.0, v30")
        a("v_cmp_le_u32 vcc, 48, v1")
        a("s_nop 1")
        a("v_cndmask_b32 v30, v30, v31, vcc")
        O = 32
        for i in range(8): a(f"s_add_u32 s{T+3+i}, s{T+1}, {i*16*2560}")
        def f_issue(i):
            a(f"buffer_load_dwordx4 {vr(O+4*i,4)}, v6, {srd('WS')}, s{T+3+i} offen sc1")
        def f_check(i):
            a(f"v_max3_u32 v8, v{O+4*i}, v{O+4*i+1}, v{O+4*i+2}")
            a(f"v_max_u32 v8, v8, v{O+4*i+3}")
            a("v_cmp_eq_u32 vcc, -1, v8")
        self.gpoll(8, f_issue, f_check, masks=[24,26,28,30,32,34,36,38])
        self.stamp(9)
        self.stamp_val(18, S_CNT)
        for k in range(4):
            a(f"v_add_f32 v{O+k}, v{O+k}, v{O+4+k}")
            a(f"v_add_f32 v{O+8+k}, v{O+8+k}, v{O+12+k}")
            a(f"v_add_f32 v{O+16+k}, v{O+16+k}, v{O+20+k}")
            a(f"v_add_f32 v{O+24+k}, v{O+24+k}, v{O+28+k}")
        for k in range(4):
            a(f"v_add_f32 v{O+k}, v{O+k}, v{O+8+k}")
            a(f"v_add_f32 v{O+16+k}, v{O+16+k}, v{O+24+k}")
        for k in range(4): a(f"v_add_f32 v{O+k}, v{O+k}, v{O+16+k}")
        for k in range(4): a(f"v_mul_f32 v{O+k}, v{O+k}, v30")
        a("s_nop 1")
        a("v_permlane32_swap_b32 v32, v34")
        a("v_permlane32_swap_b32 v33, v35")
        a("s_nop 1")
        a("v_add_f32 v32, v32, v34")
        a("v_add_f32 v33, v33, v35")
        a("s_nop 1")
        a("v_permlane16_swap_b32 v32, v33")
        a("s_nop 1")
        a("v_add_f32 v32, v32, v33")
        a("s_nop 1")
        a("v_add_f32_dpp v32, v32, v32 row_ror:8 row_mask:0xf bank_mask:0xf")
        a("s_nop 1")
        a("v_add_f32_dpp v32, v32, v32 row_ror:4 row_mask:0xf bank_mask:0xf")
        a("s_nop 0")
        a("v_cvt_pk_bf16_f32 v32, v32, v32")
        a(f"buffer_store_short v32, v11, {srd('OUT')}, s{T+2} offen")
        noep = a.newlabel("noep")
        self.skip_if(f"s_cmp_lg_u32 s{T}, 0", noep)
        a(f"v_mov_b32 v6, s{S_EP}")
        a("v_mov_b32 v7, 0")
        a("s_mov_b64 exec, 1")
        a(f"buffer_store_dword v6, v7, {srd('WS')}, 0 offen sc1")
        a("s_mov_b64 exec, -1")
        a.label(noep)
        self.stamp(10)
        a.label("L_bend")

    def build(self):
        a = self.a
        self.prologue()
        self.bset_front()
        a("s_branch L_bs")
        a.label("L_aset")
        self.aset_front()
        a("s_branch L_aback")
        a.label("L_bs")
        self.bset_s_phase()
        self.bset_pv_phase()
        a("s_branch L_bfin")
        a.label("L_aback")
        self.aset_back()
        self.stamp_flush()
        a("s_branch L_exit")
        a.label("L_bfin")
        self.bset_final()
        self.stamp_flush()
        a.label("L_exit")
        a("s_endpgm")
        hdr = f"""; generated by dev/gen2.py
; @launch grid=(256,1,1) block=(512,1,1) lds=163840
.amdgcn_target "amdgcn-amd-amdhsa--gfx950"
.text
.globl {NAME}_kernel
.p2align 8
.type {NAME}_kernel,@function
{NAME}_kernel:
"""
        ftr = f""".section .rodata,"a"
.p2align 6
.amdhsa_kernel {NAME}_kernel
  .amdhsa_next_free_vgpr 256
  .amdhsa_next_free_sgpr 102
  .amdhsa_accum_offset 256
  .amdhsa_group_segment_fixed_size 0
  .amdhsa_kernarg_size 112
  .amdhsa_user_sgpr_count 2
  .amdhsa_user_sgpr_kernarg_segment_ptr 1
  .amdhsa_system_sgpr_workgroup_id_x 1
.end_amdhsa_kernel
"""
        return hdr + a.text() + ftr

if __name__ == "__main__":
    out = sys.argv[1] if len(sys.argv) > 1 else "k.s"
    kw = {}
    for arg in sys.argv[2:]:
        if arg == "--stamps": kw["stamps"] = True
        elif arg.startswith("--"):
            k, v = arg[2:].split("="); kw[k] = int(v)
    open(out, "w").write(Gen(**kw).build())
```

```python
import sys, math, struct

NAME = "gated_mix__compressed_kv_cla__glu_gated_glu__decode"

WS_EPOCH = 0
WS_CF    = 0x400
WS_QA    = 0x10000
WS_QPG   = 0x20000
WS_QPL   = 0x80000
WS_PBG   = 0x100000
WS_PBL   = 0x1A0000
WS_ML    = 0x240000
WS_OUTP  = 0x250000
WS_OP    = 0x2A0000
WS_ST    = 0x440000
WS_SIZE  = 0x480000
PBS = 2560

S_W, S_X, S_LI, S_H, S_J4, S_EP = 3, 4, 5, 6, 7, 8
S_LB, S_BLK, S_G, S_S = 10, 11, 12, 13
S_WSCF = 14
SRD = dict(X=16, CKV=20, WQ=24, WUK=28, WUV=32, WO=36, WG=44, WU=48, WD=52, GW=56, OUT=60, WS=64)
SRD_SIZE = dict(X=1280, CKV=12582912, WQ=7864320, WUK=9437184, WUV=9437184, WO=7864320,
                WG=1966080, WU=1966080, WD=1966080, GW=1280, OUT=1280, WS=WS_SIZE)
KARG = dict(X=0, CKV=8, WQ=16, WUK=24, WUV=32, WO=40, WG=56, WU=64, WD=72, GW=80, OUT=88, WS=104)
S_M8 = 72
S_T = 74
S_CNT = 96
S_PB = 97
S_PM = 15
S_STAMP = 98
POLL_LIMIT = 100000

class Asm:
    def __init__(self):
        self.L = []; self.uid = 0
    def __call__(self, s):
        for line in s.strip("\n").split("\n"):
            self.L.append("    " + line.strip())
    def label(self, n): self.L.append(n + ":")
    def newlabel(self, base):
        self.uid += 1
        return f"L_{base}_{self.uid}"
    def text(self):
        import re
        out = []
        for line in self.L:
            t = line.strip()
            if t.startswith("v_cndmask") and t.endswith("vcc"):
                st = 0; k = len(out) - 1; found = False
                while k >= 0 and st < 2:
                    p = out[k].strip()
                    if p.endswith(":"): break
                    if p.startswith("v_cmp") and "vcc" in p:
                        found = True; break
                    m = re.match(r"s_nop (\d+)", p)
                    st += int(m.group(1)) + 1 if m else 1
                    k -= 1
                if found and st < 2:
                    out.append(f"    s_nop {1 - st}")
            out.append(line)
        return "\n".join(out) + "\n"

def srd(n):
    b = SRD[n]; return f"s[{b}:{b+3}]"
def vr(b, n=1):
    return f"v{b}" if n == 1 else f"v[{b}:{b+n-1}]"
def f32bits(x):
    return struct.unpack("<I", struct.pack("<f", x))[0]

class Gen:
    def __init__(self, stamps=False, dbgout=0, s_trig=0, wq_pf=0, sde=0, sde_win=24, perm=0, qa_order=0, early_frags=0, fin1=1, masked=1, qa_early=0, code_pf=17, tlb_warm=0, tlb_shift=21, nt_front=False, nt_ckv=False, nt_back=False, local=True, lperiod=8, a_delay=1, qa_ack=0, exp_linear=0, a_win=63, s_win=63, pv_win=63, mlpoll=2, exp_nobulk=0, a_probe=0, s_probe=0, exp_noclear=0, exp_nowuk=0):
        self.a = Asm()
        self.stamps = stamps
        self.NTF = " nt" if nt_front else ""
        self.NTC = " nt" if nt_ckv else ""
        self.NTB = " nt" if nt_back else ""
        self.local = local
        self.a_delay = a_delay
        self.qa_ack = qa_ack
        self.code_pf = code_pf
        self.dbgout = dbgout
        self.selB = [0, 24, 25, 26, 3, 21, 16, 17]; self.selA = [23, 1, 16, 4, 17, 6, 25, 26]
        self.s_trig = s_trig
        self.wq_pf = wq_pf
        self.sde = sde; self.sde_win = sde_win
        self.perm = perm
        self.qa_order = qa_order
        self.early_frags = early_frags; self.fin1 = fin1
        self.masked = masked; self.qa_early = qa_early
        self.tlb_warm = tlb_warm; self.tlb_shift = tlb_shift
        self.exp_noclear = exp_noclear; self.exp_nowuk = exp_nowuk
        self.a_probe = a_probe; self.s_probe = s_probe
        self.exp_nobulk = exp_nobulk
        self.a_win = a_win; self.s_win = s_win; self.pv_win = pv_win; self.mlpoll = mlpoll
        self.exp_linear = exp_linear
        self.lperiod = lperiod
        self.L_Q = 0; self.L_QS = 512; self.L_F = 3072; self.L_FLAG = 2048; self.L_X = 4096
        self.L_S = 8192; self.L_PA = 106496; self.L_RED = 57344; self.L_PR = 90112
        self.L_O = 4096; self.L_C = 12288; self.L_CB = 14336; self.L_R = 16384
        self.PVO = 212

    def stamp(self, idx):
        if not self.stamps: return
        a = self.a
        a(f"s_memrealtime s[{S_STAMP}:{S_STAMP+1}]")
        a("s_waitcnt lgkmcnt(0)")
        a(f"v_writelane_b32 v255, s{S_STAMP}, {idx}")
    def stamp_val(self, idx, sreg):
        if not self.stamps: return
        self.a(f"s_add_u32 s9, s{sreg}, 1")
        self.a(f"v_writelane_b32 v255, s9, {idx}")
    def stamp_flush(self):
        if not self.stamps: return
        a = self.a
        if self.dbgout:
            sk = a.newlabel("dbo")
            a(f"s_and_b32 s9, s2, 127")
            a(f"s_lshl_b32 s9, s9, 3")
            a(f"s_add_u32 s9, s9, s{S_W}")
            self.skip_if(f"s_cmp_lg_u32 s9, {(self.dbgout-1)*8}", sk)
            a("s_load_dwordx2 s[40:41], s[0:1], 96")
            a("s_mov_b32 s42, 256")
            a("s_mov_b32 s43, 0x00020000")
            a("s_memtime s[46:47]")
            a("s_memrealtime s[48:49]")
            a("s_waitcnt lgkmcnt(0)")
            a("v_writelane_b32 v255, s46, 25")
            a("v_writelane_b32 v255, s48, 26")
            selB = self.selB; selA = self.selA
            a("s_cmp_lt_u32 s2, 128")
            a("s_cselect_b32 s9, 0, 32")
            for k in range(8):
                a(f"v_readlane_b32 s44, v255, {selB[k]}")
                a(f"v_readlane_b32 s45, v255, {selA[k]}")
                a("s_cmp_lt_u32 s2, 128")
                a("s_cselect_b32 s44, s44, s45")
                a(f"v_writelane_b32 v252, s44, {k}")
            a("v_lshlrev_b32 v253, 2, v1")
            a("v_add_u32 v253, s9, v253")
            a("s_waitcnt lgkmcnt(0)")
            a("s_mov_b64 exec, 0xff")
            a("buffer_store_dword v252, v253, s[40:43], 0 offen")
            a("s_mov_b64 exec, -1")
            a.label(sk)
            return
        a(f"s_lshl_b32 s{S_T+20}, s2, 3")
        a(f"s_add_u32 s{S_T+20}, s{S_T+20}, s{S_W}")
        a(f"s_lshl_b32 s{S_T+20}, s{S_T+20}, 7")
        a(f"s_add_u32 s{S_T+20}, s{S_T+20}, {WS_ST}")
        a("v_lshlrev_b32 v252, 2, v1")
        a("s_mov_b32 exec_lo, -1")
        a("s_mov_b32 exec_hi, 0")
        a(f"buffer_store_dword v255, v252, {srd('WS')}, s{S_T+20} offen")
        a("s_mov_b64 exec, -1")

    def treduce8(self, acc, t0, t1):
        a = self.a
        a("s_nop 2")
        for k in range(4): a(f"v_permlane32_swap_b32 v{acc+k}, v{acc+k+4}")
        a("s_nop 1")
        for k in range(4): a(f"v_add_f32 v{acc+k}, v{acc+k}, v{acc+k+4}")
        a("s_nop 1")
        for k in range(2): a(f"v_permlane16_swap_b32 v{acc+k}, v{acc+k+2}")
        a("s_nop 1")
        for k in range(2): a(f"v_add_f32 v{acc+k}, v{acc+k}, v{acc+k+2}")
        a("s_nop 0")
        a(f"v_cndmask_b32 v{t0}, v{acc}, v{acc+1}, s[{S_M8}:{S_M8+1}]")
        a(f"v_cndmask_b32 v{t1}, v{acc+1}, v{acc}, s[{S_M8}:{S_M8+1}]")
        a("s_nop 1")
        a(f"v_add_f32_dpp v{acc}, v{t1}, v{t0} row_ror:8 row_mask:0xf bank_mask:0xf")

    def skip_if(self, cmp, label):
        self.a(cmp); self.a(f"s_cbranch_scc1 {label}")

    def poll_begin(self, lbase=None, gbase=None):
        a = self.a
        l = a.newlabel("poll")
        a(f"s_mov_b32 s{S_CNT}, 0")
        a.label(l)
        if lbase is not None:
            if self.local:
                a(f"s_and_b32 s9, s{S_CNT}, {self.lperiod-1}")
                a(f"s_cmp_eq_u32 s9, {self.lperiod-1}")
                a(f"s_cselect_b32 s{S_PB}, s{gbase}, s{lbase}")
            else:
                a(f"s_mov_b32 s{S_PB}, s{gbase}")
        return l
    def poll_end(self, l, vbad):
        a = self.a
        ok = a.newlabel("ok")
        a(f"v_cmp_ne_u32 vcc, 0, v{vbad}")
        a(f"s_cbranch_vccz {ok}")
        a(f"s_add_u32 s{S_CNT}, s{S_CNT}, 1")
        a(f"s_cmp_lt_u32 s{S_CNT}, {POLL_LIMIT}")
        a(f"s_cbranch_scc1 {l}")
        a.label(ok)

    def gpoll(self, n, issue, check, pre=None, first_issued=False, masks=None):
        a = self.a
        top = a.newlabel("gp"); done = a.newlabel("gpd")
        if not self.masked: masks = None
        a(f"s_mov_b32 s{S_PM}, {(1<<n)-1}")
        a(f"s_mov_b32 s{S_CNT}, 0")
        if masks:
            for m in masks: a(f"s_mov_b64 s[{m}:{m+1}], -1")
        if first_issued:
            chk = a.newlabel("gpc")
            a(f"s_branch {chk}")
        a.label(top)
        if pre: pre()
        for i in range(n):
            sk = a.newlabel("gi")
            a(f"s_bitcmp0_b32 s{S_PM}, {i}")
            a(f"s_cbranch_scc1 {sk}")
            if masks: a(f"s_mov_b64 exec, s[{masks[i]}:{masks[i]+1}]")
            issue(i)
            a.label(sk)
        if masks: a("s_mov_b64 exec, -1")
        if first_issued: a.label(chk)
        a("s_waitcnt vmcnt(0)")
        for i in range(n):
            sk = a.newlabel("gc")
            a(f"s_bitcmp0_b32 s{S_PM}, {i}")
            a(f"s_cbranch_scc1 {sk}")
            check(i)
            if masks: a(f"s_mov_b64 s[{masks[i]}:{masks[i]+1}], vcc")
            a(f"s_cbranch_vccnz {sk}")
            a(f"s_bitset0_b32 s{S_PM}, {i}")
            a.label(sk)
        a(f"s_cmp_eq_u32 s{S_PM}, 0")
        a(f"s_cbranch_scc1 {done}")
        a(f"s_add_u32 s{S_CNT}, s{S_CNT}, 1")
        a(f"s_cmp_lt_u32 s{S_CNT}, {POLL_LIMIT}")
        a(f"s_cbranch_scc1 {top}")
        a.label(done)

    def lds_signal(self, base, widx_mask=3):
        a = self.a
        a(f"s_and_b32 s9, s{S_W}, {widx_mask}")
        a("s_lshl_b32 s9, s9, 2")
        a(f"s_add_u32 s9, s9, {self.L_FLAG+base}")
        a("v_mov_b32 v6, s9")
        a("v_mov_b32 v7, 1")
        a("ds_write_b32 v6, v7")
    def lds_wait(self, base, vt):
        a = self.a
        a(f"v_mov_b32 v6, {self.L_FLAG+base}")
        l = self.poll_begin()
        a(f"ds_read_b128 {vr(vt,4)}, v6")
        a("s_waitcnt lgkmcnt(0)")
        a(f"v_and_b32 v{vt}, v{vt}, v{vt+1}")
        a(f"v_and_b32 v{vt+2}, v{vt+2}, v{vt+3}")
        a(f"v_and_b32 v{vt}, v{vt}, v{vt+2}")
        a(f"v_xor_b32 v{vt}, 1, v{vt}")
        self.poll_end(l, vt)

    def cf_check(self, vb):
        a = self.a
        a(f"v_lshlrev_b32 v{vb+4}, 4, v1")
        l = self.poll_begin()
        a(f"buffer_load_dwordx4 {vr(vb,4)}, v{vb+4}, {srd('WS')}, s{S_WSCF} offen sc1")
        a("s_waitcnt vmcnt(0)")
        for k in range(4): a(f"v_xor_b32 v{vb+k}, s{S_EP}, v{vb+k}")
        a(f"v_or3_b32 v{vb}, v{vb}, v{vb+1}, v{vb+2}")
        a(f"v_or_b32 v{vb}, v{vb}, v{vb+3}")
        self.poll_end(l, vb)

    def mk_srd(self, n):
        a = self.a; b = SRD[n]
        if n != "WS":
            src = 76 + KARG[n] // 4
            a(f"s_mov_b64 s[{b}:{b+1}], s[{src}:{src+1}]")
        a(f"s_mov_b32 s{b+2}, {SRD_SIZE[n]}")
        a(f"s_mov_b32 s{b+3}, 0x00020000")

    def prologue(self):
        a = self.a; T = S_T
        if self.stamps: a("s_memrealtime s[42:43]")
        a("s_cmp_ge_u32 s2, 256")
        a("s_cbranch_scc1 L_exit")
        if self.perm == 1:
            a("s_lshr_b32 s3, s2, 3")
            a("s_and_b32 s2, s2, 7")
            a("s_lshl_b32 s2, s2, 5")
            a("s_or_b32 s2, s2, s3")
        elif self.perm:
            a(f"s_mul_i32 s2, s2, {self.perm}")
            a("s_and_b32 s2, s2, 255")
        a("s_load_dwordx16 s[76:91], s[0:1], 0")
        a("s_load_dwordx8 s[92:99], s[0:1], 64")
        a("s_load_dwordx2 s[64:65], s[0:1], 104")
        a("v_lshrrev_b32 v2, 6, v0")
        a("v_and_b32 v1, 63, v0")
        a(f"v_readfirstlane_b32 s{S_W}, v2")
        a(f"s_lshr_b32 s{S_LI}, s2, 3")
        a(f"s_and_b32 s{S_LI}, s{S_LI}, 15")
        if self.code_pf:
            npf = a.newlabel("npf"); lp = a.newlabel("pfl")
            a(f"s_and_b32 s9, s{S_LI}, 7")
            a("s_lshl_b32 s9, s9, 3")
            a(f"s_add_u32 s9, s9, s{S_W}")
            self.skip_if("s_cmp_lg_u32 s9, 7", npf)
            a("s_getpc_b64 s[40:41]")
            a("v_lshlrev_b32 v252, 4, v1")
            a(f"s_mov_b32 s9, {self.code_pf}")
            a.label(lp)
            a("global_load_dwordx4 v[248:251], v252, s[40:41]")
            a("v_add_u32 v252, 1024, v252")
            a("s_sub_u32 s9, s9, 1")
            a("s_cmp_lg_u32 s9, 0")
            a(f"s_cbranch_scc1 {lp}")
            a.label(npf)
        a(f"s_and_b32 s{S_X}, s2, 7")
        a(f"s_and_b32 s9, s{S_LI}, 3")
        a(f"s_lshl_b32 s{S_H}, s{S_X}, 2")
        a(f"s_add_u32 s{S_H}, s{S_H}, s9")
        a(f"s_lshr_b32 s{S_J4}, s{S_LI}, 2")
        a("v_lshrrev_b32 v2, 3, v1")
        a("v_and_b32 v3, 7, v1")
        a("v_mul_u32_u24 v4, 12288, v2")
        a("v_lshl_add_u32 v4, v3, 4, v4")
        a("s_cmp_lt_u32 s2, 128")
        a("s_cbranch_scc0 L_apre")
        a(f"s_cmp_ge_u32 s{S_W}, 3")
        a("s_cselect_b32 s100, 1, 0")
        a("s_mul_i32 s101, s100, 3")
        a(f"s_sub_u32 s101, s{S_W}, s101")
        a(f"s_mul_i32 s44, s{S_J4}, 160")
        a("s_mul_i32 s45, s100, 80")
        a("s_add_u32 s44, s44, s45")
        a("s_lshl_b32 s46, s44, 1")
        a("s_mul_i32 s44, s44, 12288")
        a(f"s_mul_i32 s45, s{S_H}, 384")
        a("s_add_u32 s44, s44, s45")
        a("s_lshl_b32 s45, s101, 7")
        a("s_add_u32 s44, s44, s45")
        a(f"s_mov_b32 s{SRD['WQ']+2}, {SRD_SIZE['WQ']}")
        a(f"s_mov_b32 s{SRD['WQ']+3}, 0x00020000")
        a("s_waitcnt lgkmcnt(0)")
        a(f"s_mov_b64 s[{SRD['WQ']}:{SRD['WQ']+1}], s[80:81]")
        nl = a.newlabel("bnl")
        self.skip_if(f"s_cmp_ge_u32 s{S_W}, 6", nl)
        for i in range(10):
            a(f"buffer_load_dwordx4 {vr(20+4*i,4)}, v4, {srd('WQ')}, s44 offen{self.NTF}")
            if i < 9: a("s_add_u32 s44, s44, 98304")
        a.label(nl)
        a("s_branch L_pre2")
        a.label("L_apre")
        a(f"s_lshr_b32 s100, s{S_W}, 1")
        a(f"s_and_b32 s101, s{S_W}, 1")
        a(f"s_mul_i32 s44, s{S_J4}, 192")
        a("s_mul_i32 s45, s100, 48")
        a("s_add_u32 s44, s44, s45")
        a("s_lshl_b32 s45, s101, 3")
        a("s_add_u32 s44, s44, s45")
        a("s_mul_i32 s44, s44, 12288")
        a(f"s_mul_i32 s45, s{S_H}, 384")
        a("s_add_u32 s44, s44, s45")
        a(f"s_mov_b32 s{SRD['WUK']+2}, {SRD_SIZE['WUK']}")
        a(f"s_mov_b32 s{SRD['WUK']+3}, 0x00020000")
        a("s_waitcnt lgkmcnt(0)")
        a(f"s_mov_b64 s[{SRD['WUK']}:{SRD['WUK']+1}], s[82:83]")
        if self.wq_pf:
            a(f"s_mov_b64 s[{SRD['WQ']}:{SRD['WQ']+1}], s[80:81]")
            a(f"s_mov_b32 s{SRD['WQ']+2}, {SRD_SIZE['WQ']}")
            a(f"s_mov_b32 s{SRD['WQ']+3}, 0x00020000")
            a(f"s_mul_i32 s46, s{S_J4}, 160")
            a(f"s_lshl_b32 s47, s{S_W}, 3")
            a("s_add_u32 s46, s46, s47")
            a(f"s_add_u32 s46, s46, 80")
            a("s_mul_i32 s46, s46, 12288")
            a("s_add_u32 s46, s46, s45")
            for t in range(3):
                a(f"buffer_load_dwordx4 v[100:103], v4, {srd('WQ')}, s46 offen offset:{t*128}")
            a(f"s_add_u32 s46, s46, {64*12288}")
            npf2 = a.newlabel("npf2")
            self.skip_if(f"s_cmp_ge_u32 s{S_W}, 2", npf2)
            for t in range(3):
                a(f"buffer_load_dwordx4 v[100:103], v4, {srd('WQ')}, s46 offen offset:{t*128}")
            a.label(npf2)
            if self.wq_pf == 3: a("s_waitcnt vmcnt(0)")
        for f in range(3):
            for t in range(3):
                a(f"buffer_load_dwordx4 {vr(20+(f*3+t)*4,4)}, v4, {srd('WUK')}, s44 offen offset:{t*128}{self.NTF}")
            if f < 2: a("s_add_u32 s44, s44, 196608")
        a.label("L_pre2")
        a(f"s_load_dword s{S_EP}, s[64:65], {WS_EPOCH}")
        a(f"s_mov_b32 s{T}, s100")
        a(f"s_mov_b32 s{T+1}, s101")
        a(f"s_mov_b32 s{S_PM}, s46")
        for n in SRD: self.mk_srd(n)
        if self.stamps:
            a("v_mov_b32 v255, 0")
            self.stamp(0)
            a("v_writelane_b32 v255, s42, 23")
            a("s_memtime s[42:43]")
            a("s_waitcnt lgkmcnt(0)")
            a("v_writelane_b32 v255, s42, 24")
        a(f"s_mov_b32 s{S_M8}, 0xff00ff00")
        a(f"s_mov_b32 s{S_M8+1}, 0xff00ff00")
        a(f"s_mov_b32 s{S_WSCF}, {WS_CF}")
        a("s_cmp_lt_u32 s2, 128")
        a("s_cbranch_scc0 L_aset")

    def aset_front(self):
        a = self.a; T = S_T
        W0 = 20; QF = 56; ACC = 68
        a(f"s_lshl_b32 s{T+10}, s{S_X}, 4")
        a(f"s_add_u32 s{T+10}, s{T+10}, s{S_LI}")
        a(f"s_mul_i32 s{T+10}, s{T+10}, 2560")
        a(f"s_add_u32 s{T+10}, s{T+10}, {WS_OUTP}")
        a("v_mov_b32 v76, -1\nv_mov_b32 v77, -1\nv_mov_b32 v78, -1\nv_mov_b32 v79, -1")
        a("v_lshlrev_b32 v80, 4, v0")
        a("v_mov_b32 v81, 0x7fffffff")
        a("v_cmp_gt_u32 vcc, 160, v0")
        a("s_nop 1")
        a("v_cndmask_b32 v80, v81, v80, vcc")
        a(f"buffer_store_dwordx4 v[76:79], v80, {srd('WS')}, s{T+10} offen sc1")
        a("v_lshlrev_b32 v5, 2, v1")
        a("v_mov_b32 v6, 0")
        a(f"ds_write_b32 v5, v6 offset:{self.L_CB}")
        a(f"ds_write_b32 v5, v6 offset:{self.L_CB+256}")
        a(f"s_mul_i32 s{T+5}, s{S_H}, {8*1536}")
        a(f"s_add_u32 s{T+6}, s{T+5}, {WS_QPL}")
        a(f"s_add_u32 s{T+5}, s{T+5}, {WS_QPG}")
        a("s_waitcnt vmcnt(0) lgkmcnt(0)")
        a(f"s_add_u32 s{S_EP}, s{S_EP}, 1")
        self.stamp(1)
        skip = a.newlabel("e1skip")
        self.skip_if(f"s_cmp_ge_u32 s{S_W}, 3", skip)
        a("v_lshlrev_b32 v5, 3, v0")
        G = 84
        l = self.poll_begin(T+6, T+5)
        for p in range(8):
            a(f"buffer_load_dwordx2 {vr(G+2*p,2)}, v5, {srd('WS')}, s{S_PB} offen offset:{(p%2)*1536} sc1")
            if p % 2 == 1 and p < 7: a(f"s_add_u32 s{S_PB}, s{S_PB}, 3072")
        a("s_waitcnt vmcnt(0)")
        a(f"v_xor_b32 v6, s{S_EP}, v{G+1}")
        for p in range(1, 8):
            a(f"v_xor_b32 v7, s{S_EP}, v{G+2*p+1}")
            a("v_or_b32 v6, v6, v7")
        self.poll_end(l, 6)
        self.stamp_val(16, S_CNT)
        for p in range(1, 8): a(f"v_add_f32 v{G}, v{G}, v{G+2*p}")
        a(f"v_cvt_pk_bf16_f32 v6, v{G}, v{G}")
        a("v_lshlrev_b32 v7, 1, v0")
        a(f"ds_write_b16 v7, v6 offset:{self.L_Q}")
        a("s_waitcnt lgkmcnt(0)")
        a.label(skip)
        a("v_lshlrev_b32 v5, 4, v3")
        a(f"s_lshl_b32 s{T+7}, s{S_W}, 6")
        a("v_lshlrev_b32 v10, 1, v2")
        a(f"v_add_u32 v10, s{T+7}, v10")
        a("v_lshlrev_b32 v6, 4, v1")
        a("v_mov_b32 v7, 4")
        a("v_cmp_eq_u32 vcc, 3, v1")
        a("v_mov_b32 v8, 12")
        a("v_mov_b32 v9, 16")
        a("v_cndmask_b32 v6, v6, v8, vcc")
        a("v_cndmask_b32 v7, v7, v9, vcc")
        a("v_and_b32 v6, 63, v6")
        a(f"v_add_u32 v11, s{T+7}, v6")
        a("v_add_u32 v12, v11, v7")
        a("v_add_u32 v13, v12, v7")
        a(f"s_lshl_b32 s{T+8}, s{S_J4}, 2")
        a(f"s_add_u32 s{T+8}, s{T+8}, s{T}")
        a(f"s_lshl_b32 s{T+8}, s{T+8}, 12")
        a(f"s_lshl_b32 s{T+9}, s{T+1}, 9")
        a(f"s_add_u32 s{T+8}, s{T+8}, s{T+9}")
        a(f"s_lshl_b32 s{T+9}, s{S_H}, 4")
        a(f"s_add_u32 s{T+8}, s{T+8}, s{T+9}")
        a(f"s_add_u32 s{T+8}, s{T+8}, {WS_QA}")
        a("v_lshlrev_b32 v14, 10, v1")
        a("v_mov_b32 v7, 0x7fffffff")
        a("v_cmp_gt_u32 vcc, 4, v1")
        a(f"v_mov_b32 v75, s{S_EP}")
        a("v_cndmask_b32 v14, v7, v14, vcc")
        for f in range(3): a(f"v_mov_b32 v{ACC+f}, 0")
        a("s_barrier")
        self.stamp(2)
        for t in range(3):
            a(f"ds_read_b128 {vr(QF+4*t,4)}, v5 offset:{self.L_Q + t*128}")
        for t in range(3):
            a(f"s_waitcnt lgkmcnt({2-t})")
            for k in range(4):
                for f in range(3):
                    a(f"v_dot2c_f32_bf16 v{ACC+f}, v{W0+(f*3+t)*4+k}, v{QF+4*t+k}")
        a("s_nop 2")
        for ctrl in ["quad_perm:[1,0,3,2]", "quad_perm:[2,3,0,1]", "row_half_mirror"]:
            for f in range(3):
                a(f"v_add_f32_dpp v{ACC+f}, v{ACC+f}, v{ACC+f} {ctrl} row_mask:0xf bank_mask:0xf")
        for f in range(3): a(f"v_cvt_pk_bf16_f32 v{ACC+f}, v{ACC+f}, v{ACC+f}")
        for f in range(3): a(f"ds_write_b16 v10, v{ACC+f} offset:{self.L_QS + f*16}")
        a("s_waitcnt lgkmcnt(0)")
        a(f"ds_read_b32 v72, v11 offset:{self.L_QS}")
        a(f"ds_read_b32 v73, v12 offset:{self.L_QS}")
        a(f"ds_read_b32 v74, v13 offset:{self.L_QS}")
        a("s_waitcnt lgkmcnt(0)")
        a(f"buffer_store_dwordx4 v[72:75], v14, {srd('WS')}, s{T+8} offen sc1")
        self.stamp(3)
        if self.qa_ack: a("s_waitcnt vmcnt(0)")
        a("s_barrier")

    def wo_lane_offsets(self):
        a = self.a
        a("v_mul_u32_u24 v6, 52429, v0")
        a("v_lshrrev_b32 v6, 22, v6")
        a("v_mul_u32_u24 v7, 80, v6")
        a("v_sub_u32 v7, v0, v7")
        a("v_mul_u32_u24 v5, 1280, v6")
        a("v_lshl_add_u32 v5, v7, 4, v5")
        a("v_mov_b32 v8, 0x7fffffff")
        a("v_cmp_gt_u32 vcc, 480, v0")
        a("s_nop 1")
        a("v_cndmask_b32 v5, v8, v5, vcc")

    def preperm(self, W0, npairs, t0):
        a = self.a
        a("s_mov_b32 s94, 0x05040100")
        a("s_mov_b32 s95, 0x07060302")
        for p in range(npairs):
            for k in range(4):
                r0 = W0 + 8*p + k; r1 = r0 + 4
                a(f"v_perm_b32 v{t0}, v{r1}, v{r0}, s94")
                a(f"v_perm_b32 v{r1}, v{r1}, v{r0}, s95")
                a(f"v_mov_b32 v{r0}, v{t0}")

    def gemv_pairs(self, W0, npairs, CO, ACC):
        a = self.a
        for p in range(npairs):
            for k in range(4):
                a(f"v_dot2c_f32_bf16 v{ACC+2*k}, v{W0+8*p+k}, v{CO+p}")
            for k in range(4):
                a(f"v_dot2c_f32_bf16 v{ACC+2*k+1}, v{W0+8*p+4+k}, v{CO+p}")

    def out_reduce_publish(self, ACC, outp_soff):
        a = self.a
        a("s_nop 2")
        a(f"ds_write_b128 v129, {vr(ACC,4)} offset:{self.L_R}")
        a(f"ds_write_b128 v129, {vr(ACC+4,4)} offset:{self.L_R+16}")
        a("s_waitcnt lgkmcnt(0)")
        a("s_barrier")
        skip = a.newlabel("go")
        self.skip_if(f"s_cmp_ge_u32 s{S_W}, 3", skip)
        R = 132
        for sl in range(6):
            a(f"ds_read_b128 {vr(R+4*sl,4)}, v131 offset:{self.L_R+sl*2560}")
        a("s_waitcnt lgkmcnt(0)")
        for k in range(4):
            a(f"v_add_f32 v{R+k}, v{R+k}, v{R+4+k}")
            a(f"v_add_f32 v{R+8+k}, v{R+8+k}, v{R+12+k}")
            a(f"v_add_f32 v{R+16+k}, v{R+16+k}, v{R+20+k}")
        for k in range(4): a(f"v_add_f32 v{R+k}, v{R+k}, v{R+8+k}")
        for k in range(4): a(f"v_add_f32 v{R+k}, v{R+k}, v{R+16+k}")
        for k in range(4): a(f"v_min_u32 v{R+k}, 0xfffffffe, v{R+k}")
        a(f"buffer_store_dwordx4 {vr(R,4)}, v130, {srd('WS')}, s{outp_soff} offen sc1")
        a.label(skip)

    def write_pairs(self, vsrc, t0, t1, nvalid):
        a = self.a
        a(f"v_lshlrev_b32 v{t0}, 2, v1")
        a(f"v_add_u32 v{t1}, {self.L_CB - 24 + 2}, v{t0}")
        a(f"v_add_u32 v{t0}, {self.L_CB}, v{t0}")
        a(f"v_mov_b32 v{t0+2}, {self.L_CB + 500}")
        a("v_cmp_gt_u32 vcc, 6, v1")
        a("s_nop 1")
        a(f"v_cndmask_b32 v{t1}, v{t1}, v{t0+2}, vcc")
        if nvalid < 64:
            a(f"v_cmp_le_u32 vcc, {nvalid}, v1")
            a("s_nop 1")
            a(f"v_cndmask_b32 v{t1}, v{t1}, v{t0+2}, vcc")
            a(f"v_cndmask_b32 v{t0}, v{t0}, v{t0+2}, vcc")
        a(f"ds_write_b16 v{t0}, v{vsrc}")
        a(f"ds_write_b16 v{t1}, v{vsrc}")

    def out_addr_regs(self):
        a = self.a
        a("v_mul_u32_u24 v129, 2560, v6")
        a("v_lshl_add_u32 v129, v7, 5, v129")
        a("v_lshlrev_b32 v131, 4, v0")
        a("v_mov_b32 v130, 0x7fffffff")
        a("v_cmp_gt_u32 vcc, 160, v0")
        a("s_nop 1")
        a("v_cndmask_b32 v130, v130, v131, vcc")

    def aset_back(self):
        a = self.a; T = S_T
        self.wo_lane_offsets()
        self.out_addr_regs()
        if self.exp_nobulk:
            a(f"s_lshl_b32 s{T+1}, s{S_H}, 7")
            a(f"s_add_u32 s{T+1}, s{T+1}, {WS_ML}")
            a("v_and_b32 v14, 15, v1")
            a("v_lshlrev_b32 v14, 3, v14")
            self.cf_check(132)
            l = self.poll_begin()
            a(f"buffer_load_dwordx2 v[116:117], v14, {srd('WS')}, s{T+1} offen sc1")
            a("s_waitcnt vmcnt(0)")
            a("v_max_u32 v15, v116, v117")
            a("v_cmp_eq_u32 vcc, -1, v15")
            a("s_nop 1")
            a("v_cndmask_b32 v15, 0, 1, vcc")
            a("s_sleep 4")
            self.poll_end(l, 15)
        self.skip_if(f"s_cmp_ge_u32 s{S_LI}, 12", "L_bbranch")
        WV = 20; WO = 68
        a(f"s_mul_i32 s{T}, s{S_W}, {96*12288}")
        a(f"s_mul_i32 s{T+1}, s{S_H}, 384")
        a(f"s_add_u32 s{T}, s{T}, s{T+1}")
        a(f"s_lshl_b32 s{T+1}, s{S_J4}, 7")
        a(f"s_add_u32 s{T}, s{T}, s{T+1}")
        for i in range(12):
            a(f"buffer_load_dwordx4 {vr(WV+4*i,4)}, v4, {srd('WUV')}, s{T} offen{self.NTB}")
            if i >= self.a_win: a(f"s_waitcnt vmcnt({self.a_win})")
            if i < 11: a(f"s_add_u32 s{T}, s{T}, 98304")
        a(f"s_mul_i32 s{T}, s{S_H}, 192")
        a(f"s_lshl_b32 s{T+1}, s{S_J4}, 6")
        a(f"s_add_u32 s{T}, s{T}, s{T+1}")
        a(f"s_mul_i32 s{T}, s{T}, 1280")
        for i in range(10):
            a(f"buffer_load_dwordx4 {vr(WO+4*i,4)}, v5, {srd('WO')}, s{T} offen{self.NTB}")
            if 12 + i >= self.a_win: a(f"s_waitcnt vmcnt({self.a_win})")
            a(f"s_add_u32 s{T}, s{T}, 7680")
        a("v_cmp_gt_u32 vcc, 4, v6")
        a("s_nop 1")
        a("v_cndmask_b32 v9, v8, v5, vcc")
        a(f"buffer_load_dwordx4 {vr(WO+40,4)}, v9, {srd('WO')}, s{T} offen{self.NTB}")
        for k in range(4): a(f"v_mov_b32 v{WO+44+k}, 0")
        self.stamp(4)
        a("v_cmp_le_u32 vcc, 24, v1")
        a("s_nop 1")
        a("v_cndmask_b32 v10, 0, 1, vcc")
        a("v_mul_u32_u24 v11, 24, v10")
        a("v_sub_u32 v11, v1, v11")
        a("v_mul_u32_u24 v12, 384, v10")
        a("v_lshl_add_u32 v12, v11, 4, v12")
        a(f"s_lshl_b32 s{T+2}, s{S_W}, 10")
        a(f"s_add_u32 s{T+2}, s{T+2}, {self.L_O}")
        a(f"v_add_u32 v13, s{T+2}, v12")
        a("v_cmp_gt_u32 vcc, 48, v1")
        a("v_lshlrev_b32 v16, 2, v2")
        a(f"v_add_u32 v16, s{T+2}, v16")
        a("v_cndmask_b32 v12, v8, v12, vcc")
        a(f"s_lshl_b32 s{T}, s{S_H}, 3")
        a(f"s_add_u32 s{T}, s{T}, s{S_W}")
        a(f"s_mul_i32 s{T}, s{T}, {16*384}")
        a(f"s_add_u32 s{T}, s{T}, {WS_OP}")
        a(f"s_lshl_b32 s{T+1}, s{S_H}, 7")
        a(f"s_add_u32 s{T+1}, s{T+1}, {WS_ML}")
        a("v_and_b32 v14, 15, v1")
        a("v_lshlrev_b32 v14, 3, v14")
        a("v_lshlrev_b32 v121, 2, v10")
        a("v_lshlrev_b32 v17, 5, v3")
        a("v_lshl_add_u32 v17, v2, 2, v17")
        a(f"s_lshl_b32 s{T+3}, s{S_W}, 8")
        a(f"v_add_u32 v17, s{T+3}, v17")
        a("v_lshlrev_b32 v18, 2, v6")
        a("v_lshlrev_b32 v172, 2, v1")
        a(f"v_add_u32 v173, {self.L_CB - 24 + 2}, v172")
        a(f"v_add_u32 v172, {self.L_CB}, v172")
        a(f"v_mov_b32 v174, {self.L_CB + 500}")
        a("v_cmp_gt_u32 vcc, 6, v1")
        a("s_nop 1")
        a("v_cndmask_b32 v173, v173, v174, vcc")
        a("s_waitcnt vmcnt(11)")
        self.preperm(WV, 6, 128)
        a("s_waitcnt vmcnt(0)")
        self.preperm(WO, 6, 128)
        self.stamp(5)
        self.cf_check(132)
        OPV = 132
        def e4_issue(i):
            if i == 8:
                a(f"buffer_load_dwordx2 v[116:117], v14, {srd('WS')}, s{T+1} offen sc1")
            else:
                so = T if i < 4 else T+2
                a(f"buffer_load_dwordx4 {vr(OPV+4*i,4)}, v12, {srd('WS')}, s{so} offen offset:{(i%4)*768} sc1")
        def e4_check(i):
            if i == 8:
                a("v_max_u32 v15, v116, v117")
            else:
                a(f"v_max3_u32 v15, v{OPV+4*i}, v{OPV+4*i+1}, v{OPV+4*i+2}")
                a(f"v_max_u32 v15, v15, v{OPV+4*i+3}")
            a("v_cmp_eq_u32 vcc, -1, v15")
        a(f"s_add_u32 s{T+2}, s{T}, 3072")
        if self.mlpoll == 1:
            l = self.poll_begin()
            a(f"buffer_load_dwordx2 v[116:117], v14, {srd('WS')}, s{T+1} offen sc1")
            a("s_waitcnt vmcnt(0)")
            a("v_max_u32 v15, v116, v117")
            a("v_cmp_eq_u32 vcc, -1, v15")
            a("s_nop 1")
            a("v_cndmask_b32 v15, 0, 1, vcc")
            self.poll_end(l, 15)
            self.gpoll(8, e4_issue, e4_check, masks=[20,22,24,26,28,30,44,46])
        elif self.mlpoll == 2:
            l = a.newlabel("mla"); ok = a.newlabel("mlo")
            a(f"s_mov_b32 s{S_CNT}, 0")
            a.label(l)
            a(f"buffer_load_dwordx2 v[116:117], v14, {srd('WS')}, s{T+1} offen sc1")
            a("s_waitcnt vmcnt(0)")
            a("v_max_u32 v15, v116, v117")
            a("v_cmp_ne_u32 vcc, -1, v15")
            a(f"s_cbranch_vccnz {ok}")
            a("s_sleep 2")
            a(f"s_add_u32 s{S_CNT}, s{S_CNT}, 1")
            a(f"s_cmp_lt_u32 s{S_CNT}, {POLL_LIMIT}")
            a(f"s_cbranch_scc1 {l}")
            a.label(ok)
            self.gpoll(9, e4_issue, e4_check, masks=[20,22,24,26,28,30,44,46,48])
        else:
            self.gpoll(9, e4_issue, e4_check)
        self.stamp(6)
        self.stamp_val(17, S_CNT)
        a("v_mov_b32 v118, v116")
        a("s_nop 1")
        for ctrl in ["quad_perm:[1,0,3,2]", "quad_perm:[2,3,0,1]", "row_half_mirror", "row_mirror"]:
            a(f"v_max_f32_dpp v118, v118, v118 {ctrl} row_mask:0xf bank_mask:0xf")
            a("s_nop 1")
        a("v_sub_f32 v119, v116, v118")
        a("v_exp_f32 v119, v119")
        a("s_nop 0")
        a("v_mul_f32 v120, v117, v119")
        WN = 164
        for i in range(8): a(f"ds_bpermute_b32 v{WN+i}, v121, v119 offset:{8*i}")
        for ctrl in ["quad_perm:[1,0,3,2]", "quad_perm:[2,3,0,1]", "row_half_mirror", "row_mirror"]:
            a(f"v_add_f32_dpp v120, v120, v120 {ctrl} row_mask:0xf bank_mask:0xf")
            a("s_nop 1")
        a("v_rcp_f32 v120, v120")
        a("s_waitcnt lgkmcnt(0)")
        for k in range(4): a(f"v_mul_f32 v{122+k}, v{WN}, v{OPV+k}")
        for i in range(1, 8):
            for k in range(4): a(f"v_fmac_f32 v{122+k}, v{WN+i}, v{OPV+4*i+k}")
        for k in range(4): a(f"v_mul_f32 v{122+k}, v{122+k}, v120")
        a("s_mov_b32 exec_hi, 0xffff")
        a("ds_write_b128 v13, v[122:125]")
        a("s_mov_b32 exec_hi, -1")
        a("s_waitcnt lgkmcnt(0)")
        OV = 132
        for i in range(12):
            a(f"ds_read2_b32 {vr(OV+2*i,2)}, v16 offset0:{8*i} offset1:{8*i+96}")
        ACC = 120
        for k in range(8): a(f"v_mov_b32 v{ACC+k}, 0")
        CO = 160
        for p in range(6):
            a(f"s_waitcnt lgkmcnt({10-2*p})")
            a(f"v_add_f32 v{OV+4*p}, v{OV+4*p}, v{OV+4*p+1}")
            a(f"v_add_f32 v{OV+4*p+2}, v{OV+4*p+2}, v{OV+4*p+3}")
            a(f"v_cvt_pk_bf16_f32 v{CO+p}, v{OV+4*p}, v{OV+4*p+2}")
        self.gemv_pairs(WV, 6, CO, ACC)
        self.treduce8(ACC, 128, 118)
        a(f"ds_write_b32 v17, v{ACC} offset:{self.L_C}")
        a("s_waitcnt lgkmcnt(0)")
        a("s_barrier")
        self.stamp(7)
        skip = a.newlabel("cx")
        self.skip_if(f"s_cmp_lg_u32 s{S_W}, 0", skip)
        a("v_lshlrev_b32 v13, 2, v1")
        for w in range(8): a(f"ds_read_b32 v{132+w}, v13 offset:{self.L_C+w*256}")
        a("s_waitcnt lgkmcnt(0)")
        a("v_add_f32 v132, v132, v133\nv_add_f32 v134, v134, v135\nv_add_f32 v136, v136, v137\nv_add_f32 v138, v138, v139")
        a("v_add_f32 v132, v132, v134\nv_add_f32 v136, v136, v138")
        a("v_add_f32 v132, v132, v136")
        a("v_cvt_pk_bf16_f32 v132, v132, v132")
        a("ds_write_b16 v172, v132")
        a("ds_write_b16 v173, v132")
        a("s_waitcnt lgkmcnt(0)")
        a.label(skip)
        for k in range(8): a(f"v_mov_b32 v{ACC+k}, 0")
        a("s_barrier")
        for p in range(6):
            a(f"ds_read_b32 v{CO+p}, v18 offset:{self.L_CB+48*p}")
        a("s_waitcnt lgkmcnt(0)")
        self.gemv_pairs(WO, 6, CO, ACC)
        self.out_reduce_publish(ACC, T+10)
        self.stamp(8)
        a("s_branch L_aend")

        a.label("L_bbranch")
        WG = 20; XB = 84; WD = 160
        a("v_lshlrev_b32 v19, 2, v6")
        a(f"s_lshl_b32 s{T}, s{S_X}, 2")
        a(f"s_add_u32 s{T}, s{T}, s{S_LI}")
        a(f"s_sub_u32 s{T}, s{T}, 12")
        a("v_mul_u32_u24 v10, 43, v1")
        a("v_lshrrev_b32 v10, 8, v10")
        a("v_mul_u32_u24 v11, 6, v10")
        a("v_sub_u32 v11, v1, v11")
        a("v_mul_u32_u24 v12, 3072, v10")
        a("v_lshl_add_u32 v12, v11, 4, v12")
        a("v_cmp_gt_u32 vcc, 60, v1")
        a("v_lshlrev_b32 v13, 1, v10")
        a("v_cndmask_b32 v12, v8, v12, vcc")
        a(f"s_and_b32 s{T+1}, s{S_W}, 3")
        a(f"s_mul_i32 s{T+2}, s{T+1}, 320")
        for i in range(16):
            a(f"buffer_load_ushort v{XB+i}, v13, {srd('X')}, s{T+2} offen offset:{20*i}")
        a(f"s_mul_i32 s{T+2}, s{T+1}, {160*3072}")
        a(f"s_mul_i32 s{T+3}, s{T}, 96")
        a(f"s_add_u32 s{T+2}, s{T+2}, s{T+3}")
        up = a.newlabel("up"); upd = a.newlabel("upd")
        self.skip_if(f"s_cmp_ge_u32 s{S_W}, 4", up)
        for i in range(16):
            a(f"buffer_load_dwordx4 {vr(WG+4*i,4)}, v12, {srd('WG')}, s{T+2} offen{self.NTB}")
            if i >= self.a_win: a(f"s_waitcnt vmcnt({self.a_win})")
            a(f"s_add_u32 s{T+2}, s{T+2}, 30720")
        a(f"s_branch {upd}")
        a.label(up)
        for i in range(16):
            a(f"buffer_load_dwordx4 {vr(WG+4*i,4)}, v12, {srd('WU')}, s{T+2} offen{self.NTB}")
            if i >= self.a_win: a(f"s_waitcnt vmcnt({self.a_win})")
            a(f"s_add_u32 s{T+2}, s{T+2}, 30720")
        a.label(upd)
        a(f"s_mul_i32 s{T+2}, s{T}, {48*1280}")
        for i in range(8):
            a(f"buffer_load_dwordx4 {vr(WD+4*i,4)}, v5, {srd('WD')}, s{T+2} offen{self.NTB}")
            if 16 + i >= self.a_win: a(f"s_waitcnt vmcnt({self.a_win})")
            a(f"s_add_u32 s{T+2}, s{T+2}, 7680")
        ACC = 120
        for k in range(8): a(f"v_mov_b32 v{ACC+k}, 0")
        for i in range(16):
            a(f"s_waitcnt vmcnt({8+15-i})")
            a(f"v_lshlrev_b32 v128, 16, v{XB+i}")
            for k in range(4): a(f"v_dot2c_f32_bf16 v{ACC+2*k}, v{WG+4*i+k}, v{XB+i}")
            for k in range(4): a(f"v_dot2c_f32_bf16 v{ACC+2*k+1}, v{WG+4*i+k}, v128")
        a(f"s_mul_i32 s{T+2}, s{S_W}, 1920")
        a("v_mul_u32_u24 v13, 192, v10")
        a("v_lshl_add_u32 v13, v11, 5, v13")
        a(f"v_add_u32 v13, s{T+2}, v13")
        a("s_mov_b32 exec_hi, 0x0fffffff")
        a(f"ds_write_b128 v13, {vr(ACC,4)} offset:{self.L_R}")
        a(f"ds_write_b128 v13, {vr(ACC+4,4)} offset:{self.L_R+16}")
        a("s_mov_b32 exec_hi, -1")
        a("s_waitcnt lgkmcnt(0)")
        a("s_barrier")
        skip = a.newlabel("bg")
        self.skip_if(f"s_cmp_ge_u32 s{S_W}, 2", skip)
        a("v_cmp_le_u32 vcc, 48, v0")
        a("v_mov_b32 v14, 7488")
        a("v_lshlrev_b32 v13, 2, v0")
        a("v_cndmask_b32 v14, 0, v14, vcc")
        a("v_add_u32 v13, v13, v14")
        a("v_min_u32 v13, 7868, v13")
        for j in range(40):
            a(f"ds_read_b32 v{20+j}, v13 offset:{self.L_R+j*192}")
            if j % 8 == 7: a("s_waitcnt lgkmcnt(0)")
        for j in range(1, 40): a(f"v_add_f32 v20, v20, v{20+j}")
        a("v_lshlrev_b32 v13, 2, v0")
        a(f"ds_write_b32 v13, v20 offset:{self.L_C}")
        a("s_waitcnt lgkmcnt(0)")
        a.label(skip)
        a("s_barrier")
        skip = a.newlabel("bh")
        self.skip_if(f"s_cmp_lg_u32 s{S_W}, 0", skip)
        a("v_lshlrev_b32 v13, 2, v1")
        a(f"ds_read_b32 v20, v13 offset:{self.L_C}")
        a(f"ds_read_b32 v21, v13 offset:{self.L_C+192}")
        a("s_waitcnt lgkmcnt(0)")
        a(f"v_mul_f32 v20, 0x{f32bits(-math.log2(math.e)):08x}, v20")
        a("v_exp_f32 v20, v20")
        a("s_nop 0")
        a("v_add_f32 v20, 1.0, v20")
        a("v_rcp_f32 v20, v20")
        a("s_nop 0")
        a("v_mul_f32 v20, v20, v21")
        a("v_cvt_pk_bf16_f32 v20, v20, v20")
        self.write_pairs(20, 13, 14, 48)
        a("s_waitcnt lgkmcnt(0)")
        a.label(skip)
        for k in range(8): a(f"v_mov_b32 v{ACC+k}, 0")
        a("s_waitcnt vmcnt(0)")
        self.preperm(WD, 4, 128)
        a("s_barrier")
        CO = 100
        for p in range(4):
            a(f"ds_read_b32 v{CO+p}, v19 offset:{self.L_CB+48*p}")
        a("s_waitcnt lgkmcnt(0)")
        self.gemv_pairs(WD, 4, CO, ACC)
        self.out_reduce_publish(ACC, T+10)
        self.stamp(8)
        a.label("L_aend")

    def bset_ids(self):
        a = self.a
        a(f"s_mov_b32 s{S_LB}, s{S_LI}")
        a(f"s_lshl_b32 s{S_BLK}, s{S_X}, 5")
        a(f"s_lshl_b32 s9, s{S_LB}, 1")
        a(f"s_add_u32 s{S_BLK}, s{S_BLK}, s9")
        a(f"s_lshl_b32 s{S_G}, s{S_X}, 1")
        a(f"s_lshr_b32 s9, s{S_LB}, 3")
        a(f"s_add_u32 s{S_G}, s{S_G}, s9")
        a(f"s_and_b32 s{S_S}, s{S_LB}, 7")

    def pv_lane_offsets(self):
        a = self.a
        for n in range(3):
            a(f"v_add_u32 v5, {64*n}, v1")
            a("v_mul_u32_u24 v6, 5462, v5")
            a("v_lshrrev_b32 v6, 16, v6")
            a("v_mul_u32_u24 v7, 12, v6")
            a("v_sub_u32 v7, v5, v7")
            a("v_mul_u32_u24 v6, 1536, v6")
            a(f"v_lshl_add_u32 v{self.PVO+n}, v7, 4, v6")

    def pv_dma(self, kp, ldsbase, nw, w0):
        a = self.a; T = S_T + 8
        per = 48 // nw; rows = 256 // nw
        a(f"s_sub_u32 s{T+2}, s{S_W}, {w0}")
        a(f"s_lshl_b32 s{T}, s{S_G}, 9")
        a(f"s_mul_i32 s{T+1}, s{T+2}, {rows}")
        a(f"s_add_u32 s{T}, s{T}, s{T+1}")
        if kp: a(f"s_add_u32 s{T}, s{T}, 256")
        a(f"s_mul_i32 s{T}, s{T}, 1536")
        a(f"s_mul_i32 s{T+1}, s{S_S}, 192")
        a(f"s_add_u32 s{T}, s{T}, s{T+1}")
        a(f"s_mul_i32 s{T+1}, s{T+2}, {per*1024}")
        a(f"s_add_u32 s{T+1}, s{T+1}, {ldsbase}")
        for n in range(per):
            a(f"s_add_u32 m0, s{T+1}, {n*1024}")
            if n % 3 == 0 and n > 0: a(f"s_add_u32 s{T}, s{T}, {16*1536}")
            else: a("s_nop 0")
            a(f"buffer_load_dwordx4 v{self.PVO+(n%3)}, {srd('CKV')}, s{T} offen{self.NTC} lds")
            if self.pv_win < 63: a(f"s_waitcnt vmcnt({self.pv_win})")

    def s_dma_prep(self):
        a = self.a
        a("v_mov_b32 v216, 0")
        a("v_mov_b32 v219, v1")
        a("v_cmp_le_u32 vcc, 32, v1")
        a("v_add_u32 v5, 64, v1")
        a("v_subrev_u32 v6, 32, v1")
        a("v_cndmask_b32 v217, 0, 1, vcc")
        a("v_cndmask_b32 v220, v5, v6, vcc")
        a("v_mov_b32 v218, 1")
        a("v_add_u32 v221, 32, v1")
        for b in range(3): a(f"v_mul_u32_u24 v{222+b}, 1536, v{216+b}")
        T = S_T + 8
        a(f"s_and_b32 s{T+2}, s{S_W}, 1")
        a(f"s_lshl_b32 s{T+2}, s{T+2}, 3")
        for aa in range(4):
            for b in range(3):
                n = 3*aa + b
                a(f"s_add_u32 s{T+4}, s{T+2}, {2*aa}")
                a(f"v_add_u32 v5, s{T+4}, v{216+b}")
                a(f"v_xor_b32 v5, v5, v{219+b}")
                a(f"v_lshl_add_u32 v{226+n}, v5, 4, v{222+b}")

    def s_dma(self):
        a = self.a; T = S_T + 8
        a(f"s_lshl_b32 s{T}, s{S_X}, 10")
        a(f"s_lshl_b32 s{T+1}, s{S_LB}, 6")
        a(f"s_add_u32 s{T}, s{T}, s{T+1}")
        a(f"s_lshl_b32 s{T+1}, s{S_W}, 3")
        a(f"s_add_u32 s{T}, s{T}, s{T+1}")
        a(f"s_mul_i32 s{T}, s{T}, 1536")
        a(f"s_mul_i32 s{T+3}, s{S_W}, 12288")
        a(f"s_add_u32 s{T+3}, s{T+3}, {self.L_S}")
        for n in range(12):
            a(f"s_add_u32 m0, s{T+3}, {n*1024}")
            if n % 3 == 0 and n > 0: a(f"s_add_u32 s{T}, s{T}, {2*1536}")
            else: a("s_nop 0")
            a(f"buffer_load_dwordx4 v{226+n}, {srd('CKV')}, s{T} offen{self.NTC} lds")
            if n >= self.s_win: a(f"s_waitcnt vmcnt({self.s_win})")
            if self.s_probe and n == self.s_probe-1: a(f"s_waitcnt vmcnt({self.s_probe-1})")

    def s_dma_early(self):
        a = self.a; T = S_T + 8
        a(f"s_sub_u32 s{T+2}, s{S_W}, 6")
        a(f"s_lshl_b32 s{T}, s{S_X}, 10")
        a(f"s_lshl_b32 s{T+1}, s{S_LB}, 6")
        a(f"s_add_u32 s{T}, s{T}, s{T+1}")
        a(f"s_lshl_b32 s{T+1}, s{T+2}, 5")
        a(f"s_add_u32 s{T}, s{T}, s{T+1}")
        a(f"s_mul_i32 s{T}, s{T}, 1536")
        a(f"s_mul_i32 s{T+3}, s{T+2}, 49152")
        a(f"s_add_u32 s{T+3}, s{T+3}, {self.L_S}")
        for aa in range(16):
            for b in range(3):
                n = 3*aa + b
                a(f"v_add_u32 v5, {(2*aa) & 15}, v{216+b}")
                a(f"v_xor_b32 v5, v5, v{219+b}")
                a(f"v_lshl_add_u32 v5, v5, 4, v{222+b}")
                a(f"s_add_u32 m0, s{T+3}, {n*1024}")
                a(f"s_add_u32 s{T+5}, s{T}, {2*aa*1536}")
                a(f"buffer_load_dwordx4 v5, {srd('CKV')}, s{T+5} offen{self.NTC} lds")
                if n >= self.sde_win: a(f"s_waitcnt vmcnt({self.sde_win})")

    def bset_clears(self):
        a = self.a; T = S_T + 8
        a("v_subrev_u32 v5, 384, v0")
        a("v_mov_b32 v76, -1\nv_mov_b32 v77, -1\nv_mov_b32 v78, -1\nv_mov_b32 v79, -1")
        a("v_lshlrev_b32 v6, 4, v5")
        a("v_mov_b32 v7, 0x7fffffff")
        a("v_cmp_gt_u32 vcc, 64, v5")
        a(f"s_mul_i32 s{T+2}, s{S_BLK}, {PBS}")
        a("v_cndmask_b32 v8, v7, v6, vcc")
        for base in (WS_PBG, WS_PBL):
            a(f"s_add_u32 s{T+3}, s{T+2}, {base}")
            a(f"buffer_store_dwordx4 v[76:79], v6, {srd('WS')}, s{T+3} offen sc1")
            a(f"buffer_store_dwordx4 v[76:79], v6, {srd('WS')}, s{T+3} offen offset:2048 sc1")
            a(f"s_add_u32 s{T+3}, s{T+3}, 4096")
            a(f"buffer_store_dwordx4 v[76:79], v8, {srd('WS')}, s{T+3} offen sc1")
        a(f"s_lshl_b32 s{T+5}, s{S_S}, 4")
        a(f"s_add_u32 s{T+5}, s{T+5}, s{S_G}")
        a(f"s_mul_i32 s{T+5}, s{T+5}, 384")
        a(f"s_add_u32 s{T+5}, s{T+5}, {WS_OP}")
        a(f"s_mov_b32 s{T+6}, 49152")
        for i in range(6):
            a(f"v_add_u32 v8, {128*i}, v5")
            a("v_mul_u32_u24 v9, 2731, v8")
            a("v_lshrrev_b32 v9, 16, v9")
            a("v_mul_u32_u24 v70, 24, v9")
            a("v_sub_u32 v70, v8, v70")
            a(f"v_mul_lo_u32 v9, v9, s{T+6}")
            a("v_lshl_add_u32 v9, v70, 4, v9")
            a(f"buffer_store_dwordx4 v[76:79], v9, {srd('WS')}, s{T+5} offen sc1")
        a("v_lshlrev_b32 v8, 7, v5")
        a("v_cmp_gt_u32 vcc, 32, v5")
        a(f"s_lshl_b32 s{T+5}, s{S_G}, 3")
        a(f"s_add_u32 s{T+5}, s{T+5}, {WS_ML}")
        a("v_cndmask_b32 v8, v7, v8, vcc")
        a(f"s_cmp_eq_u32 s{S_S}, 0")
        a(f"s_cselect_b32 s{T+5}, s{T+5}, 0x7fffff00")
        a(f"buffer_store_dwordx2 v[76:77], v8, {srd('WS')}, s{T+5} offen sc1")

    def bset_front(self):
        a = self.a; T = S_T
        XV = 10; W0 = 20; ACC = 60
        a(f"v_mov_b32 v5, {self.L_FLAG}")
        for k in range(4): a(f"v_mov_b32 v{6+k}, 0")
        a("ds_write_b128 v5, v[6:9]")
        a("ds_write_b128 v5, v[6:9] offset:16")
        a("ds_write_b128 v5, v[6:9] offset:32")
        a("ds_write_b128 v5, v[6:9] offset:48")
        a("ds_write_b128 v5, v[6:9] offset:64")
        a("v_lshlrev_b32 v5, 1, v2")
        a(f"v_add_u32 v9, s{S_PM}, v5")
        nox = a.newlabel("nox")
        self.skip_if(f"s_cmp_lg_u32 s{S_W}, 6", nox)
        a("v_lshlrev_b32 v8, 4, v1")
        a(f"buffer_load_dwordx4 v[20:23], v8, {srd('X')}, 0 offen")
        a(f"buffer_load_dwordx4 v[24:27], v8, {srd('X')}, 0 offen offset:1024")
        a.label(nox)
        self.bset_ids()
        self.pv_lane_offsets()
        self.s_dma_prep()
        nox2 = a.newlabel("nox2")
        self.skip_if(f"s_cmp_lg_u32 s{S_W}, 6", nox2)
        a("s_waitcnt vmcnt(0)")
        a(f"ds_write_b128 v8, v[20:23] offset:{self.L_X}")
        a(f"ds_write_b128 v8, v[24:27] offset:{self.L_X+1024}")
        a.label(nox2)
        a("s_waitcnt lgkmcnt(0)")
        a("s_barrier")
        ldr = a.newlabel("p1ldr"); j = a.newlabel("p1j")
        self.skip_if(f"s_cmp_ge_u32 s{S_W}, 6", ldr)
        a(f"s_lshl_b32 s{T+5}, s{S_H}, 3")
        a(f"s_lshl_b32 s{T+6}, s{S_J4}, 1")
        a(f"s_add_u32 s{T+5}, s{T+5}, s{T+6}")
        a(f"s_add_u32 s{T+5}, s{T+5}, s{T}")
        a(f"s_mul_i32 s{T+5}, s{T+5}, 1536")
        a(f"s_lshl_b32 s{T+6}, s{T+1}, 9")
        a(f"s_add_u32 s{T+5}, s{T+5}, s{T+6}")
        a(f"s_add_u32 s{T+6}, s{T+5}, {WS_QPG}")
        a(f"s_add_u32 s{T+5}, s{T+5}, {WS_QPL}")
        a("v_lshlrev_b32 v5, 6, v3")
        a("v_lshl_add_u32 v5, v2, 3, v5")
        for k in range(8): a(f"v_mov_b32 v{ACC+k}, 0")
        for i in range(10):
            a(f"ds_read_u16 v{XV+i}, v9 offset:{self.L_X+16*i}")
        a("s_waitcnt lgkmcnt(0)")
        a(f"s_add_u32 s{S_EP}, s{S_EP}, 1")
        for i in range(10):
            a(f"s_waitcnt vmcnt({9-i})")
            if i == 9: self.stamp(13)
            a(f"v_lshlrev_b32 v68, 16, v{XV+i}")
            for k in range(4): a(f"v_dot2c_f32_bf16 v{ACC+2*k}, v{W0+4*i+k}, v{XV+i}")
            for k in range(4): a(f"v_dot2c_f32_bf16 v{ACC+2*k+1}, v{W0+4*i+k}, v68")
        self.treduce8(ACC, 68, 69)
        a(f"v_mov_b32 v{ACC+1}, s{S_EP}")
        if self.local:
            a(f"buffer_store_dwordx2 {vr(ACC,2)}, v5, {srd('WS')}, s{T+5} offen")
        a(f"buffer_store_dwordx2 {vr(ACC,2)}, v5, {srd('WS')}, s{T+6} offen sc1")
        self.stamp(1)
        a(f"s_branch {j}")
        a.label(ldr)
        if not self.exp_noclear: self.bset_clears()
        a("s_waitcnt lgkmcnt(0)")
        a(f"s_add_u32 s{S_EP}, s{S_EP}, 1")
        def cf_store():
            a(f"s_lshl_b32 s{T+13}, s2, 1")
            a(f"s_add_u32 s{T+13}, s{T+13}, s{S_W}")
            a(f"s_lshl_b32 s{T+13}, s{T+13}, 2")
            a(f"s_add_u32 s{T+13}, s{T+13}, {WS_CF - 24}")
            a(f"v_mov_b32 v5, s{S_EP}")
            a("v_mov_b32 v6, 0")
            a("s_mov_b64 exec, 1")
            a(f"buffer_store_dword v5, v6, {srd('WS')}, s{T+13} offen sc1")
            a("s_mov_b64 exec, -1")
        nocf = a.newlabel("nocf")
        if self.s_trig:
            notr = a.newlabel("notr")
            self.skip_if(f"s_cmp_lg_u32 s{S_W}, 7", notr)
            a(f"s_mul_i32 s{T+5}, s{S_H}, {8*1536}")
            a(f"s_add_u32 s{T+6}, s{T+5}, {WS_QPL}")
            a(f"s_add_u32 s{T+5}, s{T+5}, {WS_QPG}")
            a("v_and_b32 v5, 7, v1")
            a("v_mul_u32_u24 v5, 1536, v5")
            l = self.poll_begin(T+6, T+5)
            a(f"buffer_load_dwordx2 v[20:21], v5, {srd('WS')}, s{S_PB} offen sc1")
            a("s_waitcnt vmcnt(0)")
            a(f"v_xor_b32 v20, s{S_EP}, v21")
            self.poll_end(l, 20)
            if self.s_trig == 2:
                a(f"s_lshl_b32 s{T+5}, s{S_H}, 4")
                a(f"s_add_u32 s{T+5}, s{T+5}, {WS_QA}")
                a("v_mov_b32 v5, 0")
                l = self.poll_begin()
                a(f"buffer_load_dwordx4 v[20:23], v5, {srd('WS')}, s{T+5} offen sc1")
                a("s_waitcnt vmcnt(0)")
                a(f"v_xor_b32 v20, s{S_EP}, v23")
                self.poll_end(l, 20)
            a.label(notr)
        if self.sde:
            self.s_dma_early()
            cf_store()
            a.label(j)
        else:
            a.label(j)
            a("s_barrier")
            self.s_dma()
            self.skip_if(f"s_cmp_lt_u32 s{S_W}, 6", nocf)
            a("s_waitcnt vmcnt(12)")
            cf_store()
        a.label(nocf)
        self.stamp(2)

    def bset_s_phase(self):
        a = self.a; T = S_T
        QA = 20; AF = 84; ACC = 180
        a("v_and_b32 v6, 31, v1")
        a("v_lshrrev_b32 v7, 5, v1")
        a("v_and_b32 v8, 15, v6")
        a("v_xor_b32 v8, v8, v7")
        a("v_mul_u32_u24 v6, 1536, v6")
        a(f"v_add_u32 v6, {self.L_S}, v6")
        a(f"s_mul_i32 s{T+2}, s{S_W}, 24")
        for i in range(12):
            a(f"s_add_u32 s{T+3}, s{T+2}, {2*i}")
            a(f"v_xor_b32 v9, s{T+3}, v8")
            a(f"v_lshl_add_u32 v{226+i}, v9, 4, v6")
        a(f"s_lshl_b32 s{T}, s{S_W}, 14")
        a(f"s_add_u32 s{T}, s{T}, {WS_QA}")
        a("v_lshlrev_b32 v5, 4, v1")
        for g in range(4): a(f"s_add_u32 s{T+9+g}, s{T}, {4096*g}")
        def qa_first():
            for n in range(16):
                a(f"buffer_load_dwordx4 {vr(QA+4*n,4)}, v5, {srd('WS')}, s{T+9+n//4} offen offset:{(n%4)*1024} sc1")
        if self.qa_early:
            a("s_barrier")
            notS0 = a.newlabel("notS0")
            self.skip_if(f"s_cmp_ge_u32 s{S_W}, 4", notS0)
            qa_first()
            a("s_waitcnt vmcnt(16)")
            a.label(notS0)
            nw = a.newlabel("nw")
            self.skip_if(f"s_cmp_lt_u32 s{S_W}, 4", nw)
            a("s_waitcnt vmcnt(0)")
            a.label(nw)
        else:
            a("s_waitcnt vmcnt(0)")
        a("s_barrier")
        self.stamp(3)
        notS = a.newlabel("notS"); j4 = a.newlabel("j4")
        self.skip_if(f"s_cmp_ge_u32 s{S_W}, 4", notS)
        if not self.qa_early and not self.qa_order: qa_first()
        for i in range(12):
            a(f"ds_read_b128 {vr(AF+4*i,4)}, v{226+i}")
            a(f"ds_read_b128 {vr(AF+48+4*i,4)}, v{226+i} offset:49152")
            if i == 5: a("s_waitcnt lgkmcnt(0)")
        a("s_waitcnt lgkmcnt(0)")
        a("s_barrier")
        self.stamp(21)
        if self.qa_order:
            qa_first()
            if self.qa_order == 2: self.lds_signal(64)
        a(f"s_lshl_b32 s{T+2}, s{S_W}, 13")
        a(f"s_add_u32 s{T+2}, s{T+2}, {self.L_RED}")
        a(f"v_add_u32 v10, s{T+2}, v5")
        a(f"s_lshl_b32 s{T+2}, s{S_W}, 10")
        a(f"s_add_u32 s{T+2}, s{T+2}, {self.L_RED}")
        a(f"v_add_u32 v11, s{T+2}, v5")
        a("v_bfe_u32 v12, v1, 4, 1")
        a("v_lshlrev_b32 v12, 10, v12")
        a("v_and_b32 v9, 15, v1")
        a("v_lshl_add_u32 v12, v9, 4, v12")
        a("v_lshrrev_b32 v9, 5, v1")
        a("v_lshl_add_u32 v12, v9, 3, v12")
        a("v_and_b32 v13, 31, v1")
        a("v_lshlrev_b32 v13, 2, v13")
        a("v_mov_b32 v9, 0x7fffffff")
        a("v_cmp_gt_u32 vcc, 32, v1")
        a(f"s_mul_i32 s{T+4}, s{S_BLK}, {PBS}")
        a("v_cndmask_b32 v13, v9, v13, vcc")
        a(f"s_lshl_b32 s{T+3}, s{S_W}, 8")
        a(f"s_add_u32 s{T+5}, s{T+4}, s{T+3}")
        a(f"s_lshl_b32 s{T+3}, s{S_W}, 7")
        a(f"s_add_u32 s{T+6}, s{T+4}, s{T+3}")
        a(f"s_add_u32 s{T+6}, s{T+6}, 2048")
        def qa_issue(g):
            for k in range(4):
                n = 4*g + k
                a(f"buffer_load_dwordx4 {vr(QA+4*n,4)}, v5, {srd('WS')}, s{T+9+g} offen offset:{k*1024} sc1")
        def qa_check(g):
            a(f"v_xor_b32 v6, s{S_EP}, v{QA+16*g+3}")
            for k in range(1, 4):
                a(f"v_xor_b32 v7, s{S_EP}, v{QA+16*g+4*k+3}")
                a("v_or_b32 v6, v6, v7")
            a("v_cmp_ne_u32 vcc, 0, v6")
        self.gpoll(4, qa_issue, qa_check, first_issued=True, masks=[24,26,28,30])
        self.stamp(4)
        self.stamp_val(16, S_CNT)
        for sg in range(4):
            for f in range(3): a(f"v_mov_b32 v{QA+(sg*4+f)*4+3}, v{QA+(sg*4+3)*4+f}")
        a("s_nop 0")
        for i in range(12):
            sg, f = i // 3, i % 3
            B = QA + (sg*4+f)*4
            for kb in range(2):
                c = "0" if i == 0 else vr(ACC+16*kb, 16)
                a(f"v_mfma_f32_32x32x16_bf16 {vr(ACC+16*kb,16)}, {vr(AF+48*kb+4*i,4)}, {vr(B,4)}, {c}")
        a("s_nop 3")
        a("s_nop 7")
        for q in range(4): a(f"ds_write_b128 v10, {vr(ACC+4*q,4)} offset:{q*1024}")
        a("s_nop 3")
        for q in range(4): a(f"ds_write_b128 v10, {vr(ACC+16+4*q,4)} offset:{(4+q)*1024}")
        a("s_waitcnt lgkmcnt(0)")
        self.stamp(8)
        self.lds_signal(16)
        self.lds_wait(16, 20)
        R = 20
        for src in range(4):
            for kb in range(2):
                a(f"ds_read_b128 {vr(R+(src*2+kb)*4,4)}, v11 offset:{src*8192+kb*4096}")
        a(f"s_mov_b32 s{T+3}, 0x{f32bits(192**-0.5*math.log2(math.e)):08x}")
        a("s_waitcnt lgkmcnt(4)")
        for k in range(8): a(f"v_add_f32 v{R+k}, v{R+k}, v{R+8+k}")
        a("s_waitcnt lgkmcnt(0)")
        reads = []
        if self.early_frags:
            self.lds_wait(32, 60)
            self.stamp(14)
            reads = self.pv_read_frags(self.L_S, defer=True)
        def v(ins):
            a(ins)
            if reads: a(reads.pop(0))
        for k in range(8): v(f"v_add_f32 v{R+16+k}, v{R+16+k}, v{R+24+k}")
        for k in range(8): v(f"v_add_f32 v{R+k}, v{R+k}, v{R+16+k}")
        for k in range(8): v(f"v_mul_f32 v{R+k}, s{T+3}, v{R+k}")
        for kb in range(2):
            v(f"v_max3_f32 v{R+8+kb}, v{R+kb*4}, v{R+kb*4+1}, v{R+kb*4+2}")
        for kb in range(2):
            v(f"v_max_f32 v{R+8+kb}, v{R+8+kb}, v{R+kb*4+3}")
        a(f"v_mov_b32 v{R+10}, v{R+8}")
        a(f"v_mov_b32 v{R+11}, v{R+9}")
        a("s_nop 1")
        a(f"v_permlane32_swap_b32 v{R+8}, v{R+10}")
        a(f"v_permlane32_swap_b32 v{R+9}, v{R+11}")
        a("s_nop 1")
        a(f"v_max_f32 v{R+8}, v{R+8}, v{R+10}")
        a(f"v_max_f32 v{R+9}, v{R+9}, v{R+11}")
        a(f"v_ceil_f32 v{R+8}, v{R+8}")
        a(f"v_ceil_f32 v{R+9}, v{R+9}")
        for kb in range(2):
            for r in range(4): v(f"v_sub_f32 v{R+kb*4+r}, v{R+kb*4+r}, v{R+8+kb}")
        for k in range(8): v(f"v_exp_f32 v{R+k}, v{R+k}")
        a(f"v_min_u32 v{R+8}, 0xfffffffe, v{R+8}")
        a(f"v_min_u32 v{R+9}, 0xfffffffe, v{R+9}")
        P = R + 12
        for kb in range(2):
            a(f"v_cvt_pk_bf16_f32 v{P+kb*2}, v{R+kb*4}, v{R+kb*4+1}")
            a(f"v_cvt_pk_bf16_f32 v{P+kb*2+1}, v{R+kb*4+2}, v{R+kb*4+3}")
        for k in range(4): a(f"v_and_b32 v{P+k}, 0x7fff7fff, v{P+k}")
        paths = ([(WS_PBL, "")] if self.local else []) + [(WS_PBG, " sc1")]
        for base, fl in paths:
            a(f"s_add_u32 s{T+7}, s{T+5}, {base}")
            a(f"s_add_u32 s{T+8}, s{T+6}, {base}")
            a(f"buffer_store_dwordx2 {vr(P,2)}, v12, {srd('WS')}, s{T+7} offen{fl}")
            a(f"buffer_store_dwordx2 {vr(P+2,2)}, v12, {srd('WS')}, s{T+7} offen offset:{PBS}{fl}")
            a(f"buffer_store_dword v{R+8}, v13, {srd('WS')}, s{T+8} offen{fl}")
            a(f"buffer_store_dword v{R+9}, v13, {srd('WS')}, s{T+8} offen offset:{PBS}{fl}")
        self.stamp(5)
        for r in reads: a(r)
        if not self.early_frags:
            self.lds_wait(32, 60)
            self.stamp(14)
            self.pv_read_frags(self.L_S)
        a(f"s_branch {j4}")
        a.label(notS)
        a("s_barrier")
        if self.qa_order == 2: self.lds_wait(64, 20)
        self.pv_dma(0, self.L_PA, 4, 4)
        self.pv_dma(1, self.L_S, 4, 4)
        self.stamp(20)
        a("s_waitcnt vmcnt(12)")
        self.lds_signal(0)
        self.lds_wait(0, 20)
        self.stamp(19)
        self.pv_read_frags(self.L_PA)
        a("s_waitcnt vmcnt(0)")
        self.lds_signal(32)
        nocf = a.newlabel("nocf")
        self.skip_if(f"s_cmp_lg_u32 s{S_W}, 4", nocf)
        self.cf_check(20)
        a(f"v_mov_b32 v6, {self.L_FLAG+48}")
        a("v_mov_b32 v7, 1")
        a("ds_write_b32 v6, v7")
        a.label(nocf)
        self.stamp(14)
        a.label(j4)

    def pv_read_frags(self, base, defer=False):
        a = self.a; T = S_T + 8; AF = 84
        a("v_lshrrev_b32 v14, 4, v1")
        a("v_and_b32 v15, 15, v1")
        a("v_lshrrev_b32 v16, 2, v15")
        a("v_lshl_add_u32 v16, v14, 3, v16")
        a("v_mul_u32_u24 v16, 192, v16")
        a("v_and_b32 v15, 3, v15")
        a("v_lshl_add_u32 v16, v15, 3, v16")
        a(f"s_lshr_b32 s9, s{S_W}, 1")
        a("s_and_b32 s9, s9, 1")
        a("s_mul_i32 s9, s9, 96")
        a(f"s_add_u32 s9, s9, {base}")
        a("v_add_u32 v16, s9, v16")
        reads = []
        for bb in range(8):
            for ct in range(3):
                r = AF + (bb*3+ct)*4; off = bb*6144 + ct*32
                reads.append(f"ds_read_b64_tr_b16 {vr(r,2)}, v16 offset:{off}")
                reads.append(f"ds_read_b64_tr_b16 {vr(r+2,2)}, v16 offset:{off+768}")
        if defer: return reads
        for n, r in enumerate(reads):
            a(r)
            if n % 12 == 11: a("s_waitcnt lgkmcnt(6)")

    def bset_pv_phase(self):
        a = self.a; T = S_T
        AF = 84; P = 20; MI = 52; DL = 60; ACC = 180; LA = 192; ON = 196
        a(f"s_cmp_lt_u32 s{S_W}, 4")
        a(f"s_cselect_b32 s{T}, 8, 0")
        a(f"s_lshl_b32 s{T+1}, s{S_G}, 4")
        a(f"s_add_u32 s{T+1}, s{T+1}, s{T}")
        a(f"s_and_b32 s{T+2}, s{S_W}, 1")
        a(f"s_mul_i32 s{T+3}, s{T+1}, {PBS}")
        a(f"s_lshl_b32 s{T+4}, s{T+2}, 10")
        a(f"s_add_u32 s{T+3}, s{T+3}, s{T+4}")
        a(f"s_add_u32 s{T+4}, s{T+3}, {WS_PBG}")
        a(f"s_add_u32 s{T+3}, s{T+3}, {WS_PBL}")
        a("v_lshlrev_b32 v5, 4, v1")
        a("v_and_b32 v6, 15, v1")
        a("v_lshlrev_b32 v6, 2, v6")
        a("v_lshrrev_b32 v7, 4, v1")
        a("v_lshl_add_u32 v6, v7, 7, v6")
        a(f"s_mul_i32 s{T+5}, s{T+2}, 960")
        a(f"s_sub_u32 s{T+5}, 2048, s{T+5}")
        a(f"v_add_u32 v6, s{T+5}, v6")
        for k in range(4): a(f"v_mov_b32 v{ON+k}, 0x3f803f80")
        a("v_and_b32 v14, 15, v1")
        a(f"s_mov_b32 s{T+5}, 49152")
        a(f"v_mul_lo_u32 v15, v14, s{T+5}")
        a("v_lshl_add_u32 v15, v7, 4, v15")
        a(f"s_mul_i32 s{T+5}, s{T+2}, {16*49152}")
        a(f"s_lshl_b32 s{T+6}, s{S_S}, 4")
        a(f"s_add_u32 s{T+6}, s{T+6}, s{S_G}")
        a(f"s_mul_i32 s{T+6}, s{T+6}, 384")
        a(f"s_add_u32 s{T+5}, s{T+5}, s{T+6}")
        a(f"s_lshr_b32 s{T+6}, s{S_W}, 1")
        a(f"s_and_b32 s{T+6}, s{T+6}, 1")
        a(f"s_mul_i32 s{T+7}, s{T+6}, 192")
        a(f"s_add_u32 s{T+5}, s{T+5}, s{T+7}")
        a(f"s_add_u32 s{T+5}, s{T+5}, {WS_OP}")
        a("v_lshlrev_b32 v14, 7, v14")
        a("v_mov_b32 v16, 0x7fffffff")
        a("v_cmp_gt_u32 vcc, 16, v1")
        a(f"s_lshl_b32 s{T+8}, s{T+2}, 11")
        a(f"s_lshl_b32 s{T+7}, s{S_G}, 3")
        a(f"s_add_u32 s{T+8}, s{T+8}, s{T+7}")
        a(f"s_add_u32 s{T+8}, s{T+8}, {WS_ML}")
        a("v_cndmask_b32 v14, v16, v14, vcc")
        a(f"s_or_b32 s{T+7}, s{T+6}, s{S_S}")
        a(f"s_cmp_eq_u32 s{T+7}, 0")
        a(f"s_cselect_b32 s{T+8}, s{T+8}, 0x7fffff00")
        a(f"s_and_b32 s{T+9}, s{S_W}, 3")
        a(f"s_lshl_b32 s{T+9}, s{T+9}, 12")
        a(f"s_add_u32 s{T+9}, s{T+9}, {self.L_PR}")
        a(f"v_add_u32 v17, s{T+9}, v5")
        def p_pre():
            if self.local:
                a(f"s_and_b32 s9, s{S_CNT}, {self.lperiod-1}")
                a(f"s_cmp_eq_u32 s9, {self.lperiod-1}")
                a(f"s_cselect_b32 s{S_PB}, s{T+4}, s{T+3}")
            else:
                a(f"s_mov_b32 s{S_PB}, s{T+4}")
        def p_issue(bb):
            a(f"s_add_u32 s9, s{S_PB}, {bb*PBS}")
            a(f"buffer_load_dwordx4 {vr(P+4*bb,4)}, v5, {srd('WS')}, s9 offen sc1")
            a(f"buffer_load_dword v{MI+bb}, v6, {srd('WS')}, s9 offen sc1")
        def p_check(bb):
            a(f"v_or3_b32 v7, v{P+4*bb}, v{P+4*bb+1}, v{P+4*bb+2}")
            a(f"v_or_b32 v7, v7, v{P+4*bb+3}")
            a("v_and_b32 v7, 0x80008000, v7")
            a(f"v_cmp_eq_u32 vcc, -1, v{MI+bb}")
            a("s_nop 1")
            a("v_cndmask_b32 v8, 0, 1, vcc")
            a("v_or_b32 v7, v7, v8")
            a("v_cmp_ne_u32 vcc, 0, v7")
        a(f"v_mov_b32 v7, {self.L_FLAG+48}")
        l = self.poll_begin()
        a("ds_read_b32 v8, v7")
        a("s_waitcnt lgkmcnt(0)")
        a("v_xor_b32 v8, 1, v8")
        self.poll_end(l, 8)
        self.stamp(15)
        self.gpoll(8, p_issue, p_check, pre=p_pre, masks=[24,26,28,30,32,34,36,38])
        self.stamp(6)
        self.stamp_val(17, S_CNT)
        a(f"v_max3_f32 v9, v{MI}, v{MI+1}, v{MI+2}")
        a(f"v_max3_f32 v9, v9, v{MI+3}, v{MI+4}")
        a(f"v_max3_f32 v9, v9, v{MI+5}, v{MI+6}")
        a(f"v_max_f32 v9, v9, v{MI+7}")
        a("v_mov_b32 v10, v9")
        a("s_nop 1")
        a("v_permlane16_swap_b32 v9, v10")
        a("s_nop 1")
        a("v_max_f32 v9, v9, v10")
        a("v_mov_b32 v10, v9")
        a("s_nop 1")
        a("v_permlane32_swap_b32 v9, v10")
        a("s_nop 1")
        a("v_max_f32 v9, v9, v10")
        a(f"s_mov_b32 s{T+10}, 0x437f0000")
        a(f"s_mov_b32 s{T+11}, 0x00800080")
        for bb in range(8): a(f"v_sub_f32 v{DL+bb}, v9, v{MI+bb}")
        for bb in range(8): a(f"v_min_f32 v{DL+bb}, s{T+10}, v{DL+bb}")
        for bb in range(8): a(f"v_cvt_u32_f32 v{DL+bb}, v{DL+bb}")
        for bb in range(8): a(f"v_mul_u32_u24 v{DL+bb}, s{T+11}, v{DL+bb}")
        for k in range(4): a(f"v_pk_sub_u16 v{P+k}, v{P+k}, v{DL} clamp")
        for bb in range(8):
            if bb < 7:
                for k in range(4): a(f"v_pk_sub_u16 v{P+4*(bb+1)+k}, v{P+4*(bb+1)+k}, v{DL+bb+1} clamp")
            else:
                a("s_nop 1")
            for ct in range(3):
                c = "0" if bb == 0 else vr(ACC+4*ct, 4)
                a(f"v_mfma_f32_16x16x32_bf16 {vr(ACC+4*ct,4)}, {vr(AF+(bb*3+ct)*4,4)}, {vr(P+4*bb,4)}, {c}")
            c = "0" if bb == 0 else vr(LA, 4)
            a(f"v_mfma_f32_16x16x32_bf16 {vr(LA,4)}, {vr(ON,4)}, {vr(P+4*bb,4)}, {c}")
        a("s_nop 7")
        self.stamp(11)
        kp1 = a.newlabel("kp1")
        self.skip_if(f"s_cmp_lt_u32 s{S_W}, 4", kp1)
        a(f"v_mov_b32 v{LA+1}, v9")
        for ct in range(3): a(f"ds_write_b128 v17, {vr(ACC+4*ct,4)} offset:{ct*1024}")
        a(f"ds_write_b128 v17, {vr(LA,4)} offset:3072")
        a("s_waitcnt lgkmcnt(0)")
        a.label(kp1)
        a("s_barrier")
        self.stamp(12)
        fin = a.newlabel("pvfin")
        self.skip_if(f"s_cmp_ge_u32 s{S_W}, 4", fin)
        O = 20
        for k in range(4): a(f"ds_read_b128 {vr(O+4*k,4)}, v17 offset:{k*1024}")
        a("s_waitcnt lgkmcnt(0)")
        a(f"v_max_f32 v10, v9, v{O+13}")
        a("v_sub_f32 v11, v9, v10")
        a(f"v_sub_f32 v12, v{O+13}, v10")
        a("v_exp_f32 v11, v11")
        a("v_exp_f32 v12, v12")
        a("s_nop 0")
        for k in range(12): a(f"v_mul_f32 v{ACC+k}, v{ACC+k}, v11")
        for k in range(12): a(f"v_fmac_f32 v{ACC+k}, v{O+k}, v12")
        for k in range(12): a(f"v_min_u32 v{ACC+k}, 0xfffffffe, v{ACC+k}")
        if self.exp_linear:
            a(f"s_lshl_b32 s{T+5}, s{S_G}, 3")
            a(f"s_add_u32 s{T+5}, s{T+5}, s{S_S}")
            a(f"s_lshl_b32 s{T+5}, s{T+5}, 2")
            a(f"s_add_u32 s{T+5}, s{T+5}, s{S_W}")
            a(f"s_mul_i32 s{T+5}, s{T+5}, 3072")
            a(f"s_add_u32 s{T+5}, s{T+5}, {WS_OP}")
            for ct in range(3):
                a(f"buffer_store_dwordx4 {vr(ACC+4*ct,4)}, v5, {srd('WS')}, s{T+5} offen offset:{ct*1024} sc1")
        else:
          for ct in range(3):
            a(f"buffer_store_dwordx4 {vr(ACC+4*ct,4)}, v15, {srd('WS')}, s{T+5} offen offset:{ct*64} sc1")
        a(f"v_mul_f32 v{LA}, v{LA}, v11")
        a(f"v_fmac_f32 v{LA}, v{O+12}, v12")
        a(f"v_min_u32 v11, 0xfffffffe, v{LA}")
        a("v_min_u32 v10, 0xfffffffe, v10")
        a(f"buffer_store_dwordx2 v[10:11], v14, {srd('WS')}, s{T+8} offen sc1")
        a.label(fin)
        self.stamp(7)

    def bset_final(self):
        a = self.a; T = S_T
        self.skip_if(f"s_cmp_ge_u32 s{S_LB}, 5", "L_bend")
        self.skip_if(f"s_cmp_lg_u32 s{S_W}, 0", "L_bend")
        a("v_lshlrev_b32 v5, 2, v1")
        for i in range(5):
            a(f"buffer_load_dword v{20+i}, v5, {srd('X')}, 0 offen offset:{256*i}")
            a(f"buffer_load_dword v{25+i}, v5, {srd('GW')}, 0 offen offset:{256*i}")
        a("v_mov_b32 v30, 0")
        a(f"s_mul_i32 s{T}, s{S_X}, 5")
        a(f"s_add_u32 s{T}, s{T}, s{S_LB}")
        a(f"s_lshl_b32 s{T+1}, s{T}, 6")
        a(f"s_add_u32 s{T+1}, s{T+1}, {WS_OUTP}")
        a("v_lshrrev_b32 v6, 2, v1")
        a("v_mul_u32_u24 v6, 2560, v6")
        a("v_and_b32 v7, 3, v1")
        a("v_lshl_add_u32 v6, v7, 4, v6")
        a("v_lshlrev_b32 v8, 2, v7")
        a("v_bfe_u32 v9, v1, 5, 1")
        a("v_lshl_add_u32 v8, v9, 1, v8")
        a("v_bfe_u32 v9, v1, 4, 1")
        a("v_add_u32 v8, v8, v9")
        a("v_lshlrev_b32 v11, 1, v8")
        a("v_and_b32 v9, 12, v1")
        a("v_mov_b32 v10, 0x7fffffff")
        a("v_cmp_eq_u32 vcc, 0, v9")
        a(f"s_lshl_b32 s{T+2}, s{T}, 5")
        a("v_cndmask_b32 v11, v10, v11, vcc")
        a("s_waitcnt vmcnt(0)")
        for i in range(5): a(f"v_dot2c_f32_bf16 v30, v{20+i}, v{25+i}")
        a("s_nop 2")
        for ctrl in ["quad_perm:[1,0,3,2]", "quad_perm:[2,3,0,1]", "row_half_mirror", "row_mirror"]:
            a(f"v_add_f32_dpp v30, v30, v30 {ctrl} row_mask:0xf bank_mask:0xf")
            a("s_nop 1")
        a("v_mov_b32 v31, v30")
        a("s_nop 1")
        a("v_permlane16_swap_b32 v30, v31")
        a("s_nop 1")
        a("v_add_f32 v30, v30, v31")
        a("v_mov_b32 v31, v30")
        a("s_nop 1")
        a("v_permlane32_swap_b32 v30, v31")
        a("s_nop 1")
        a("v_add_f32 v30, v30, v31")
        a(f"v_mul_f32 v30, 0x{f32bits(-math.log2(math.e)):08x}, v30")
        a("v_exp_f32 v30, v30")
        a("s_nop 0")
        a("v_add_f32 v30, 1.0, v30")
        a("v_rcp_f32 v30, v30")
        a("s_nop 0")
        a("v_sub_f32 v31, 1.0, v30")
        a("v_cmp_le_u32 vcc, 48, v1")
        a("s_nop 1")
        a("v_cndmask_b32 v30, v30, v31, vcc")
        O = 32
        for i in range(8): a(f"s_add_u32 s{T+3+i}, s{T+1}, {i*16*2560}")
        def f_issue(i):
            a(f"buffer_load_dwordx4 {vr(O+4*i,4)}, v6, {srd('WS')}, s{T+3+i} offen sc1")
        def f_check(i):
            a(f"v_max3_u32 v8, v{O+4*i}, v{O+4*i+1}, v{O+4*i+2}")
            a(f"v_max_u32 v8, v8, v{O+4*i+3}")
            a("v_cmp_eq_u32 vcc, -1, v8")
        self.gpoll(8, f_issue, f_check, masks=[24,26,28,30,32,34,36,38])
        self.stamp(9)
        self.stamp_val(18, S_CNT)
        for k in range(4):
            a(f"v_add_f32 v{O+k}, v{O+k}, v{O+4+k}")
            a(f"v_add_f32 v{O+8+k}, v{O+8+k}, v{O+12+k}")
            a(f"v_add_f32 v{O+16+k}, v{O+16+k}, v{O+20+k}")
            a(f"v_add_f32 v{O+24+k}, v{O+24+k}, v{O+28+k}")
        for k in range(4):
            a(f"v_add_f32 v{O+k}, v{O+k}, v{O+8+k}")
            a(f"v_add_f32 v{O+16+k}, v{O+16+k}, v{O+24+k}")
        for k in range(4): a(f"v_add_f32 v{O+k}, v{O+k}, v{O+16+k}")
        for k in range(4): a(f"v_mul_f32 v{O+k}, v{O+k}, v30")
        a("s_nop 1")
        a("v_permlane32_swap_b32 v32, v34")
        a("v_permlane32_swap_b32 v33, v35")
        a("s_nop 1")
        a("v_add_f32 v32, v32, v34")
        a("v_add_f32 v33, v33, v35")
        a("s_nop 1")
        a("v_permlane16_swap_b32 v32, v33")
        a("s_nop 1")
        a("v_add_f32 v32, v32, v33")
        a("s_nop 1")
        a("v_add_f32_dpp v32, v32, v32 row_ror:8 row_mask:0xf bank_mask:0xf")
        a("s_nop 1")
        a("v_add_f32_dpp v32, v32, v32 row_ror:4 row_mask:0xf bank_mask:0xf")
        a("s_nop 0")
        a("v_cvt_pk_bf16_f32 v32, v32, v32")
        a(f"buffer_store_short v32, v11, {srd('OUT')}, s{T+2} offen")
        noep = a.newlabel("noep")
        self.skip_if(f"s_cmp_lg_u32 s{T}, 0", noep)
        a(f"v_mov_b32 v6, s{S_EP}")
        a("v_mov_b32 v7, 0")
        a("s_mov_b64 exec, 1")
        a(f"buffer_store_dword v6, v7, {srd('WS')}, 0 offen sc1")
        a("s_mov_b64 exec, -1")
        a.label(noep)
        self.stamp(10)
        a.label("L_bend")

    def build(self):
        a = self.a
        self.prologue()
        self.bset_front()
        a("s_branch L_bs")
        a.label("L_aset")
        self.aset_front()
        a("s_branch L_aback")
        a.label("L_bs")
        self.bset_s_phase()
        self.bset_pv_phase()
        a("s_branch L_bfin")
        a.label("L_aback")
        self.aset_back()
        self.stamp_flush()
        a("s_branch L_exit")
        a.label("L_bfin")
        self.bset_final()
        self.stamp_flush()
        a.label("L_exit")
        a("s_endpgm")
        hdr = f"""; Hand-written (own generator script) persistent kernel: MLA decode with weight absorption + GLU + gated mix.
; @launch grid=(256,1,1) block=(512,1,1) lds=163840
.amdgcn_target "amdgcn-amd-amdhsa--gfx950"
.text
.globl {NAME}_kernel
.p2align 8
.type {NAME}_kernel,@function
{NAME}_kernel:
"""
        ftr = f""".section .rodata,"a"
.p2align 6
.amdhsa_kernel {NAME}_kernel
  .amdhsa_next_free_vgpr 256
  .amdhsa_next_free_sgpr 102
  .amdhsa_accum_offset 256
  .amdhsa_group_segment_fixed_size 0
  .amdhsa_kernarg_size 112
  .amdhsa_user_sgpr_count 2
  .amdhsa_user_sgpr_kernarg_segment_ptr 1
  .amdhsa_system_sgpr_workgroup_id_x 1
.end_amdhsa_kernel
"""
        return hdr + a.text() + ftr

if __name__ == "__main__":
    out = sys.argv[1] if len(sys.argv) > 1 else "k.s"
    kw = {}
    for arg in sys.argv[2:]:
        if arg == "--stamps": kw["stamps"] = True
        elif arg.startswith("--"):
            k, v = arg[2:].split("="); kw[k] = int(v)
    open(out, "w").write(Gen(**kw).build())
```

```python
import sys, math, struct

NAME = "gated_mix__compressed_kv_cla__glu_gated_glu__decode"

WS_EPOCH = 0
WS_CF    = 0x400
WS_QA    = 0x10000
WS_QPG   = 0x20000
WS_QPL   = 0x80000
WS_PBG   = 0x100000
WS_PBL   = 0x1A0000
WS_ML    = 0x240000
WS_OUTP  = 0x250000
WS_OP    = 0x2A0000
WS_ST    = 0x440000
WS_SIZE  = 0x480000
PBS = 2560

S_W, S_X, S_LI, S_H, S_J4, S_EP = 3, 4, 5, 6, 7, 8
S_LB, S_BLK, S_G, S_S = 10, 11, 12, 13
S_WSCF = 14
SRD = dict(X=16, CKV=20, WQ=24, WUK=28, WUV=32, WO=36, WG=44, WU=48, WD=52, GW=56, OUT=60, WS=64)
SRD_SIZE = dict(X=1280, CKV=12582912, WQ=7864320, WUK=9437184, WUV=9437184, WO=7864320,
                WG=1966080, WU=1966080, WD=1966080, GW=1280, OUT=1280, WS=WS_SIZE)
KARG = dict(X=0, CKV=8, WQ=16, WUK=24, WUV=32, WO=40, WG=56, WU=64, WD=72, GW=80, OUT=88, WS=104)
S_M8 = 72
S_T = 74
S_CNT = 96
S_PB = 97
S_PM = 15
S_STAMP = 98
POLL_LIMIT = 100000

class Asm:
    def __init__(self):
        self.L = []; self.uid = 0
    def __call__(self, s):
        for line in s.strip("\n").split("\n"):
            self.L.append("    " + line.strip())
    def label(self, n): self.L.append(n + ":")
    def newlabel(self, base):
        self.uid += 1
        return f"L_{base}_{self.uid}"
    def text(self):
        import re
        out = []
        for line in self.L:
            t = line.strip()
            if t.startswith("v_cndmask") and t.endswith("vcc"):
                st = 0; k = len(out) - 1; found = False
                while k >= 0 and st < 2:
                    p = out[k].strip()
                    if p.endswith(":"): break
                    if p.startswith("v_cmp") and "vcc" in p:
                        found = True; break
                    m = re.match(r"s_nop (\d+)", p)
                    st += int(m.group(1)) + 1 if m else 1
                    k -= 1
                if found and st < 2:
                    out.append(f"    s_nop {1 - st}")
            out.append(line)
        return "\n".join(out) + "\n"

def srd(n):
    b = SRD[n]; return f"s[{b}:{b+3}]"
def vr(b, n=1):
    return f"v{b}" if n == 1 else f"v[{b}:{b+n-1}]"
def f32bits(x):
    return struct.unpack("<I", struct.pack("<f", x))[0]

class Gen:
    def __init__(self, stamps=False, dbl=0, dbgout=0, s_trig=0, wq_pf=0, sde=0, sde_win=24, perm=0, qa_order=0, early_frags=0, fin1=1, masked=1, qa_early=0, code_pf=17, tlb_warm=0, tlb_shift=21, nt_front=False, nt_ckv=False, nt_back=False, local=True, lperiod=8, a_delay=1, qa_ack=0, exp_linear=0, a_win=63, s_win=63, pv_win=63, mlpoll=2, exp_nobulk=0, a_probe=0, s_probe=0, exp_noclear=0, exp_nowuk=0):
        self.a = Asm()
        self.stamps = stamps
        self.NTF = " nt" if nt_front else ""
        self.NTC = " nt" if nt_ckv else ""
        self.NTB = " nt" if nt_back else ""
        self.local = local
        self.a_delay = a_delay
        self.qa_ack = qa_ack
        self.code_pf = code_pf
        self.dbl = dbl
        self.dbgout = dbgout
        self.selB = [0, 24, 25, 26, 3, 21, 16, 17]; self.selA = [23, 1, 16, 4, 17, 6, 25, 26]
        self.s_trig = s_trig
        self.wq_pf = wq_pf
        self.sde = sde; self.sde_win = sde_win
        self.perm = perm
        self.qa_order = qa_order
        self.early_frags = early_frags; self.fin1 = fin1
        self.masked = masked; self.qa_early = qa_early
        self.tlb_warm = tlb_warm; self.tlb_shift = tlb_shift
        self.exp_noclear = exp_noclear; self.exp_nowuk = exp_nowuk
        self.a_probe = a_probe; self.s_probe = s_probe
        self.exp_nobulk = exp_nobulk
        self.a_win = a_win; self.s_win = s_win; self.pv_win = pv_win; self.mlpoll = mlpoll
        self.exp_linear = exp_linear
        self.lperiod = lperiod
        self.L_Q = 0; self.L_QS = 512; self.L_F = 3072; self.L_FLAG = 2048; self.L_X = 4096
        self.L_S = 8192; self.L_PA = 106496; self.L_RED = 57344; self.L_PR = 90112
        self.L_O = 4096; self.L_C = 12288; self.L_CB = 14336; self.L_R = 16384
        self.PVO = 212

    def stamp(self, idx):
        if not self.stamps: return
        a = self.a
        a(f"s_memrealtime s[{S_STAMP}:{S_STAMP+1}]")
        a("s_waitcnt lgkmcnt(0)")
        a(f"v_writelane_b32 v255, s{S_STAMP}, {idx}")
    def stamp_val(self, idx, sreg):
        if not self.stamps: return
        self.a(f"s_add_u32 s9, s{sreg}, 1")
        self.a(f"v_writelane_b32 v255, s9, {idx}")
    def stamp_flush(self):
        if not self.stamps: return
        a = self.a
        if self.dbgout:
            sk = a.newlabel("dbo")
            a(f"s_and_b32 s9, s2, 127")
            a(f"s_lshl_b32 s9, s9, 3")
            a(f"s_add_u32 s9, s9, s{S_W}")
            self.skip_if(f"s_cmp_lg_u32 s9, {(self.dbgout-1)*8}", sk)
            a("s_load_dwordx2 s[40:41], s[0:1], 96")
            a("s_mov_b32 s42, 256")
            a("s_mov_b32 s43, 0x00020000")
            a("s_memtime s[46:47]")
            a("s_memrealtime s[48:49]")
            a("s_waitcnt lgkmcnt(0)")
            a("v_writelane_b32 v255, s46, 25")
            a("v_writelane_b32 v255, s48, 26")
            selB = self.selB; selA = self.selA
            a("s_cmp_lt_u32 s2, 128")
            a("s_cselect_b32 s9, 0, 32")
            for k in range(8):
                a(f"v_readlane_b32 s44, v255, {selB[k]}")
                a(f"v_readlane_b32 s45, v255, {selA[k]}")
                a("s_cmp_lt_u32 s2, 128")
                a("s_cselect_b32 s44, s44, s45")
                a(f"v_writelane_b32 v252, s44, {k}")
            a("v_lshlrev_b32 v253, 2, v1")
            a("v_add_u32 v253, s9, v253")
            a("s_waitcnt lgkmcnt(0)")
            a("s_mov_b64 exec, 0xff")
            a("buffer_store_dword v252, v253, s[40:43], 0 offen")
            a("s_mov_b64 exec, -1")
            a.label(sk)
            return
        a(f"s_lshl_b32 s{S_T+20}, s2, 3")
        a(f"s_add_u32 s{S_T+20}, s{S_T+20}, s{S_W}")
        a(f"s_lshl_b32 s{S_T+20}, s{S_T+20}, 7")
        a(f"s_add_u32 s{S_T+20}, s{S_T+20}, {WS_ST}")
        a("v_lshlrev_b32 v252, 2, v1")
        a("s_mov_b32 exec_lo, -1")
        a("s_mov_b32 exec_hi, 0")
        a(f"buffer_store_dword v255, v252, {srd('WS')}, s{S_T+20} offen")
        a("s_mov_b64 exec, -1")

    def treduce8(self, acc, t0, t1):
        a = self.a
        a("s_nop 2")
        for k in range(4): a(f"v_permlane32_swap_b32 v{acc+k}, v{acc+k+4}")
        a("s_nop 1")
        for k in range(4): a(f"v_add_f32 v{acc+k}, v{acc+k}, v{acc+k+4}")
        a("s_nop 1")
        for k in range(2): a(f"v_permlane16_swap_b32 v{acc+k}, v{acc+k+2}")
        a("s_nop 1")
        for k in range(2): a(f"v_add_f32 v{acc+k}, v{acc+k}, v{acc+k+2}")
        a("s_nop 0")
        a(f"v_cndmask_b32 v{t0}, v{acc}, v{acc+1}, s[{S_M8}:{S_M8+1}]")
        a(f"v_cndmask_b32 v{t1}, v{acc+1}, v{acc}, s[{S_M8}:{S_M8+1}]")
        a("s_nop 1")
        a(f"v_add_f32_dpp v{acc}, v{t1}, v{t0} row_ror:8 row_mask:0xf bank_mask:0xf")

    def skip_if(self, cmp, label):
        self.a(cmp); self.a(f"s_cbranch_scc1 {label}")

    def poll_begin(self, lbase=None, gbase=None):
        a = self.a
        l = a.newlabel("poll")
        a(f"s_mov_b32 s{S_CNT}, 0")
        a.label(l)
        if lbase is not None:
            if self.local:
                a(f"s_and_b32 s9, s{S_CNT}, {self.lperiod-1}")
                a(f"s_cmp_eq_u32 s9, {self.lperiod-1}")
                a(f"s_cselect_b32 s{S_PB}, s{gbase}, s{lbase}")
            else:
                a(f"s_mov_b32 s{S_PB}, s{gbase}")
        return l
    def poll_end(self, l, vbad):
        a = self.a
        ok = a.newlabel("ok")
        a(f"v_cmp_ne_u32 vcc, 0, v{vbad}")
        a(f"s_cbranch_vccz {ok}")
        a(f"s_add_u32 s{S_CNT}, s{S_CNT}, 1")
        a(f"s_cmp_lt_u32 s{S_CNT}, {POLL_LIMIT}")
        a(f"s_cbranch_scc1 {l}")
        a.label(ok)

    def gpoll(self, n, issue, check, pre=None, first_issued=False, masks=None):
        a = self.a
        top = a.newlabel("gp"); done = a.newlabel("gpd")
        if not self.masked: masks = None
        a(f"s_mov_b32 s{S_PM}, {(1<<n)-1}")
        a(f"s_mov_b32 s{S_CNT}, 0")
        if masks:
            for m in masks: a(f"s_mov_b64 s[{m}:{m+1}], -1")
        if first_issued:
            chk = a.newlabel("gpc")
            a(f"s_branch {chk}")
        a.label(top)
        if pre: pre()
        for i in range(n):
            sk = a.newlabel("gi")
            a(f"s_bitcmp0_b32 s{S_PM}, {i}")
            a(f"s_cbranch_scc1 {sk}")
            if masks: a(f"s_mov_b64 exec, s[{masks[i]}:{masks[i]+1}]")
            issue(i)
            a.label(sk)
        if masks: a("s_mov_b64 exec, -1")
        if first_issued: a.label(chk)
        a("s_waitcnt vmcnt(0)")
        for i in range(n):
            sk = a.newlabel("gc")
            a(f"s_bitcmp0_b32 s{S_PM}, {i}")
            a(f"s_cbranch_scc1 {sk}")
            check(i)
            if masks: a(f"s_mov_b64 s[{masks[i]}:{masks[i]+1}], vcc")
            a(f"s_cbranch_vccnz {sk}")
            a(f"s_bitset0_b32 s{S_PM}, {i}")
            a.label(sk)
        a(f"s_cmp_eq_u32 s{S_PM}, 0")
        a(f"s_cbranch_scc1 {done}")
        a(f"s_add_u32 s{S_CNT}, s{S_CNT}, 1")
        a(f"s_cmp_lt_u32 s{S_CNT}, {POLL_LIMIT}")
        a(f"s_cbranch_scc1 {top}")
        a.label(done)

    def lds_signal(self, base, widx_mask=3):
        a = self.a
        a(f"s_and_b32 s9, s{S_W}, {widx_mask}")
        a("s_lshl_b32 s9, s9, 2")
        a(f"s_add_u32 s9, s9, {self.L_FLAG+base}")
        a("v_mov_b32 v6, s9")
        a("v_mov_b32 v7, 1")
        a("ds_write_b32 v6, v7")
    def lds_wait(self, base, vt):
        a = self.a
        a(f"v_mov_b32 v6, {self.L_FLAG+base}")
        l = self.poll_begin()
        a(f"ds_read_b128 {vr(vt,4)}, v6")
        a("s_waitcnt lgkmcnt(0)")
        a(f"v_and_b32 v{vt}, v{vt}, v{vt+1}")
        a(f"v_and_b32 v{vt+2}, v{vt+2}, v{vt+3}")
        a(f"v_and_b32 v{vt}, v{vt}, v{vt+2}")
        a(f"v_xor_b32 v{vt}, 1, v{vt}")
        self.poll_end(l, vt)

    def cf_check(self, vb):
        a = self.a
        a(f"v_lshlrev_b32 v{vb+4}, 4, v1")
        l = self.poll_begin()
        a(f"buffer_load_dwordx4 {vr(vb,4)}, v{vb+4}, {srd('WS')}, s{S_WSCF} offen sc1")
        a("s_waitcnt vmcnt(0)")
        for k in range(4): a(f"v_xor_b32 v{vb+k}, s{S_EP}, v{vb+k}")
        a(f"v_or3_b32 v{vb}, v{vb}, v{vb+1}, v{vb+2}")
        a(f"v_or_b32 v{vb}, v{vb}, v{vb+3}")
        self.poll_end(l, vb)

    def mk_srd(self, n):
        a = self.a; b = SRD[n]
        if n != "WS":
            src = 76 + KARG[n] // 4
            a(f"s_mov_b64 s[{b}:{b+1}], s[{src}:{src+1}]")
        a(f"s_mov_b32 s{b+2}, {SRD_SIZE[n]}")
        a(f"s_mov_b32 s{b+3}, 0x00020000")

    def prologue(self):
        a = self.a; T = S_T
        if self.stamps or self.dbl: a("s_memrealtime s[42:43]")
        a("s_cmp_ge_u32 s2, 256")
        a("s_cbranch_scc1 L_exit")
        if self.perm == 1:
            a("s_lshr_b32 s3, s2, 3")
            a("s_and_b32 s2, s2, 7")
            a("s_lshl_b32 s2, s2, 5")
            a("s_or_b32 s2, s2, s3")
        elif self.perm:
            a(f"s_mul_i32 s2, s2, {self.perm}")
            a("s_and_b32 s2, s2, 255")
        a("s_load_dwordx16 s[76:91], s[0:1], 0")
        a("s_load_dwordx8 s[92:99], s[0:1], 64")
        a("s_load_dwordx2 s[64:65], s[0:1], 104")
        a("v_lshrrev_b32 v2, 6, v0")
        a("v_and_b32 v1, 63, v0")
        a(f"v_readfirstlane_b32 s{S_W}, v2")
        a(f"s_lshr_b32 s{S_LI}, s2, 3")
        a(f"s_and_b32 s{S_LI}, s{S_LI}, 15")
        if self.code_pf:
            npf = a.newlabel("npf"); lp = a.newlabel("pfl")
            a(f"s_and_b32 s9, s{S_LI}, 7")
            a("s_lshl_b32 s9, s9, 3")
            a(f"s_add_u32 s9, s9, s{S_W}")
            self.skip_if("s_cmp_lg_u32 s9, 7", npf)
            a("s_getpc_b64 s[40:41]")
            a("v_lshlrev_b32 v252, 4, v1")
            a(f"s_mov_b32 s9, {self.code_pf}")
            a.label(lp)
            a("global_load_dwordx4 v[248:251], v252, s[40:41]")
            a("v_add_u32 v252, 1024, v252")
            a("s_sub_u32 s9, s9, 1")
            a("s_cmp_lg_u32 s9, 0")
            a(f"s_cbranch_scc1 {lp}")
            a.label(npf)
        a(f"s_and_b32 s{S_X}, s2, 7")
        a(f"s_and_b32 s9, s{S_LI}, 3")
        a(f"s_lshl_b32 s{S_H}, s{S_X}, 2")
        a(f"s_add_u32 s{S_H}, s{S_H}, s9")
        a(f"s_lshr_b32 s{S_J4}, s{S_LI}, 2")
        a("v_lshrrev_b32 v2, 3, v1")
        a("v_and_b32 v3, 7, v1")
        a("v_mul_u32_u24 v4, 12288, v2")
        a("v_lshl_add_u32 v4, v3, 4, v4")
        a("s_cmp_lt_u32 s2, 128")
        a("s_cbranch_scc0 L_apre")
        a(f"s_cmp_ge_u32 s{S_W}, 3")
        a("s_cselect_b32 s100, 1, 0")
        a("s_mul_i32 s101, s100, 3")
        a(f"s_sub_u32 s101, s{S_W}, s101")
        a(f"s_mul_i32 s44, s{S_J4}, 160")
        a("s_mul_i32 s45, s100, 80")
        a("s_add_u32 s44, s44, s45")
        a("s_lshl_b32 s46, s44, 1")
        a("s_mul_i32 s44, s44, 12288")
        a(f"s_mul_i32 s45, s{S_H}, 384")
        a("s_add_u32 s44, s44, s45")
        a("s_lshl_b32 s45, s101, 7")
        a("s_add_u32 s44, s44, s45")
        a(f"s_mov_b32 s{SRD['WQ']+2}, {SRD_SIZE['WQ']}")
        a(f"s_mov_b32 s{SRD['WQ']+3}, 0x00020000")
        a("s_waitcnt lgkmcnt(0)")
        a(f"s_mov_b64 s[{SRD['WQ']}:{SRD['WQ']+1}], s[80:81]")
        nl = a.newlabel("bnl")
        self.skip_if(f"s_cmp_ge_u32 s{S_W}, 6", nl)
        for i in range(10):
            a(f"buffer_load_dwordx4 {vr(20+4*i,4)}, v4, {srd('WQ')}, s44 offen{self.NTF}")
            if i < 9: a("s_add_u32 s44, s44, 98304")
        a.label(nl)
        a("s_branch L_pre2")
        a.label("L_apre")
        a(f"s_lshr_b32 s100, s{S_W}, 1")
        a(f"s_and_b32 s101, s{S_W}, 1")
        a(f"s_mul_i32 s44, s{S_J4}, 192")
        a("s_mul_i32 s45, s100, 48")
        a("s_add_u32 s44, s44, s45")
        a("s_lshl_b32 s45, s101, 3")
        a("s_add_u32 s44, s44, s45")
        a("s_mul_i32 s44, s44, 12288")
        a(f"s_mul_i32 s45, s{S_H}, 384")
        a("s_add_u32 s44, s44, s45")
        a(f"s_mov_b32 s{SRD['WUK']+2}, {SRD_SIZE['WUK']}")
        a(f"s_mov_b32 s{SRD['WUK']+3}, 0x00020000")
        a("s_waitcnt lgkmcnt(0)")
        a(f"s_mov_b64 s[{SRD['WUK']}:{SRD['WUK']+1}], s[82:83]")
        if self.wq_pf:
            a(f"s_mov_b64 s[{SRD['WQ']}:{SRD['WQ']+1}], s[80:81]")
            a(f"s_mov_b32 s{SRD['WQ']+2}, {SRD_SIZE['WQ']}")
            a(f"s_mov_b32 s{SRD['WQ']+3}, 0x00020000")
            a(f"s_mul_i32 s46, s{S_J4}, 160")
            a(f"s_lshl_b32 s47, s{S_W}, 3")
            a("s_add_u32 s46, s46, s47")
            a(f"s_add_u32 s46, s46, 80")
            a("s_mul_i32 s46, s46, 12288")
            a("s_add_u32 s46, s46, s45")
            for t in range(3):
                a(f"buffer_load_dwordx4 v[100:103], v4, {srd('WQ')}, s46 offen offset:{t*128}")
            a(f"s_add_u32 s46, s46, {64*12288}")
            npf2 = a.newlabel("npf2")
            self.skip_if(f"s_cmp_ge_u32 s{S_W}, 2", npf2)
            for t in range(3):
                a(f"buffer_load_dwordx4 v[100:103], v4, {srd('WQ')}, s46 offen offset:{t*128}")
            a.label(npf2)
            if self.wq_pf == 3: a("s_waitcnt vmcnt(0)")
        for f in range(3):
            for t in range(3):
                a(f"buffer_load_dwordx4 {vr(20+(f*3+t)*4,4)}, v4, {srd('WUK')}, s44 offen offset:{t*128}{self.NTF}")
            if f < 2: a("s_add_u32 s44, s44, 196608")
        a.label("L_pre2")
        a(f"s_load_dword s{S_EP}, s[64:65], {WS_EPOCH}")
        a(f"s_mov_b32 s{T}, s100")
        a(f"s_mov_b32 s{T+1}, s101")
        a(f"s_mov_b32 s{S_PM}, s46")
        for n in SRD: self.mk_srd(n)
        if self.stamps:
            a("v_mov_b32 v255, 0")
            self.stamp(0)
            a("v_writelane_b32 v255, s42, 23")
            a("s_memtime s[42:43]")
            a("s_waitcnt lgkmcnt(0)")
            a("v_writelane_b32 v255, s42, 24")
        a(f"s_mov_b32 s{S_M8}, 0xff00ff00")
        a(f"s_mov_b32 s{S_M8+1}, 0xff00ff00")
        a(f"s_mov_b32 s{S_WSCF}, {WS_CF}")
        a("s_cmp_lt_u32 s2, 128")
        a("s_cbranch_scc0 L_aset")

    def aset_front(self):
        a = self.a; T = S_T
        W0 = 20; QF = 56; ACC = 68
        a(f"s_lshl_b32 s{T+10}, s{S_X}, 4")
        a(f"s_add_u32 s{T+10}, s{T+10}, s{S_LI}")
        a(f"s_mul_i32 s{T+10}, s{T+10}, 2560")
        a(f"s_add_u32 s{T+10}, s{T+10}, {WS_OUTP}")
        a("v_mov_b32 v76, -1\nv_mov_b32 v77, -1\nv_mov_b32 v78, -1\nv_mov_b32 v79, -1")
        a("v_lshlrev_b32 v80, 4, v0")
        a("v_mov_b32 v81, 0x7fffffff")
        a("v_cmp_gt_u32 vcc, 160, v0")
        a("s_nop 1")
        a("v_cndmask_b32 v80, v81, v80, vcc")
        a(f"buffer_store_dwordx4 v[76:79], v80, {srd('WS')}, s{T+10} offen sc1")
        a("v_lshlrev_b32 v5, 2, v1")
        a("v_mov_b32 v6, 0")
        a(f"ds_write_b32 v5, v6 offset:{self.L_CB}")
        a(f"ds_write_b32 v5, v6 offset:{self.L_CB+256}")
        a(f"s_mul_i32 s{T+5}, s{S_H}, {8*1536}")
        a(f"s_add_u32 s{T+6}, s{T+5}, {WS_QPL}")
        a(f"s_add_u32 s{T+5}, s{T+5}, {WS_QPG}")
        a("s_waitcnt vmcnt(0) lgkmcnt(0)")
        a(f"s_add_u32 s{S_EP}, s{S_EP}, 1")
        self.stamp(1)
        skip = a.newlabel("e1skip")
        self.skip_if(f"s_cmp_ge_u32 s{S_W}, 3", skip)
        a("v_lshlrev_b32 v5, 3, v0")
        G = 84
        l = self.poll_begin(T+6, T+5)
        for p in range(8):
            a(f"buffer_load_dwordx2 {vr(G+2*p,2)}, v5, {srd('WS')}, s{S_PB} offen offset:{(p%2)*1536} sc1")
            if p % 2 == 1 and p < 7: a(f"s_add_u32 s{S_PB}, s{S_PB}, 3072")
        a("s_waitcnt vmcnt(0)")
        a(f"v_xor_b32 v6, s{S_EP}, v{G+1}")
        for p in range(1, 8):
            a(f"v_xor_b32 v7, s{S_EP}, v{G+2*p+1}")
            a("v_or_b32 v6, v6, v7")
        self.poll_end(l, 6)
        self.stamp_val(16, S_CNT)
        for p in range(1, 8): a(f"v_add_f32 v{G}, v{G}, v{G+2*p}")
        a(f"v_cvt_pk_bf16_f32 v6, v{G}, v{G}")
        a("v_lshlrev_b32 v7, 1, v0")
        a(f"ds_write_b16 v7, v6 offset:{self.L_Q}")
        a("s_waitcnt lgkmcnt(0)")
        a.label(skip)
        a("v_lshlrev_b32 v5, 4, v3")
        a(f"s_lshl_b32 s{T+7}, s{S_W}, 6")
        a("v_lshlrev_b32 v10, 1, v2")
        a(f"v_add_u32 v10, s{T+7}, v10")
        a("v_lshlrev_b32 v6, 4, v1")
        a("v_mov_b32 v7, 4")
        a("v_cmp_eq_u32 vcc, 3, v1")
        a("v_mov_b32 v8, 12")
        a("v_mov_b32 v9, 16")
        a("v_cndmask_b32 v6, v6, v8, vcc")
        a("v_cndmask_b32 v7, v7, v9, vcc")
        a("v_and_b32 v6, 63, v6")
        a(f"v_add_u32 v11, s{T+7}, v6")
        a("v_add_u32 v12, v11, v7")
        a("v_add_u32 v13, v12, v7")
        a(f"s_lshl_b32 s{T+8}, s{S_J4}, 2")
        a(f"s_add_u32 s{T+8}, s{T+8}, s{T}")
        a(f"s_lshl_b32 s{T+8}, s{T+8}, 12")
        a(f"s_lshl_b32 s{T+9}, s{T+1}, 9")
        a(f"s_add_u32 s{T+8}, s{T+8}, s{T+9}")
        a(f"s_lshl_b32 s{T+9}, s{S_H}, 4")
        a(f"s_add_u32 s{T+8}, s{T+8}, s{T+9}")
        a(f"s_add_u32 s{T+8}, s{T+8}, {WS_QA}")
        a("v_lshlrev_b32 v14, 10, v1")
        a("v_mov_b32 v7, 0x7fffffff")
        a("v_cmp_gt_u32 vcc, 4, v1")
        a(f"v_mov_b32 v75, s{S_EP}")
        a("v_cndmask_b32 v14, v7, v14, vcc")
        for f in range(3): a(f"v_mov_b32 v{ACC+f}, 0")
        a("s_barrier")
        self.stamp(2)
        for t in range(3):
            a(f"ds_read_b128 {vr(QF+4*t,4)}, v5 offset:{self.L_Q + t*128}")
        for t in range(3):
            a(f"s_waitcnt lgkmcnt({2-t})")
            for k in range(4):
                for f in range(3):
                    a(f"v_dot2c_f32_bf16 v{ACC+f}, v{W0+(f*3+t)*4+k}, v{QF+4*t+k}")
        a("s_nop 2")
        for ctrl in ["quad_perm:[1,0,3,2]", "quad_perm:[2,3,0,1]", "row_half_mirror"]:
            for f in range(3):
                a(f"v_add_f32_dpp v{ACC+f}, v{ACC+f}, v{ACC+f} {ctrl} row_mask:0xf bank_mask:0xf")
        for f in range(3): a(f"v_cvt_pk_bf16_f32 v{ACC+f}, v{ACC+f}, v{ACC+f}")
        for f in range(3): a(f"ds_write_b16 v10, v{ACC+f} offset:{self.L_QS + f*16}")
        a("s_waitcnt lgkmcnt(0)")
        a(f"ds_read_b32 v72, v11 offset:{self.L_QS}")
        a(f"ds_read_b32 v73, v12 offset:{self.L_QS}")
        a(f"ds_read_b32 v74, v13 offset:{self.L_QS}")
        a("s_waitcnt lgkmcnt(0)")
        a(f"buffer_store_dwordx4 v[72:75], v14, {srd('WS')}, s{T+8} offen sc1")
        self.stamp(3)
        if self.qa_ack: a("s_waitcnt vmcnt(0)")
        a("s_barrier")

    def wo_lane_offsets(self):
        a = self.a
        a("v_mul_u32_u24 v6, 52429, v0")
        a("v_lshrrev_b32 v6, 22, v6")
        a("v_mul_u32_u24 v7, 80, v6")
        a("v_sub_u32 v7, v0, v7")
        a("v_mul_u32_u24 v5, 1280, v6")
        a("v_lshl_add_u32 v5, v7, 4, v5")
        a("v_mov_b32 v8, 0x7fffffff")
        a("v_cmp_gt_u32 vcc, 480, v0")
        a("s_nop 1")
        a("v_cndmask_b32 v5, v8, v5, vcc")

    def preperm(self, W0, npairs, t0):
        a = self.a
        a("s_mov_b32 s94, 0x05040100")
        a("s_mov_b32 s95, 0x07060302")
        for p in range(npairs):
            for k in range(4):
                r0 = W0 + 8*p + k; r1 = r0 + 4
                a(f"v_perm_b32 v{t0}, v{r1}, v{r0}, s94")
                a(f"v_perm_b32 v{r1}, v{r1}, v{r0}, s95")
                a(f"v_mov_b32 v{r0}, v{t0}")

    def gemv_pairs(self, W0, npairs, CO, ACC):
        a = self.a
        for p in range(npairs):
            for k in range(4):
                a(f"v_dot2c_f32_bf16 v{ACC+2*k}, v{W0+8*p+k}, v{CO+p}")
            for k in range(4):
                a(f"v_dot2c_f32_bf16 v{ACC+2*k+1}, v{W0+8*p+4+k}, v{CO+p}")

    def out_reduce_publish(self, ACC, outp_soff):
        a = self.a
        a("s_nop 2")
        a(f"ds_write_b128 v129, {vr(ACC,4)} offset:{self.L_R}")
        a(f"ds_write_b128 v129, {vr(ACC+4,4)} offset:{self.L_R+16}")
        a("s_waitcnt lgkmcnt(0)")
        a("s_barrier")
        skip = a.newlabel("go")
        self.skip_if(f"s_cmp_ge_u32 s{S_W}, 3", skip)
        R = 132
        for sl in range(6):
            a(f"ds_read_b128 {vr(R+4*sl,4)}, v131 offset:{self.L_R+sl*2560}")
        a("s_waitcnt lgkmcnt(0)")
        for k in range(4):
            a(f"v_add_f32 v{R+k}, v{R+k}, v{R+4+k}")
            a(f"v_add_f32 v{R+8+k}, v{R+8+k}, v{R+12+k}")
            a(f"v_add_f32 v{R+16+k}, v{R+16+k}, v{R+20+k}")
        for k in range(4): a(f"v_add_f32 v{R+k}, v{R+k}, v{R+8+k}")
        for k in range(4): a(f"v_add_f32 v{R+k}, v{R+k}, v{R+16+k}")
        for k in range(4): a(f"v_min_u32 v{R+k}, 0xfffffffe, v{R+k}")
        a(f"buffer_store_dwordx4 {vr(R,4)}, v130, {srd('WS')}, s{outp_soff} offen sc1")
        a.label(skip)

    def write_pairs(self, vsrc, t0, t1, nvalid):
        a = self.a
        a(f"v_lshlrev_b32 v{t0}, 2, v1")
        a(f"v_add_u32 v{t1}, {self.L_CB - 24 + 2}, v{t0}")
        a(f"v_add_u32 v{t0}, {self.L_CB}, v{t0}")
        a(f"v_mov_b32 v{t0+2}, {self.L_CB + 500}")
        a("v_cmp_gt_u32 vcc, 6, v1")
        a("s_nop 1")
        a(f"v_cndmask_b32 v{t1}, v{t1}, v{t0+2}, vcc")
        if nvalid < 64:
            a(f"v_cmp_le_u32 vcc, {nvalid}, v1")
            a("s_nop 1")
            a(f"v_cndmask_b32 v{t1}, v{t1}, v{t0+2}, vcc")
            a(f"v_cndmask_b32 v{t0}, v{t0}, v{t0+2}, vcc")
        a(f"ds_write_b16 v{t0}, v{vsrc}")
        a(f"ds_write_b16 v{t1}, v{vsrc}")

    def out_addr_regs(self):
        a = self.a
        a("v_mul_u32_u24 v129, 2560, v6")
        a("v_lshl_add_u32 v129, v7, 5, v129")
        a("v_lshlrev_b32 v131, 4, v0")
        a("v_mov_b32 v130, 0x7fffffff")
        a("v_cmp_gt_u32 vcc, 160, v0")
        a("s_nop 1")
        a("v_cndmask_b32 v130, v130, v131, vcc")

    def aset_back(self):
        a = self.a; T = S_T
        self.wo_lane_offsets()
        self.out_addr_regs()
        if self.exp_nobulk:
            a(f"s_lshl_b32 s{T+1}, s{S_H}, 7")
            a(f"s_add_u32 s{T+1}, s{T+1}, {WS_ML}")
            a("v_and_b32 v14, 15, v1")
            a("v_lshlrev_b32 v14, 3, v14")
            self.cf_check(132)
            l = self.poll_begin()
            a(f"buffer_load_dwordx2 v[116:117], v14, {srd('WS')}, s{T+1} offen sc1")
            a("s_waitcnt vmcnt(0)")
            a("v_max_u32 v15, v116, v117")
            a("v_cmp_eq_u32 vcc, -1, v15")
            a("s_nop 1")
            a("v_cndmask_b32 v15, 0, 1, vcc")
            a("s_sleep 4")
            self.poll_end(l, 15)
        self.skip_if(f"s_cmp_ge_u32 s{S_LI}, 12", "L_bbranch")
        WV = 20; WO = 68
        a(f"s_mul_i32 s{T}, s{S_W}, {96*12288}")
        a(f"s_mul_i32 s{T+1}, s{S_H}, 384")
        a(f"s_add_u32 s{T}, s{T}, s{T+1}")
        a(f"s_lshl_b32 s{T+1}, s{S_J4}, 7")
        a(f"s_add_u32 s{T}, s{T}, s{T+1}")
        for i in range(12):
            a(f"buffer_load_dwordx4 {vr(WV+4*i,4)}, v4, {srd('WUV')}, s{T} offen{self.NTB}")
            if i >= self.a_win: a(f"s_waitcnt vmcnt({self.a_win})")
            if i < 11: a(f"s_add_u32 s{T}, s{T}, 98304")
        a(f"s_mul_i32 s{T}, s{S_H}, 192")
        a(f"s_lshl_b32 s{T+1}, s{S_J4}, 6")
        a(f"s_add_u32 s{T}, s{T}, s{T+1}")
        a(f"s_mul_i32 s{T}, s{T}, 1280")
        for i in range(10):
            a(f"buffer_load_dwordx4 {vr(WO+4*i,4)}, v5, {srd('WO')}, s{T} offen{self.NTB}")
            if 12 + i >= self.a_win: a(f"s_waitcnt vmcnt({self.a_win})")
            a(f"s_add_u32 s{T}, s{T}, 7680")
        a("v_cmp_gt_u32 vcc, 4, v6")
        a("s_nop 1")
        a("v_cndmask_b32 v9, v8, v5, vcc")
        a(f"buffer_load_dwordx4 {vr(WO+40,4)}, v9, {srd('WO')}, s{T} offen{self.NTB}")
        for k in range(4): a(f"v_mov_b32 v{WO+44+k}, 0")
        self.stamp(4)
        a("v_cmp_le_u32 vcc, 24, v1")
        a("s_nop 1")
        a("v_cndmask_b32 v10, 0, 1, vcc")
        a("v_mul_u32_u24 v11, 24, v10")
        a("v_sub_u32 v11, v1, v11")
        a("v_mul_u32_u24 v12, 384, v10")
        a("v_lshl_add_u32 v12, v11, 4, v12")
        a(f"s_lshl_b32 s{T+2}, s{S_W}, 10")
        a(f"s_add_u32 s{T+2}, s{T+2}, {self.L_O}")
        a(f"v_add_u32 v13, s{T+2}, v12")
        a("v_cmp_gt_u32 vcc, 48, v1")
        a("v_lshlrev_b32 v16, 2, v2")
        a(f"v_add_u32 v16, s{T+2}, v16")
        a("v_cndmask_b32 v12, v8, v12, vcc")
        a(f"s_lshl_b32 s{T}, s{S_H}, 3")
        a(f"s_add_u32 s{T}, s{T}, s{S_W}")
        a(f"s_mul_i32 s{T}, s{T}, {16*384}")
        a(f"s_add_u32 s{T}, s{T}, {WS_OP}")
        a(f"s_lshl_b32 s{T+1}, s{S_H}, 7")
        a(f"s_add_u32 s{T+1}, s{T+1}, {WS_ML}")
        a("v_and_b32 v14, 15, v1")
        a("v_lshlrev_b32 v14, 3, v14")
        a("v_lshlrev_b32 v121, 2, v10")
        a("v_lshlrev_b32 v17, 5, v3")
        a("v_lshl_add_u32 v17, v2, 2, v17")
        a(f"s_lshl_b32 s{T+3}, s{S_W}, 8")
        a(f"v_add_u32 v17, s{T+3}, v17")
        a("v_lshlrev_b32 v18, 2, v6")
        a("v_lshlrev_b32 v172, 2, v1")
        a(f"v_add_u32 v173, {self.L_CB - 24 + 2}, v172")
        a(f"v_add_u32 v172, {self.L_CB}, v172")
        a(f"v_mov_b32 v174, {self.L_CB + 500}")
        a("v_cmp_gt_u32 vcc, 6, v1")
        a("s_nop 1")
        a("v_cndmask_b32 v173, v173, v174, vcc")
        a("s_waitcnt vmcnt(11)")
        self.preperm(WV, 6, 128)
        a("s_waitcnt vmcnt(0)")
        self.preperm(WO, 6, 128)
        self.stamp(5)
        self.cf_check(132)
        OPV = 132
        def e4_issue(i):
            if i == 8:
                a(f"buffer_load_dwordx2 v[116:117], v14, {srd('WS')}, s{T+1} offen sc1")
            else:
                so = T if i < 4 else T+2
                a(f"buffer_load_dwordx4 {vr(OPV+4*i,4)}, v12, {srd('WS')}, s{so} offen offset:{(i%4)*768} sc1")
        def e4_check(i):
            if i == 8:
                a("v_max_u32 v15, v116, v117")
            else:
                a(f"v_max3_u32 v15, v{OPV+4*i}, v{OPV+4*i+1}, v{OPV+4*i+2}")
                a(f"v_max_u32 v15, v15, v{OPV+4*i+3}")
            a("v_cmp_eq_u32 vcc, -1, v15")
        a(f"s_add_u32 s{T+2}, s{T}, 3072")
        if self.mlpoll == 1:
            l = self.poll_begin()
            a(f"buffer_load_dwordx2 v[116:117], v14, {srd('WS')}, s{T+1} offen sc1")
            a("s_waitcnt vmcnt(0)")
            a("v_max_u32 v15, v116, v117")
            a("v_cmp_eq_u32 vcc, -1, v15")
            a("s_nop 1")
            a("v_cndmask_b32 v15, 0, 1, vcc")
            self.poll_end(l, 15)
            self.gpoll(8, e4_issue, e4_check, masks=[20,22,24,26,28,30,44,46])
        elif self.mlpoll == 2:
            l = a.newlabel("mla"); ok = a.newlabel("mlo")
            a(f"s_mov_b32 s{S_CNT}, 0")
            a.label(l)
            a(f"buffer_load_dwordx2 v[116:117], v14, {srd('WS')}, s{T+1} offen sc1")
            a("s_waitcnt vmcnt(0)")
            a("v_max_u32 v15, v116, v117")
            a("v_cmp_ne_u32 vcc, -1, v15")
            a(f"s_cbranch_vccnz {ok}")
            a("s_sleep 2")
            a(f"s_add_u32 s{S_CNT}, s{S_CNT}, 1")
            a(f"s_cmp_lt_u32 s{S_CNT}, {POLL_LIMIT}")
            a(f"s_cbranch_scc1 {l}")
            a.label(ok)
            self.gpoll(9, e4_issue, e4_check, masks=[20,22,24,26,28,30,44,46,48])
        else:
            self.gpoll(9, e4_issue, e4_check)
        self.stamp(6)
        self.stamp_val(17, S_CNT)
        a("v_mov_b32 v118, v116")
        a("s_nop 1")
        for ctrl in ["quad_perm:[1,0,3,2]", "quad_perm:[2,3,0,1]", "row_half_mirror", "row_mirror"]:
            a(f"v_max_f32_dpp v118, v118, v118 {ctrl} row_mask:0xf bank_mask:0xf")
            a("s_nop 1")
        a("v_sub_f32 v119, v116, v118")
        a("v_exp_f32 v119, v119")
        a("s_nop 0")
        a("v_mul_f32 v120, v117, v119")
        WN = 164
        for i in range(8): a(f"ds_bpermute_b32 v{WN+i}, v121, v119 offset:{8*i}")
        for ctrl in ["quad_perm:[1,0,3,2]", "quad_perm:[2,3,0,1]", "row_half_mirror", "row_mirror"]:
            a(f"v_add_f32_dpp v120, v120, v120 {ctrl} row_mask:0xf bank_mask:0xf")
            a("s_nop 1")
        a("v_rcp_f32 v120, v120")
        a("s_waitcnt lgkmcnt(0)")
        for k in range(4): a(f"v_mul_f32 v{122+k}, v{WN}, v{OPV+k}")
        for i in range(1, 8):
            for k in range(4): a(f"v_fmac_f32 v{122+k}, v{WN+i}, v{OPV+4*i+k}")
        for k in range(4): a(f"v_mul_f32 v{122+k}, v{122+k}, v120")
        a("s_mov_b32 exec_hi, 0xffff")
        a("ds_write_b128 v13, v[122:125]")
        a("s_mov_b32 exec_hi, -1")
        a("s_waitcnt lgkmcnt(0)")
        OV = 132
        for i in range(12):
            a(f"ds_read2_b32 {vr(OV+2*i,2)}, v16 offset0:{8*i} offset1:{8*i+96}")
        ACC = 120
        for k in range(8): a(f"v_mov_b32 v{ACC+k}, 0")
        CO = 160
        for p in range(6):
            a(f"s_waitcnt lgkmcnt({10-2*p})")
            a(f"v_add_f32 v{OV+4*p}, v{OV+4*p}, v{OV+4*p+1}")
            a(f"v_add_f32 v{OV+4*p+2}, v{OV+4*p+2}, v{OV+4*p+3}")
            a(f"v_cvt_pk_bf16_f32 v{CO+p}, v{OV+4*p}, v{OV+4*p+2}")
        self.gemv_pairs(WV, 6, CO, ACC)
        self.treduce8(ACC, 128, 118)
        a(f"ds_write_b32 v17, v{ACC} offset:{self.L_C}")
        a("s_waitcnt lgkmcnt(0)")
        a("s_barrier")
        self.stamp(7)
        skip = a.newlabel("cx")
        self.skip_if(f"s_cmp_lg_u32 s{S_W}, 0", skip)
        a("v_lshlrev_b32 v13, 2, v1")
        for w in range(8): a(f"ds_read_b32 v{132+w}, v13 offset:{self.L_C+w*256}")
        a("s_waitcnt lgkmcnt(0)")
        a("v_add_f32 v132, v132, v133\nv_add_f32 v134, v134, v135\nv_add_f32 v136, v136, v137\nv_add_f32 v138, v138, v139")
        a("v_add_f32 v132, v132, v134\nv_add_f32 v136, v136, v138")
        a("v_add_f32 v132, v132, v136")
        a("v_cvt_pk_bf16_f32 v132, v132, v132")
        a("ds_write_b16 v172, v132")
        a("ds_write_b16 v173, v132")
        a("s_waitcnt lgkmcnt(0)")
        a.label(skip)
        for k in range(8): a(f"v_mov_b32 v{ACC+k}, 0")
        a("s_barrier")
        for p in range(6):
            a(f"ds_read_b32 v{CO+p}, v18 offset:{self.L_CB+48*p}")
        a("s_waitcnt lgkmcnt(0)")
        self.gemv_pairs(WO, 6, CO, ACC)
        self.out_reduce_publish(ACC, T+10)
        self.stamp(8)
        a("s_branch L_aend")

        a.label("L_bbranch")
        WG = 20; XB = 84; WD = 160
        a("v_lshlrev_b32 v19, 2, v6")
        a(f"s_lshl_b32 s{T}, s{S_X}, 2")
        a(f"s_add_u32 s{T}, s{T}, s{S_LI}")
        a(f"s_sub_u32 s{T}, s{T}, 12")
        a("v_mul_u32_u24 v10, 43, v1")
        a("v_lshrrev_b32 v10, 8, v10")
        a("v_mul_u32_u24 v11, 6, v10")
        a("v_sub_u32 v11, v1, v11")
        a("v_mul_u32_u24 v12, 3072, v10")
        a("v_lshl_add_u32 v12, v11, 4, v12")
        a("v_cmp_gt_u32 vcc, 60, v1")
        a("v_lshlrev_b32 v13, 1, v10")
        a("v_cndmask_b32 v12, v8, v12, vcc")
        a(f"s_and_b32 s{T+1}, s{S_W}, 3")
        a(f"s_mul_i32 s{T+2}, s{T+1}, 320")
        for i in range(16):
            a(f"buffer_load_ushort v{XB+i}, v13, {srd('X')}, s{T+2} offen offset:{20*i}")
        a(f"s_mul_i32 s{T+2}, s{T+1}, {160*3072}")
        a(f"s_mul_i32 s{T+3}, s{T}, 96")
        a(f"s_add_u32 s{T+2}, s{T+2}, s{T+3}")
        up = a.newlabel("up"); upd = a.newlabel("upd")
        self.skip_if(f"s_cmp_ge_u32 s{S_W}, 4", up)
        for i in range(16):
            a(f"buffer_load_dwordx4 {vr(WG+4*i,4)}, v12, {srd('WG')}, s{T+2} offen{self.NTB}")
            if i >= self.a_win: a(f"s_waitcnt vmcnt({self.a_win})")
            a(f"s_add_u32 s{T+2}, s{T+2}, 30720")
        a(f"s_branch {upd}")
        a.label(up)
        for i in range(16):
            a(f"buffer_load_dwordx4 {vr(WG+4*i,4)}, v12, {srd('WU')}, s{T+2} offen{self.NTB}")
            if i >= self.a_win: a(f"s_waitcnt vmcnt({self.a_win})")
            a(f"s_add_u32 s{T+2}, s{T+2}, 30720")
        a.label(upd)
        a(f"s_mul_i32 s{T+2}, s{T}, {48*1280}")
        for i in range(8):
            a(f"buffer_load_dwordx4 {vr(WD+4*i,4)}, v5, {srd('WD')}, s{T+2} offen{self.NTB}")
            if 16 + i >= self.a_win: a(f"s_waitcnt vmcnt({self.a_win})")
            a(f"s_add_u32 s{T+2}, s{T+2}, 7680")
        ACC = 120
        for k in range(8): a(f"v_mov_b32 v{ACC+k}, 0")
        for i in range(16):
            a(f"s_waitcnt vmcnt({8+15-i})")
            a(f"v_lshlrev_b32 v128, 16, v{XB+i}")
            for k in range(4): a(f"v_dot2c_f32_bf16 v{ACC+2*k}, v{WG+4*i+k}, v{XB+i}")
            for k in range(4): a(f"v_dot2c_f32_bf16 v{ACC+2*k+1}, v{WG+4*i+k}, v128")
        a(f"s_mul_i32 s{T+2}, s{S_W}, 1920")
        a("v_mul_u32_u24 v13, 192, v10")
        a("v_lshl_add_u32 v13, v11, 5, v13")
        a(f"v_add_u32 v13, s{T+2}, v13")
        a("s_mov_b32 exec_hi, 0x0fffffff")
        a(f"ds_write_b128 v13, {vr(ACC,4)} offset:{self.L_R}")
        a(f"ds_write_b128 v13, {vr(ACC+4,4)} offset:{self.L_R+16}")
        a("s_mov_b32 exec_hi, -1")
        a("s_waitcnt lgkmcnt(0)")
        a("s_barrier")
        skip = a.newlabel("bg")
        self.skip_if(f"s_cmp_ge_u32 s{S_W}, 2", skip)
        a("v_cmp_le_u32 vcc, 48, v0")
        a("v_mov_b32 v14, 7488")
        a("v_lshlrev_b32 v13, 2, v0")
        a("v_cndmask_b32 v14, 0, v14, vcc")
        a("v_add_u32 v13, v13, v14")
        a("v_min_u32 v13, 7868, v13")
        for j in range(40):
            a(f"ds_read_b32 v{20+j}, v13 offset:{self.L_R+j*192}")
            if j % 8 == 7: a("s_waitcnt lgkmcnt(0)")
        for j in range(1, 40): a(f"v_add_f32 v20, v20, v{20+j}")
        a("v_lshlrev_b32 v13, 2, v0")
        a(f"ds_write_b32 v13, v20 offset:{self.L_C}")
        a("s_waitcnt lgkmcnt(0)")
        a.label(skip)
        a("s_barrier")
        skip = a.newlabel("bh")
        self.skip_if(f"s_cmp_lg_u32 s{S_W}, 0", skip)
        a("v_lshlrev_b32 v13, 2, v1")
        a(f"ds_read_b32 v20, v13 offset:{self.L_C}")
        a(f"ds_read_b32 v21, v13 offset:{self.L_C+192}")
        a("s_waitcnt lgkmcnt(0)")
        a(f"v_mul_f32 v20, 0x{f32bits(-math.log2(math.e)):08x}, v20")
        a("v_exp_f32 v20, v20")
        a("s_nop 0")
        a("v_add_f32 v20, 1.0, v20")
        a("v_rcp_f32 v20, v20")
        a("s_nop 0")
        a("v_mul_f32 v20, v20, v21")
        a("v_cvt_pk_bf16_f32 v20, v20, v20")
        self.write_pairs(20, 13, 14, 48)
        a("s_waitcnt lgkmcnt(0)")
        a.label(skip)
        for k in range(8): a(f"v_mov_b32 v{ACC+k}, 0")
        a("s_waitcnt vmcnt(0)")
        self.preperm(WD, 4, 128)
        a("s_barrier")
        CO = 100
        for p in range(4):
            a(f"ds_read_b32 v{CO+p}, v19 offset:{self.L_CB+48*p}")
        a("s_waitcnt lgkmcnt(0)")
        self.gemv_pairs(WD, 4, CO, ACC)
        self.out_reduce_publish(ACC, T+10)
        self.stamp(8)
        a.label("L_aend")

    def bset_ids(self):
        a = self.a
        a(f"s_mov_b32 s{S_LB}, s{S_LI}")
        a(f"s_lshl_b32 s{S_BLK}, s{S_X}, 5")
        a(f"s_lshl_b32 s9, s{S_LB}, 1")
        a(f"s_add_u32 s{S_BLK}, s{S_BLK}, s9")
        a(f"s_lshl_b32 s{S_G}, s{S_X}, 1")
        a(f"s_lshr_b32 s9, s{S_LB}, 3")
        a(f"s_add_u32 s{S_G}, s{S_G}, s9")
        a(f"s_and_b32 s{S_S}, s{S_LB}, 7")

    def pv_lane_offsets(self):
        a = self.a
        for n in range(3):
            a(f"v_add_u32 v5, {64*n}, v1")
            a("v_mul_u32_u24 v6, 5462, v5")
            a("v_lshrrev_b32 v6, 16, v6")
            a("v_mul_u32_u24 v7, 12, v6")
            a("v_sub_u32 v7, v5, v7")
            a("v_mul_u32_u24 v6, 1536, v6")
            a(f"v_lshl_add_u32 v{self.PVO+n}, v7, 4, v6")

    def pv_dma(self, kp, ldsbase, nw, w0):
        a = self.a; T = S_T + 8
        per = 48 // nw; rows = 256 // nw
        a(f"s_sub_u32 s{T+2}, s{S_W}, {w0}")
        a(f"s_lshl_b32 s{T}, s{S_G}, 9")
        a(f"s_mul_i32 s{T+1}, s{T+2}, {rows}")
        a(f"s_add_u32 s{T}, s{T}, s{T+1}")
        if kp: a(f"s_add_u32 s{T}, s{T}, 256")
        a(f"s_mul_i32 s{T}, s{T}, 1536")
        a(f"s_mul_i32 s{T+1}, s{S_S}, 192")
        a(f"s_add_u32 s{T}, s{T}, s{T+1}")
        a(f"s_mul_i32 s{T+1}, s{T+2}, {per*1024}")
        a(f"s_add_u32 s{T+1}, s{T+1}, {ldsbase}")
        for n in range(per):
            a(f"s_add_u32 m0, s{T+1}, {n*1024}")
            if n % 3 == 0 and n > 0: a(f"s_add_u32 s{T}, s{T}, {16*1536}")
            else: a("s_nop 0")
            a(f"buffer_load_dwordx4 v{self.PVO+(n%3)}, {srd('CKV')}, s{T} offen{self.NTC} lds")
            if self.pv_win < 63: a(f"s_waitcnt vmcnt({self.pv_win})")

    def s_dma_prep(self):
        a = self.a
        a("v_mov_b32 v216, 0")
        a("v_mov_b32 v219, v1")
        a("v_cmp_le_u32 vcc, 32, v1")
        a("v_add_u32 v5, 64, v1")
        a("v_subrev_u32 v6, 32, v1")
        a("v_cndmask_b32 v217, 0, 1, vcc")
        a("v_cndmask_b32 v220, v5, v6, vcc")
        a("v_mov_b32 v218, 1")
        a("v_add_u32 v221, 32, v1")
        for b in range(3): a(f"v_mul_u32_u24 v{222+b}, 1536, v{216+b}")
        T = S_T + 8
        a(f"s_and_b32 s{T+2}, s{S_W}, 1")
        a(f"s_lshl_b32 s{T+2}, s{T+2}, 3")
        for aa in range(4):
            for b in range(3):
                n = 3*aa + b
                a(f"s_add_u32 s{T+4}, s{T+2}, {2*aa}")
                a(f"v_add_u32 v5, s{T+4}, v{216+b}")
                a(f"v_xor_b32 v5, v5, v{219+b}")
                a(f"v_lshl_add_u32 v{226+n}, v5, 4, v{222+b}")

    def s_dma(self):
        a = self.a; T = S_T + 8
        a(f"s_lshl_b32 s{T}, s{S_X}, 10")
        a(f"s_lshl_b32 s{T+1}, s{S_LB}, 6")
        a(f"s_add_u32 s{T}, s{T}, s{T+1}")
        a(f"s_lshl_b32 s{T+1}, s{S_W}, 3")
        a(f"s_add_u32 s{T}, s{T}, s{T+1}")
        a(f"s_mul_i32 s{T}, s{T}, 1536")
        a(f"s_mul_i32 s{T+3}, s{S_W}, 12288")
        a(f"s_add_u32 s{T+3}, s{T+3}, {self.L_S}")
        for n in range(12):
            a(f"s_add_u32 m0, s{T+3}, {n*1024}")
            if n % 3 == 0 and n > 0: a(f"s_add_u32 s{T}, s{T}, {2*1536}")
            else: a("s_nop 0")
            a(f"buffer_load_dwordx4 v{226+n}, {srd('CKV')}, s{T} offen{self.NTC} lds")
            if n >= self.s_win: a(f"s_waitcnt vmcnt({self.s_win})")
            if self.s_probe and n == self.s_probe-1: a(f"s_waitcnt vmcnt({self.s_probe-1})")

    def s_dma_early(self):
        a = self.a; T = S_T + 8
        a(f"s_sub_u32 s{T+2}, s{S_W}, 6")
        a(f"s_lshl_b32 s{T}, s{S_X}, 10")
        a(f"s_lshl_b32 s{T+1}, s{S_LB}, 6")
        a(f"s_add_u32 s{T}, s{T}, s{T+1}")
        a(f"s_lshl_b32 s{T+1}, s{T+2}, 5")
        a(f"s_add_u32 s{T}, s{T}, s{T+1}")
        a(f"s_mul_i32 s{T}, s{T}, 1536")
        a(f"s_mul_i32 s{T+3}, s{T+2}, 49152")
        a(f"s_add_u32 s{T+3}, s{T+3}, {self.L_S}")
        for aa in range(16):
            for b in range(3):
                n = 3*aa + b
                a(f"v_add_u32 v5, {(2*aa) & 15}, v{216+b}")
                a(f"v_xor_b32 v5, v5, v{219+b}")
                a(f"v_lshl_add_u32 v5, v5, 4, v{222+b}")
                a(f"s_add_u32 m0, s{T+3}, {n*1024}")
                a(f"s_add_u32 s{T+5}, s{T}, {2*aa*1536}")
                a(f"buffer_load_dwordx4 v5, {srd('CKV')}, s{T+5} offen{self.NTC} lds")
                if n >= self.sde_win: a(f"s_waitcnt vmcnt({self.sde_win})")

    def bset_clears(self):
        a = self.a; T = S_T + 8
        a("v_subrev_u32 v5, 384, v0")
        a("v_mov_b32 v76, -1\nv_mov_b32 v77, -1\nv_mov_b32 v78, -1\nv_mov_b32 v79, -1")
        a("v_lshlrev_b32 v6, 4, v5")
        a("v_mov_b32 v7, 0x7fffffff")
        a("v_cmp_gt_u32 vcc, 64, v5")
        a(f"s_mul_i32 s{T+2}, s{S_BLK}, {PBS}")
        a("v_cndmask_b32 v8, v7, v6, vcc")
        for base in (WS_PBG, WS_PBL):
            a(f"s_add_u32 s{T+3}, s{T+2}, {base}")
            a(f"buffer_store_dwordx4 v[76:79], v6, {srd('WS')}, s{T+3} offen sc1")
            a(f"buffer_store_dwordx4 v[76:79], v6, {srd('WS')}, s{T+3} offen offset:2048 sc1")
            a(f"s_add_u32 s{T+3}, s{T+3}, 4096")
            a(f"buffer_store_dwordx4 v[76:79], v8, {srd('WS')}, s{T+3} offen sc1")
        a(f"s_lshl_b32 s{T+5}, s{S_S}, 4")
        a(f"s_add_u32 s{T+5}, s{T+5}, s{S_G}")
        a(f"s_mul_i32 s{T+5}, s{T+5}, 384")
        a(f"s_add_u32 s{T+5}, s{T+5}, {WS_OP}")
        a(f"s_mov_b32 s{T+6}, 49152")
        for i in range(6):
            a(f"v_add_u32 v8, {128*i}, v5")
            a("v_mul_u32_u24 v9, 2731, v8")
            a("v_lshrrev_b32 v9, 16, v9")
            a("v_mul_u32_u24 v70, 24, v9")
            a("v_sub_u32 v70, v8, v70")
            a(f"v_mul_lo_u32 v9, v9, s{T+6}")
            a("v_lshl_add_u32 v9, v70, 4, v9")
            a(f"buffer_store_dwordx4 v[76:79], v9, {srd('WS')}, s{T+5} offen sc1")
        a("v_lshlrev_b32 v8, 7, v5")
        a("v_cmp_gt_u32 vcc, 32, v5")
        a(f"s_lshl_b32 s{T+5}, s{S_G}, 3")
        a(f"s_add_u32 s{T+5}, s{T+5}, {WS_ML}")
        a("v_cndmask_b32 v8, v7, v8, vcc")
        a(f"s_cmp_eq_u32 s{S_S}, 0")
        a(f"s_cselect_b32 s{T+5}, s{T+5}, 0x7fffff00")
        a(f"buffer_store_dwordx2 v[76:77], v8, {srd('WS')}, s{T+5} offen sc1")

    def bset_front(self):
        a = self.a; T = S_T
        XV = 10; W0 = 20; ACC = 60
        a(f"v_mov_b32 v5, {self.L_FLAG}")
        for k in range(4): a(f"v_mov_b32 v{6+k}, 0")
        a("ds_write_b128 v5, v[6:9]")
        a("ds_write_b128 v5, v[6:9] offset:16")
        a("ds_write_b128 v5, v[6:9] offset:32")
        a("ds_write_b128 v5, v[6:9] offset:48")
        a("ds_write_b128 v5, v[6:9] offset:64")
        a("v_lshlrev_b32 v5, 1, v2")
        a(f"v_add_u32 v9, s{S_PM}, v5")
        nox = a.newlabel("nox")
        self.skip_if(f"s_cmp_lg_u32 s{S_W}, 6", nox)
        a("v_lshlrev_b32 v8, 4, v1")
        a(f"buffer_load_dwordx4 v[20:23], v8, {srd('X')}, 0 offen")
        a(f"buffer_load_dwordx4 v[24:27], v8, {srd('X')}, 0 offen offset:1024")
        a.label(nox)
        self.bset_ids()
        self.pv_lane_offsets()
        self.s_dma_prep()
        nox2 = a.newlabel("nox2")
        self.skip_if(f"s_cmp_lg_u32 s{S_W}, 6", nox2)
        a("s_waitcnt vmcnt(0)")
        a(f"ds_write_b128 v8, v[20:23] offset:{self.L_X}")
        a(f"ds_write_b128 v8, v[24:27] offset:{self.L_X+1024}")
        a.label(nox2)
        a("s_waitcnt lgkmcnt(0)")
        a("s_barrier")
        ldr = a.newlabel("p1ldr"); j = a.newlabel("p1j")
        self.skip_if(f"s_cmp_ge_u32 s{S_W}, 6", ldr)
        a(f"s_lshl_b32 s{T+5}, s{S_H}, 3")
        a(f"s_lshl_b32 s{T+6}, s{S_J4}, 1")
        a(f"s_add_u32 s{T+5}, s{T+5}, s{T+6}")
        a(f"s_add_u32 s{T+5}, s{T+5}, s{T}")
        a(f"s_mul_i32 s{T+5}, s{T+5}, 1536")
        a(f"s_lshl_b32 s{T+6}, s{T+1}, 9")
        a(f"s_add_u32 s{T+5}, s{T+5}, s{T+6}")
        a(f"s_add_u32 s{T+6}, s{T+5}, {WS_QPG}")
        a(f"s_add_u32 s{T+5}, s{T+5}, {WS_QPL}")
        a("v_lshlrev_b32 v5, 6, v3")
        a("v_lshl_add_u32 v5, v2, 3, v5")
        for k in range(8): a(f"v_mov_b32 v{ACC+k}, 0")
        for i in range(10):
            a(f"ds_read_u16 v{XV+i}, v9 offset:{self.L_X+16*i}")
        a("s_waitcnt lgkmcnt(0)")
        a(f"s_add_u32 s{S_EP}, s{S_EP}, 1")
        for i in range(10):
            a(f"s_waitcnt vmcnt({9-i})")
            if i == 9: self.stamp(13)
            a(f"v_lshlrev_b32 v68, 16, v{XV+i}")
            for k in range(4): a(f"v_dot2c_f32_bf16 v{ACC+2*k}, v{W0+4*i+k}, v{XV+i}")
            for k in range(4): a(f"v_dot2c_f32_bf16 v{ACC+2*k+1}, v{W0+4*i+k}, v68")
        self.treduce8(ACC, 68, 69)
        a(f"v_mov_b32 v{ACC+1}, s{S_EP}")
        if self.local:
            a(f"buffer_store_dwordx2 {vr(ACC,2)}, v5, {srd('WS')}, s{T+5} offen")
        a(f"buffer_store_dwordx2 {vr(ACC,2)}, v5, {srd('WS')}, s{T+6} offen sc1")
        self.stamp(1)
        a(f"s_branch {j}")
        a.label(ldr)
        if not self.exp_noclear: self.bset_clears()
        a("s_waitcnt lgkmcnt(0)")
        a(f"s_add_u32 s{S_EP}, s{S_EP}, 1")
        def cf_store():
            a(f"s_lshl_b32 s{T+13}, s2, 1")
            a(f"s_add_u32 s{T+13}, s{T+13}, s{S_W}")
            a(f"s_lshl_b32 s{T+13}, s{T+13}, 2")
            a(f"s_add_u32 s{T+13}, s{T+13}, {WS_CF - 24}")
            a(f"v_mov_b32 v5, s{S_EP}")
            a("v_mov_b32 v6, 0")
            a("s_mov_b64 exec, 1")
            a(f"buffer_store_dword v5, v6, {srd('WS')}, s{T+13} offen sc1")
            a("s_mov_b64 exec, -1")
        nocf = a.newlabel("nocf")
        if self.s_trig:
            notr = a.newlabel("notr")
            self.skip_if(f"s_cmp_lg_u32 s{S_W}, 7", notr)
            a(f"s_mul_i32 s{T+5}, s{S_H}, {8*1536}")
            a(f"s_add_u32 s{T+6}, s{T+5}, {WS_QPL}")
            a(f"s_add_u32 s{T+5}, s{T+5}, {WS_QPG}")
            a("v_and_b32 v5, 7, v1")
            a("v_mul_u32_u24 v5, 1536, v5")
            l = self.poll_begin(T+6, T+5)
            a(f"buffer_load_dwordx2 v[20:21], v5, {srd('WS')}, s{S_PB} offen sc1")
            a("s_waitcnt vmcnt(0)")
            a(f"v_xor_b32 v20, s{S_EP}, v21")
            self.poll_end(l, 20)
            if self.s_trig == 2:
                a(f"s_lshl_b32 s{T+5}, s{S_H}, 4")
                a(f"s_add_u32 s{T+5}, s{T+5}, {WS_QA}")
                a("v_mov_b32 v5, 0")
                l = self.poll_begin()
                a(f"buffer_load_dwordx4 v[20:23], v5, {srd('WS')}, s{T+5} offen sc1")
                a("s_waitcnt vmcnt(0)")
                a(f"v_xor_b32 v20, s{S_EP}, v23")
                self.poll_end(l, 20)
            a.label(notr)
        if self.sde:
            self.s_dma_early()
            cf_store()
            a.label(j)
        else:
            a.label(j)
            a("s_barrier")
            self.s_dma()
            self.skip_if(f"s_cmp_lt_u32 s{S_W}, 6", nocf)
            a("s_waitcnt vmcnt(12)")
            cf_store()
        a.label(nocf)
        self.stamp(2)

    def bset_s_phase(self):
        a = self.a; T = S_T
        QA = 20; AF = 84; ACC = 180
        a("v_and_b32 v6, 31, v1")
        a("v_lshrrev_b32 v7, 5, v1")
        a("v_and_b32 v8, 15, v6")
        a("v_xor_b32 v8, v8, v7")
        a("v_mul_u32_u24 v6, 1536, v6")
        a(f"v_add_u32 v6, {self.L_S}, v6")
        a(f"s_mul_i32 s{T+2}, s{S_W}, 24")
        for i in range(12):
            a(f"s_add_u32 s{T+3}, s{T+2}, {2*i}")
            a(f"v_xor_b32 v9, s{T+3}, v8")
            a(f"v_lshl_add_u32 v{226+i}, v9, 4, v6")
        a(f"s_lshl_b32 s{T}, s{S_W}, 14")
        a(f"s_add_u32 s{T}, s{T}, {WS_QA}")
        a("v_lshlrev_b32 v5, 4, v1")
        for g in range(4): a(f"s_add_u32 s{T+9+g}, s{T}, {4096*g}")
        def qa_first():
            for n in range(16):
                a(f"buffer_load_dwordx4 {vr(QA+4*n,4)}, v5, {srd('WS')}, s{T+9+n//4} offen offset:{(n%4)*1024} sc1")
        if self.qa_early:
            a("s_barrier")
            notS0 = a.newlabel("notS0")
            self.skip_if(f"s_cmp_ge_u32 s{S_W}, 4", notS0)
            qa_first()
            a("s_waitcnt vmcnt(16)")
            a.label(notS0)
            nw = a.newlabel("nw")
            self.skip_if(f"s_cmp_lt_u32 s{S_W}, 4", nw)
            a("s_waitcnt vmcnt(0)")
            a.label(nw)
        else:
            a("s_waitcnt vmcnt(0)")
        a("s_barrier")
        self.stamp(3)
        notS = a.newlabel("notS"); j4 = a.newlabel("j4")
        self.skip_if(f"s_cmp_ge_u32 s{S_W}, 4", notS)
        if not self.qa_early and not self.qa_order: qa_first()
        for i in range(12):
            a(f"ds_read_b128 {vr(AF+4*i,4)}, v{226+i}")
            a(f"ds_read_b128 {vr(AF+48+4*i,4)}, v{226+i} offset:49152")
            if i == 5: a("s_waitcnt lgkmcnt(0)")
        a("s_waitcnt lgkmcnt(0)")
        a("s_barrier")
        self.stamp(21)
        if self.qa_order:
            qa_first()
            if self.qa_order == 2: self.lds_signal(64)
        a(f"s_lshl_b32 s{T+2}, s{S_W}, 13")
        a(f"s_add_u32 s{T+2}, s{T+2}, {self.L_RED}")
        a(f"v_add_u32 v10, s{T+2}, v5")
        a(f"s_lshl_b32 s{T+2}, s{S_W}, 10")
        a(f"s_add_u32 s{T+2}, s{T+2}, {self.L_RED}")
        a(f"v_add_u32 v11, s{T+2}, v5")
        a("v_bfe_u32 v12, v1, 4, 1")
        a("v_lshlrev_b32 v12, 10, v12")
        a("v_and_b32 v9, 15, v1")
        a("v_lshl_add_u32 v12, v9, 4, v12")
        a("v_lshrrev_b32 v9, 5, v1")
        a("v_lshl_add_u32 v12, v9, 3, v12")
        a("v_and_b32 v13, 31, v1")
        a("v_lshlrev_b32 v13, 2, v13")
        a("v_mov_b32 v9, 0x7fffffff")
        a("v_cmp_gt_u32 vcc, 32, v1")
        a(f"s_mul_i32 s{T+4}, s{S_BLK}, {PBS}")
        a("v_cndmask_b32 v13, v9, v13, vcc")
        a(f"s_lshl_b32 s{T+3}, s{S_W}, 8")
        a(f"s_add_u32 s{T+5}, s{T+4}, s{T+3}")
        a(f"s_lshl_b32 s{T+3}, s{S_W}, 7")
        a(f"s_add_u32 s{T+6}, s{T+4}, s{T+3}")
        a(f"s_add_u32 s{T+6}, s{T+6}, 2048")
        def qa_issue(g):
            for k in range(4):
                n = 4*g + k
                a(f"buffer_load_dwordx4 {vr(QA+4*n,4)}, v5, {srd('WS')}, s{T+9+g} offen offset:{k*1024} sc1")
        def qa_check(g):
            a(f"v_xor_b32 v6, s{S_EP}, v{QA+16*g+3}")
            for k in range(1, 4):
                a(f"v_xor_b32 v7, s{S_EP}, v{QA+16*g+4*k+3}")
                a("v_or_b32 v6, v6, v7")
            a("v_cmp_ne_u32 vcc, 0, v6")
        self.gpoll(4, qa_issue, qa_check, first_issued=True, masks=[24,26,28,30])
        self.stamp(4)
        self.stamp_val(16, S_CNT)
        for sg in range(4):
            for f in range(3): a(f"v_mov_b32 v{QA+(sg*4+f)*4+3}, v{QA+(sg*4+3)*4+f}")
        a("s_nop 0")
        for i in range(12):
            sg, f = i // 3, i % 3
            B = QA + (sg*4+f)*4
            for kb in range(2):
                c = "0" if i == 0 else vr(ACC+16*kb, 16)
                a(f"v_mfma_f32_32x32x16_bf16 {vr(ACC+16*kb,16)}, {vr(AF+48*kb+4*i,4)}, {vr(B,4)}, {c}")
        a("s_nop 3")
        a("s_nop 7")
        for q in range(4): a(f"ds_write_b128 v10, {vr(ACC+4*q,4)} offset:{q*1024}")
        a("s_nop 3")
        for q in range(4): a(f"ds_write_b128 v10, {vr(ACC+16+4*q,4)} offset:{(4+q)*1024}")
        a("s_waitcnt lgkmcnt(0)")
        self.stamp(8)
        self.lds_signal(16)
        self.lds_wait(16, 20)
        R = 20
        for src in range(4):
            for kb in range(2):
                a(f"ds_read_b128 {vr(R+(src*2+kb)*4,4)}, v11 offset:{src*8192+kb*4096}")
        a(f"s_mov_b32 s{T+3}, 0x{f32bits(192**-0.5*math.log2(math.e)):08x}")
        a("s_waitcnt lgkmcnt(4)")
        for k in range(8): a(f"v_add_f32 v{R+k}, v{R+k}, v{R+8+k}")
        a("s_waitcnt lgkmcnt(0)")
        reads = []
        if self.early_frags:
            self.lds_wait(32, 60)
            self.stamp(14)
            reads = self.pv_read_frags(self.L_S, defer=True)
        def v(ins):
            a(ins)
            if reads: a(reads.pop(0))
        for k in range(8): v(f"v_add_f32 v{R+16+k}, v{R+16+k}, v{R+24+k}")
        for k in range(8): v(f"v_add_f32 v{R+k}, v{R+k}, v{R+16+k}")
        for k in range(8): v(f"v_mul_f32 v{R+k}, s{T+3}, v{R+k}")
        for kb in range(2):
            v(f"v_max3_f32 v{R+8+kb}, v{R+kb*4}, v{R+kb*4+1}, v{R+kb*4+2}")
        for kb in range(2):
            v(f"v_max_f32 v{R+8+kb}, v{R+8+kb}, v{R+kb*4+3}")
        a(f"v_mov_b32 v{R+10}, v{R+8}")
        a(f"v_mov_b32 v{R+11}, v{R+9}")
        a("s_nop 1")
        a(f"v_permlane32_swap_b32 v{R+8}, v{R+10}")
        a(f"v_permlane32_swap_b32 v{R+9}, v{R+11}")
        a("s_nop 1")
        a(f"v_max_f32 v{R+8}, v{R+8}, v{R+10}")
        a(f"v_max_f32 v{R+9}, v{R+9}, v{R+11}")
        a(f"v_ceil_f32 v{R+8}, v{R+8}")
        a(f"v_ceil_f32 v{R+9}, v{R+9}")
        for kb in range(2):
            for r in range(4): v(f"v_sub_f32 v{R+kb*4+r}, v{R+kb*4+r}, v{R+8+kb}")
        for k in range(8): v(f"v_exp_f32 v{R+k}, v{R+k}")
        a(f"v_min_u32 v{R+8}, 0xfffffffe, v{R+8}")
        a(f"v_min_u32 v{R+9}, 0xfffffffe, v{R+9}")
        P = R + 12
        for kb in range(2):
            a(f"v_cvt_pk_bf16_f32 v{P+kb*2}, v{R+kb*4}, v{R+kb*4+1}")
            a(f"v_cvt_pk_bf16_f32 v{P+kb*2+1}, v{R+kb*4+2}, v{R+kb*4+3}")
        for k in range(4): a(f"v_and_b32 v{P+k}, 0x7fff7fff, v{P+k}")
        paths = ([(WS_PBL, "")] if self.local else []) + [(WS_PBG, " sc1")]
        for base, fl in paths:
            a(f"s_add_u32 s{T+7}, s{T+5}, {base}")
            a(f"s_add_u32 s{T+8}, s{T+6}, {base}")
            a(f"buffer_store_dwordx2 {vr(P,2)}, v12, {srd('WS')}, s{T+7} offen{fl}")
            a(f"buffer_store_dwordx2 {vr(P+2,2)}, v12, {srd('WS')}, s{T+7} offen offset:{PBS}{fl}")
            a(f"buffer_store_dword v{R+8}, v13, {srd('WS')}, s{T+8} offen{fl}")
            a(f"buffer_store_dword v{R+9}, v13, {srd('WS')}, s{T+8} offen offset:{PBS}{fl}")
        self.stamp(5)
        for r in reads: a(r)
        if not self.early_frags:
            self.lds_wait(32, 60)
            self.stamp(14)
            self.pv_read_frags(self.L_S)
        a(f"s_branch {j4}")
        a.label(notS)
        a("s_barrier")
        if self.qa_order == 2: self.lds_wait(64, 20)
        self.pv_dma(0, self.L_PA, 4, 4)
        self.pv_dma(1, self.L_S, 4, 4)
        self.stamp(20)
        a("s_waitcnt vmcnt(12)")
        self.lds_signal(0)
        self.lds_wait(0, 20)
        self.stamp(19)
        self.pv_read_frags(self.L_PA)
        a("s_waitcnt vmcnt(0)")
        self.lds_signal(32)
        nocf = a.newlabel("nocf")
        self.skip_if(f"s_cmp_lg_u32 s{S_W}, 4", nocf)
        self.cf_check(20)
        a(f"v_mov_b32 v6, {self.L_FLAG+48}")
        a("v_mov_b32 v7, 1")
        a("ds_write_b32 v6, v7")
        a.label(nocf)
        self.stamp(14)
        a.label(j4)

    def pv_read_frags(self, base, defer=False):
        a = self.a; T = S_T + 8; AF = 84
        a("v_lshrrev_b32 v14, 4, v1")
        a("v_and_b32 v15, 15, v1")
        a("v_lshrrev_b32 v16, 2, v15")
        a("v_lshl_add_u32 v16, v14, 3, v16")
        a("v_mul_u32_u24 v16, 192, v16")
        a("v_and_b32 v15, 3, v15")
        a("v_lshl_add_u32 v16, v15, 3, v16")
        a(f"s_lshr_b32 s9, s{S_W}, 1")
        a("s_and_b32 s9, s9, 1")
        a("s_mul_i32 s9, s9, 96")
        a(f"s_add_u32 s9, s9, {base}")
        a("v_add_u32 v16, s9, v16")
        reads = []
        for bb in range(8):
            for ct in range(3):
                r = AF + (bb*3+ct)*4; off = bb*6144 + ct*32
                reads.append(f"ds_read_b64_tr_b16 {vr(r,2)}, v16 offset:{off}")
                reads.append(f"ds_read_b64_tr_b16 {vr(r+2,2)}, v16 offset:{off+768}")
        if defer: return reads
        for n, r in enumerate(reads):
            a(r)
            if n % 12 == 11: a("s_waitcnt lgkmcnt(6)")

    def bset_pv_phase(self):
        a = self.a; T = S_T
        AF = 84; P = 20; MI = 52; DL = 60; ACC = 180; LA = 192; ON = 196
        a(f"s_cmp_lt_u32 s{S_W}, 4")
        a(f"s_cselect_b32 s{T}, 8, 0")
        a(f"s_lshl_b32 s{T+1}, s{S_G}, 4")
        a(f"s_add_u32 s{T+1}, s{T+1}, s{T}")
        a(f"s_and_b32 s{T+2}, s{S_W}, 1")
        a(f"s_mul_i32 s{T+3}, s{T+1}, {PBS}")
        a(f"s_lshl_b32 s{T+4}, s{T+2}, 10")
        a(f"s_add_u32 s{T+3}, s{T+3}, s{T+4}")
        a(f"s_add_u32 s{T+4}, s{T+3}, {WS_PBG}")
        a(f"s_add_u32 s{T+3}, s{T+3}, {WS_PBL}")
        a("v_lshlrev_b32 v5, 4, v1")
        a("v_and_b32 v6, 15, v1")
        a("v_lshlrev_b32 v6, 2, v6")
        a("v_lshrrev_b32 v7, 4, v1")
        a("v_lshl_add_u32 v6, v7, 7, v6")
        a(f"s_mul_i32 s{T+5}, s{T+2}, 960")
        a(f"s_sub_u32 s{T+5}, 2048, s{T+5}")
        a(f"v_add_u32 v6, s{T+5}, v6")
        for k in range(4): a(f"v_mov_b32 v{ON+k}, 0x3f803f80")
        a("v_and_b32 v14, 15, v1")
        a(f"s_mov_b32 s{T+5}, 49152")
        a(f"v_mul_lo_u32 v15, v14, s{T+5}")
        a("v_lshl_add_u32 v15, v7, 4, v15")
        a(f"s_mul_i32 s{T+5}, s{T+2}, {16*49152}")
        a(f"s_lshl_b32 s{T+6}, s{S_S}, 4")
        a(f"s_add_u32 s{T+6}, s{T+6}, s{S_G}")
        a(f"s_mul_i32 s{T+6}, s{T+6}, 384")
        a(f"s_add_u32 s{T+5}, s{T+5}, s{T+6}")
        a(f"s_lshr_b32 s{T+6}, s{S_W}, 1")
        a(f"s_and_b32 s{T+6}, s{T+6}, 1")
        a(f"s_mul_i32 s{T+7}, s{T+6}, 192")
        a(f"s_add_u32 s{T+5}, s{T+5}, s{T+7}")
        a(f"s_add_u32 s{T+5}, s{T+5}, {WS_OP}")
        a("v_lshlrev_b32 v14, 7, v14")
        a("v_mov_b32 v16, 0x7fffffff")
        a("v_cmp_gt_u32 vcc, 16, v1")
        a(f"s_lshl_b32 s{T+8}, s{T+2}, 11")
        a(f"s_lshl_b32 s{T+7}, s{S_G}, 3")
        a(f"s_add_u32 s{T+8}, s{T+8}, s{T+7}")
        a(f"s_add_u32 s{T+8}, s{T+8}, {WS_ML}")
        a("v_cndmask_b32 v14, v16, v14, vcc")
        a(f"s_or_b32 s{T+7}, s{T+6}, s{S_S}")
        a(f"s_cmp_eq_u32 s{T+7}, 0")
        a(f"s_cselect_b32 s{T+8}, s{T+8}, 0x7fffff00")
        a(f"s_and_b32 s{T+9}, s{S_W}, 3")
        a(f"s_lshl_b32 s{T+9}, s{T+9}, 12")
        a(f"s_add_u32 s{T+9}, s{T+9}, {self.L_PR}")
        a(f"v_add_u32 v17, s{T+9}, v5")
        def p_pre():
            if self.local:
                a(f"s_and_b32 s9, s{S_CNT}, {self.lperiod-1}")
                a(f"s_cmp_eq_u32 s9, {self.lperiod-1}")
                a(f"s_cselect_b32 s{S_PB}, s{T+4}, s{T+3}")
            else:
                a(f"s_mov_b32 s{S_PB}, s{T+4}")
        def p_issue(bb):
            a(f"s_add_u32 s9, s{S_PB}, {bb*PBS}")
            a(f"buffer_load_dwordx4 {vr(P+4*bb,4)}, v5, {srd('WS')}, s9 offen sc1")
            a(f"buffer_load_dword v{MI+bb}, v6, {srd('WS')}, s9 offen sc1")
        def p_check(bb):
            a(f"v_or3_b32 v7, v{P+4*bb}, v{P+4*bb+1}, v{P+4*bb+2}")
            a(f"v_or_b32 v7, v7, v{P+4*bb+3}")
            a("v_and_b32 v7, 0x80008000, v7")
            a(f"v_cmp_eq_u32 vcc, -1, v{MI+bb}")
            a("s_nop 1")
            a("v_cndmask_b32 v8, 0, 1, vcc")
            a("v_or_b32 v7, v7, v8")
            a("v_cmp_ne_u32 vcc, 0, v7")
        a(f"v_mov_b32 v7, {self.L_FLAG+48}")
        l = self.poll_begin()
        a("ds_read_b32 v8, v7")
        a("s_waitcnt lgkmcnt(0)")
        a("v_xor_b32 v8, 1, v8")
        self.poll_end(l, 8)
        self.stamp(15)
        self.gpoll(8, p_issue, p_check, pre=p_pre, masks=[24,26,28,30,32,34,36,38])
        self.stamp(6)
        self.stamp_val(17, S_CNT)
        a(f"v_max3_f32 v9, v{MI}, v{MI+1}, v{MI+2}")
        a(f"v_max3_f32 v9, v9, v{MI+3}, v{MI+4}")
        a(f"v_max3_f32 v9, v9, v{MI+5}, v{MI+6}")
        a(f"v_max_f32 v9, v9, v{MI+7}")
        a("v_mov_b32 v10, v9")
        a("s_nop 1")
        a("v_permlane16_swap_b32 v9, v10")
        a("s_nop 1")
        a("v_max_f32 v9, v9, v10")
        a("v_mov_b32 v10, v9")
        a("s_nop 1")
        a("v_permlane32_swap_b32 v9, v10")
        a("s_nop 1")
        a("v_max_f32 v9, v9, v10")
        a(f"s_mov_b32 s{T+10}, 0x437f0000")
        a(f"s_mov_b32 s{T+11}, 0x00800080")
        for bb in range(8): a(f"v_sub_f32 v{DL+bb}, v9, v{MI+bb}")
        for bb in range(8): a(f"v_min_f32 v{DL+bb}, s{T+10}, v{DL+bb}")
        for bb in range(8): a(f"v_cvt_u32_f32 v{DL+bb}, v{DL+bb}")
        for bb in range(8): a(f"v_mul_u32_u24 v{DL+bb}, s{T+11}, v{DL+bb}")
        for k in range(4): a(f"v_pk_sub_u16 v{P+k}, v{P+k}, v{DL} clamp")
        for bb in range(8):
            if bb < 7:
                for k in range(4): a(f"v_pk_sub_u16 v{P+4*(bb+1)+k}, v{P+4*(bb+1)+k}, v{DL+bb+1} clamp")
            else:
                a("s_nop 1")
            for ct in range(3):
                c = "0" if bb == 0 else vr(ACC+4*ct, 4)
                a(f"v_mfma_f32_16x16x32_bf16 {vr(ACC+4*ct,4)}, {vr(AF+(bb*3+ct)*4,4)}, {vr(P+4*bb,4)}, {c}")
            c = "0" if bb == 0 else vr(LA, 4)
            a(f"v_mfma_f32_16x16x32_bf16 {vr(LA,4)}, {vr(ON,4)}, {vr(P+4*bb,4)}, {c}")
        a("s_nop 7")
        self.stamp(11)
        kp1 = a.newlabel("kp1")
        self.skip_if(f"s_cmp_lt_u32 s{S_W}, 4", kp1)
        a(f"v_mov_b32 v{LA+1}, v9")
        for ct in range(3): a(f"ds_write_b128 v17, {vr(ACC+4*ct,4)} offset:{ct*1024}")
        a(f"ds_write_b128 v17, {vr(LA,4)} offset:3072")
        a("s_waitcnt lgkmcnt(0)")
        a.label(kp1)
        a("s_barrier")
        self.stamp(12)
        fin = a.newlabel("pvfin")
        self.skip_if(f"s_cmp_ge_u32 s{S_W}, 4", fin)
        O = 20
        for k in range(4): a(f"ds_read_b128 {vr(O+4*k,4)}, v17 offset:{k*1024}")
        a("s_waitcnt lgkmcnt(0)")
        a(f"v_max_f32 v10, v9, v{O+13}")
        a("v_sub_f32 v11, v9, v10")
        a(f"v_sub_f32 v12, v{O+13}, v10")
        a("v_exp_f32 v11, v11")
        a("v_exp_f32 v12, v12")
        a("s_nop 0")
        for k in range(12): a(f"v_mul_f32 v{ACC+k}, v{ACC+k}, v11")
        for k in range(12): a(f"v_fmac_f32 v{ACC+k}, v{O+k}, v12")
        for k in range(12): a(f"v_min_u32 v{ACC+k}, 0xfffffffe, v{ACC+k}")
        if self.exp_linear:
            a(f"s_lshl_b32 s{T+5}, s{S_G}, 3")
            a(f"s_add_u32 s{T+5}, s{T+5}, s{S_S}")
            a(f"s_lshl_b32 s{T+5}, s{T+5}, 2")
            a(f"s_add_u32 s{T+5}, s{T+5}, s{S_W}")
            a(f"s_mul_i32 s{T+5}, s{T+5}, 3072")
            a(f"s_add_u32 s{T+5}, s{T+5}, {WS_OP}")
            for ct in range(3):
                a(f"buffer_store_dwordx4 {vr(ACC+4*ct,4)}, v5, {srd('WS')}, s{T+5} offen offset:{ct*1024} sc1")
        else:
          for ct in range(3):
            a(f"buffer_store_dwordx4 {vr(ACC+4*ct,4)}, v15, {srd('WS')}, s{T+5} offen offset:{ct*64} sc1")
        a(f"v_mul_f32 v{LA}, v{LA}, v11")
        a(f"v_fmac_f32 v{LA}, v{O+12}, v12")
        a(f"v_min_u32 v11, 0xfffffffe, v{LA}")
        a("v_min_u32 v10, 0xfffffffe, v10")
        a(f"buffer_store_dwordx2 v[10:11], v14, {srd('WS')}, s{T+8} offen sc1")
        a.label(fin)
        self.stamp(7)

    def bset_final(self):
        a = self.a; T = S_T
        self.skip_if(f"s_cmp_ge_u32 s{S_LB}, 5", "L_bend")
        self.skip_if(f"s_cmp_lg_u32 s{S_W}, 0", "L_bend")
        a("v_lshlrev_b32 v5, 2, v1")
        for i in range(5):
            a(f"buffer_load_dword v{20+i}, v5, {srd('X')}, 0 offen offset:{256*i}")
            a(f"buffer_load_dword v{25+i}, v5, {srd('GW')}, 0 offen offset:{256*i}")
        a("v_mov_b32 v30, 0")
        a(f"s_mul_i32 s{T}, s{S_X}, 5")
        a(f"s_add_u32 s{T}, s{T}, s{S_LB}")
        a(f"s_lshl_b32 s{T+1}, s{T}, 6")
        a(f"s_add_u32 s{T+1}, s{T+1}, {WS_OUTP}")
        a("v_lshrrev_b32 v6, 2, v1")
        a("v_mul_u32_u24 v6, 2560, v6")
        a("v_and_b32 v7, 3, v1")
        a("v_lshl_add_u32 v6, v7, 4, v6")
        a("v_lshlrev_b32 v8, 2, v7")
        a("v_bfe_u32 v9, v1, 5, 1")
        a("v_lshl_add_u32 v8, v9, 1, v8")
        a("v_bfe_u32 v9, v1, 4, 1")
        a("v_add_u32 v8, v8, v9")
        a("v_lshlrev_b32 v11, 1, v8")
        a("v_and_b32 v9, 12, v1")
        a("v_mov_b32 v10, 0x7fffffff")
        a("v_cmp_eq_u32 vcc, 0, v9")
        a(f"s_lshl_b32 s{T+2}, s{T}, 5")
        a("v_cndmask_b32 v11, v10, v11, vcc")
        a("s_waitcnt vmcnt(0)")
        for i in range(5): a(f"v_dot2c_f32_bf16 v30, v{20+i}, v{25+i}")
        a("s_nop 2")
        for ctrl in ["quad_perm:[1,0,3,2]", "quad_perm:[2,3,0,1]", "row_half_mirror", "row_mirror"]:
            a(f"v_add_f32_dpp v30, v30, v30 {ctrl} row_mask:0xf bank_mask:0xf")
            a("s_nop 1")
        a("v_mov_b32 v31, v30")
        a("s_nop 1")
        a("v_permlane16_swap_b32 v30, v31")
        a("s_nop 1")
        a("v_add_f32 v30, v30, v31")
        a("v_mov_b32 v31, v30")
        a("s_nop 1")
        a("v_permlane32_swap_b32 v30, v31")
        a("s_nop 1")
        a("v_add_f32 v30, v30, v31")
        a(f"v_mul_f32 v30, 0x{f32bits(-math.log2(math.e)):08x}, v30")
        a("v_exp_f32 v30, v30")
        a("s_nop 0")
        a("v_add_f32 v30, 1.0, v30")
        a("v_rcp_f32 v30, v30")
        a("s_nop 0")
        a("v_sub_f32 v31, 1.0, v30")
        a("v_cmp_le_u32 vcc, 48, v1")
        a("s_nop 1")
        a("v_cndmask_b32 v30, v30, v31, vcc")
        O = 32
        for i in range(8): a(f"s_add_u32 s{T+3+i}, s{T+1}, {i*16*2560}")
        def f_issue(i):
            a(f"buffer_load_dwordx4 {vr(O+4*i,4)}, v6, {srd('WS')}, s{T+3+i} offen sc1")
        def f_check(i):
            a(f"v_max3_u32 v8, v{O+4*i}, v{O+4*i+1}, v{O+4*i+2}")
            a(f"v_max_u32 v8, v8, v{O+4*i+3}")
            a("v_cmp_eq_u32 vcc, -1, v8")
        self.gpoll(8, f_issue, f_check, masks=[24,26,28,30,32,34,36,38])
        self.stamp(9)
        self.stamp_val(18, S_CNT)
        for k in range(4):
            a(f"v_add_f32 v{O+k}, v{O+k}, v{O+4+k}")
            a(f"v_add_f32 v{O+8+k}, v{O+8+k}, v{O+12+k}")
            a(f"v_add_f32 v{O+16+k}, v{O+16+k}, v{O+20+k}")
            a(f"v_add_f32 v{O+24+k}, v{O+24+k}, v{O+28+k}")
        for k in range(4):
            a(f"v_add_f32 v{O+k}, v{O+k}, v{O+8+k}")
            a(f"v_add_f32 v{O+16+k}, v{O+16+k}, v{O+24+k}")
        for k in range(4): a(f"v_add_f32 v{O+k}, v{O+k}, v{O+16+k}")
        for k in range(4): a(f"v_mul_f32 v{O+k}, v{O+k}, v30")
        a("s_nop 1")
        a("v_permlane32_swap_b32 v32, v34")
        a("v_permlane32_swap_b32 v33, v35")
        a("s_nop 1")
        a("v_add_f32 v32, v32, v34")
        a("v_add_f32 v33, v33, v35")
        a("s_nop 1")
        a("v_permlane16_swap_b32 v32, v33")
        a("s_nop 1")
        a("v_add_f32 v32, v32, v33")
        a("s_nop 1")
        a("v_add_f32_dpp v32, v32, v32 row_ror:8 row_mask:0xf bank_mask:0xf")
        a("s_nop 1")
        a("v_add_f32_dpp v32, v32, v32 row_ror:4 row_mask:0xf bank_mask:0xf")
        a("s_nop 0")
        a("v_cvt_pk_bf16_f32 v32, v32, v32")
        a(f"buffer_store_short v32, v11, {srd('OUT')}, s{T+2} offen")
        noep = a.newlabel("noep")
        self.skip_if(f"s_cmp_lg_u32 s{T}, 0", noep)
        a(f"v_mov_b32 v6, s{S_EP}")
        a("v_mov_b32 v7, 0")
        a("s_mov_b64 exec, 1")
        a(f"buffer_store_dword v6, v7, {srd('WS')}, 0 offen sc1")
        a("s_mov_b64 exec, -1")
        a.label(noep)
        if self.dbl:
            a("s_waitcnt vmcnt(0)")
            a("s_memrealtime s[44:45]")
            a("s_waitcnt lgkmcnt(0)")
            a("s_sub_u32 s46, s44, s42")
            a(f"s_mul_i32 s46, s46, {self.dbl}")
            a("s_lshr_b32 s46, s46, 2")
            a("s_add_u32 s46, s46, s44")
            lp = a.newlabel("dbl")
            a.label(lp)
            a("s_memrealtime s[44:45]")
            a("s_waitcnt lgkmcnt(0)")
            a("s_sub_u32 s47, s44, s46")
            a("s_cmp_lt_i32 s47, 0")
            a(f"s_cbranch_scc1 {lp}")
        self.stamp(10)
        a.label("L_bend")

    def build(self):
        a = self.a
        self.prologue()
        self.bset_front()
        a("s_branch L_bs")
        a.label("L_aset")
        self.aset_front()
        a("s_branch L_aback")
        a.label("L_bs")
        self.bset_s_phase()
        self.bset_pv_phase()
        a("s_branch L_bfin")
        a.label("L_aback")
        self.aset_back()
        self.stamp_flush()
        a("s_branch L_exit")
        a.label("L_bfin")
        self.bset_final()
        self.stamp_flush()
        a.label("L_exit")
        a("s_endpgm")
        hdr = f"""; Hand-written (own generator script) persistent kernel: MLA decode with weight absorption + GLU + gated mix.
; @launch grid=(256,1,1) block=(512,1,1) lds=163840
.amdgcn_target "amdgcn-amd-amdhsa--gfx950"
.text
.globl {NAME}_kernel
.p2align 8
.type {NAME}_kernel,@function
{NAME}_kernel:
"""
        ftr = f""".section .rodata,"a"
.p2align 6
.amdhsa_kernel {NAME}_kernel
  .amdhsa_next_free_vgpr 256
  .amdhsa_next_free_sgpr 102
  .amdhsa_accum_offset 256
  .amdhsa_group_segment_fixed_size 0
  .amdhsa_kernarg_size 112
  .amdhsa_user_sgpr_count 2
  .amdhsa_user_sgpr_kernarg_segment_ptr 1
  .amdhsa_system_sgpr_workgroup_id_x 1
.end_amdhsa_kernel
"""
        return hdr + a.text() + ftr

if __name__ == "__main__":
    out = sys.argv[1] if len(sys.argv) > 1 else "k.s"
    kw = {}
    for arg in sys.argv[2:]:
        if arg == "--stamps": kw["stamps"] = True
        elif arg.startswith("--"):
            k, v = arg[2:].split("="); kw[k] = int(v)
    open(out, "w").write(Gen(**kw).build())
```

```python
import sys, math, struct

NAME = "gated_mix__compressed_kv_cla__glu_gated_glu__decode"

WS_EPOCH = 0
WS_CF    = 0x400
WS_QA    = 0x10000
WS_QPG   = 0x20000
WS_QPL   = 0x80000
WS_PBG   = 0x100000
WS_PBL   = 0x1A0000
WS_ML    = 0x240000
WS_OUTP  = 0x250000
WS_OP    = 0x2A0000
WS_ST    = 0x440000
WS_SIZE  = 0x480000
PBS = 2560

S_W, S_X, S_LI, S_H, S_J4, S_EP = 3, 4, 5, 6, 7, 8
S_LB, S_BLK, S_G, S_S = 10, 11, 12, 13
S_WSCF = 14
SRD = dict(X=16, CKV=20, WQ=24, WUK=28, WUV=32, WO=36, WG=44, WU=48, WD=52, GW=56, OUT=60, WS=64)
SRD_SIZE = dict(X=1280, CKV=12582912, WQ=7864320, WUK=9437184, WUV=9437184, WO=7864320,
                WG=1966080, WU=1966080, WD=1966080, GW=1280, OUT=1280, WS=WS_SIZE)
KARG = dict(X=0, CKV=8, WQ=16, WUK=24, WUV=32, WO=40, WG=56, WU=64, WD=72, GW=80, OUT=88, WS=104)
S_M8 = 72
S_T = 74
S_CNT = 96
S_PB = 97
S_PM = 15
S_STAMP = 98
POLL_LIMIT = 100000

class Asm:
    def __init__(self):
        self.L = []; self.uid = 0
    def __call__(self, s):
        for line in s.strip("\n").split("\n"):
            self.L.append("    " + line.strip())
    def label(self, n): self.L.append(n + ":")
    def newlabel(self, base):
        self.uid += 1
        return f"L_{base}_{self.uid}"
    def text(self):
        import re
        out = []
        for line in self.L:
            t = line.strip()
            if t.startswith("v_cndmask") and t.endswith("vcc"):
                st = 0; k = len(out) - 1; found = False
                while k >= 0 and st < 2:
                    p = out[k].strip()
                    if p.endswith(":"): break
                    if p.startswith("v_cmp") and "vcc" in p:
                        found = True; break
                    m = re.match(r"s_nop (\d+)", p)
                    st += int(m.group(1)) + 1 if m else 1
                    k -= 1
                if found and st < 2:
                    out.append(f"    s_nop {1 - st}")
            out.append(line)
        return "\n".join(out) + "\n"

def srd(n):
    b = SRD[n]; return f"s[{b}:{b+3}]"
def vr(b, n=1):
    return f"v{b}" if n == 1 else f"v[{b}:{b+n-1}]"
def f32bits(x):
    return struct.unpack("<I", struct.pack("<f", x))[0]

class Gen:
    def __init__(self, stamps=False, probe=-1, probew=0, dbl=0, dbgout=0, s_trig=0, wq_pf=0, sde=0, sde_win=24, perm=0, qa_order=0, early_frags=0, fin1=1, masked=1, qa_early=0, code_pf=17, tlb_warm=0, tlb_shift=21, nt_front=False, nt_ckv=False, nt_back=False, local=True, lperiod=8, a_delay=1, qa_ack=0, exp_linear=0, a_win=63, s_win=63, pv_win=63, mlpoll=2, exp_nobulk=0, a_probe=0, s_probe=0, exp_noclear=0, exp_nowuk=0):
        self.a = Asm()
        self.stamps = stamps
        self.NTF = " nt" if nt_front else ""
        self.NTC = " nt" if nt_ckv else ""
        self.NTB = " nt" if nt_back else ""
        self.local = local
        self.a_delay = a_delay
        self.qa_ack = qa_ack
        self.code_pf = code_pf
        self.probe = probe; self.probew = probew
        self.dbl = dbl
        self.dbgout = dbgout
        self.selB = [0, 24, 25, 26, 3, 21, 16, 17]; self.selA = [23, 1, 16, 4, 17, 6, 25, 26]
        self.s_trig = s_trig
        self.wq_pf = wq_pf
        self.sde = sde; self.sde_win = sde_win
        self.perm = perm
        self.qa_order = qa_order
        self.early_frags = early_frags; self.fin1 = fin1
        self.masked = masked; self.qa_early = qa_early
        self.tlb_warm = tlb_warm; self.tlb_shift = tlb_shift
        self.exp_noclear = exp_noclear; self.exp_nowuk = exp_nowuk
        self.a_probe = a_probe; self.s_probe = s_probe
        self.exp_nobulk = exp_nobulk
        self.a_win = a_win; self.s_win = s_win; self.pv_win = pv_win; self.mlpoll = mlpoll
        self.exp_linear = exp_linear
        self.lperiod = lperiod
        self.L_Q = 0; self.L_QS = 512; self.L_F = 3072; self.L_FLAG = 2048; self.L_X = 4096
        self.L_S = 8192; self.L_PA = 106496; self.L_RED = 57344; self.L_PR = 90112
        self.L_O = 4096; self.L_C = 12288; self.L_CB = 14336; self.L_R = 16384
        self.PVO = 212

    def stamp(self, idx):
        if not self.stamps: return
        a = self.a
        a(f"s_memrealtime s[{S_STAMP}:{S_STAMP+1}]")
        a("s_waitcnt lgkmcnt(0)")
        a(f"v_writelane_b32 v255, s{S_STAMP}, {idx}")
    def stamp_val(self, idx, sreg):
        if not self.stamps: return
        self.a(f"s_add_u32 s9, s{sreg}, 1")
        self.a(f"v_writelane_b32 v255, s9, {idx}")
    def stamp_flush(self):
        if not self.stamps: return
        a = self.a
        if self.probe >= 0:
            sk = a.newlabel("prb"); lp = a.newlabel("prl")
            a("s_lshl_b32 s9, s2, 3")
            a(f"s_add_u32 s9, s9, s{S_W}")
            self.skip_if(f"s_cmp_lg_u32 s9, {self.probew*8}", sk)
            a(f"v_readlane_b32 s46, v255, {self.probe}")
            a("s_nop 3")
            a("s_add_u32 s46, s46, 3000")
            a.label(lp)
            a("s_memrealtime s[44:45]")
            a("s_waitcnt lgkmcnt(0)")
            a("s_sub_u32 s47, s44, s46")
            a("s_cmp_lt_i32 s47, 0")
            a(f"s_cbranch_scc1 {lp}")
            a.label(sk)
            return
        if self.dbgout:
            sk = a.newlabel("dbo")
            a(f"s_and_b32 s9, s2, 127")
            a(f"s_lshl_b32 s9, s9, 3")
            a(f"s_add_u32 s9, s9, s{S_W}")
            self.skip_if(f"s_cmp_lg_u32 s9, {(self.dbgout-1)*8}", sk)
            a("s_load_dwordx2 s[40:41], s[0:1], 96")
            a("s_mov_b32 s42, 256")
            a("s_mov_b32 s43, 0x00020000")
            a("s_memtime s[46:47]")
            a("s_memrealtime s[48:49]")
            a("s_waitcnt lgkmcnt(0)")
            a("v_writelane_b32 v255, s46, 25")
            a("v_writelane_b32 v255, s48, 26")
            selB = self.selB; selA = self.selA
            a("s_cmp_lt_u32 s2, 128")
            a("s_cselect_b32 s9, 0, 32")
            for k in range(8):
                a(f"v_readlane_b32 s44, v255, {selB[k]}")
                a(f"v_readlane_b32 s45, v255, {selA[k]}")
                a("s_cmp_lt_u32 s2, 128")
                a("s_cselect_b32 s44, s44, s45")
                a(f"v_writelane_b32 v252, s44, {k}")
            a("v_lshlrev_b32 v253, 2, v1")
            a("v_add_u32 v253, s9, v253")
            a("s_waitcnt lgkmcnt(0)")
            a("s_mov_b64 exec, 0xff")
            a("buffer_store_dword v252, v253, s[40:43], 0 offen")
            a("s_mov_b64 exec, -1")
            a.label(sk)
            return
        a(f"s_lshl_b32 s{S_T+20}, s2, 3")
        a(f"s_add_u32 s{S_T+20}, s{S_T+20}, s{S_W}")
        a(f"s_lshl_b32 s{S_T+20}, s{S_T+20}, 7")
        a(f"s_add_u32 s{S_T+20}, s{S_T+20}, {WS_ST}")
        a("v_lshlrev_b32 v252, 2, v1")
        a("s_mov_b32 exec_lo, -1")
        a("s_mov_b32 exec_hi, 0")
        a(f"buffer_store_dword v255, v252, {srd('WS')}, s{S_T+20} offen")
        a("s_mov_b64 exec, -1")

    def treduce8(self, acc, t0, t1):
        a = self.a
        a("s_nop 2")
        for k in range(4): a(f"v_permlane32_swap_b32 v{acc+k}, v{acc+k+4}")
        a("s_nop 1")
        for k in range(4): a(f"v_add_f32 v{acc+k}, v{acc+k}, v{acc+k+4}")
        a("s_nop 1")
        for k in range(2): a(f"v_permlane16_swap_b32 v{acc+k}, v{acc+k+2}")
        a("s_nop 1")
        for k in range(2): a(f"v_add_f32 v{acc+k}, v{acc+k}, v{acc+k+2}")
        a("s_nop 0")
        a(f"v_cndmask_b32 v{t0}, v{acc}, v{acc+1}, s[{S_M8}:{S_M8+1}]")
        a(f"v_cndmask_b32 v{t1}, v{acc+1}, v{acc}, s[{S_M8}:{S_M8+1}]")
        a("s_nop 1")
        a(f"v_add_f32_dpp v{acc}, v{t1}, v{t0} row_ror:8 row_mask:0xf bank_mask:0xf")

    def skip_if(self, cmp, label):
        self.a(cmp); self.a(f"s_cbranch_scc1 {label}")

    def poll_begin(self, lbase=None, gbase=None):
        a = self.a
        l = a.newlabel("poll")
        a(f"s_mov_b32 s{S_CNT}, 0")
        a.label(l)
        if lbase is not None:
            if self.local:
                a(f"s_and_b32 s9, s{S_CNT}, {self.lperiod-1}")
                a(f"s_cmp_eq_u32 s9, {self.lperiod-1}")
                a(f"s_cselect_b32 s{S_PB}, s{gbase}, s{lbase}")
            else:
                a(f"s_mov_b32 s{S_PB}, s{gbase}")
        return l
    def poll_end(self, l, vbad):
        a = self.a
        ok = a.newlabel("ok")
        a(f"v_cmp_ne_u32 vcc, 0, v{vbad}")
        a(f"s_cbranch_vccz {ok}")
        a(f"s_add_u32 s{S_CNT}, s{S_CNT}, 1")
        a(f"s_cmp_lt_u32 s{S_CNT}, {POLL_LIMIT}")
        a(f"s_cbranch_scc1 {l}")
        a.label(ok)

    def gpoll(self, n, issue, check, pre=None, first_issued=False, masks=None):
        a = self.a
        top = a.newlabel("gp"); done = a.newlabel("gpd")
        if not self.masked: masks = None
        a(f"s_mov_b32 s{S_PM}, {(1<<n)-1}")
        a(f"s_mov_b32 s{S_CNT}, 0")
        if masks:
            for m in masks: a(f"s_mov_b64 s[{m}:{m+1}], -1")
        if first_issued:
            chk = a.newlabel("gpc")
            a(f"s_branch {chk}")
        a.label(top)
        if pre: pre()
        for i in range(n):
            sk = a.newlabel("gi")
            a(f"s_bitcmp0_b32 s{S_PM}, {i}")
            a(f"s_cbranch_scc1 {sk}")
            if masks: a(f"s_mov_b64 exec, s[{masks[i]}:{masks[i]+1}]")
            issue(i)
            a.label(sk)
        if masks: a("s_mov_b64 exec, -1")
        if first_issued: a.label(chk)
        a("s_waitcnt vmcnt(0)")
        for i in range(n):
            sk = a.newlabel("gc")
            a(f"s_bitcmp0_b32 s{S_PM}, {i}")
            a(f"s_cbranch_scc1 {sk}")
            check(i)
            if masks: a(f"s_mov_b64 s[{masks[i]}:{masks[i]+1}], vcc")
            a(f"s_cbranch_vccnz {sk}")
            a(f"s_bitset0_b32 s{S_PM}, {i}")
            a.label(sk)
        a(f"s_cmp_eq_u32 s{S_PM}, 0")
        a(f"s_cbranch_scc1 {done}")
        a(f"s_add_u32 s{S_CNT}, s{S_CNT}, 1")
        a(f"s_cmp_lt_u32 s{S_CNT}, {POLL_LIMIT}")
        a(f"s_cbranch_scc1 {top}")
        a.label(done)

    def lds_signal(self, base, widx_mask=3):
        a = self.a
        a(f"s_and_b32 s9, s{S_W}, {widx_mask}")
        a("s_lshl_b32 s9, s9, 2")
        a(f"s_add_u32 s9, s9, {self.L_FLAG+base}")
        a("v_mov_b32 v6, s9")
        a("v_mov_b32 v7, 1")
        a("ds_write_b32 v6, v7")
    def lds_wait(self, base, vt):
        a = self.a
        a(f"v_mov_b32 v6, {self.L_FLAG+base}")
        l = self.poll_begin()
        a(f"ds_read_b128 {vr(vt,4)}, v6")
        a("s_waitcnt lgkmcnt(0)")
        a(f"v_and_b32 v{vt}, v{vt}, v{vt+1}")
        a(f"v_and_b32 v{vt+2}, v{vt+2}, v{vt+3}")
        a(f"v_and_b32 v{vt}, v{vt}, v{vt+2}")
        a(f"v_xor_b32 v{vt}, 1, v{vt}")
        self.poll_end(l, vt)

    def cf_check(self, vb):
        a = self.a
        a(f"v_lshlrev_b32 v{vb+4}, 4, v1")
        l = self.poll_begin()
        a(f"buffer_load_dwordx4 {vr(vb,4)}, v{vb+4}, {srd('WS')}, s{S_WSCF} offen sc1")
        a("s_waitcnt vmcnt(0)")
        for k in range(4): a(f"v_xor_b32 v{vb+k}, s{S_EP}, v{vb+k}")
        a(f"v_or3_b32 v{vb}, v{vb}, v{vb+1}, v{vb+2}")
        a(f"v_or_b32 v{vb}, v{vb}, v{vb+3}")
        self.poll_end(l, vb)

    def mk_srd(self, n):
        a = self.a; b = SRD[n]
        if n != "WS":
            src = 76 + KARG[n] // 4
            a(f"s_mov_b64 s[{b}:{b+1}], s[{src}:{src+1}]")
        a(f"s_mov_b32 s{b+2}, {SRD_SIZE[n]}")
        a(f"s_mov_b32 s{b+3}, 0x00020000")

    def prologue(self):
        a = self.a; T = S_T
        if self.stamps or self.dbl: a("s_memrealtime s[42:43]")
        a("s_cmp_ge_u32 s2, 256")
        a("s_cbranch_scc1 L_exit")
        if self.perm == 1:
            a("s_lshr_b32 s3, s2, 3")
            a("s_and_b32 s2, s2, 7")
            a("s_lshl_b32 s2, s2, 5")
            a("s_or_b32 s2, s2, s3")
        elif self.perm:
            a(f"s_mul_i32 s2, s2, {self.perm}")
            a("s_and_b32 s2, s2, 255")
        a("s_load_dwordx16 s[76:91], s[0:1], 0")
        a("s_load_dwordx8 s[92:99], s[0:1], 64")
        a("s_load_dwordx2 s[64:65], s[0:1], 104")
        a("v_lshrrev_b32 v2, 6, v0")
        a("v_and_b32 v1, 63, v0")
        a(f"v_readfirstlane_b32 s{S_W}, v2")
        a(f"s_lshr_b32 s{S_LI}, s2, 3")
        a(f"s_and_b32 s{S_LI}, s{S_LI}, 15")
        if self.code_pf:
            npf = a.newlabel("npf"); lp = a.newlabel("pfl")
            a(f"s_and_b32 s9, s{S_LI}, 7")
            a("s_lshl_b32 s9, s9, 3")
            a(f"s_add_u32 s9, s9, s{S_W}")
            self.skip_if("s_cmp_lg_u32 s9, 7", npf)
            a("s_getpc_b64 s[40:41]")
            a("v_lshlrev_b32 v252, 4, v1")
            a(f"s_mov_b32 s9, {self.code_pf}")
            a.label(lp)
            a("global_load_dwordx4 v[248:251], v252, s[40:41]")
            a("v_add_u32 v252, 1024, v252")
            a("s_sub_u32 s9, s9, 1")
            a("s_cmp_lg_u32 s9, 0")
            a(f"s_cbranch_scc1 {lp}")
            a.label(npf)
        a(f"s_and_b32 s{S_X}, s2, 7")
        a(f"s_and_b32 s9, s{S_LI}, 3")
        a(f"s_lshl_b32 s{S_H}, s{S_X}, 2")
        a(f"s_add_u32 s{S_H}, s{S_H}, s9")
        a(f"s_lshr_b32 s{S_J4}, s{S_LI}, 2")
        a("v_lshrrev_b32 v2, 3, v1")
        a("v_and_b32 v3, 7, v1")
        a("v_mul_u32_u24 v4, 12288, v2")
        a("v_lshl_add_u32 v4, v3, 4, v4")
        a("s_cmp_lt_u32 s2, 128")
        a("s_cbranch_scc0 L_apre")
        a(f"s_cmp_ge_u32 s{S_W}, 3")
        a("s_cselect_b32 s100, 1, 0")
        a("s_mul_i32 s101, s100, 3")
        a(f"s_sub_u32 s101, s{S_W}, s101")
        a(f"s_mul_i32 s44, s{S_J4}, 160")
        a("s_mul_i32 s45, s100, 80")
        a("s_add_u32 s44, s44, s45")
        a("s_lshl_b32 s46, s44, 1")
        a("s_mul_i32 s44, s44, 12288")
        a(f"s_mul_i32 s45, s{S_H}, 384")
        a("s_add_u32 s44, s44, s45")
        a("s_lshl_b32 s45, s101, 7")
        a("s_add_u32 s44, s44, s45")
        a(f"s_mov_b32 s{SRD['WQ']+2}, {SRD_SIZE['WQ']}")
        a(f"s_mov_b32 s{SRD['WQ']+3}, 0x00020000")
        a("s_waitcnt lgkmcnt(0)")
        a(f"s_mov_b64 s[{SRD['WQ']}:{SRD['WQ']+1}], s[80:81]")
        nl = a.newlabel("bnl")
        self.skip_if(f"s_cmp_ge_u32 s{S_W}, 6", nl)
        for i in range(10):
            a(f"buffer_load_dwordx4 {vr(20+4*i,4)}, v4, {srd('WQ')}, s44 offen{self.NTF}")
            if i < 9: a("s_add_u32 s44, s44, 98304")
        a.label(nl)
        a("s_branch L_pre2")
        a.label("L_apre")
        a(f"s_lshr_b32 s100, s{S_W}, 1")
        a(f"s_and_b32 s101, s{S_W}, 1")
        a(f"s_mul_i32 s44, s{S_J4}, 192")
        a("s_mul_i32 s45, s100, 48")
        a("s_add_u32 s44, s44, s45")
        a("s_lshl_b32 s45, s101, 3")
        a("s_add_u32 s44, s44, s45")
        a("s_mul_i32 s44, s44, 12288")
        a(f"s_mul_i32 s45, s{S_H}, 384")
        a("s_add_u32 s44, s44, s45")
        a(f"s_mov_b32 s{SRD['WUK']+2}, {SRD_SIZE['WUK']}")
        a(f"s_mov_b32 s{SRD['WUK']+3}, 0x00020000")
        a("s_waitcnt lgkmcnt(0)")
        a(f"s_mov_b64 s[{SRD['WUK']}:{SRD['WUK']+1}], s[82:83]")
        if self.wq_pf:
            a(f"s_mov_b64 s[{SRD['WQ']}:{SRD['WQ']+1}], s[80:81]")
            a(f"s_mov_b32 s{SRD['WQ']+2}, {SRD_SIZE['WQ']}")
            a(f"s_mov_b32 s{SRD['WQ']+3}, 0x00020000")
            a(f"s_mul_i32 s46, s{S_J4}, 160")
            a(f"s_lshl_b32 s47, s{S_W}, 3")
            a("s_add_u32 s46, s46, s47")
            a(f"s_add_u32 s46, s46, 80")
            a("s_mul_i32 s46, s46, 12288")
            a("s_add_u32 s46, s46, s45")
            for t in range(3):
                a(f"buffer_load_dwordx4 v[100:103], v4, {srd('WQ')}, s46 offen offset:{t*128}")
            a(f"s_add_u32 s46, s46, {64*12288}")
            npf2 = a.newlabel("npf2")
            self.skip_if(f"s_cmp_ge_u32 s{S_W}, 2", npf2)
            for t in range(3):
                a(f"buffer_load_dwordx4 v[100:103], v4, {srd('WQ')}, s46 offen offset:{t*128}")
            a.label(npf2)
            if self.wq_pf == 3: a("s_waitcnt vmcnt(0)")
        for f in range(3):
            for t in range(3):
                a(f"buffer_load_dwordx4 {vr(20+(f*3+t)*4,4)}, v4, {srd('WUK')}, s44 offen offset:{t*128}{self.NTF}")
            if f < 2: a("s_add_u32 s44, s44, 196608")
        a.label("L_pre2")
        a(f"s_load_dword s{S_EP}, s[64:65], {WS_EPOCH}")
        a(f"s_mov_b32 s{T}, s100")
        a(f"s_mov_b32 s{T+1}, s101")
        a(f"s_mov_b32 s{S_PM}, s46")
        for n in SRD: self.mk_srd(n)
        if self.stamps:
            a("v_mov_b32 v255, 0")
            self.stamp(0)
            a("v_writelane_b32 v255, s42, 23")
            a("s_memtime s[42:43]")
            a("s_waitcnt lgkmcnt(0)")
            a("v_writelane_b32 v255, s42, 24")
        a(f"s_mov_b32 s{S_M8}, 0xff00ff00")
        a(f"s_mov_b32 s{S_M8+1}, 0xff00ff00")
        a(f"s_mov_b32 s{S_WSCF}, {WS_CF}")
        a("s_cmp_lt_u32 s2, 128")
        a("s_cbranch_scc0 L_aset")

    def aset_front(self):
        a = self.a; T = S_T
        W0 = 20; QF = 56; ACC = 68
        a(f"s_lshl_b32 s{T+10}, s{S_X}, 4")
        a(f"s_add_u32 s{T+10}, s{T+10}, s{S_LI}")
        a(f"s_mul_i32 s{T+10}, s{T+10}, 2560")
        a(f"s_add_u32 s{T+10}, s{T+10}, {WS_OUTP}")
        a("v_mov_b32 v76, -1\nv_mov_b32 v77, -1\nv_mov_b32 v78, -1\nv_mov_b32 v79, -1")
        a("v_lshlrev_b32 v80, 4, v0")
        a("v_mov_b32 v81, 0x7fffffff")
        a("v_cmp_gt_u32 vcc, 160, v0")
        a("s_nop 1")
        a("v_cndmask_b32 v80, v81, v80, vcc")
        a(f"buffer_store_dwordx4 v[76:79], v80, {srd('WS')}, s{T+10} offen sc1")
        a("v_lshlrev_b32 v5, 2, v1")
        a("v_mov_b32 v6, 0")
        a(f"ds_write_b32 v5, v6 offset:{self.L_CB}")
        a(f"ds_write_b32 v5, v6 offset:{self.L_CB+256}")
        a(f"s_mul_i32 s{T+5}, s{S_H}, {8*1536}")
        a(f"s_add_u32 s{T+6}, s{T+5}, {WS_QPL}")
        a(f"s_add_u32 s{T+5}, s{T+5}, {WS_QPG}")
        a("s_waitcnt vmcnt(0) lgkmcnt(0)")
        a(f"s_add_u32 s{S_EP}, s{S_EP}, 1")
        self.stamp(1)
        skip = a.newlabel("e1skip")
        self.skip_if(f"s_cmp_ge_u32 s{S_W}, 3", skip)
        a("v_lshlrev_b32 v5, 3, v0")
        G = 84
        l = self.poll_begin(T+6, T+5)
        for p in range(8):
            a(f"buffer_load_dwordx2 {vr(G+2*p,2)}, v5, {srd('WS')}, s{S_PB} offen offset:{(p%2)*1536} sc1")
            if p % 2 == 1 and p < 7: a(f"s_add_u32 s{S_PB}, s{S_PB}, 3072")
        a("s_waitcnt vmcnt(0)")
        a(f"v_xor_b32 v6, s{S_EP}, v{G+1}")
        for p in range(1, 8):
            a(f"v_xor_b32 v7, s{S_EP}, v{G+2*p+1}")
            a("v_or_b32 v6, v6, v7")
        self.poll_end(l, 6)
        self.stamp_val(16, S_CNT)
        for p in range(1, 8): a(f"v_add_f32 v{G}, v{G}, v{G+2*p}")
        a(f"v_cvt_pk_bf16_f32 v6, v{G}, v{G}")
        a("v_lshlrev_b32 v7, 1, v0")
        a(f"ds_write_b16 v7, v6 offset:{self.L_Q}")
        a("s_waitcnt lgkmcnt(0)")
        a.label(skip)
        a("v_lshlrev_b32 v5, 4, v3")
        a(f"s_lshl_b32 s{T+7}, s{S_W}, 6")
        a("v_lshlrev_b32 v10, 1, v2")
        a(f"v_add_u32 v10, s{T+7}, v10")
        a("v_lshlrev_b32 v6, 4, v1")
        a("v_mov_b32 v7, 4")
        a("v_cmp_eq_u32 vcc, 3, v1")
        a("v_mov_b32 v8, 12")
        a("v_mov_b32 v9, 16")
        a("v_cndmask_b32 v6, v6, v8, vcc")
        a("v_cndmask_b32 v7, v7, v9, vcc")
        a("v_and_b32 v6, 63, v6")
        a(f"v_add_u32 v11, s{T+7}, v6")
        a("v_add_u32 v12, v11, v7")
        a("v_add_u32 v13, v12, v7")
        a(f"s_lshl_b32 s{T+8}, s{S_J4}, 2")
        a(f"s_add_u32 s{T+8}, s{T+8}, s{T}")
        a(f"s_lshl_b32 s{T+8}, s{T+8}, 12")
        a(f"s_lshl_b32 s{T+9}, s{T+1}, 9")
        a(f"s_add_u32 s{T+8}, s{T+8}, s{T+9}")
        a(f"s_lshl_b32 s{T+9}, s{S_H}, 4")
        a(f"s_add_u32 s{T+8}, s{T+8}, s{T+9}")
        a(f"s_add_u32 s{T+8}, s{T+8}, {WS_QA}")
        a("v_lshlrev_b32 v14, 10, v1")
        a("v_mov_b32 v7, 0x7fffffff")
        a("v_cmp_gt_u32 vcc, 4, v1")
        a(f"v_mov_b32 v75, s{S_EP}")
        a("v_cndmask_b32 v14, v7, v14, vcc")
        for f in range(3): a(f"v_mov_b32 v{ACC+f}, 0")
        a("s_barrier")
        self.stamp(2)
        for t in range(3):
            a(f"ds_read_b128 {vr(QF+4*t,4)}, v5 offset:{self.L_Q + t*128}")
        for t in range(3):
            a(f"s_waitcnt lgkmcnt({2-t})")
            for k in range(4):
                for f in range(3):
                    a(f"v_dot2c_f32_bf16 v{ACC+f}, v{W0+(f*3+t)*4+k}, v{QF+4*t+k}")
        a("s_nop 2")
        for ctrl in ["quad_perm:[1,0,3,2]", "quad_perm:[2,3,0,1]", "row_half_mirror"]:
            for f in range(3):
                a(f"v_add_f32_dpp v{ACC+f}, v{ACC+f}, v{ACC+f} {ctrl} row_mask:0xf bank_mask:0xf")
        for f in range(3): a(f"v_cvt_pk_bf16_f32 v{ACC+f}, v{ACC+f}, v{ACC+f}")
        for f in range(3): a(f"ds_write_b16 v10, v{ACC+f} offset:{self.L_QS + f*16}")
        a("s_waitcnt lgkmcnt(0)")
        a(f"ds_read_b32 v72, v11 offset:{self.L_QS}")
        a(f"ds_read_b32 v73, v12 offset:{self.L_QS}")
        a(f"ds_read_b32 v74, v13 offset:{self.L_QS}")
        a("s_waitcnt lgkmcnt(0)")
        a(f"buffer_store_dwordx4 v[72:75], v14, {srd('WS')}, s{T+8} offen sc1")
        self.stamp(3)
        if self.qa_ack: a("s_waitcnt vmcnt(0)")
        a("s_barrier")

    def wo_lane_offsets(self):
        a = self.a
        a("v_mul_u32_u24 v6, 52429, v0")
        a("v_lshrrev_b32 v6, 22, v6")
        a("v_mul_u32_u24 v7, 80, v6")
        a("v_sub_u32 v7, v0, v7")
        a("v_mul_u32_u24 v5, 1280, v6")
        a("v_lshl_add_u32 v5, v7, 4, v5")
        a("v_mov_b32 v8, 0x7fffffff")
        a("v_cmp_gt_u32 vcc, 480, v0")
        a("s_nop 1")
        a("v_cndmask_b32 v5, v8, v5, vcc")

    def preperm(self, W0, npairs, t0):
        a = self.a
        a("s_mov_b32 s94, 0x05040100")
        a("s_mov_b32 s95, 0x07060302")
        for p in range(npairs):
            for k in range(4):
                r0 = W0 + 8*p + k; r1 = r0 + 4
                a(f"v_perm_b32 v{t0}, v{r1}, v{r0}, s94")
                a(f"v_perm_b32 v{r1}, v{r1}, v{r0}, s95")
                a(f"v_mov_b32 v{r0}, v{t0}")

    def gemv_pairs(self, W0, npairs, CO, ACC):
        a = self.a
        for p in range(npairs):
            for k in range(4):
                a(f"v_dot2c_f32_bf16 v{ACC+2*k}, v{W0+8*p+k}, v{CO+p}")
            for k in range(4):
                a(f"v_dot2c_f32_bf16 v{ACC+2*k+1}, v{W0+8*p+4+k}, v{CO+p}")

    def out_reduce_publish(self, ACC, outp_soff):
        a = self.a
        a("s_nop 2")
        a(f"ds_write_b128 v129, {vr(ACC,4)} offset:{self.L_R}")
        a(f"ds_write_b128 v129, {vr(ACC+4,4)} offset:{self.L_R+16}")
        a("s_waitcnt lgkmcnt(0)")
        a("s_barrier")
        skip = a.newlabel("go")
        self.skip_if(f"s_cmp_ge_u32 s{S_W}, 3", skip)
        R = 132
        for sl in range(6):
            a(f"ds_read_b128 {vr(R+4*sl,4)}, v131 offset:{self.L_R+sl*2560}")
        a("s_waitcnt lgkmcnt(0)")
        for k in range(4):
            a(f"v_add_f32 v{R+k}, v{R+k}, v{R+4+k}")
            a(f"v_add_f32 v{R+8+k}, v{R+8+k}, v{R+12+k}")
            a(f"v_add_f32 v{R+16+k}, v{R+16+k}, v{R+20+k}")
        for k in range(4): a(f"v_add_f32 v{R+k}, v{R+k}, v{R+8+k}")
        for k in range(4): a(f"v_add_f32 v{R+k}, v{R+k}, v{R+16+k}")
        for k in range(4): a(f"v_min_u32 v{R+k}, 0xfffffffe, v{R+k}")
        a(f"buffer_store_dwordx4 {vr(R,4)}, v130, {srd('WS')}, s{outp_soff} offen sc1")
        a.label(skip)

    def write_pairs(self, vsrc, t0, t1, nvalid):
        a = self.a
        a(f"v_lshlrev_b32 v{t0}, 2, v1")
        a(f"v_add_u32 v{t1}, {self.L_CB - 24 + 2}, v{t0}")
        a(f"v_add_u32 v{t0}, {self.L_CB}, v{t0}")
        a(f"v_mov_b32 v{t0+2}, {self.L_CB + 500}")
        a("v_cmp_gt_u32 vcc, 6, v1")
        a("s_nop 1")
        a(f"v_cndmask_b32 v{t1}, v{t1}, v{t0+2}, vcc")
        if nvalid < 64:
            a(f"v_cmp_le_u32 vcc, {nvalid}, v1")
            a("s_nop 1")
            a(f"v_cndmask_b32 v{t1}, v{t1}, v{t0+2}, vcc")
            a(f"v_cndmask_b32 v{t0}, v{t0}, v{t0+2}, vcc")
        a(f"ds_write_b16 v{t0}, v{vsrc}")
        a(f"ds_write_b16 v{t1}, v{vsrc}")

    def out_addr_regs(self):
        a = self.a
        a("v_mul_u32_u24 v129, 2560, v6")
        a("v_lshl_add_u32 v129, v7, 5, v129")
        a("v_lshlrev_b32 v131, 4, v0")
        a("v_mov_b32 v130, 0x7fffffff")
        a("v_cmp_gt_u32 vcc, 160, v0")
        a("s_nop 1")
        a("v_cndmask_b32 v130, v130, v131, vcc")

    def aset_back(self):
        a = self.a; T = S_T
        self.wo_lane_offsets()
        self.out_addr_regs()
        if self.exp_nobulk:
            a(f"s_lshl_b32 s{T+1}, s{S_H}, 7")
            a(f"s_add_u32 s{T+1}, s{T+1}, {WS_ML}")
            a("v_and_b32 v14, 15, v1")
            a("v_lshlrev_b32 v14, 3, v14")
            self.cf_check(132)
            l = self.poll_begin()
            a(f"buffer_load_dwordx2 v[116:117], v14, {srd('WS')}, s{T+1} offen sc1")
            a("s_waitcnt vmcnt(0)")
            a("v_max_u32 v15, v116, v117")
            a("v_cmp_eq_u32 vcc, -1, v15")
            a("s_nop 1")
            a("v_cndmask_b32 v15, 0, 1, vcc")
            a("s_sleep 4")
            self.poll_end(l, 15)
        self.skip_if(f"s_cmp_ge_u32 s{S_LI}, 12", "L_bbranch")
        WV = 20; WO = 68
        a(f"s_mul_i32 s{T}, s{S_W}, {96*12288}")
        a(f"s_mul_i32 s{T+1}, s{S_H}, 384")
        a(f"s_add_u32 s{T}, s{T}, s{T+1}")
        a(f"s_lshl_b32 s{T+1}, s{S_J4}, 7")
        a(f"s_add_u32 s{T}, s{T}, s{T+1}")
        for i in range(12):
            a(f"buffer_load_dwordx4 {vr(WV+4*i,4)}, v4, {srd('WUV')}, s{T} offen{self.NTB}")
            if i >= self.a_win: a(f"s_waitcnt vmcnt({self.a_win})")
            if i < 11: a(f"s_add_u32 s{T}, s{T}, 98304")
        a(f"s_mul_i32 s{T}, s{S_H}, 192")
        a(f"s_lshl_b32 s{T+1}, s{S_J4}, 6")
        a(f"s_add_u32 s{T}, s{T}, s{T+1}")
        a(f"s_mul_i32 s{T}, s{T}, 1280")
        for i in range(10):
            a(f"buffer_load_dwordx4 {vr(WO+4*i,4)}, v5, {srd('WO')}, s{T} offen{self.NTB}")
            if 12 + i >= self.a_win: a(f"s_waitcnt vmcnt({self.a_win})")
            a(f"s_add_u32 s{T}, s{T}, 7680")
        a("v_cmp_gt_u32 vcc, 4, v6")
        a("s_nop 1")
        a("v_cndmask_b32 v9, v8, v5, vcc")
        a(f"buffer_load_dwordx4 {vr(WO+40,4)}, v9, {srd('WO')}, s{T} offen{self.NTB}")
        for k in range(4): a(f"v_mov_b32 v{WO+44+k}, 0")
        self.stamp(4)
        a("v_cmp_le_u32 vcc, 24, v1")
        a("s_nop 1")
        a("v_cndmask_b32 v10, 0, 1, vcc")
        a("v_mul_u32_u24 v11, 24, v10")
        a("v_sub_u32 v11, v1, v11")
        a("v_mul_u32_u24 v12, 384, v10")
        a("v_lshl_add_u32 v12, v11, 4, v12")
        a(f"s_lshl_b32 s{T+2}, s{S_W}, 10")
        a(f"s_add_u32 s{T+2}, s{T+2}, {self.L_O}")
        a(f"v_add_u32 v13, s{T+2}, v12")
        a("v_cmp_gt_u32 vcc, 48, v1")
        a("v_lshlrev_b32 v16, 2, v2")
        a(f"v_add_u32 v16, s{T+2}, v16")
        a("v_cndmask_b32 v12, v8, v12, vcc")
        a(f"s_lshl_b32 s{T}, s{S_H}, 3")
        a(f"s_add_u32 s{T}, s{T}, s{S_W}")
        a(f"s_mul_i32 s{T}, s{T}, {16*384}")
        a(f"s_add_u32 s{T}, s{T}, {WS_OP}")
        a(f"s_lshl_b32 s{T+1}, s{S_H}, 7")
        a(f"s_add_u32 s{T+1}, s{T+1}, {WS_ML}")
        a("v_and_b32 v14, 15, v1")
        a("v_lshlrev_b32 v14, 3, v14")
        a("v_lshlrev_b32 v121, 2, v10")
        a("v_lshlrev_b32 v17, 5, v3")
        a("v_lshl_add_u32 v17, v2, 2, v17")
        a(f"s_lshl_b32 s{T+3}, s{S_W}, 8")
        a(f"v_add_u32 v17, s{T+3}, v17")
        a("v_lshlrev_b32 v18, 2, v6")
        a("v_lshlrev_b32 v172, 2, v1")
        a(f"v_add_u32 v173, {self.L_CB - 24 + 2}, v172")
        a(f"v_add_u32 v172, {self.L_CB}, v172")
        a(f"v_mov_b32 v174, {self.L_CB + 500}")
        a("v_cmp_gt_u32 vcc, 6, v1")
        a("s_nop 1")
        a("v_cndmask_b32 v173, v173, v174, vcc")
        a("s_waitcnt vmcnt(11)")
        self.preperm(WV, 6, 128)
        a("s_waitcnt vmcnt(0)")
        self.preperm(WO, 6, 128)
        self.stamp(5)
        self.cf_check(132)
        OPV = 132
        def e4_issue(i):
            if i == 8:
                a(f"buffer_load_dwordx2 v[116:117], v14, {srd('WS')}, s{T+1} offen sc1")
            else:
                so = T if i < 4 else T+2
                a(f"buffer_load_dwordx4 {vr(OPV+4*i,4)}, v12, {srd('WS')}, s{so} offen offset:{(i%4)*768} sc1")
        def e4_check(i):
            if i == 8:
                a("v_max_u32 v15, v116, v117")
            else:
                a(f"v_max3_u32 v15, v{OPV+4*i}, v{OPV+4*i+1}, v{OPV+4*i+2}")
                a(f"v_max_u32 v15, v15, v{OPV+4*i+3}")
            a("v_cmp_eq_u32 vcc, -1, v15")
        a(f"s_add_u32 s{T+2}, s{T}, 3072")
        if self.mlpoll == 1:
            l = self.poll_begin()
            a(f"buffer_load_dwordx2 v[116:117], v14, {srd('WS')}, s{T+1} offen sc1")
            a("s_waitcnt vmcnt(0)")
            a("v_max_u32 v15, v116, v117")
            a("v_cmp_eq_u32 vcc, -1, v15")
            a("s_nop 1")
            a("v_cndmask_b32 v15, 0, 1, vcc")
            self.poll_end(l, 15)
            self.gpoll(8, e4_issue, e4_check, masks=[20,22,24,26,28,30,44,46])
        elif self.mlpoll == 2:
            l = a.newlabel("mla"); ok = a.newlabel("mlo")
            a(f"s_mov_b32 s{S_CNT}, 0")
            a.label(l)
            a(f"buffer_load_dwordx2 v[116:117], v14, {srd('WS')}, s{T+1} offen sc1")
            a("s_waitcnt vmcnt(0)")
            a("v_max_u32 v15, v116, v117")
            a("v_cmp_ne_u32 vcc, -1, v15")
            a(f"s_cbranch_vccnz {ok}")
            a("s_sleep 2")
            a(f"s_add_u32 s{S_CNT}, s{S_CNT}, 1")
            a(f"s_cmp_lt_u32 s{S_CNT}, {POLL_LIMIT}")
            a(f"s_cbranch_scc1 {l}")
            a.label(ok)
            self.gpoll(9, e4_issue, e4_check, masks=[20,22,24,26,28,30,44,46,48])
        else:
            self.gpoll(9, e4_issue, e4_check)
        self.stamp(6)
        self.stamp_val(17, S_CNT)
        a("v_mov_b32 v118, v116")
        a("s_nop 1")
        for ctrl in ["quad_perm:[1,0,3,2]", "quad_perm:[2,3,0,1]", "row_half_mirror", "row_mirror"]:
            a(f"v_max_f32_dpp v118, v118, v118 {ctrl} row_mask:0xf bank_mask:0xf")
            a("s_nop 1")
        a("v_sub_f32 v119, v116, v118")
        a("v_exp_f32 v119, v119")
        a("s_nop 0")
        a("v_mul_f32 v120, v117, v119")
        WN = 164
        for i in range(8): a(f"ds_bpermute_b32 v{WN+i}, v121, v119 offset:{8*i}")
        for ctrl in ["quad_perm:[1,0,3,2]", "quad_perm:[2,3,0,1]", "row_half_mirror", "row_mirror"]:
            a(f"v_add_f32_dpp v120, v120, v120 {ctrl} row_mask:0xf bank_mask:0xf")
            a("s_nop 1")
        a("v_rcp_f32 v120, v120")
        a("s_waitcnt lgkmcnt(0)")
        for k in range(4): a(f"v_mul_f32 v{122+k}, v{WN}, v{OPV+k}")
        for i in range(1, 8):
            for k in range(4): a(f"v_fmac_f32 v{122+k}, v{WN+i}, v{OPV+4*i+k}")
        for k in range(4): a(f"v_mul_f32 v{122+k}, v{122+k}, v120")
        a("s_mov_b32 exec_hi, 0xffff")
        a("ds_write_b128 v13, v[122:125]")
        a("s_mov_b32 exec_hi, -1")
        a("s_waitcnt lgkmcnt(0)")
        OV = 132
        for i in range(12):
            a(f"ds_read2_b32 {vr(OV+2*i,2)}, v16 offset0:{8*i} offset1:{8*i+96}")
        ACC = 120
        for k in range(8): a(f"v_mov_b32 v{ACC+k}, 0")
        CO = 160
        for p in range(6):
            a(f"s_waitcnt lgkmcnt({10-2*p})")
            a(f"v_add_f32 v{OV+4*p}, v{OV+4*p}, v{OV+4*p+1}")
            a(f"v_add_f32 v{OV+4*p+2}, v{OV+4*p+2}, v{OV+4*p+3}")
            a(f"v_cvt_pk_bf16_f32 v{CO+p}, v{OV+4*p}, v{OV+4*p+2}")
        self.gemv_pairs(WV, 6, CO, ACC)
        self.treduce8(ACC, 128, 118)
        a(f"ds_write_b32 v17, v{ACC} offset:{self.L_C}")
        a("s_waitcnt lgkmcnt(0)")
        a("s_barrier")
        self.stamp(7)
        skip = a.newlabel("cx")
        self.skip_if(f"s_cmp_lg_u32 s{S_W}, 0", skip)
        a("v_lshlrev_b32 v13, 2, v1")
        for w in range(8): a(f"ds_read_b32 v{132+w}, v13 offset:{self.L_C+w*256}")
        a("s_waitcnt lgkmcnt(0)")
        a("v_add_f32 v132, v132, v133\nv_add_f32 v134, v134, v135\nv_add_f32 v136, v136, v137\nv_add_f32 v138, v138, v139")
        a("v_add_f32 v132, v132, v134\nv_add_f32 v136, v136, v138")
        a("v_add_f32 v132, v132, v136")
        a("v_cvt_pk_bf16_f32 v132, v132, v132")
        a("ds_write_b16 v172, v132")
        a("ds_write_b16 v173, v132")
        a("s_waitcnt lgkmcnt(0)")
        a.label(skip)
        for k in range(8): a(f"v_mov_b32 v{ACC+k}, 0")
        a("s_barrier")
        for p in range(6):
            a(f"ds_read_b32 v{CO+p}, v18 offset:{self.L_CB+48*p}")
        a("s_waitcnt lgkmcnt(0)")
        self.gemv_pairs(WO, 6, CO, ACC)
        self.out_reduce_publish(ACC, T+10)
        self.stamp(8)
        a("s_branch L_aend")

        a.label("L_bbranch")
        WG = 20; XB = 84; WD = 160
        a("v_lshlrev_b32 v19, 2, v6")
        a(f"s_lshl_b32 s{T}, s{S_X}, 2")
        a(f"s_add_u32 s{T}, s{T}, s{S_LI}")
        a(f"s_sub_u32 s{T}, s{T}, 12")
        a("v_mul_u32_u24 v10, 43, v1")
        a("v_lshrrev_b32 v10, 8, v10")
        a("v_mul_u32_u24 v11, 6, v10")
        a("v_sub_u32 v11, v1, v11")
        a("v_mul_u32_u24 v12, 3072, v10")
        a("v_lshl_add_u32 v12, v11, 4, v12")
        a("v_cmp_gt_u32 vcc, 60, v1")
        a("v_lshlrev_b32 v13, 1, v10")
        a("v_cndmask_b32 v12, v8, v12, vcc")
        a(f"s_and_b32 s{T+1}, s{S_W}, 3")
        a(f"s_mul_i32 s{T+2}, s{T+1}, 320")
        for i in range(16):
            a(f"buffer_load_ushort v{XB+i}, v13, {srd('X')}, s{T+2} offen offset:{20*i}")
        a(f"s_mul_i32 s{T+2}, s{T+1}, {160*3072}")
        a(f"s_mul_i32 s{T+3}, s{T}, 96")
        a(f"s_add_u32 s{T+2}, s{T+2}, s{T+3}")
        up = a.newlabel("up"); upd = a.newlabel("upd")
        self.skip_if(f"s_cmp_ge_u32 s{S_W}, 4", up)
        for i in range(16):
            a(f"buffer_load_dwordx4 {vr(WG+4*i,4)}, v12, {srd('WG')}, s{T+2} offen{self.NTB}")
            if i >= self.a_win: a(f"s_waitcnt vmcnt({self.a_win})")
            a(f"s_add_u32 s{T+2}, s{T+2}, 30720")
        a(f"s_branch {upd}")
        a.label(up)
        for i in range(16):
            a(f"buffer_load_dwordx4 {vr(WG+4*i,4)}, v12, {srd('WU')}, s{T+2} offen{self.NTB}")
            if i >= self.a_win: a(f"s_waitcnt vmcnt({self.a_win})")
            a(f"s_add_u32 s{T+2}, s{T+2}, 30720")
        a.label(upd)
        a(f"s_mul_i32 s{T+2}, s{T}, {48*1280}")
        for i in range(8):
            a(f"buffer_load_dwordx4 {vr(WD+4*i,4)}, v5, {srd('WD')}, s{T+2} offen{self.NTB}")
            if 16 + i >= self.a_win: a(f"s_waitcnt vmcnt({self.a_win})")
            a(f"s_add_u32 s{T+2}, s{T+2}, 7680")
        ACC = 120
        for k in range(8): a(f"v_mov_b32 v{ACC+k}, 0")
        for i in range(16):
            a(f"s_waitcnt vmcnt({8+15-i})")
            a(f"v_lshlrev_b32 v128, 16, v{XB+i}")
            for k in range(4): a(f"v_dot2c_f32_bf16 v{ACC+2*k}, v{WG+4*i+k}, v{XB+i}")
            for k in range(4): a(f"v_dot2c_f32_bf16 v{ACC+2*k+1}, v{WG+4*i+k}, v128")
        a(f"s_mul_i32 s{T+2}, s{S_W}, 1920")
        a("v_mul_u32_u24 v13, 192, v10")
        a("v_lshl_add_u32 v13, v11, 5, v13")
        a(f"v_add_u32 v13, s{T+2}, v13")
        a("s_mov_b32 exec_hi, 0x0fffffff")
        a(f"ds_write_b128 v13, {vr(ACC,4)} offset:{self.L_R}")
        a(f"ds_write_b128 v13, {vr(ACC+4,4)} offset:{self.L_R+16}")
        a("s_mov_b32 exec_hi, -1")
        a("s_waitcnt lgkmcnt(0)")
        a("s_barrier")
        skip = a.newlabel("bg")
        self.skip_if(f"s_cmp_ge_u32 s{S_W}, 2", skip)
        a("v_cmp_le_u32 vcc, 48, v0")
        a("v_mov_b32 v14, 7488")
        a("v_lshlrev_b32 v13, 2, v0")
        a("v_cndmask_b32 v14, 0, v14, vcc")
        a("v_add_u32 v13, v13, v14")
        a("v_min_u32 v13, 7868, v13")
        for j in range(40):
            a(f"ds_read_b32 v{20+j}, v13 offset:{self.L_R+j*192}")
            if j % 8 == 7: a("s_waitcnt lgkmcnt(0)")
        for j in range(1, 40): a(f"v_add_f32 v20, v20, v{20+j}")
        a("v_lshlrev_b32 v13, 2, v0")
        a(f"ds_write_b32 v13, v20 offset:{self.L_C}")
        a("s_waitcnt lgkmcnt(0)")
        a.label(skip)
        a("s_barrier")
        skip = a.newlabel("bh")
        self.skip_if(f"s_cmp_lg_u32 s{S_W}, 0", skip)
        a("v_lshlrev_b32 v13, 2, v1")
        a(f"ds_read_b32 v20, v13 offset:{self.L_C}")
        a(f"ds_read_b32 v21, v13 offset:{self.L_C+192}")
        a("s_waitcnt lgkmcnt(0)")
        a(f"v_mul_f32 v20, 0x{f32bits(-math.log2(math.e)):08x}, v20")
        a("v_exp_f32 v20, v20")
        a("s_nop 0")
        a("v_add_f32 v20, 1.0, v20")
        a("v_rcp_f32 v20, v20")
        a("s_nop 0")
        a("v_mul_f32 v20, v20, v21")
        a("v_cvt_pk_bf16_f32 v20, v20, v20")
        self.write_pairs(20, 13, 14, 48)
        a("s_waitcnt lgkmcnt(0)")
        a.label(skip)
        for k in range(8): a(f"v_mov_b32 v{ACC+k}, 0")
        a("s_waitcnt vmcnt(0)")
        self.preperm(WD, 4, 128)
        a("s_barrier")
        CO = 100
        for p in range(4):
            a(f"ds_read_b32 v{CO+p}, v19 offset:{self.L_CB+48*p}")
        a("s_waitcnt lgkmcnt(0)")
        self.gemv_pairs(WD, 4, CO, ACC)
        self.out_reduce_publish(ACC, T+10)
        self.stamp(8)
        a.label("L_aend")

    def bset_ids(self):
        a = self.a
        a(f"s_mov_b32 s{S_LB}, s{S_LI}")
        a(f"s_lshl_b32 s{S_BLK}, s{S_X}, 5")
        a(f"s_lshl_b32 s9, s{S_LB}, 1")
        a(f"s_add_u32 s{S_BLK}, s{S_BLK}, s9")
        a(f"s_lshl_b32 s{S_G}, s{S_X}, 1")
        a(f"s_lshr_b32 s9, s{S_LB}, 3")
        a(f"s_add_u32 s{S_G}, s{S_G}, s9")
        a(f"s_and_b32 s{S_S}, s{S_LB}, 7")

    def pv_lane_offsets(self):
        a = self.a
        for n in range(3):
            a(f"v_add_u32 v5, {64*n}, v1")
            a("v_mul_u32_u24 v6, 5462, v5")
            a("v_lshrrev_b32 v6, 16, v6")
            a("v_mul_u32_u24 v7, 12, v6")
            a("v_sub_u32 v7, v5, v7")
            a("v_mul_u32_u24 v6, 1536, v6")
            a(f"v_lshl_add_u32 v{self.PVO+n}, v7, 4, v6")

    def pv_dma(self, kp, ldsbase, nw, w0):
        a = self.a; T = S_T + 8
        per = 48 // nw; rows = 256 // nw
        a(f"s_sub_u32 s{T+2}, s{S_W}, {w0}")
        a(f"s_lshl_b32 s{T}, s{S_G}, 9")
        a(f"s_mul_i32 s{T+1}, s{T+2}, {rows}")
        a(f"s_add_u32 s{T}, s{T}, s{T+1}")
        if kp: a(f"s_add_u32 s{T}, s{T}, 256")
        a(f"s_mul_i32 s{T}, s{T}, 1536")
        a(f"s_mul_i32 s{T+1}, s{S_S}, 192")
        a(f"s_add_u32 s{T}, s{T}, s{T+1}")
        a(f"s_mul_i32 s{T+1}, s{T+2}, {per*1024}")
        a(f"s_add_u32 s{T+1}, s{T+1}, {ldsbase}")
        for n in range(per):
            a(f"s_add_u32 m0, s{T+1}, {n*1024}")
            if n % 3 == 0 and n > 0: a(f"s_add_u32 s{T}, s{T}, {16*1536}")
            else: a("s_nop 0")
            a(f"buffer_load_dwordx4 v{self.PVO+(n%3)}, {srd('CKV')}, s{T} offen{self.NTC} lds")
            if self.pv_win < 63: a(f"s_waitcnt vmcnt({self.pv_win})")

    def s_dma_prep(self):
        a = self.a
        a("v_mov_b32 v216, 0")
        a("v_mov_b32 v219, v1")
        a("v_cmp_le_u32 vcc, 32, v1")
        a("v_add_u32 v5, 64, v1")
        a("v_subrev_u32 v6, 32, v1")
        a("v_cndmask_b32 v217, 0, 1, vcc")
        a("v_cndmask_b32 v220, v5, v6, vcc")
        a("v_mov_b32 v218, 1")
        a("v_add_u32 v221, 32, v1")
        for b in range(3): a(f"v_mul_u32_u24 v{222+b}, 1536, v{216+b}")
        T = S_T + 8
        a(f"s_and_b32 s{T+2}, s{S_W}, 1")
        a(f"s_lshl_b32 s{T+2}, s{T+2}, 3")
        for aa in range(4):
            for b in range(3):
                n = 3*aa + b
                a(f"s_add_u32 s{T+4}, s{T+2}, {2*aa}")
                a(f"v_add_u32 v5, s{T+4}, v{216+b}")
                a(f"v_xor_b32 v5, v5, v{219+b}")
                a(f"v_lshl_add_u32 v{226+n}, v5, 4, v{222+b}")

    def s_dma(self):
        a = self.a; T = S_T + 8
        a(f"s_lshl_b32 s{T}, s{S_X}, 10")
        a(f"s_lshl_b32 s{T+1}, s{S_LB}, 6")
        a(f"s_add_u32 s{T}, s{T}, s{T+1}")
        a(f"s_lshl_b32 s{T+1}, s{S_W}, 3")
        a(f"s_add_u32 s{T}, s{T}, s{T+1}")
        a(f"s_mul_i32 s{T}, s{T}, 1536")
        a(f"s_mul_i32 s{T+3}, s{S_W}, 12288")
        a(f"s_add_u32 s{T+3}, s{T+3}, {self.L_S}")
        for n in range(12):
            a(f"s_add_u32 m0, s{T+3}, {n*1024}")
            if n % 3 == 0 and n > 0: a(f"s_add_u32 s{T}, s{T}, {2*1536}")
            else: a("s_nop 0")
            a(f"buffer_load_dwordx4 v{226+n}, {srd('CKV')}, s{T} offen{self.NTC} lds")
            if n >= self.s_win: a(f"s_waitcnt vmcnt({self.s_win})")
            if self.s_probe and n == self.s_probe-1: a(f"s_waitcnt vmcnt({self.s_probe-1})")

    def s_dma_early(self):
        a = self.a; T = S_T + 8
        a(f"s_sub_u32 s{T+2}, s{S_W}, 6")
        a(f"s_lshl_b32 s{T}, s{S_X}, 10")
        a(f"s_lshl_b32 s{T+1}, s{S_LB}, 6")
        a(f"s_add_u32 s{T}, s{T}, s{T+1}")
        a(f"s_lshl_b32 s{T+1}, s{T+2}, 5")
        a(f"s_add_u32 s{T}, s{T}, s{T+1}")
        a(f"s_mul_i32 s{T}, s{T}, 1536")
        a(f"s_mul_i32 s{T+3}, s{T+2}, 49152")
        a(f"s_add_u32 s{T+3}, s{T+3}, {self.L_S}")
        for aa in range(16):
            for b in range(3):
                n = 3*aa + b
                a(f"v_add_u32 v5, {(2*aa) & 15}, v{216+b}")
                a(f"v_xor_b32 v5, v5, v{219+b}")
                a(f"v_lshl_add_u32 v5, v5, 4, v{222+b}")
                a(f"s_add_u32 m0, s{T+3}, {n*1024}")
                a(f"s_add_u32 s{T+5}, s{T}, {2*aa*1536}")
                a(f"buffer_load_dwordx4 v5, {srd('CKV')}, s{T+5} offen{self.NTC} lds")
                if n >= self.sde_win: a(f"s_waitcnt vmcnt({self.sde_win})")

    def bset_clears(self):
        a = self.a; T = S_T + 8
        a("v_subrev_u32 v5, 384, v0")
        a("v_mov_b32 v76, -1\nv_mov_b32 v77, -1\nv_mov_b32 v78, -1\nv_mov_b32 v79, -1")
        a("v_lshlrev_b32 v6, 4, v5")
        a("v_mov_b32 v7, 0x7fffffff")
        a("v_cmp_gt_u32 vcc, 64, v5")
        a(f"s_mul_i32 s{T+2}, s{S_BLK}, {PBS}")
        a("v_cndmask_b32 v8, v7, v6, vcc")
        for base in (WS_PBG, WS_PBL):
            a(f"s_add_u32 s{T+3}, s{T+2}, {base}")
            a(f"buffer_store_dwordx4 v[76:79], v6, {srd('WS')}, s{T+3} offen sc1")
            a(f"buffer_store_dwordx4 v[76:79], v6, {srd('WS')}, s{T+3} offen offset:2048 sc1")
            a(f"s_add_u32 s{T+3}, s{T+3}, 4096")
            a(f"buffer_store_dwordx4 v[76:79], v8, {srd('WS')}, s{T+3} offen sc1")
        a(f"s_lshl_b32 s{T+5}, s{S_S}, 4")
        a(f"s_add_u32 s{T+5}, s{T+5}, s{S_G}")
        a(f"s_mul_i32 s{T+5}, s{T+5}, 384")
        a(f"s_add_u32 s{T+5}, s{T+5}, {WS_OP}")
        a(f"s_mov_b32 s{T+6}, 49152")
        for i in range(6):
            a(f"v_add_u32 v8, {128*i}, v5")
            a("v_mul_u32_u24 v9, 2731, v8")
            a("v_lshrrev_b32 v9, 16, v9")
            a("v_mul_u32_u24 v70, 24, v9")
            a("v_sub_u32 v70, v8, v70")
            a(f"v_mul_lo_u32 v9, v9, s{T+6}")
            a("v_lshl_add_u32 v9, v70, 4, v9")
            a(f"buffer_store_dwordx4 v[76:79], v9, {srd('WS')}, s{T+5} offen sc1")
        a("v_lshlrev_b32 v8, 7, v5")
        a("v_cmp_gt_u32 vcc, 32, v5")
        a(f"s_lshl_b32 s{T+5}, s{S_G}, 3")
        a(f"s_add_u32 s{T+5}, s{T+5}, {WS_ML}")
        a("v_cndmask_b32 v8, v7, v8, vcc")
        a(f"s_cmp_eq_u32 s{S_S}, 0")
        a(f"s_cselect_b32 s{T+5}, s{T+5}, 0x7fffff00")
        a(f"buffer_store_dwordx2 v[76:77], v8, {srd('WS')}, s{T+5} offen sc1")

    def bset_front(self):
        a = self.a; T = S_T
        XV = 10; W0 = 20; ACC = 60
        a(f"v_mov_b32 v5, {self.L_FLAG}")
        for k in range(4): a(f"v_mov_b32 v{6+k}, 0")
        a("ds_write_b128 v5, v[6:9]")
        a("ds_write_b128 v5, v[6:9] offset:16")
        a("ds_write_b128 v5, v[6:9] offset:32")
        a("ds_write_b128 v5, v[6:9] offset:48")
        a("ds_write_b128 v5, v[6:9] offset:64")
        a("v_lshlrev_b32 v5, 1, v2")
        a(f"v_add_u32 v9, s{S_PM}, v5")
        nox = a.newlabel("nox")
        self.skip_if(f"s_cmp_lg_u32 s{S_W}, 6", nox)
        a("v_lshlrev_b32 v8, 4, v1")
        a(f"buffer_load_dwordx4 v[20:23], v8, {srd('X')}, 0 offen")
        a(f"buffer_load_dwordx4 v[24:27], v8, {srd('X')}, 0 offen offset:1024")
        a.label(nox)
        self.bset_ids()
        self.pv_lane_offsets()
        self.s_dma_prep()
        nox2 = a.newlabel("nox2")
        self.skip_if(f"s_cmp_lg_u32 s{S_W}, 6", nox2)
        a("s_waitcnt vmcnt(0)")
        a(f"ds_write_b128 v8, v[20:23] offset:{self.L_X}")
        a(f"ds_write_b128 v8, v[24:27] offset:{self.L_X+1024}")
        a.label(nox2)
        a("s_waitcnt lgkmcnt(0)")
        a("s_barrier")
        ldr = a.newlabel("p1ldr"); j = a.newlabel("p1j")
        self.skip_if(f"s_cmp_ge_u32 s{S_W}, 6", ldr)
        a(f"s_lshl_b32 s{T+5}, s{S_H}, 3")
        a(f"s_lshl_b32 s{T+6}, s{S_J4}, 1")
        a(f"s_add_u32 s{T+5}, s{T+5}, s{T+6}")
        a(f"s_add_u32 s{T+5}, s{T+5}, s{T}")
        a(f"s_mul_i32 s{T+5}, s{T+5}, 1536")
        a(f"s_lshl_b32 s{T+6}, s{T+1}, 9")
        a(f"s_add_u32 s{T+5}, s{T+5}, s{T+6}")
        a(f"s_add_u32 s{T+6}, s{T+5}, {WS_QPG}")
        a(f"s_add_u32 s{T+5}, s{T+5}, {WS_QPL}")
        a("v_lshlrev_b32 v5, 6, v3")
        a("v_lshl_add_u32 v5, v2, 3, v5")
        for k in range(8): a(f"v_mov_b32 v{ACC+k}, 0")
        for i in range(10):
            a(f"ds_read_u16 v{XV+i}, v9 offset:{self.L_X+16*i}")
        a("s_waitcnt lgkmcnt(0)")
        a(f"s_add_u32 s{S_EP}, s{S_EP}, 1")
        for i in range(10):
            a(f"s_waitcnt vmcnt({9-i})")
            if i == 9: self.stamp(13)
            a(f"v_lshlrev_b32 v68, 16, v{XV+i}")
            for k in range(4): a(f"v_dot2c_f32_bf16 v{ACC+2*k}, v{W0+4*i+k}, v{XV+i}")
            for k in range(4): a(f"v_dot2c_f32_bf16 v{ACC+2*k+1}, v{W0+4*i+k}, v68")
        self.treduce8(ACC, 68, 69)
        a(f"v_mov_b32 v{ACC+1}, s{S_EP}")
        if self.local:
            a(f"buffer_store_dwordx2 {vr(ACC,2)}, v5, {srd('WS')}, s{T+5} offen")
        a(f"buffer_store_dwordx2 {vr(ACC,2)}, v5, {srd('WS')}, s{T+6} offen sc1")
        self.stamp(1)
        a(f"s_branch {j}")
        a.label(ldr)
        if not self.exp_noclear: self.bset_clears()
        a("s_waitcnt lgkmcnt(0)")
        a(f"s_add_u32 s{S_EP}, s{S_EP}, 1")
        def cf_store():
            a(f"s_lshl_b32 s{T+13}, s2, 1")
            a(f"s_add_u32 s{T+13}, s{T+13}, s{S_W}")
            a(f"s_lshl_b32 s{T+13}, s{T+13}, 2")
            a(f"s_add_u32 s{T+13}, s{T+13}, {WS_CF - 24}")
            a(f"v_mov_b32 v5, s{S_EP}")
            a("v_mov_b32 v6, 0")
            a("s_mov_b64 exec, 1")
            a(f"buffer_store_dword v5, v6, {srd('WS')}, s{T+13} offen sc1")
            a("s_mov_b64 exec, -1")
        nocf = a.newlabel("nocf")
        if self.s_trig:
            notr = a.newlabel("notr")
            self.skip_if(f"s_cmp_lg_u32 s{S_W}, 7", notr)
            a(f"s_mul_i32 s{T+5}, s{S_H}, {8*1536}")
            a(f"s_add_u32 s{T+6}, s{T+5}, {WS_QPL}")
            a(f"s_add_u32 s{T+5}, s{T+5}, {WS_QPG}")
            a("v_and_b32 v5, 7, v1")
            a("v_mul_u32_u24 v5, 1536, v5")
            l = self.poll_begin(T+6, T+5)
            a(f"buffer_load_dwordx2 v[20:21], v5, {srd('WS')}, s{S_PB} offen sc1")
            a("s_waitcnt vmcnt(0)")
            a(f"v_xor_b32 v20, s{S_EP}, v21")
            self.poll_end(l, 20)
            if self.s_trig == 2:
                a(f"s_lshl_b32 s{T+5}, s{S_H}, 4")
                a(f"s_add_u32 s{T+5}, s{T+5}, {WS_QA}")
                a("v_mov_b32 v5, 0")
                l = self.poll_begin()
                a(f"buffer_load_dwordx4 v[20:23], v5, {srd('WS')}, s{T+5} offen sc1")
                a("s_waitcnt vmcnt(0)")
                a(f"v_xor_b32 v20, s{S_EP}, v23")
                self.poll_end(l, 20)
            a.label(notr)
        if self.sde:
            self.s_dma_early()
            cf_store()
            a.label(j)
        else:
            a.label(j)
            a("s_barrier")
            self.s_dma()
            self.skip_if(f"s_cmp_lt_u32 s{S_W}, 6", nocf)
            a("s_waitcnt vmcnt(12)")
            cf_store()
        a.label(nocf)
        self.stamp(2)

    def bset_s_phase(self):
        a = self.a; T = S_T
        QA = 20; AF = 84; ACC = 180
        a("v_and_b32 v6, 31, v1")
        a("v_lshrrev_b32 v7, 5, v1")
        a("v_and_b32 v8, 15, v6")
        a("v_xor_b32 v8, v8, v7")
        a("v_mul_u32_u24 v6, 1536, v6")
        a(f"v_add_u32 v6, {self.L_S}, v6")
        a(f"s_mul_i32 s{T+2}, s{S_W}, 24")
        for i in range(12):
            a(f"s_add_u32 s{T+3}, s{T+2}, {2*i}")
            a(f"v_xor_b32 v9, s{T+3}, v8")
            a(f"v_lshl_add_u32 v{226+i}, v9, 4, v6")
        a(f"s_lshl_b32 s{T}, s{S_W}, 14")
        a(f"s_add_u32 s{T}, s{T}, {WS_QA}")
        a("v_lshlrev_b32 v5, 4, v1")
        for g in range(4): a(f"s_add_u32 s{T+9+g}, s{T}, {4096*g}")
        def qa_first():
            for n in range(16):
                a(f"buffer_load_dwordx4 {vr(QA+4*n,4)}, v5, {srd('WS')}, s{T+9+n//4} offen offset:{(n%4)*1024} sc1")
        if self.qa_early:
            a("s_barrier")
            notS0 = a.newlabel("notS0")
            self.skip_if(f"s_cmp_ge_u32 s{S_W}, 4", notS0)
            qa_first()
            a("s_waitcnt vmcnt(16)")
            a.label(notS0)
            nw = a.newlabel("nw")
            self.skip_if(f"s_cmp_lt_u32 s{S_W}, 4", nw)
            a("s_waitcnt vmcnt(0)")
            a.label(nw)
        else:
            a("s_waitcnt vmcnt(0)")
        a("s_barrier")
        self.stamp(3)
        notS = a.newlabel("notS"); j4 = a.newlabel("j4")
        self.skip_if(f"s_cmp_ge_u32 s{S_W}, 4", notS)
        if not self.qa_early and not self.qa_order: qa_first()
        for i in range(12):
            a(f"ds_read_b128 {vr(AF+4*i,4)}, v{226+i}")
            a(f"ds_read_b128 {vr(AF+48+4*i,4)}, v{226+i} offset:49152")
            if i == 5: a("s_waitcnt lgkmcnt(0)")
        a("s_waitcnt lgkmcnt(0)")
        a("s_barrier")
        self.stamp(21)
        if self.qa_order:
            qa_first()
            if self.qa_order == 2: self.lds_signal(64)
        a(f"s_lshl_b32 s{T+2}, s{S_W}, 13")
        a(f"s_add_u32 s{T+2}, s{T+2}, {self.L_RED}")
        a(f"v_add_u32 v10, s{T+2}, v5")
        a(f"s_lshl_b32 s{T+2}, s{S_W}, 10")
        a(f"s_add_u32 s{T+2}, s{T+2}, {self.L_RED}")
        a(f"v_add_u32 v11, s{T+2}, v5")
        a("v_bfe_u32 v12, v1, 4, 1")
        a("v_lshlrev_b32 v12, 10, v12")
        a("v_and_b32 v9, 15, v1")
        a("v_lshl_add_u32 v12, v9, 4, v12")
        a("v_lshrrev_b32 v9, 5, v1")
        a("v_lshl_add_u32 v12, v9, 3, v12")
        a("v_and_b32 v13, 31, v1")
        a("v_lshlrev_b32 v13, 2, v13")
        a("v_mov_b32 v9, 0x7fffffff")
        a("v_cmp_gt_u32 vcc, 32, v1")
        a(f"s_mul_i32 s{T+4}, s{S_BLK}, {PBS}")
        a("v_cndmask_b32 v13, v9, v13, vcc")
        a(f"s_lshl_b32 s{T+3}, s{S_W}, 8")
        a(f"s_add_u32 s{T+5}, s{T+4}, s{T+3}")
        a(f"s_lshl_b32 s{T+3}, s{S_W}, 7")
        a(f"s_add_u32 s{T+6}, s{T+4}, s{T+3}")
        a(f"s_add_u32 s{T+6}, s{T+6}, 2048")
        def qa_issue(g):
            for k in range(4):
                n = 4*g + k
                a(f"buffer_load_dwordx4 {vr(QA+4*n,4)}, v5, {srd('WS')}, s{T+9+g} offen offset:{k*1024} sc1")
        def qa_check(g):
            a(f"v_xor_b32 v6, s{S_EP}, v{QA+16*g+3}")
            for k in range(1, 4):
                a(f"v_xor_b32 v7, s{S_EP}, v{QA+16*g+4*k+3}")
                a("v_or_b32 v6, v6, v7")
            a("v_cmp_ne_u32 vcc, 0, v6")
        self.gpoll(4, qa_issue, qa_check, first_issued=True, masks=[24,26,28,30])
        self.stamp(4)
        self.stamp_val(16, S_CNT)
        for sg in range(4):
            for f in range(3): a(f"v_mov_b32 v{QA+(sg*4+f)*4+3}, v{QA+(sg*4+3)*4+f}")
        a("s_nop 0")
        for i in range(12):
            sg, f = i // 3, i % 3
            B = QA + (sg*4+f)*4
            for kb in range(2):
                c = "0" if i == 0 else vr(ACC+16*kb, 16)
                a(f"v_mfma_f32_32x32x16_bf16 {vr(ACC+16*kb,16)}, {vr(AF+48*kb+4*i,4)}, {vr(B,4)}, {c}")
        a("s_nop 3")
        a("s_nop 7")
        for q in range(4): a(f"ds_write_b128 v10, {vr(ACC+4*q,4)} offset:{q*1024}")
        a("s_nop 3")
        for q in range(4): a(f"ds_write_b128 v10, {vr(ACC+16+4*q,4)} offset:{(4+q)*1024}")
        a("s_waitcnt lgkmcnt(0)")
        self.stamp(8)
        self.lds_signal(16)
        self.lds_wait(16, 20)
        R = 20
        for src in range(4):
            for kb in range(2):
                a(f"ds_read_b128 {vr(R+(src*2+kb)*4,4)}, v11 offset:{src*8192+kb*4096}")
        a(f"s_mov_b32 s{T+3}, 0x{f32bits(192**-0.5*math.log2(math.e)):08x}")
        a("s_waitcnt lgkmcnt(4)")
        for k in range(8): a(f"v_add_f32 v{R+k}, v{R+k}, v{R+8+k}")
        a("s_waitcnt lgkmcnt(0)")
        reads = []
        if self.early_frags:
            self.lds_wait(32, 60)
            self.stamp(14)
            reads = self.pv_read_frags(self.L_S, defer=True)
        def v(ins):
            a(ins)
            if reads: a(reads.pop(0))
        for k in range(8): v(f"v_add_f32 v{R+16+k}, v{R+16+k}, v{R+24+k}")
        for k in range(8): v(f"v_add_f32 v{R+k}, v{R+k}, v{R+16+k}")
        for k in range(8): v(f"v_mul_f32 v{R+k}, s{T+3}, v{R+k}")
        for kb in range(2):
            v(f"v_max3_f32 v{R+8+kb}, v{R+kb*4}, v{R+kb*4+1}, v{R+kb*4+2}")
        for kb in range(2):
            v(f"v_max_f32 v{R+8+kb}, v{R+8+kb}, v{R+kb*4+3}")
        a(f"v_mov_b32 v{R+10}, v{R+8}")
        a(f"v_mov_b32 v{R+11}, v{R+9}")
        a("s_nop 1")
        a(f"v_permlane32_swap_b32 v{R+8}, v{R+10}")
        a(f"v_permlane32_swap_b32 v{R+9}, v{R+11}")
        a("s_nop 1")
        a(f"v_max_f32 v{R+8}, v{R+8}, v{R+10}")
        a(f"v_max_f32 v{R+9}, v{R+9}, v{R+11}")
        a(f"v_ceil_f32 v{R+8}, v{R+8}")
        a(f"v_ceil_f32 v{R+9}, v{R+9}")
        for kb in range(2):
            for r in range(4): v(f"v_sub_f32 v{R+kb*4+r}, v{R+kb*4+r}, v{R+8+kb}")
        for k in range(8): v(f"v_exp_f32 v{R+k}, v{R+k}")
        a(f"v_min_u32 v{R+8}, 0xfffffffe, v{R+8}")
        a(f"v_min_u32 v{R+9}, 0xfffffffe, v{R+9}")
        P = R + 12
        for kb in range(2):
            a(f"v_cvt_pk_bf16_f32 v{P+kb*2}, v{R+kb*4}, v{R+kb*4+1}")
            a(f"v_cvt_pk_bf16_f32 v{P+kb*2+1}, v{R+kb*4+2}, v{R+kb*4+3}")
        for k in range(4): a(f"v_and_b32 v{P+k}, 0x7fff7fff, v{P+k}")
        paths = ([(WS_PBL, "")] if self.local else []) + [(WS_PBG, " sc1")]
        for base, fl in paths:
            a(f"s_add_u32 s{T+7}, s{T+5}, {base}")
            a(f"s_add_u32 s{T+8}, s{T+6}, {base}")
            a(f"buffer_store_dwordx2 {vr(P,2)}, v12, {srd('WS')}, s{T+7} offen{fl}")
            a(f"buffer_store_dwordx2 {vr(P+2,2)}, v12, {srd('WS')}, s{T+7} offen offset:{PBS}{fl}")
            a(f"buffer_store_dword v{R+8}, v13, {srd('WS')}, s{T+8} offen{fl}")
            a(f"buffer_store_dword v{R+9}, v13, {srd('WS')}, s{T+8} offen offset:{PBS}{fl}")
        self.stamp(5)
        for r in reads: a(r)
        if not self.early_frags:
            self.lds_wait(32, 60)
            self.stamp(14)
            self.pv_read_frags(self.L_S)
        a(f"s_branch {j4}")
        a.label(notS)
        a("s_barrier")
        if self.qa_order == 2: self.lds_wait(64, 20)
        self.pv_dma(0, self.L_PA, 4, 4)
        self.pv_dma(1, self.L_S, 4, 4)
        self.stamp(20)
        a("s_waitcnt vmcnt(12)")
        self.lds_signal(0)
        self.lds_wait(0, 20)
        self.stamp(19)
        self.pv_read_frags(self.L_PA)
        a("s_waitcnt vmcnt(0)")
        self.lds_signal(32)
        nocf = a.newlabel("nocf")
        self.skip_if(f"s_cmp_lg_u32 s{S_W}, 4", nocf)
        self.cf_check(20)
        a(f"v_mov_b32 v6, {self.L_FLAG+48}")
        a("v_mov_b32 v7, 1")
        a("ds_write_b32 v6, v7")
        a.label(nocf)
        self.stamp(14)
        a.label(j4)

    def pv_read_frags(self, base, defer=False):
        a = self.a; T = S_T + 8; AF = 84
        a("v_lshrrev_b32 v14, 4, v1")
        a("v_and_b32 v15, 15, v1")
        a("v_lshrrev_b32 v16, 2, v15")
        a("v_lshl_add_u32 v16, v14, 3, v16")
        a("v_mul_u32_u24 v16, 192, v16")
        a("v_and_b32 v15, 3, v15")
        a("v_lshl_add_u32 v16, v15, 3, v16")
        a(f"s_lshr_b32 s9, s{S_W}, 1")
        a("s_and_b32 s9, s9, 1")
        a("s_mul_i32 s9, s9, 96")
        a(f"s_add_u32 s9, s9, {base}")
        a("v_add_u32 v16, s9, v16")
        reads = []
        for bb in range(8):
            for ct in range(3):
                r = AF + (bb*3+ct)*4; off = bb*6144 + ct*32
                reads.append(f"ds_read_b64_tr_b16 {vr(r,2)}, v16 offset:{off}")
                reads.append(f"ds_read_b64_tr_b16 {vr(r+2,2)}, v16 offset:{off+768}")
        if defer: return reads
        for n, r in enumerate(reads):
            a(r)
            if n % 12 == 11: a("s_waitcnt lgkmcnt(6)")

    def bset_pv_phase(self):
        a = self.a; T = S_T
        AF = 84; P = 20; MI = 52; DL = 60; ACC = 180; LA = 192; ON = 196
        a(f"s_cmp_lt_u32 s{S_W}, 4")
        a(f"s_cselect_b32 s{T}, 8, 0")
        a(f"s_lshl_b32 s{T+1}, s{S_G}, 4")
        a(f"s_add_u32 s{T+1}, s{T+1}, s{T}")
        a(f"s_and_b32 s{T+2}, s{S_W}, 1")
        a(f"s_mul_i32 s{T+3}, s{T+1}, {PBS}")
        a(f"s_lshl_b32 s{T+4}, s{T+2}, 10")
        a(f"s_add_u32 s{T+3}, s{T+3}, s{T+4}")
        a(f"s_add_u32 s{T+4}, s{T+3}, {WS_PBG}")
        a(f"s_add_u32 s{T+3}, s{T+3}, {WS_PBL}")
        a("v_lshlrev_b32 v5, 4, v1")
        a("v_and_b32 v6, 15, v1")
        a("v_lshlrev_b32 v6, 2, v6")
        a("v_lshrrev_b32 v7, 4, v1")
        a("v_lshl_add_u32 v6, v7, 7, v6")
        a(f"s_mul_i32 s{T+5}, s{T+2}, 960")
        a(f"s_sub_u32 s{T+5}, 2048, s{T+5}")
        a(f"v_add_u32 v6, s{T+5}, v6")
        for k in range(4): a(f"v_mov_b32 v{ON+k}, 0x3f803f80")
        a("v_and_b32 v14, 15, v1")
        a(f"s_mov_b32 s{T+5}, 49152")
        a(f"v_mul_lo_u32 v15, v14, s{T+5}")
        a("v_lshl_add_u32 v15, v7, 4, v15")
        a(f"s_mul_i32 s{T+5}, s{T+2}, {16*49152}")
        a(f"s_lshl_b32 s{T+6}, s{S_S}, 4")
        a(f"s_add_u32 s{T+6}, s{T+6}, s{S_G}")
        a(f"s_mul_i32 s{T+6}, s{T+6}, 384")
        a(f"s_add_u32 s{T+5}, s{T+5}, s{T+6}")
        a(f"s_lshr_b32 s{T+6}, s{S_W}, 1")
        a(f"s_and_b32 s{T+6}, s{T+6}, 1")
        a(f"s_mul_i32 s{T+7}, s{T+6}, 192")
        a(f"s_add_u32 s{T+5}, s{T+5}, s{T+7}")
        a(f"s_add_u32 s{T+5}, s{T+5}, {WS_OP}")
        a("v_lshlrev_b32 v14, 7, v14")
        a("v_mov_b32 v16, 0x7fffffff")
        a("v_cmp_gt_u32 vcc, 16, v1")
        a(f"s_lshl_b32 s{T+8}, s{T+2}, 11")
        a(f"s_lshl_b32 s{T+7}, s{S_G}, 3")
        a(f"s_add_u32 s{T+8}, s{T+8}, s{T+7}")
        a(f"s_add_u32 s{T+8}, s{T+8}, {WS_ML}")
        a("v_cndmask_b32 v14, v16, v14, vcc")
        a(f"s_or_b32 s{T+7}, s{T+6}, s{S_S}")
        a(f"s_cmp_eq_u32 s{T+7}, 0")
        a(f"s_cselect_b32 s{T+8}, s{T+8}, 0x7fffff00")
        a(f"s_and_b32 s{T+9}, s{S_W}, 3")
        a(f"s_lshl_b32 s{T+9}, s{T+9}, 12")
        a(f"s_add_u32 s{T+9}, s{T+9}, {self.L_PR}")
        a(f"v_add_u32 v17, s{T+9}, v5")
        def p_pre():
            if self.local:
                a(f"s_and_b32 s9, s{S_CNT}, {self.lperiod-1}")
                a(f"s_cmp_eq_u32 s9, {self.lperiod-1}")
                a(f"s_cselect_b32 s{S_PB}, s{T+4}, s{T+3}")
            else:
                a(f"s_mov_b32 s{S_PB}, s{T+4}")
        def p_issue(bb):
            a(f"s_add_u32 s9, s{S_PB}, {bb*PBS}")
            a(f"buffer_load_dwordx4 {vr(P+4*bb,4)}, v5, {srd('WS')}, s9 offen sc1")
            a(f"buffer_load_dword v{MI+bb}, v6, {srd('WS')}, s9 offen sc1")
        def p_check(bb):
            a(f"v_or3_b32 v7, v{P+4*bb}, v{P+4*bb+1}, v{P+4*bb+2}")
            a(f"v_or_b32 v7, v7, v{P+4*bb+3}")
            a("v_and_b32 v7, 0x80008000, v7")
            a(f"v_cmp_eq_u32 vcc, -1, v{MI+bb}")
            a("s_nop 1")
            a("v_cndmask_b32 v8, 0, 1, vcc")
            a("v_or_b32 v7, v7, v8")
            a("v_cmp_ne_u32 vcc, 0, v7")
        a(f"v_mov_b32 v7, {self.L_FLAG+48}")
        l = self.poll_begin()
        a("ds_read_b32 v8, v7")
        a("s_waitcnt lgkmcnt(0)")
        a("v_xor_b32 v8, 1, v8")
        self.poll_end(l, 8)
        self.stamp(15)
        self.gpoll(8, p_issue, p_check, pre=p_pre, masks=[24,26,28,30,32,34,36,38])
        self.stamp(6)
        self.stamp_val(17, S_CNT)
        a(f"v_max3_f32 v9, v{MI}, v{MI+1}, v{MI+2}")
        a(f"v_max3_f32 v9, v9, v{MI+3}, v{MI+4}")
        a(f"v_max3_f32 v9, v9, v{MI+5}, v{MI+6}")
        a(f"v_max_f32 v9, v9, v{MI+7}")
        a("v_mov_b32 v10, v9")
        a("s_nop 1")
        a("v_permlane16_swap_b32 v9, v10")
        a("s_nop 1")
        a("v_max_f32 v9, v9, v10")
        a("v_mov_b32 v10, v9")
        a("s_nop 1")
        a("v_permlane32_swap_b32 v9, v10")
        a("s_nop 1")
        a("v_max_f32 v9, v9, v10")
        a(f"s_mov_b32 s{T+10}, 0x437f0000")
        a(f"s_mov_b32 s{T+11}, 0x00800080")
        for bb in range(8): a(f"v_sub_f32 v{DL+bb}, v9, v{MI+bb}")
        for bb in range(8): a(f"v_min_f32 v{DL+bb}, s{T+10}, v{DL+bb}")
        for bb in range(8): a(f"v_cvt_u32_f32 v{DL+bb}, v{DL+bb}")
        for bb in range(8): a(f"v_mul_u32_u24 v{DL+bb}, s{T+11}, v{DL+bb}")
        for k in range(4): a(f"v_pk_sub_u16 v{P+k}, v{P+k}, v{DL} clamp")
        for bb in range(8):
            if bb < 7:
                for k in range(4): a(f"v_pk_sub_u16 v{P+4*(bb+1)+k}, v{P+4*(bb+1)+k}, v{DL+bb+1} clamp")
            else:
                a("s_nop 1")
            for ct in range(3):
                c = "0" if bb == 0 else vr(ACC+4*ct, 4)
                a(f"v_mfma_f32_16x16x32_bf16 {vr(ACC+4*ct,4)}, {vr(AF+(bb*3+ct)*4,4)}, {vr(P+4*bb,4)}, {c}")
            c = "0" if bb == 0 else vr(LA, 4)
            a(f"v_mfma_f32_16x16x32_bf16 {vr(LA,4)}, {vr(ON,4)}, {vr(P+4*bb,4)}, {c}")
        a("s_nop 7")
        self.stamp(11)
        kp1 = a.newlabel("kp1")
        self.skip_if(f"s_cmp_lt_u32 s{S_W}, 4", kp1)
        a(f"v_mov_b32 v{LA+1}, v9")
        for ct in range(3): a(f"ds_write_b128 v17, {vr(ACC+4*ct,4)} offset:{ct*1024}")
        a(f"ds_write_b128 v17, {vr(LA,4)} offset:3072")
        a("s_waitcnt lgkmcnt(0)")
        a.label(kp1)
        a("s_barrier")
        self.stamp(12)
        fin = a.newlabel("pvfin")
        self.skip_if(f"s_cmp_ge_u32 s{S_W}, 4", fin)
        O = 20
        for k in range(4): a(f"ds_read_b128 {vr(O+4*k,4)}, v17 offset:{k*1024}")
        a("s_waitcnt lgkmcnt(0)")
        a(f"v_max_f32 v10, v9, v{O+13}")
        a("v_sub_f32 v11, v9, v10")
        a(f"v_sub_f32 v12, v{O+13}, v10")
        a("v_exp_f32 v11, v11")
        a("v_exp_f32 v12, v12")
        a("s_nop 0")
        for k in range(12): a(f"v_mul_f32 v{ACC+k}, v{ACC+k}, v11")
        for k in range(12): a(f"v_fmac_f32 v{ACC+k}, v{O+k}, v12")
        for k in range(12): a(f"v_min_u32 v{ACC+k}, 0xfffffffe, v{ACC+k}")
        if self.exp_linear:
            a(f"s_lshl_b32 s{T+5}, s{S_G}, 3")
            a(f"s_add_u32 s{T+5}, s{T+5}, s{S_S}")
            a(f"s_lshl_b32 s{T+5}, s{T+5}, 2")
            a(f"s_add_u32 s{T+5}, s{T+5}, s{S_W}")
            a(f"s_mul_i32 s{T+5}, s{T+5}, 3072")
            a(f"s_add_u32 s{T+5}, s{T+5}, {WS_OP}")
            for ct in range(3):
                a(f"buffer_store_dwordx4 {vr(ACC+4*ct,4)}, v5, {srd('WS')}, s{T+5} offen offset:{ct*1024} sc1")
        else:
          for ct in range(3):
            a(f"buffer_store_dwordx4 {vr(ACC+4*ct,4)}, v15, {srd('WS')}, s{T+5} offen offset:{ct*64} sc1")
        a(f"v_mul_f32 v{LA}, v{LA}, v11")
        a(f"v_fmac_f32 v{LA}, v{O+12}, v12")
        a(f"v_min_u32 v11, 0xfffffffe, v{LA}")
        a("v_min_u32 v10, 0xfffffffe, v10")
        a(f"buffer_store_dwordx2 v[10:11], v14, {srd('WS')}, s{T+8} offen sc1")
        a.label(fin)
        self.stamp(7)

    def bset_final(self):
        a = self.a; T = S_T
        self.skip_if(f"s_cmp_ge_u32 s{S_LB}, 5", "L_bend")
        self.skip_if(f"s_cmp_lg_u32 s{S_W}, 0", "L_bend")
        a("v_lshlrev_b32 v5, 2, v1")
        for i in range(5):
            a(f"buffer_load_dword v{20+i}, v5, {srd('X')}, 0 offen offset:{256*i}")
            a(f"buffer_load_dword v{25+i}, v5, {srd('GW')}, 0 offen offset:{256*i}")
        a("v_mov_b32 v30, 0")
        a(f"s_mul_i32 s{T}, s{S_X}, 5")
        a(f"s_add_u32 s{T}, s{T}, s{S_LB}")
        a(f"s_lshl_b32 s{T+1}, s{T}, 6")
        a(f"s_add_u32 s{T+1}, s{T+1}, {WS_OUTP}")
        a("v_lshrrev_b32 v6, 2, v1")
        a("v_mul_u32_u24 v6, 2560, v6")
        a("v_and_b32 v7, 3, v1")
        a("v_lshl_add_u32 v6, v7, 4, v6")
        a("v_lshlrev_b32 v8, 2, v7")
        a("v_bfe_u32 v9, v1, 5, 1")
        a("v_lshl_add_u32 v8, v9, 1, v8")
        a("v_bfe_u32 v9, v1, 4, 1")
        a("v_add_u32 v8, v8, v9")
        a("v_lshlrev_b32 v11, 1, v8")
        a("v_and_b32 v9, 12, v1")
        a("v_mov_b32 v10, 0x7fffffff")
        a("v_cmp_eq_u32 vcc, 0, v9")
        a(f"s_lshl_b32 s{T+2}, s{T}, 5")
        a("v_cndmask_b32 v11, v10, v11, vcc")
        a("s_waitcnt vmcnt(0)")
        for i in range(5): a(f"v_dot2c_f32_bf16 v30, v{20+i}, v{25+i}")
        a("s_nop 2")
        for ctrl in ["quad_perm:[1,0,3,2]", "quad_perm:[2,3,0,1]", "row_half_mirror", "row_mirror"]:
            a(f"v_add_f32_dpp v30, v30, v30 {ctrl} row_mask:0xf bank_mask:0xf")
            a("s_nop 1")
        a("v_mov_b32 v31, v30")
        a("s_nop 1")
        a("v_permlane16_swap_b32 v30, v31")
        a("s_nop 1")
        a("v_add_f32 v30, v30, v31")
        a("v_mov_b32 v31, v30")
        a("s_nop 1")
        a("v_permlane32_swap_b32 v30, v31")
        a("s_nop 1")
        a("v_add_f32 v30, v30, v31")
        a(f"v_mul_f32 v30, 0x{f32bits(-math.log2(math.e)):08x}, v30")
        a("v_exp_f32 v30, v30")
        a("s_nop 0")
        a("v_add_f32 v30, 1.0, v30")
        a("v_rcp_f32 v30, v30")
        a("s_nop 0")
        a("v_sub_f32 v31, 1.0, v30")
        a("v_cmp_le_u32 vcc, 48, v1")
        a("s_nop 1")
        a("v_cndmask_b32 v30, v30, v31, vcc")
        O = 32
        for i in range(8): a(f"s_add_u32 s{T+3+i}, s{T+1}, {i*16*2560}")
        def f_issue(i):
            a(f"buffer_load_dwordx4 {vr(O+4*i,4)}, v6, {srd('WS')}, s{T+3+i} offen sc1")
        def f_check(i):
            a(f"v_max3_u32 v8, v{O+4*i}, v{O+4*i+1}, v{O+4*i+2}")
            a(f"v_max_u32 v8, v8, v{O+4*i+3}")
            a("v_cmp_eq_u32 vcc, -1, v8")
        self.gpoll(8, f_issue, f_check, masks=[24,26,28,30,32,34,36,38])
        self.stamp(9)
        self.stamp_val(18, S_CNT)
        for k in range(4):
            a(f"v_add_f32 v{O+k}, v{O+k}, v{O+4+k}")
            a(f"v_add_f32 v{O+8+k}, v{O+8+k}, v{O+12+k}")
            a(f"v_add_f32 v{O+16+k}, v{O+16+k}, v{O+20+k}")
            a(f"v_add_f32 v{O+24+k}, v{O+24+k}, v{O+28+k}")
        for k in range(4):
            a(f"v_add_f32 v{O+k}, v{O+k}, v{O+8+k}")
            a(f"v_add_f32 v{O+16+k}, v{O+16+k}, v{O+24+k}")
        for k in range(4): a(f"v_add_f32 v{O+k}, v{O+k}, v{O+16+k}")
        for k in range(4): a(f"v_mul_f32 v{O+k}, v{O+k}, v30")
        a("s_nop 1")
        a("v_permlane32_swap_b32 v32, v34")
        a("v_permlane32_swap_b32 v33, v35")
        a("s_nop 1")
        a("v_add_f32 v32, v32, v34")
        a("v_add_f32 v33, v33, v35")
        a("s_nop 1")
        a("v_permlane16_swap_b32 v32, v33")
        a("s_nop 1")
        a("v_add_f32 v32, v32, v33")
        a("s_nop 1")
        a("v_add_f32_dpp v32, v32, v32 row_ror:8 row_mask:0xf bank_mask:0xf")
        a("s_nop 1")
        a("v_add_f32_dpp v32, v32, v32 row_ror:4 row_mask:0xf bank_mask:0xf")
        a("s_nop 0")
        a("v_cvt_pk_bf16_f32 v32, v32, v32")
        a(f"buffer_store_short v32, v11, {srd('OUT')}, s{T+2} offen")
        noep = a.newlabel("noep")
        self.skip_if(f"s_cmp_lg_u32 s{T}, 0", noep)
        a(f"v_mov_b32 v6, s{S_EP}")
        a("v_mov_b32 v7, 0")
        a("s_mov_b64 exec, 1")
        a(f"buffer_store_dword v6, v7, {srd('WS')}, 0 offen sc1")
        a("s_mov_b64 exec, -1")
        a.label(noep)
        if self.dbl:
            a("s_waitcnt vmcnt(0)")
            a("s_memrealtime s[44:45]")
            a("s_waitcnt lgkmcnt(0)")
            a("s_sub_u32 s46, s44, s42")
            a(f"s_mul_i32 s46, s46, {self.dbl}")
            a("s_lshr_b32 s46, s46, 2")
            a("s_add_u32 s46, s46, s44")
            lp = a.newlabel("dbl")
            a.label(lp)
            a("s_memrealtime s[44:45]")
            a("s_waitcnt lgkmcnt(0)")
            a("s_sub_u32 s47, s44, s46")
            a("s_cmp_lt_i32 s47, 0")
            a(f"s_cbranch_scc1 {lp}")
        self.stamp(10)
        a.label("L_bend")

    def build(self):
        a = self.a
        self.prologue()
        self.bset_front()
        a("s_branch L_bs")
        a.label("L_aset")
        self.aset_front()
        a("s_branch L_aback")
        a.label("L_bs")
        self.bset_s_phase()
        self.bset_pv_phase()
        a("s_branch L_bfin")
        a.label("L_aback")
        self.aset_back()
        self.stamp_flush()
        a("s_branch L_exit")
        a.label("L_bfin")
        self.bset_final()
        self.stamp_flush()
        a.label("L_exit")
        a("s_endpgm")
        hdr = f"""; Hand-written (own generator script) persistent kernel: MLA decode with weight absorption + GLU + gated mix.
; @launch grid=(256,1,1) block=(512,1,1) lds=163840
.amdgcn_target "amdgcn-amd-amdhsa--gfx950"
.text
.globl {NAME}_kernel
.p2align 8
.type {NAME}_kernel,@function
{NAME}_kernel:
"""
        ftr = f""".section .rodata,"a"
.p2align 6
.amdhsa_kernel {NAME}_kernel
  .amdhsa_next_free_vgpr 256
  .amdhsa_next_free_sgpr 102
  .amdhsa_accum_offset 256
  .amdhsa_group_segment_fixed_size 0
  .amdhsa_kernarg_size 112
  .amdhsa_user_sgpr_count 2
  .amdhsa_user_sgpr_kernarg_segment_ptr 1
  .amdhsa_system_sgpr_workgroup_id_x 1
.end_amdhsa_kernel
"""
        return hdr + a.text() + ftr

if __name__ == "__main__":
    out = sys.argv[1] if len(sys.argv) > 1 else "k.s"
    kw = {}
    for arg in sys.argv[2:]:
        if arg == "--stamps": kw["stamps"] = True
        elif arg.startswith("--"):
            k, v = arg[2:].split("="); kw[k] = int(v)
    open(out, "w").write(Gen(**kw).build())
```

```python
import sys, math, struct

NAME = "gated_mix__compressed_kv_cla__glu_gated_glu__decode"

WS_EPOCH = 0
WS_CF    = 0x400
WS_QA    = 0x10000
WS_QPG   = 0x20000
WS_QPL   = 0x80000
WS_PBG   = 0x100000
WS_PBL   = 0x1A0000
WS_ML    = 0x240000
WS_OUTP  = 0x250000
WS_OP    = 0x2A0000
WS_ST    = 0x440000
WS_SIZE  = 0x480000
PBS = 2560

S_W, S_X, S_LI, S_H, S_J4, S_EP = 3, 4, 5, 6, 7, 8
S_LB, S_BLK, S_G, S_S = 10, 11, 12, 13
S_WSCF = 14
SRD = dict(X=16, CKV=20, WQ=24, WUK=28, WUV=32, WO=36, WG=44, WU=48, WD=52, GW=56, OUT=60, WS=64)
SRD_SIZE = dict(X=1280, CKV=12582912, WQ=7864320, WUK=9437184, WUV=9437184, WO=7864320,
                WG=1966080, WU=1966080, WD=1966080, GW=1280, OUT=1280, WS=WS_SIZE)
KARG = dict(X=0, CKV=8, WQ=16, WUK=24, WUV=32, WO=40, WG=56, WU=64, WD=72, GW=80, OUT=88, WS=104)
S_M8 = 72
S_T = 74
S_CNT = 96
S_PB = 97
S_PM = 15
S_STAMP = 98
POLL_LIMIT = 100000

class Asm:
    def __init__(self):
        self.L = []; self.uid = 0
    def __call__(self, s):
        for line in s.strip("\n").split("\n"):
            self.L.append("    " + line.strip())
    def label(self, n): self.L.append(n + ":")
    def newlabel(self, base):
        self.uid += 1
        return f"L_{base}_{self.uid}"
    def text(self):
        import re
        out = []
        for line in self.L:
            t = line.strip()
            if t.startswith("v_cndmask") and t.endswith("vcc"):
                st = 0; k = len(out) - 1; found = False
                while k >= 0 and st < 2:
                    p = out[k].strip()
                    if p.endswith(":"): break
                    if p.startswith("v_cmp") and "vcc" in p:
                        found = True; break
                    m = re.match(r"s_nop (\d+)", p)
                    st += int(m.group(1)) + 1 if m else 1
                    k -= 1
                if found and st < 2:
                    out.append(f"    s_nop {1 - st}")
            out.append(line)
        return "\n".join(out) + "\n"

def srd(n):
    b = SRD[n]; return f"s[{b}:{b+3}]"
def vr(b, n=1):
    return f"v{b}" if n == 1 else f"v[{b}:{b+n-1}]"
def f32bits(x):
    return struct.unpack("<I", struct.pack("<f", x))[0]

class Gen:
    def __init__(self, stamps=False, probe=-1, probew=0, dbl=0, dbgout=0, s_trig=0, wq_pf=0, sde=0, sde_win=24, perm=0, qa_order=0, early_frags=0, fin1=1, masked=1, qa_early=0, code_pf=17, tlb_warm=0, tlb_shift=21, nt_front=False, nt_ckv=False, nt_back=False, local=True, lperiod=8, a_delay=1, qa_ack=0, exp_linear=0, a_win=63, s_win=63, pv_win=63, mlpoll=2, exp_nobulk=0, a_probe=0, s_probe=0, exp_noclear=0, exp_nowuk=0):
        self.a = Asm()
        self.stamps = stamps
        self.NTF = " nt" if nt_front else ""
        self.NTC = " nt" if nt_ckv else ""
        self.NTB = " nt" if nt_back else ""
        self.local = local
        self.a_delay = a_delay
        self.qa_ack = qa_ack
        self.code_pf = code_pf
        self.probe = probe; self.probew = probew
        self.dbl = dbl
        self.dbgout = dbgout
        self.selB = [0, 24, 25, 26, 3, 21, 16, 17]; self.selA = [23, 1, 16, 4, 17, 6, 25, 26]
        self.s_trig = s_trig
        self.wq_pf = wq_pf
        self.sde = sde; self.sde_win = sde_win
        self.perm = perm
        self.qa_order = qa_order
        self.early_frags = early_frags; self.fin1 = fin1
        self.masked = masked; self.qa_early = qa_early
        self.tlb_warm = tlb_warm; self.tlb_shift = tlb_shift
        self.exp_noclear = exp_noclear; self.exp_nowuk = exp_nowuk
        self.a_probe = a_probe; self.s_probe = s_probe
        self.exp_nobulk = exp_nobulk
        self.a_win = a_win; self.s_win = s_win; self.pv_win = pv_win; self.mlpoll = mlpoll
        self.exp_linear = exp_linear
        self.lperiod = lperiod
        self.L_Q = 0; self.L_QS = 512; self.L_F = 3072; self.L_FLAG = 2048; self.L_X = 4096
        self.L_S = 8192; self.L_PA = 106496; self.L_RED = 57344; self.L_PR = 90112
        self.L_O = 4096; self.L_C = 12288; self.L_CB = 14336; self.L_R = 16384
        self.PVO = 212

    def stamp(self, idx):
        if not self.stamps: return
        a = self.a
        a(f"s_memrealtime s[{S_STAMP}:{S_STAMP+1}]")
        a("s_waitcnt lgkmcnt(0)")
        a(f"v_writelane_b32 v255, s{S_STAMP}, {idx}")
    def stamp_val(self, idx, sreg):
        if not self.stamps: return
        self.a(f"s_add_u32 s9, s{sreg}, 1")
        self.a(f"v_writelane_b32 v255, s9, {idx}")
    def stamp_flush(self):
        if not self.stamps: return
        a = self.a
        if self.probe >= 0:
            sk = a.newlabel("prb"); lp = a.newlabel("prl")
            a("s_lshl_b32 s9, s2, 3")
            a(f"s_add_u32 s9, s9, s{S_W}")
            self.skip_if(f"s_cmp_lg_u32 s9, {self.probew*8}", sk)
            a(f"v_readlane_b32 s46, v255, {self.probe}")
            a("s_nop 3")
            a("s_add_u32 s46, s46, 3000")
            a.label(lp)
            a("s_memrealtime s[44:45]")
            a("s_waitcnt lgkmcnt(0)")
            a("s_sub_u32 s47, s44, s46")
            a("s_cmp_lt_i32 s47, 0")
            a(f"s_cbranch_scc1 {lp}")
            a.label(sk)
            return
        if self.dbgout:
            sk = a.newlabel("dbo")
            a(f"s_and_b32 s9, s2, 127")
            a(f"s_lshl_b32 s9, s9, 3")
            a(f"s_add_u32 s9, s9, s{S_W}")
            self.skip_if(f"s_cmp_lg_u32 s9, {(self.dbgout-1)*8}", sk)
            a("s_load_dwordx2 s[40:41], s[0:1], 96")
            a("s_mov_b32 s42, 256")
            a("s_mov_b32 s43, 0x00020000")
            a("s_memtime s[46:47]")
            a("s_memrealtime s[48:49]")
            a("s_waitcnt lgkmcnt(0)")
            a("v_writelane_b32 v255, s46, 25")
            a("v_writelane_b32 v255, s48, 26")
            selB = self.selB; selA = self.selA
            a("s_cmp_lt_u32 s2, 128")
            a("s_cselect_b32 s9, 0, 32")
            for k in range(8):
                a(f"v_readlane_b32 s44, v255, {selB[k]}")
                a(f"v_readlane_b32 s45, v255, {selA[k]}")
                a("s_cmp_lt_u32 s2, 128")
                a("s_cselect_b32 s44, s44, s45")
                a(f"v_writelane_b32 v252, s44, {k}")
            a("v_lshlrev_b32 v253, 2, v1")
            a("v_add_u32 v253, s9, v253")
            a("s_waitcnt lgkmcnt(0)")
            a("s_mov_b64 exec, 0xff")
            a("buffer_store_dword v252, v253, s[40:43], 0 offen")
            a("s_mov_b64 exec, -1")
            a.label(sk)
            return
        a(f"s_lshl_b32 s{S_T+20}, s2, 3")
        a(f"s_add_u32 s{S_T+20}, s{S_T+20}, s{S_W}")
        a(f"s_lshl_b32 s{S_T+20}, s{S_T+20}, 7")
        a(f"s_add_u32 s{S_T+20}, s{S_T+20}, {WS_ST}")
        a("v_lshlrev_b32 v252, 2, v1")
        a("s_mov_b32 exec_lo, -1")
        a("s_mov_b32 exec_hi, 0")
        a(f"buffer_store_dword v255, v252, {srd('WS')}, s{S_T+20} offen")
        a("s_mov_b64 exec, -1")

    def treduce8(self, acc, t0, t1):
        a = self.a
        a("s_nop 2")
        for k in range(4): a(f"v_permlane32_swap_b32 v{acc+k}, v{acc+k+4}")
        a("s_nop 1")
        for k in range(4): a(f"v_add_f32 v{acc+k}, v{acc+k}, v{acc+k+4}")
        a("s_nop 1")
        for k in range(2): a(f"v_permlane16_swap_b32 v{acc+k}, v{acc+k+2}")
        a("s_nop 1")
        for k in range(2): a(f"v_add_f32 v{acc+k}, v{acc+k}, v{acc+k+2}")
        a("s_nop 0")
        a(f"v_cndmask_b32 v{t0}, v{acc}, v{acc+1}, s[{S_M8}:{S_M8+1}]")
        a(f"v_cndmask_b32 v{t1}, v{acc+1}, v{acc}, s[{S_M8}:{S_M8+1}]")
        a("s_nop 1")
        a(f"v_add_f32_dpp v{acc}, v{t1}, v{t0} row_ror:8 row_mask:0xf bank_mask:0xf")

    def skip_if(self, cmp, label):
        self.a(cmp); self.a(f"s_cbranch_scc1 {label}")

    def poll_begin(self, lbase=None, gbase=None):
        a = self.a
        l = a.newlabel("poll")
        a(f"s_mov_b32 s{S_CNT}, 0")
        a.label(l)
        if lbase is not None:
            if self.local:
                a(f"s_and_b32 s9, s{S_CNT}, {self.lperiod-1}")
                a(f"s_cmp_eq_u32 s9, {self.lperiod-1}")
                a(f"s_cselect_b32 s{S_PB}, s{gbase}, s{lbase}")
            else:
                a(f"s_mov_b32 s{S_PB}, s{gbase}")
        return l
    def poll_end(self, l, vbad):
        a = self.a
        ok = a.newlabel("ok")
        a(f"v_cmp_ne_u32 vcc, 0, v{vbad}")
        a(f"s_cbranch_vccz {ok}")
        a(f"s_add_u32 s{S_CNT}, s{S_CNT}, 1")
        a(f"s_cmp_lt_u32 s{S_CNT}, {POLL_LIMIT}")
        a(f"s_cbranch_scc1 {l}")
        a.label(ok)

    def gpoll(self, n, issue, check, pre=None, first_issued=False, masks=None):
        a = self.a
        top = a.newlabel("gp"); done = a.newlabel("gpd")
        if not self.masked: masks = None
        a(f"s_mov_b32 s{S_PM}, {(1<<n)-1}")
        a(f"s_mov_b32 s{S_CNT}, 0")
        if masks:
            for m in masks: a(f"s_mov_b64 s[{m}:{m+1}], -1")
        if first_issued:
            chk = a.newlabel("gpc")
            a(f"s_branch {chk}")
        a.label(top)
        if pre: pre()
        for i in range(n):
            sk = a.newlabel("gi")
            a(f"s_bitcmp0_b32 s{S_PM}, {i}")
            a(f"s_cbranch_scc1 {sk}")
            if masks: a(f"s_mov_b64 exec, s[{masks[i]}:{masks[i]+1}]")
            issue(i)
            a.label(sk)
        if masks: a("s_mov_b64 exec, -1")
        if first_issued: a.label(chk)
        a("s_waitcnt vmcnt(0)")
        for i in range(n):
            sk = a.newlabel("gc")
            a(f"s_bitcmp0_b32 s{S_PM}, {i}")
            a(f"s_cbranch_scc1 {sk}")
            check(i)
            if masks: a(f"s_mov_b64 s[{masks[i]}:{masks[i]+1}], vcc")
            a(f"s_cbranch_vccnz {sk}")
            a(f"s_bitset0_b32 s{S_PM}, {i}")
            a.label(sk)
        a(f"s_cmp_eq_u32 s{S_PM}, 0")
        a(f"s_cbranch_scc1 {done}")
        a(f"s_add_u32 s{S_CNT}, s{S_CNT}, 1")
        a(f"s_cmp_lt_u32 s{S_CNT}, {POLL_LIMIT}")
        a(f"s_cbranch_scc1 {top}")
        a.label(done)

    def lds_signal(self, base, widx_mask=3):
        a = self.a
        a(f"s_and_b32 s9, s{S_W}, {widx_mask}")
        a("s_lshl_b32 s9, s9, 2")
        a(f"s_add_u32 s9, s9, {self.L_FLAG+base}")
        a("v_mov_b32 v6, s9")
        a("v_mov_b32 v7, 1")
        a("ds_write_b32 v6, v7")
    def lds_wait(self, base, vt):
        a = self.a
        a(f"v_mov_b32 v6, {self.L_FLAG+base}")
        l = self.poll_begin()
        a(f"ds_read_b128 {vr(vt,4)}, v6")
        a("s_waitcnt lgkmcnt(0)")
        a(f"v_and_b32 v{vt}, v{vt}, v{vt+1}")
        a(f"v_and_b32 v{vt+2}, v{vt+2}, v{vt+3}")
        a(f"v_and_b32 v{vt}, v{vt}, v{vt+2}")
        a(f"v_xor_b32 v{vt}, 1, v{vt}")
        self.poll_end(l, vt)

    def cf_check(self, vb):
        a = self.a
        a(f"v_lshlrev_b32 v{vb+4}, 4, v1")
        l = self.poll_begin()
        a(f"buffer_load_dwordx4 {vr(vb,4)}, v{vb+4}, {srd('WS')}, s{S_WSCF} offen sc1")
        a("s_waitcnt vmcnt(0)")
        for k in range(4): a(f"v_xor_b32 v{vb+k}, s{S_EP}, v{vb+k}")
        a(f"v_or3_b32 v{vb}, v{vb}, v{vb+1}, v{vb+2}")
        a(f"v_or_b32 v{vb}, v{vb}, v{vb+3}")
        self.poll_end(l, vb)

    def mk_srd(self, n):
        a = self.a; b = SRD[n]
        if n != "WS":
            src = 76 + KARG[n] // 4
            a(f"s_mov_b64 s[{b}:{b+1}], s[{src}:{src+1}]")
        a(f"s_mov_b32 s{b+2}, {SRD_SIZE[n]}")
        a(f"s_mov_b32 s{b+3}, 0x00020000")

    def prologue(self):
        a = self.a; T = S_T
        if self.stamps or self.dbl: a("s_memrealtime s[42:43]")
        a("s_cmp_ge_u32 s2, 256")
        a("s_cbranch_scc1 L_exit")
        if self.perm == 1:
            a("s_lshr_b32 s3, s2, 3")
            a("s_and_b32 s2, s2, 7")
            a("s_lshl_b32 s2, s2, 5")
            a("s_or_b32 s2, s2, s3")
        elif self.perm:
            a(f"s_mul_i32 s2, s2, {self.perm}")
            a("s_and_b32 s2, s2, 255")
        a("s_load_dwordx16 s[76:91], s[0:1], 0")
        a("s_load_dwordx8 s[92:99], s[0:1], 64")
        a("s_load_dwordx2 s[64:65], s[0:1], 104")
        a("v_lshrrev_b32 v2, 6, v0")
        a("v_and_b32 v1, 63, v0")
        a(f"v_readfirstlane_b32 s{S_W}, v2")
        a(f"s_lshr_b32 s{S_LI}, s2, 3")
        a(f"s_and_b32 s{S_LI}, s{S_LI}, 15")
        if self.code_pf:
            npf = a.newlabel("npf"); lp = a.newlabel("pfl")
            a(f"s_and_b32 s9, s{S_LI}, 7")
            a("s_lshl_b32 s9, s9, 3")
            a(f"s_add_u32 s9, s9, s{S_W}")
            self.skip_if("s_cmp_lg_u32 s9, 7", npf)
            a("s_getpc_b64 s[40:41]")
            a("v_lshlrev_b32 v252, 4, v1")
            a(f"s_mov_b32 s9, {self.code_pf}")
            a.label(lp)
            a("global_load_dwordx4 v[248:251], v252, s[40:41]")
            a("v_add_u32 v252, 1024, v252")
            a("s_sub_u32 s9, s9, 1")
            a("s_cmp_lg_u32 s9, 0")
            a(f"s_cbranch_scc1 {lp}")
            a.label(npf)
        a(f"s_and_b32 s{S_X}, s2, 7")
        a(f"s_and_b32 s9, s{S_LI}, 3")
        a(f"s_lshl_b32 s{S_H}, s{S_X}, 2")
        a(f"s_add_u32 s{S_H}, s{S_H}, s9")
        a(f"s_lshr_b32 s{S_J4}, s{S_LI}, 2")
        a("v_lshrrev_b32 v2, 3, v1")
        a("v_and_b32 v3, 7, v1")
        a("v_mul_u32_u24 v4, 12288, v2")
        a("v_lshl_add_u32 v4, v3, 4, v4")
        a("s_cmp_lt_u32 s2, 128")
        a("s_cbranch_scc0 L_apre")
        a(f"s_cmp_ge_u32 s{S_W}, 3")
        a("s_cselect_b32 s100, 1, 0")
        a("s_mul_i32 s101, s100, 3")
        a(f"s_sub_u32 s101, s{S_W}, s101")
        a(f"s_mul_i32 s44, s{S_J4}, 160")
        a("s_mul_i32 s45, s100, 80")
        a("s_add_u32 s44, s44, s45")
        a("s_lshl_b32 s46, s44, 1")
        a("s_mul_i32 s44, s44, 12288")
        a(f"s_mul_i32 s45, s{S_H}, 384")
        a("s_add_u32 s44, s44, s45")
        a("s_lshl_b32 s45, s101, 7")
        a("s_add_u32 s44, s44, s45")
        a(f"s_mov_b32 s{SRD['WQ']+2}, {SRD_SIZE['WQ']}")
        a(f"s_mov_b32 s{SRD['WQ']+3}, 0x00020000")
        a("s_waitcnt lgkmcnt(0)")
        a(f"s_mov_b64 s[{SRD['WQ']}:{SRD['WQ']+1}], s[80:81]")
        nl = a.newlabel("bnl")
        self.skip_if(f"s_cmp_ge_u32 s{S_W}, 6", nl)
        for i in range(10):
            a(f"buffer_load_dwordx4 {vr(20+4*i,4)}, v4, {srd('WQ')}, s44 offen{self.NTF}")
            if i < 9: a("s_add_u32 s44, s44, 98304")
        a.label(nl)
        a("s_branch L_pre2")
        a.label("L_apre")
        a(f"s_lshr_b32 s100, s{S_W}, 1")
        a(f"s_and_b32 s101, s{S_W}, 1")
        a(f"s_mul_i32 s44, s{S_J4}, 192")
        a("s_mul_i32 s45, s100, 48")
        a("s_add_u32 s44, s44, s45")
        a("s_lshl_b32 s45, s101, 3")
        a("s_add_u32 s44, s44, s45")
        a("s_mul_i32 s44, s44, 12288")
        a(f"s_mul_i32 s45, s{S_H}, 384")
        a("s_add_u32 s44, s44, s45")
        a(f"s_mov_b32 s{SRD['WUK']+2}, {SRD_SIZE['WUK']}")
        a(f"s_mov_b32 s{SRD['WUK']+3}, 0x00020000")
        a("s_waitcnt lgkmcnt(0)")
        a(f"s_mov_b64 s[{SRD['WUK']}:{SRD['WUK']+1}], s[82:83]")
        if self.wq_pf:
            a(f"s_mov_b64 s[{SRD['WQ']}:{SRD['WQ']+1}], s[80:81]")
            a(f"s_mov_b32 s{SRD['WQ']+2}, {SRD_SIZE['WQ']}")
            a(f"s_mov_b32 s{SRD['WQ']+3}, 0x00020000")
            a(f"s_mul_i32 s46, s{S_J4}, 160")
            a(f"s_lshl_b32 s47, s{S_W}, 3")
            a("s_add_u32 s46, s46, s47")
            if self.wq_pf in (1, 3): a("s_add_u32 s46, s46, 80")
            a("s_mul_i32 s46, s46, 12288")
            a("s_add_u32 s46, s46, s45")
            if self.wq_pf in (1, 3):
                for t in range(3):
                    a(f"buffer_load_dwordx4 v[100:103], v4, {srd('WQ')}, s46 offen offset:{t*128}")
                a(f"s_add_u32 s46, s46, {64*12288}")
                npf2 = a.newlabel("npf2")
                self.skip_if(f"s_cmp_ge_u32 s{S_W}, 2", npf2)
                for t in range(3):
                    a(f"buffer_load_dwordx4 v[100:103], v4, {srd('WQ')}, s46 offen offset:{t*128}")
                a.label(npf2)
            else:
                for rep in range(3):
                    if rep == 2:
                        npf2 = a.newlabel("npf2")
                        self.skip_if(f"s_cmp_ge_u32 s{S_W}, 4", npf2)
                    for t in range(3):
                        a(f"buffer_load_dwordx4 v[100:103], v4, {srd('WQ')}, s46 offen offset:{t*128}")
                    if rep < 2: a(f"s_add_u32 s46, s46, {64*12288}")
                a.label(npf2)
            if self.wq_pf == 3: a("s_waitcnt vmcnt(0)")
        for f in range(3):
            for t in range(3):
                a(f"buffer_load_dwordx4 {vr(20+(f*3+t)*4,4)}, v4, {srd('WUK')}, s44 offen offset:{t*128}{self.NTF}")
            if f < 2: a("s_add_u32 s44, s44, 196608")
        a.label("L_pre2")
        a(f"s_load_dword s{S_EP}, s[64:65], {WS_EPOCH}")
        a(f"s_mov_b32 s{T}, s100")
        a(f"s_mov_b32 s{T+1}, s101")
        a(f"s_mov_b32 s{S_PM}, s46")
        for n in SRD: self.mk_srd(n)
        if self.stamps:
            a("v_mov_b32 v255, 0")
            self.stamp(0)
            a("v_writelane_b32 v255, s42, 23")
            a("s_memtime s[42:43]")
            a("s_waitcnt lgkmcnt(0)")
            a("v_writelane_b32 v255, s42, 24")
        a(f"s_mov_b32 s{S_M8}, 0xff00ff00")
        a(f"s_mov_b32 s{S_M8+1}, 0xff00ff00")
        a(f"s_mov_b32 s{S_WSCF}, {WS_CF}")
        a("s_cmp_lt_u32 s2, 128")
        a("s_cbranch_scc0 L_aset")

    def aset_front(self):
        a = self.a; T = S_T
        W0 = 20; QF = 56; ACC = 68
        a(f"s_lshl_b32 s{T+10}, s{S_X}, 4")
        a(f"s_add_u32 s{T+10}, s{T+10}, s{S_LI}")
        a(f"s_mul_i32 s{T+10}, s{T+10}, 2560")
        a(f"s_add_u32 s{T+10}, s{T+10}, {WS_OUTP}")
        a("v_mov_b32 v76, -1\nv_mov_b32 v77, -1\nv_mov_b32 v78, -1\nv_mov_b32 v79, -1")
        a("v_lshlrev_b32 v80, 4, v0")
        a("v_mov_b32 v81, 0x7fffffff")
        a("v_cmp_gt_u32 vcc, 160, v0")
        a("s_nop 1")
        a("v_cndmask_b32 v80, v81, v80, vcc")
        a(f"buffer_store_dwordx4 v[76:79], v80, {srd('WS')}, s{T+10} offen sc1")
        a("v_lshlrev_b32 v5, 2, v1")
        a("v_mov_b32 v6, 0")
        a(f"ds_write_b32 v5, v6 offset:{self.L_CB}")
        a(f"ds_write_b32 v5, v6 offset:{self.L_CB+256}")
        a(f"s_mul_i32 s{T+5}, s{S_H}, {8*1536}")
        a(f"s_add_u32 s{T+6}, s{T+5}, {WS_QPL}")
        a(f"s_add_u32 s{T+5}, s{T+5}, {WS_QPG}")
        a("s_waitcnt vmcnt(0) lgkmcnt(0)")
        a(f"s_add_u32 s{S_EP}, s{S_EP}, 1")
        self.stamp(1)
        skip = a.newlabel("e1skip")
        self.skip_if(f"s_cmp_ge_u32 s{S_W}, 3", skip)
        a("v_lshlrev_b32 v5, 3, v0")
        G = 84
        l = self.poll_begin(T+6, T+5)
        for p in range(8):
            a(f"buffer_load_dwordx2 {vr(G+2*p,2)}, v5, {srd('WS')}, s{S_PB} offen offset:{(p%2)*1536} sc1")
            if p % 2 == 1 and p < 7: a(f"s_add_u32 s{S_PB}, s{S_PB}, 3072")
        a("s_waitcnt vmcnt(0)")
        a(f"v_xor_b32 v6, s{S_EP}, v{G+1}")
        for p in range(1, 8):
            a(f"v_xor_b32 v7, s{S_EP}, v{G+2*p+1}")
            a("v_or_b32 v6, v6, v7")
        self.poll_end(l, 6)
        self.stamp_val(16, S_CNT)
        for p in range(1, 8): a(f"v_add_f32 v{G}, v{G}, v{G+2*p}")
        a(f"v_cvt_pk_bf16_f32 v6, v{G}, v{G}")
        a("v_lshlrev_b32 v7, 1, v0")
        a(f"ds_write_b16 v7, v6 offset:{self.L_Q}")
        a("s_waitcnt lgkmcnt(0)")
        a.label(skip)
        a("v_lshlrev_b32 v5, 4, v3")
        a(f"s_lshl_b32 s{T+7}, s{S_W}, 6")
        a("v_lshlrev_b32 v10, 1, v2")
        a(f"v_add_u32 v10, s{T+7}, v10")
        a("v_lshlrev_b32 v6, 4, v1")
        a("v_mov_b32 v7, 4")
        a("v_cmp_eq_u32 vcc, 3, v1")
        a("v_mov_b32 v8, 12")
        a("v_mov_b32 v9, 16")
        a("v_cndmask_b32 v6, v6, v8, vcc")
        a("v_cndmask_b32 v7, v7, v9, vcc")
        a("v_and_b32 v6, 63, v6")
        a(f"v_add_u32 v11, s{T+7}, v6")
        a("v_add_u32 v12, v11, v7")
        a("v_add_u32 v13, v12, v7")
        a(f"s_lshl_b32 s{T+8}, s{S_J4}, 2")
        a(f"s_add_u32 s{T+8}, s{T+8}, s{T}")
        a(f"s_lshl_b32 s{T+8}, s{T+8}, 12")
        a(f"s_lshl_b32 s{T+9}, s{T+1}, 9")
        a(f"s_add_u32 s{T+8}, s{T+8}, s{T+9}")
        a(f"s_lshl_b32 s{T+9}, s{S_H}, 4")
        a(f"s_add_u32 s{T+8}, s{T+8}, s{T+9}")
        a(f"s_add_u32 s{T+8}, s{T+8}, {WS_QA}")
        a("v_lshlrev_b32 v14, 10, v1")
        a("v_mov_b32 v7, 0x7fffffff")
        a("v_cmp_gt_u32 vcc, 4, v1")
        a(f"v_mov_b32 v75, s{S_EP}")
        a("v_cndmask_b32 v14, v7, v14, vcc")
        for f in range(3): a(f"v_mov_b32 v{ACC+f}, 0")
        a("s_barrier")
        self.stamp(2)
        for t in range(3):
            a(f"ds_read_b128 {vr(QF+4*t,4)}, v5 offset:{self.L_Q + t*128}")
        for t in range(3):
            a(f"s_waitcnt lgkmcnt({2-t})")
            for k in range(4):
                for f in range(3):
                    a(f"v_dot2c_f32_bf16 v{ACC+f}, v{W0+(f*3+t)*4+k}, v{QF+4*t+k}")
        a("s_nop 2")
        for ctrl in ["quad_perm:[1,0,3,2]", "quad_perm:[2,3,0,1]", "row_half_mirror"]:
            for f in range(3):
                a(f"v_add_f32_dpp v{ACC+f}, v{ACC+f}, v{ACC+f} {ctrl} row_mask:0xf bank_mask:0xf")
        for f in range(3): a(f"v_cvt_pk_bf16_f32 v{ACC+f}, v{ACC+f}, v{ACC+f}")
        for f in range(3): a(f"ds_write_b16 v10, v{ACC+f} offset:{self.L_QS + f*16}")
        a("s_waitcnt lgkmcnt(0)")
        a(f"ds_read_b32 v72, v11 offset:{self.L_QS}")
        a(f"ds_read_b32 v73, v12 offset:{self.L_QS}")
        a(f"ds_read_b32 v74, v13 offset:{self.L_QS}")
        a("s_waitcnt lgkmcnt(0)")
        a(f"buffer_store_dwordx4 v[72:75], v14, {srd('WS')}, s{T+8} offen sc1")
        self.stamp(3)
        if self.qa_ack: a("s_waitcnt vmcnt(0)")
        a("s_barrier")

    def wo_lane_offsets(self):
        a = self.a
        a("v_mul_u32_u24 v6, 52429, v0")
        a("v_lshrrev_b32 v6, 22, v6")
        a("v_mul_u32_u24 v7, 80, v6")
        a("v_sub_u32 v7, v0, v7")
        a("v_mul_u32_u24 v5, 1280, v6")
        a("v_lshl_add_u32 v5, v7, 4, v5")
        a("v_mov_b32 v8, 0x7fffffff")
        a("v_cmp_gt_u32 vcc, 480, v0")
        a("s_nop 1")
        a("v_cndmask_b32 v5, v8, v5, vcc")

    def preperm(self, W0, npairs, t0):
        a = self.a
        a("s_mov_b32 s94, 0x05040100")
        a("s_mov_b32 s95, 0x07060302")
        for p in range(npairs):
            for k in range(4):
                r0 = W0 + 8*p + k; r1 = r0 + 4
                a(f"v_perm_b32 v{t0}, v{r1}, v{r0}, s94")
                a(f"v_perm_b32 v{r1}, v{r1}, v{r0}, s95")
                a(f"v_mov_b32 v{r0}, v{t0}")

    def gemv_pairs(self, W0, npairs, CO, ACC):
        a = self.a
        for p in range(npairs):
            for k in range(4):
                a(f"v_dot2c_f32_bf16 v{ACC+2*k}, v{W0+8*p+k}, v{CO+p}")
            for k in range(4):
                a(f"v_dot2c_f32_bf16 v{ACC+2*k+1}, v{W0+8*p+4+k}, v{CO+p}")

    def out_reduce_publish(self, ACC, outp_soff):
        a = self.a
        a("s_nop 2")
        a(f"ds_write_b128 v129, {vr(ACC,4)} offset:{self.L_R}")
        a(f"ds_write_b128 v129, {vr(ACC+4,4)} offset:{self.L_R+16}")
        a("s_waitcnt lgkmcnt(0)")
        a("s_barrier")
        skip = a.newlabel("go")
        self.skip_if(f"s_cmp_ge_u32 s{S_W}, 3", skip)
        R = 132
        for sl in range(6):
            a(f"ds_read_b128 {vr(R+4*sl,4)}, v131 offset:{self.L_R+sl*2560}")
        a("s_waitcnt lgkmcnt(0)")
        for k in range(4):
            a(f"v_add_f32 v{R+k}, v{R+k}, v{R+4+k}")
            a(f"v_add_f32 v{R+8+k}, v{R+8+k}, v{R+12+k}")
            a(f"v_add_f32 v{R+16+k}, v{R+16+k}, v{R+20+k}")
        for k in range(4): a(f"v_add_f32 v{R+k}, v{R+k}, v{R+8+k}")
        for k in range(4): a(f"v_add_f32 v{R+k}, v{R+k}, v{R+16+k}")
        for k in range(4): a(f"v_min_u32 v{R+k}, 0xfffffffe, v{R+k}")
        a(f"buffer_store_dwordx4 {vr(R,4)}, v130, {srd('WS')}, s{outp_soff} offen sc1")
        a.label(skip)

    def write_pairs(self, vsrc, t0, t1, nvalid):
        a = self.a
        a(f"v_lshlrev_b32 v{t0}, 2, v1")
        a(f"v_add_u32 v{t1}, {self.L_CB - 24 + 2}, v{t0}")
        a(f"v_add_u32 v{t0}, {self.L_CB}, v{t0}")
        a(f"v_mov_b32 v{t0+2}, {self.L_CB + 500}")
        a("v_cmp_gt_u32 vcc, 6, v1")
        a("s_nop 1")
        a(f"v_cndmask_b32 v{t1}, v{t1}, v{t0+2}, vcc")
        if nvalid < 64:
            a(f"v_cmp_le_u32 vcc, {nvalid}, v1")
            a("s_nop 1")
            a(f"v_cndmask_b32 v{t1}, v{t1}, v{t0+2}, vcc")
            a(f"v_cndmask_b32 v{t0}, v{t0}, v{t0+2}, vcc")
        a(f"ds_write_b16 v{t0}, v{vsrc}")
        a(f"ds_write_b16 v{t1}, v{vsrc}")

    def out_addr_regs(self):
        a = self.a
        a("v_mul_u32_u24 v129, 2560, v6")
        a("v_lshl_add_u32 v129, v7, 5, v129")
        a("v_lshlrev_b32 v131, 4, v0")
        a("v_mov_b32 v130, 0x7fffffff")
        a("v_cmp_gt_u32 vcc, 160, v0")
        a("s_nop 1")
        a("v_cndmask_b32 v130, v130, v131, vcc")

    def aset_back(self):
        a = self.a; T = S_T
        self.wo_lane_offsets()
        self.out_addr_regs()
        if self.exp_nobulk:
            a(f"s_lshl_b32 s{T+1}, s{S_H}, 7")
            a(f"s_add_u32 s{T+1}, s{T+1}, {WS_ML}")
            a("v_and_b32 v14, 15, v1")
            a("v_lshlrev_b32 v14, 3, v14")
            self.cf_check(132)
            l = self.poll_begin()
            a(f"buffer_load_dwordx2 v[116:117], v14, {srd('WS')}, s{T+1} offen sc1")
            a("s_waitcnt vmcnt(0)")
            a("v_max_u32 v15, v116, v117")
            a("v_cmp_eq_u32 vcc, -1, v15")
            a("s_nop 1")
            a("v_cndmask_b32 v15, 0, 1, vcc")
            a("s_sleep 4")
            self.poll_end(l, 15)
        self.skip_if(f"s_cmp_ge_u32 s{S_LI}, 12", "L_bbranch")
        WV = 20; WO = 68
        a(f"s_mul_i32 s{T}, s{S_W}, {96*12288}")
        a(f"s_mul_i32 s{T+1}, s{S_H}, 384")
        a(f"s_add_u32 s{T}, s{T}, s{T+1}")
        a(f"s_lshl_b32 s{T+1}, s{S_J4}, 7")
        a(f"s_add_u32 s{T}, s{T}, s{T+1}")
        for i in range(12):
            a(f"buffer_load_dwordx4 {vr(WV+4*i,4)}, v4, {srd('WUV')}, s{T} offen{self.NTB}")
            if i >= self.a_win: a(f"s_waitcnt vmcnt({self.a_win})")
            if i < 11: a(f"s_add_u32 s{T}, s{T}, 98304")
        a(f"s_mul_i32 s{T}, s{S_H}, 192")
        a(f"s_lshl_b32 s{T+1}, s{S_J4}, 6")
        a(f"s_add_u32 s{T}, s{T}, s{T+1}")
        a(f"s_mul_i32 s{T}, s{T}, 1280")
        for i in range(10):
            a(f"buffer_load_dwordx4 {vr(WO+4*i,4)}, v5, {srd('WO')}, s{T} offen{self.NTB}")
            if 12 + i >= self.a_win: a(f"s_waitcnt vmcnt({self.a_win})")
            a(f"s_add_u32 s{T}, s{T}, 7680")
        a("v_cmp_gt_u32 vcc, 4, v6")
        a("s_nop 1")
        a("v_cndmask_b32 v9, v8, v5, vcc")
        a(f"buffer_load_dwordx4 {vr(WO+40,4)}, v9, {srd('WO')}, s{T} offen{self.NTB}")
        for k in range(4): a(f"v_mov_b32 v{WO+44+k}, 0")
        self.stamp(4)
        a("v_cmp_le_u32 vcc, 24, v1")
        a("s_nop 1")
        a("v_cndmask_b32 v10, 0, 1, vcc")
        a("v_mul_u32_u24 v11, 24, v10")
        a("v_sub_u32 v11, v1, v11")
        a("v_mul_u32_u24 v12, 384, v10")
        a("v_lshl_add_u32 v12, v11, 4, v12")
        a(f"s_lshl_b32 s{T+2}, s{S_W}, 10")
        a(f"s_add_u32 s{T+2}, s{T+2}, {self.L_O}")
        a(f"v_add_u32 v13, s{T+2}, v12")
        a("v_cmp_gt_u32 vcc, 48, v1")
        a("v_lshlrev_b32 v16, 2, v2")
        a(f"v_add_u32 v16, s{T+2}, v16")
        a("v_cndmask_b32 v12, v8, v12, vcc")
        a(f"s_lshl_b32 s{T}, s{S_H}, 3")
        a(f"s_add_u32 s{T}, s{T}, s{S_W}")
        a(f"s_mul_i32 s{T}, s{T}, {16*384}")
        a(f"s_add_u32 s{T}, s{T}, {WS_OP}")
        a(f"s_lshl_b32 s{T+1}, s{S_H}, 7")
        a(f"s_add_u32 s{T+1}, s{T+1}, {WS_ML}")
        a("v_and_b32 v14, 15, v1")
        a("v_lshlrev_b32 v14, 3, v14")
        a("v_lshlrev_b32 v121, 2, v10")
        a("v_lshlrev_b32 v17, 5, v3")
        a("v_lshl_add_u32 v17, v2, 2, v17")
        a(f"s_lshl_b32 s{T+3}, s{S_W}, 8")
        a(f"v_add_u32 v17, s{T+3}, v17")
        a("v_lshlrev_b32 v18, 2, v6")
        a("v_lshlrev_b32 v172, 2, v1")
        a(f"v_add_u32 v173, {self.L_CB - 24 + 2}, v172")
        a(f"v_add_u32 v172, {self.L_CB}, v172")
        a(f"v_mov_b32 v174, {self.L_CB + 500}")
        a("v_cmp_gt_u32 vcc, 6, v1")
        a("s_nop 1")
        a("v_cndmask_b32 v173, v173, v174, vcc")
        a("s_waitcnt vmcnt(11)")
        self.preperm(WV, 6, 128)
        a("s_waitcnt vmcnt(0)")
        self.preperm(WO, 6, 128)
        self.stamp(5)
        self.cf_check(132)
        OPV = 132
        def e4_issue(i):
            if i == 8:
                a(f"buffer_load_dwordx2 v[116:117], v14, {srd('WS')}, s{T+1} offen sc1")
            else:
                so = T if i < 4 else T+2
                a(f"buffer_load_dwordx4 {vr(OPV+4*i,4)}, v12, {srd('WS')}, s{so} offen offset:{(i%4)*768} sc1")
        def e4_check(i):
            if i == 8:
                a("v_max_u32 v15, v116, v117")
            else:
                a(f"v_max3_u32 v15, v{OPV+4*i}, v{OPV+4*i+1}, v{OPV+4*i+2}")
                a(f"v_max_u32 v15, v15, v{OPV+4*i+3}")
            a("v_cmp_eq_u32 vcc, -1, v15")
        a(f"s_add_u32 s{T+2}, s{T}, 3072")
        if self.mlpoll == 1:
            l = self.poll_begin()
            a(f"buffer_load_dwordx2 v[116:117], v14, {srd('WS')}, s{T+1} offen sc1")
            a("s_waitcnt vmcnt(0)")
            a("v_max_u32 v15, v116, v117")
            a("v_cmp_eq_u32 vcc, -1, v15")
            a("s_nop 1")
            a("v_cndmask_b32 v15, 0, 1, vcc")
            self.poll_end(l, 15)
            self.gpoll(8, e4_issue, e4_check, masks=[20,22,24,26,28,30,44,46])
        elif self.mlpoll == 2:
            l = a.newlabel("mla"); ok = a.newlabel("mlo")
            a(f"s_mov_b32 s{S_CNT}, 0")
            a.label(l)
            a(f"buffer_load_dwordx2 v[116:117], v14, {srd('WS')}, s{T+1} offen sc1")
            a("s_waitcnt vmcnt(0)")
            a("v_max_u32 v15, v116, v117")
            a("v_cmp_ne_u32 vcc, -1, v15")
            a(f"s_cbranch_vccnz {ok}")
            a("s_sleep 2")
            a(f"s_add_u32 s{S_CNT}, s{S_CNT}, 1")
            a(f"s_cmp_lt_u32 s{S_CNT}, {POLL_LIMIT}")
            a(f"s_cbranch_scc1 {l}")
            a.label(ok)
            self.gpoll(9, e4_issue, e4_check, masks=[20,22,24,26,28,30,44,46,48])
        else:
            self.gpoll(9, e4_issue, e4_check)
        self.stamp(6)
        self.stamp_val(17, S_CNT)
        a("v_mov_b32 v118, v116")
        a("s_nop 1")
        for ctrl in ["quad_perm:[1,0,3,2]", "quad_perm:[2,3,0,1]", "row_half_mirror", "row_mirror"]:
            a(f"v_max_f32_dpp v118, v118, v118 {ctrl} row_mask:0xf bank_mask:0xf")
            a("s_nop 1")
        a("v_sub_f32 v119, v116, v118")
        a("v_exp_f32 v119, v119")
        a("s_nop 0")
        a("v_mul_f32 v120, v117, v119")
        WN = 164
        for i in range(8): a(f"ds_bpermute_b32 v{WN+i}, v121, v119 offset:{8*i}")
        for ctrl in ["quad_perm:[1,0,3,2]", "quad_perm:[2,3,0,1]", "row_half_mirror", "row_mirror"]:
            a(f"v_add_f32_dpp v120, v120, v120 {ctrl} row_mask:0xf bank_mask:0xf")
            a("s_nop 1")
        a("v_rcp_f32 v120, v120")
        a("s_waitcnt lgkmcnt(0)")
        for k in range(4): a(f"v_mul_f32 v{122+k}, v{WN}, v{OPV+k}")
        for i in range(1, 8):
            for k in range(4): a(f"v_fmac_f32 v{122+k}, v{WN+i}, v{OPV+4*i+k}")
        for k in range(4): a(f"v_mul_f32 v{122+k}, v{122+k}, v120")
        a("s_mov_b32 exec_hi, 0xffff")
        a("ds_write_b128 v13, v[122:125]")
        a("s_mov_b32 exec_hi, -1")
        a("s_waitcnt lgkmcnt(0)")
        OV = 132
        for i in range(12):
            a(f"ds_read2_b32 {vr(OV+2*i,2)}, v16 offset0:{8*i} offset1:{8*i+96}")
        ACC = 120
        for k in range(8): a(f"v_mov_b32 v{ACC+k}, 0")
        CO = 160
        for p in range(6):
            a(f"s_waitcnt lgkmcnt({10-2*p})")
            a(f"v_add_f32 v{OV+4*p}, v{OV+4*p}, v{OV+4*p+1}")
            a(f"v_add_f32 v{OV+4*p+2}, v{OV+4*p+2}, v{OV+4*p+3}")
            a(f"v_cvt_pk_bf16_f32 v{CO+p}, v{OV+4*p}, v{OV+4*p+2}")
        self.gemv_pairs(WV, 6, CO, ACC)
        self.treduce8(ACC, 128, 118)
        a(f"ds_write_b32 v17, v{ACC} offset:{self.L_C}")
        a("s_waitcnt lgkmcnt(0)")
        a("s_barrier")
        self.stamp(7)
        skip = a.newlabel("cx")
        self.skip_if(f"s_cmp_lg_u32 s{S_W}, 0", skip)
        a("v_lshlrev_b32 v13, 2, v1")
        for w in range(8): a(f"ds_read_b32 v{132+w}, v13 offset:{self.L_C+w*256}")
        a("s_waitcnt lgkmcnt(0)")
        a("v_add_f32 v132, v132, v133\nv_add_f32 v134, v134, v135\nv_add_f32 v136, v136, v137\nv_add_f32 v138, v138, v139")
        a("v_add_f32 v132, v132, v134\nv_add_f32 v136, v136, v138")
        a("v_add_f32 v132, v132, v136")
        a("v_cvt_pk_bf16_f32 v132, v132, v132")
        a("ds_write_b16 v172, v132")
        a("ds_write_b16 v173, v132")
        a("s_waitcnt lgkmcnt(0)")
        a.label(skip)
        for k in range(8): a(f"v_mov_b32 v{ACC+k}, 0")
        a("s_barrier")
        for p in range(6):
            a(f"ds_read_b32 v{CO+p}, v18 offset:{self.L_CB+48*p}")
        a("s_waitcnt lgkmcnt(0)")
        self.gemv_pairs(WO, 6, CO, ACC)
        self.out_reduce_publish(ACC, T+10)
        self.stamp(8)
        a("s_branch L_aend")

        a.label("L_bbranch")
        WG = 20; XB = 84; WD = 160
        a("v_lshlrev_b32 v19, 2, v6")
        a(f"s_lshl_b32 s{T}, s{S_X}, 2")
        a(f"s_add_u32 s{T}, s{T}, s{S_LI}")
        a(f"s_sub_u32 s{T}, s{T}, 12")
        a("v_mul_u32_u24 v10, 43, v1")
        a("v_lshrrev_b32 v10, 8, v10")
        a("v_mul_u32_u24 v11, 6, v10")
        a("v_sub_u32 v11, v1, v11")
        a("v_mul_u32_u24 v12, 3072, v10")
        a("v_lshl_add_u32 v12, v11, 4, v12")
        a("v_cmp_gt_u32 vcc, 60, v1")
        a("v_lshlrev_b32 v13, 1, v10")
        a("v_cndmask_b32 v12, v8, v12, vcc")
        a(f"s_and_b32 s{T+1}, s{S_W}, 3")
        a(f"s_mul_i32 s{T+2}, s{T+1}, 320")
        for i in range(16):
            a(f"buffer_load_ushort v{XB+i}, v13, {srd('X')}, s{T+2} offen offset:{20*i}")
        a(f"s_mul_i32 s{T+2}, s{T+1}, {160*3072}")
        a(f"s_mul_i32 s{T+3}, s{T}, 96")
        a(f"s_add_u32 s{T+2}, s{T+2}, s{T+3}")
        up = a.newlabel("up"); upd = a.newlabel("upd")
        self.skip_if(f"s_cmp_ge_u32 s{S_W}, 4", up)
        for i in range(16):
            a(f"buffer_load_dwordx4 {vr(WG+4*i,4)}, v12, {srd('WG')}, s{T+2} offen{self.NTB}")
            if i >= self.a_win: a(f"s_waitcnt vmcnt({self.a_win})")
            a(f"s_add_u32 s{T+2}, s{T+2}, 30720")
        a(f"s_branch {upd}")
        a.label(up)
        for i in range(16):
            a(f"buffer_load_dwordx4 {vr(WG+4*i,4)}, v12, {srd('WU')}, s{T+2} offen{self.NTB}")
            if i >= self.a_win: a(f"s_waitcnt vmcnt({self.a_win})")
            a(f"s_add_u32 s{T+2}, s{T+2}, 30720")
        a.label(upd)
        a(f"s_mul_i32 s{T+2}, s{T}, {48*1280}")
        for i in range(8):
            a(f"buffer_load_dwordx4 {vr(WD+4*i,4)}, v5, {srd('WD')}, s{T+2} offen{self.NTB}")
            if 16 + i >= self.a_win: a(f"s_waitcnt vmcnt({self.a_win})")
            a(f"s_add_u32 s{T+2}, s{T+2}, 7680")
        ACC = 120
        for k in range(8): a(f"v_mov_b32 v{ACC+k}, 0")
        for i in range(16):
            a(f"s_waitcnt vmcnt({8+15-i})")
            a(f"v_lshlrev_b32 v128, 16, v{XB+i}")
            for k in range(4): a(f"v_dot2c_f32_bf16 v{ACC+2*k}, v{WG+4*i+k}, v{XB+i}")
            for k in range(4): a(f"v_dot2c_f32_bf16 v{ACC+2*k+1}, v{WG+4*i+k}, v128")
        a(f"s_mul_i32 s{T+2}, s{S_W}, 1920")
        a("v_mul_u32_u24 v13, 192, v10")
        a("v_lshl_add_u32 v13, v11, 5, v13")
        a(f"v_add_u32 v13, s{T+2}, v13")
        a("s_mov_b32 exec_hi, 0x0fffffff")
        a(f"ds_write_b128 v13, {vr(ACC,4)} offset:{self.L_R}")
        a(f"ds_write_b128 v13, {vr(ACC+4,4)} offset:{self.L_R+16}")
        a("s_mov_b32 exec_hi, -1")
        a("s_waitcnt lgkmcnt(0)")
        a("s_barrier")
        skip = a.newlabel("bg")
        self.skip_if(f"s_cmp_ge_u32 s{S_W}, 2", skip)
        a("v_cmp_le_u32 vcc, 48, v0")
        a("v_mov_b32 v14, 7488")
        a("v_lshlrev_b32 v13, 2, v0")
        a("v_cndmask_b32 v14, 0, v14, vcc")
        a("v_add_u32 v13, v13, v14")
        a("v_min_u32 v13, 7868, v13")
        for j in range(40):
            a(f"ds_read_b32 v{20+j}, v13 offset:{self.L_R+j*192}")
            if j % 8 == 7: a("s_waitcnt lgkmcnt(0)")
        for j in range(1, 40): a(f"v_add_f32 v20, v20, v{20+j}")
        a("v_lshlrev_b32 v13, 2, v0")
        a(f"ds_write_b32 v13, v20 offset:{self.L_C}")
        a("s_waitcnt lgkmcnt(0)")
        a.label(skip)
        a("s_barrier")
        skip = a.newlabel("bh")
        self.skip_if(f"s_cmp_lg_u32 s{S_W}, 0", skip)
        a("v_lshlrev_b32 v13, 2, v1")
        a(f"ds_read_b32 v20, v13 offset:{self.L_C}")
        a(f"ds_read_b32 v21, v13 offset:{self.L_C+192}")
        a("s_waitcnt lgkmcnt(0)")
        a(f"v_mul_f32 v20, 0x{f32bits(-math.log2(math.e)):08x}, v20")
        a("v_exp_f32 v20, v20")
        a("s_nop 0")
        a("v_add_f32 v20, 1.0, v20")
        a("v_rcp_f32 v20, v20")
        a("s_nop 0")
        a("v_mul_f32 v20, v20, v21")
        a("v_cvt_pk_bf16_f32 v20, v20, v20")
        self.write_pairs(20, 13, 14, 48)
        a("s_waitcnt lgkmcnt(0)")
        a.label(skip)
        for k in range(8): a(f"v_mov_b32 v{ACC+k}, 0")
        a("s_waitcnt vmcnt(0)")
        self.preperm(WD, 4, 128)
        a("s_barrier")
        CO = 100
        for p in range(4):
            a(f"ds_read_b32 v{CO+p}, v19 offset:{self.L_CB+48*p}")
        a("s_waitcnt lgkmcnt(0)")
        self.gemv_pairs(WD, 4, CO, ACC)
        self.out_reduce_publish(ACC, T+10)
        self.stamp(8)
        a.label("L_aend")

    def bset_ids(self):
        a = self.a
        a(f"s_mov_b32 s{S_LB}, s{S_LI}")
        a(f"s_lshl_b32 s{S_BLK}, s{S_X}, 5")
        a(f"s_lshl_b32 s9, s{S_LB}, 1")
        a(f"s_add_u32 s{S_BLK}, s{S_BLK}, s9")
        a(f"s_lshl_b32 s{S_G}, s{S_X}, 1")
        a(f"s_lshr_b32 s9, s{S_LB}, 3")
        a(f"s_add_u32 s{S_G}, s{S_G}, s9")
        a(f"s_and_b32 s{S_S}, s{S_LB}, 7")

    def pv_lane_offsets(self):
        a = self.a
        for n in range(3):
            a(f"v_add_u32 v5, {64*n}, v1")
            a("v_mul_u32_u24 v6, 5462, v5")
            a("v_lshrrev_b32 v6, 16, v6")
            a("v_mul_u32_u24 v7, 12, v6")
            a("v_sub_u32 v7, v5, v7")
            a("v_mul_u32_u24 v6, 1536, v6")
            a(f"v_lshl_add_u32 v{self.PVO+n}, v7, 4, v6")

    def pv_dma(self, kp, ldsbase, nw, w0):
        a = self.a; T = S_T + 8
        per = 48 // nw; rows = 256 // nw
        a(f"s_sub_u32 s{T+2}, s{S_W}, {w0}")
        a(f"s_lshl_b32 s{T}, s{S_G}, 9")
        a(f"s_mul_i32 s{T+1}, s{T+2}, {rows}")
        a(f"s_add_u32 s{T}, s{T}, s{T+1}")
        if kp: a(f"s_add_u32 s{T}, s{T}, 256")
        a(f"s_mul_i32 s{T}, s{T}, 1536")
        a(f"s_mul_i32 s{T+1}, s{S_S}, 192")
        a(f"s_add_u32 s{T}, s{T}, s{T+1}")
        a(f"s_mul_i32 s{T+1}, s{T+2}, {per*1024}")
        a(f"s_add_u32 s{T+1}, s{T+1}, {ldsbase}")
        for n in range(per):
            a(f"s_add_u32 m0, s{T+1}, {n*1024}")
            if n % 3 == 0 and n > 0: a(f"s_add_u32 s{T}, s{T}, {16*1536}")
            else: a("s_nop 0")
            a(f"buffer_load_dwordx4 v{self.PVO+(n%3)}, {srd('CKV')}, s{T} offen{self.NTC} lds")
            if self.pv_win < 63: a(f"s_waitcnt vmcnt({self.pv_win})")

    def s_dma_prep(self):
        a = self.a
        a("v_mov_b32 v216, 0")
        a("v_mov_b32 v219, v1")
        a("v_cmp_le_u32 vcc, 32, v1")
        a("v_add_u32 v5, 64, v1")
        a("v_subrev_u32 v6, 32, v1")
        a("v_cndmask_b32 v217, 0, 1, vcc")
        a("v_cndmask_b32 v220, v5, v6, vcc")
        a("v_mov_b32 v218, 1")
        a("v_add_u32 v221, 32, v1")
        for b in range(3): a(f"v_mul_u32_u24 v{222+b}, 1536, v{216+b}")
        T = S_T + 8
        a(f"s_and_b32 s{T+2}, s{S_W}, 1")
        a(f"s_lshl_b32 s{T+2}, s{T+2}, 3")
        for aa in range(4):
            for b in range(3):
                n = 3*aa + b
                a(f"s_add_u32 s{T+4}, s{T+2}, {2*aa}")
                a(f"v_add_u32 v5, s{T+4}, v{216+b}")
                a(f"v_xor_b32 v5, v5, v{219+b}")
                a(f"v_lshl_add_u32 v{226+n}, v5, 4, v{222+b}")

    def s_dma(self):
        a = self.a; T = S_T + 8
        a(f"s_lshl_b32 s{T}, s{S_X}, 10")
        a(f"s_lshl_b32 s{T+1}, s{S_LB}, 6")
        a(f"s_add_u32 s{T}, s{T}, s{T+1}")
        a(f"s_lshl_b32 s{T+1}, s{S_W}, 3")
        a(f"s_add_u32 s{T}, s{T}, s{T+1}")
        a(f"s_mul_i32 s{T}, s{T}, 1536")
        a(f"s_mul_i32 s{T+3}, s{S_W}, 12288")
        a(f"s_add_u32 s{T+3}, s{T+3}, {self.L_S}")
        for n in range(12):
            a(f"s_add_u32 m0, s{T+3}, {n*1024}")
            if n % 3 == 0 and n > 0: a(f"s_add_u32 s{T}, s{T}, {2*1536}")
            else: a("s_nop 0")
            a(f"buffer_load_dwordx4 v{226+n}, {srd('CKV')}, s{T} offen{self.NTC} lds")
            if n >= self.s_win: a(f"s_waitcnt vmcnt({self.s_win})")
            if self.s_probe and n == self.s_probe-1: a(f"s_waitcnt vmcnt({self.s_probe-1})")

    def s_dma_early(self):
        a = self.a; T = S_T + 8
        a(f"s_sub_u32 s{T+2}, s{S_W}, 6")
        a(f"s_lshl_b32 s{T}, s{S_X}, 10")
        a(f"s_lshl_b32 s{T+1}, s{S_LB}, 6")
        a(f"s_add_u32 s{T}, s{T}, s{T+1}")
        a(f"s_lshl_b32 s{T+1}, s{T+2}, 5")
        a(f"s_add_u32 s{T}, s{T}, s{T+1}")
        a(f"s_mul_i32 s{T}, s{T}, 1536")
        a(f"s_mul_i32 s{T+3}, s{T+2}, 49152")
        a(f"s_add_u32 s{T+3}, s{T+3}, {self.L_S}")
        for aa in range(16):
            for b in range(3):
                n = 3*aa + b
                a(f"v_add_u32 v5, {(2*aa) & 15}, v{216+b}")
                a(f"v_xor_b32 v5, v5, v{219+b}")
                a(f"v_lshl_add_u32 v5, v5, 4, v{222+b}")
                a(f"s_add_u32 m0, s{T+3}, {n*1024}")
                a(f"s_add_u32 s{T+5}, s{T}, {2*aa*1536}")
                a(f"buffer_load_dwordx4 v5, {srd('CKV')}, s{T+5} offen{self.NTC} lds")
                if n >= self.sde_win: a(f"s_waitcnt vmcnt({self.sde_win})")

    def bset_clears(self):
        a = self.a; T = S_T + 8
        a("v_subrev_u32 v5, 384, v0")
        a("v_mov_b32 v76, -1\nv_mov_b32 v77, -1\nv_mov_b32 v78, -1\nv_mov_b32 v79, -1")
        a("v_lshlrev_b32 v6, 4, v5")
        a("v_mov_b32 v7, 0x7fffffff")
        a("v_cmp_gt_u32 vcc, 64, v5")
        a(f"s_mul_i32 s{T+2}, s{S_BLK}, {PBS}")
        a("v_cndmask_b32 v8, v7, v6, vcc")
        for base in (WS_PBG, WS_PBL):
            a(f"s_add_u32 s{T+3}, s{T+2}, {base}")
            a(f"buffer_store_dwordx4 v[76:79], v6, {srd('WS')}, s{T+3} offen sc1")
            a(f"buffer_store_dwordx4 v[76:79], v6, {srd('WS')}, s{T+3} offen offset:2048 sc1")
            a(f"s_add_u32 s{T+3}, s{T+3}, 4096")
            a(f"buffer_store_dwordx4 v[76:79], v8, {srd('WS')}, s{T+3} offen sc1")
        a(f"s_lshl_b32 s{T+5}, s{S_S}, 4")
        a(f"s_add_u32 s{T+5}, s{T+5}, s{S_G}")
        a(f"s_mul_i32 s{T+5}, s{T+5}, 384")
        a(f"s_add_u32 s{T+5}, s{T+5}, {WS_OP}")
        a(f"s_mov_b32 s{T+6}, 49152")
        for i in range(6):
            a(f"v_add_u32 v8, {128*i}, v5")
            a("v_mul_u32_u24 v9, 2731, v8")
            a("v_lshrrev_b32 v9, 16, v9")
            a("v_mul_u32_u24 v70, 24, v9")
            a("v_sub_u32 v70, v8, v70")
            a(f"v_mul_lo_u32 v9, v9, s{T+6}")
            a("v_lshl_add_u32 v9, v70, 4, v9")
            a(f"buffer_store_dwordx4 v[76:79], v9, {srd('WS')}, s{T+5} offen sc1")
        a("v_lshlrev_b32 v8, 7, v5")
        a("v_cmp_gt_u32 vcc, 32, v5")
        a(f"s_lshl_b32 s{T+5}, s{S_G}, 3")
        a(f"s_add_u32 s{T+5}, s{T+5}, {WS_ML}")
        a("v_cndmask_b32 v8, v7, v8, vcc")
        a(f"s_cmp_eq_u32 s{S_S}, 0")
        a(f"s_cselect_b32 s{T+5}, s{T+5}, 0x7fffff00")
        a(f"buffer_store_dwordx2 v[76:77], v8, {srd('WS')}, s{T+5} offen sc1")

    def bset_front(self):
        a = self.a; T = S_T
        XV = 10; W0 = 20; ACC = 60
        a(f"v_mov_b32 v5, {self.L_FLAG}")
        for k in range(4): a(f"v_mov_b32 v{6+k}, 0")
        a("ds_write_b128 v5, v[6:9]")
        a("ds_write_b128 v5, v[6:9] offset:16")
        a("ds_write_b128 v5, v[6:9] offset:32")
        a("ds_write_b128 v5, v[6:9] offset:48")
        a("ds_write_b128 v5, v[6:9] offset:64")
        a("v_lshlrev_b32 v5, 1, v2")
        a(f"v_add_u32 v9, s{S_PM}, v5")
        nox = a.newlabel("nox")
        self.skip_if(f"s_cmp_lg_u32 s{S_W}, 6", nox)
        a("v_lshlrev_b32 v8, 4, v1")
        a(f"buffer_load_dwordx4 v[20:23], v8, {srd('X')}, 0 offen")
        a(f"buffer_load_dwordx4 v[24:27], v8, {srd('X')}, 0 offen offset:1024")
        a.label(nox)
        self.bset_ids()
        self.pv_lane_offsets()
        self.s_dma_prep()
        nox2 = a.newlabel("nox2")
        self.skip_if(f"s_cmp_lg_u32 s{S_W}, 6", nox2)
        a("s_waitcnt vmcnt(0)")
        a(f"ds_write_b128 v8, v[20:23] offset:{self.L_X}")
        a(f"ds_write_b128 v8, v[24:27] offset:{self.L_X+1024}")
        a.label(nox2)
        a("s_waitcnt lgkmcnt(0)")
        a("s_barrier")
        ldr = a.newlabel("p1ldr"); j = a.newlabel("p1j")
        self.skip_if(f"s_cmp_ge_u32 s{S_W}, 6", ldr)
        a(f"s_lshl_b32 s{T+5}, s{S_H}, 3")
        a(f"s_lshl_b32 s{T+6}, s{S_J4}, 1")
        a(f"s_add_u32 s{T+5}, s{T+5}, s{T+6}")
        a(f"s_add_u32 s{T+5}, s{T+5}, s{T}")
        a(f"s_mul_i32 s{T+5}, s{T+5}, 1536")
        a(f"s_lshl_b32 s{T+6}, s{T+1}, 9")
        a(f"s_add_u32 s{T+5}, s{T+5}, s{T+6}")
        a(f"s_add_u32 s{T+6}, s{T+5}, {WS_QPG}")
        a(f"s_add_u32 s{T+5}, s{T+5}, {WS_QPL}")
        a("v_lshlrev_b32 v5, 6, v3")
        a("v_lshl_add_u32 v5, v2, 3, v5")
        for k in range(8): a(f"v_mov_b32 v{ACC+k}, 0")
        for i in range(10):
            a(f"ds_read_u16 v{XV+i}, v9 offset:{self.L_X+16*i}")
        a("s_waitcnt lgkmcnt(0)")
        a(f"s_add_u32 s{S_EP}, s{S_EP}, 1")
        for i in range(10):
            a(f"s_waitcnt vmcnt({9-i})")
            if i == 9: self.stamp(13)
            a(f"v_lshlrev_b32 v68, 16, v{XV+i}")
            for k in range(4): a(f"v_dot2c_f32_bf16 v{ACC+2*k}, v{W0+4*i+k}, v{XV+i}")
            for k in range(4): a(f"v_dot2c_f32_bf16 v{ACC+2*k+1}, v{W0+4*i+k}, v68")
        self.treduce8(ACC, 68, 69)
        a(f"v_mov_b32 v{ACC+1}, s{S_EP}")
        if self.local:
            a(f"buffer_store_dwordx2 {vr(ACC,2)}, v5, {srd('WS')}, s{T+5} offen")
        a(f"buffer_store_dwordx2 {vr(ACC,2)}, v5, {srd('WS')}, s{T+6} offen sc1")
        self.stamp(1)
        a(f"s_branch {j}")
        a.label(ldr)
        if not self.exp_noclear: self.bset_clears()
        a("s_waitcnt lgkmcnt(0)")
        a(f"s_add_u32 s{S_EP}, s{S_EP}, 1")
        def cf_store():
            a(f"s_lshl_b32 s{T+13}, s2, 1")
            a(f"s_add_u32 s{T+13}, s{T+13}, s{S_W}")
            a(f"s_lshl_b32 s{T+13}, s{T+13}, 2")
            a(f"s_add_u32 s{T+13}, s{T+13}, {WS_CF - 24}")
            a(f"v_mov_b32 v5, s{S_EP}")
            a("v_mov_b32 v6, 0")
            a("s_mov_b64 exec, 1")
            a(f"buffer_store_dword v5, v6, {srd('WS')}, s{T+13} offen sc1")
            a("s_mov_b64 exec, -1")
        nocf = a.newlabel("nocf")
        if self.s_trig:
            notr = a.newlabel("notr")
            self.skip_if(f"s_cmp_lg_u32 s{S_W}, 7", notr)
            a(f"s_mul_i32 s{T+5}, s{S_H}, {8*1536}")
            a(f"s_add_u32 s{T+6}, s{T+5}, {WS_QPL}")
            a(f"s_add_u32 s{T+5}, s{T+5}, {WS_QPG}")
            a("v_and_b32 v5, 7, v1")
            a("v_mul_u32_u24 v5, 1536, v5")
            l = self.poll_begin(T+6, T+5)
            a(f"buffer_load_dwordx2 v[20:21], v5, {srd('WS')}, s{S_PB} offen sc1")
            a("s_waitcnt vmcnt(0)")
            a(f"v_xor_b32 v20, s{S_EP}, v21")
            self.poll_end(l, 20)
            if self.s_trig == 2:
                a(f"s_lshl_b32 s{T+5}, s{S_H}, 4")
                a(f"s_add_u32 s{T+5}, s{T+5}, {WS_QA}")
                a("v_mov_b32 v5, 0")
                l = self.poll_begin()
                a(f"buffer_load_dwordx4 v[20:23], v5, {srd('WS')}, s{T+5} offen sc1")
                a("s_waitcnt vmcnt(0)")
                a(f"v_xor_b32 v20, s{S_EP}, v23")
                self.poll_end(l, 20)
            a.label(notr)
        if self.sde:
            self.s_dma_early()
            cf_store()
            a.label(j)
        else:
            a.label(j)
            a("s_barrier")
            self.s_dma()
            self.skip_if(f"s_cmp_lt_u32 s{S_W}, 6", nocf)
            a("s_waitcnt vmcnt(12)")
            cf_store()
        a.label(nocf)
        self.stamp(2)

    def bset_s_phase(self):
        a = self.a; T = S_T
        QA = 20; AF = 84; ACC = 180
        a("v_and_b32 v6, 31, v1")
        a("v_lshrrev_b32 v7, 5, v1")
        a("v_and_b32 v8, 15, v6")
        a("v_xor_b32 v8, v8, v7")
        a("v_mul_u32_u24 v6, 1536, v6")
        a(f"v_add_u32 v6, {self.L_S}, v6")
        a(f"s_mul_i32 s{T+2}, s{S_W}, 24")
        for i in range(12):
            a(f"s_add_u32 s{T+3}, s{T+2}, {2*i}")
            a(f"v_xor_b32 v9, s{T+3}, v8")
            a(f"v_lshl_add_u32 v{226+i}, v9, 4, v6")
        a(f"s_lshl_b32 s{T}, s{S_W}, 14")
        a(f"s_add_u32 s{T}, s{T}, {WS_QA}")
        a("v_lshlrev_b32 v5, 4, v1")
        for g in range(4): a(f"s_add_u32 s{T+9+g}, s{T}, {4096*g}")
        def qa_first():
            for n in range(16):
                a(f"buffer_load_dwordx4 {vr(QA+4*n,4)}, v5, {srd('WS')}, s{T+9+n//4} offen offset:{(n%4)*1024} sc1")
        if self.qa_early:
            a("s_barrier")
            notS0 = a.newlabel("notS0")
            self.skip_if(f"s_cmp_ge_u32 s{S_W}, 4", notS0)
            qa_first()
            a("s_waitcnt vmcnt(16)")
            a.label(notS0)
            nw = a.newlabel("nw")
            self.skip_if(f"s_cmp_lt_u32 s{S_W}, 4", nw)
            a("s_waitcnt vmcnt(0)")
            a.label(nw)
        else:
            a("s_waitcnt vmcnt(0)")
        a("s_barrier")
        self.stamp(3)
        notS = a.newlabel("notS"); j4 = a.newlabel("j4")
        self.skip_if(f"s_cmp_ge_u32 s{S_W}, 4", notS)
        if not self.qa_early and not self.qa_order: qa_first()
        for i in range(12):
            a(f"ds_read_b128 {vr(AF+4*i,4)}, v{226+i}")
            a(f"ds_read_b128 {vr(AF+48+4*i,4)}, v{226+i} offset:49152")
            if i == 5: a("s_waitcnt lgkmcnt(0)")
        a("s_waitcnt lgkmcnt(0)")
        a("s_barrier")
        self.stamp(21)
        if self.qa_order:
            qa_first()
            if self.qa_order == 2: self.lds_signal(64)
        a(f"s_lshl_b32 s{T+2}, s{S_W}, 13")
        a(f"s_add_u32 s{T+2}, s{T+2}, {self.L_RED}")
        a(f"v_add_u32 v10, s{T+2}, v5")
        a(f"s_lshl_b32 s{T+2}, s{S_W}, 10")
        a(f"s_add_u32 s{T+2}, s{T+2}, {self.L_RED}")
        a(f"v_add_u32 v11, s{T+2}, v5")
        a("v_bfe_u32 v12, v1, 4, 1")
        a("v_lshlrev_b32 v12, 10, v12")
        a("v_and_b32 v9, 15, v1")
        a("v_lshl_add_u32 v12, v9, 4, v12")
        a("v_lshrrev_b32 v9, 5, v1")
        a("v_lshl_add_u32 v12, v9, 3, v12")
        a("v_and_b32 v13, 31, v1")
        a("v_lshlrev_b32 v13, 2, v13")
        a("v_mov_b32 v9, 0x7fffffff")
        a("v_cmp_gt_u32 vcc, 32, v1")
        a(f"s_mul_i32 s{T+4}, s{S_BLK}, {PBS}")
        a("v_cndmask_b32 v13, v9, v13, vcc")
        a(f"s_lshl_b32 s{T+3}, s{S_W}, 8")
        a(f"s_add_u32 s{T+5}, s{T+4}, s{T+3}")
        a(f"s_lshl_b32 s{T+3}, s{S_W}, 7")
        a(f"s_add_u32 s{T+6}, s{T+4}, s{T+3}")
        a(f"s_add_u32 s{T+6}, s{T+6}, 2048")
        def qa_issue(g):
            for k in range(4):
                n = 4*g + k
                a(f"buffer_load_dwordx4 {vr(QA+4*n,4)}, v5, {srd('WS')}, s{T+9+g} offen offset:{k*1024} sc1")
        def qa_check(g):
            a(f"v_xor_b32 v6, s{S_EP}, v{QA+16*g+3}")
            for k in range(1, 4):
                a(f"v_xor_b32 v7, s{S_EP}, v{QA+16*g+4*k+3}")
                a("v_or_b32 v6, v6, v7")
            a("v_cmp_ne_u32 vcc, 0, v6")
        self.gpoll(4, qa_issue, qa_check, first_issued=True, masks=[24,26,28,30])
        self.stamp(4)
        self.stamp_val(16, S_CNT)
        for sg in range(4):
            for f in range(3): a(f"v_mov_b32 v{QA+(sg*4+f)*4+3}, v{QA+(sg*4+3)*4+f}")
        a("s_nop 0")
        for i in range(12):
            sg, f = i // 3, i % 3
            B = QA + (sg*4+f)*4
            for kb in range(2):
                c = "0" if i == 0 else vr(ACC+16*kb, 16)
                a(f"v_mfma_f32_32x32x16_bf16 {vr(ACC+16*kb,16)}, {vr(AF+48*kb+4*i,4)}, {vr(B,4)}, {c}")
        a("s_nop 3")
        a("s_nop 7")
        for q in range(4): a(f"ds_write_b128 v10, {vr(ACC+4*q,4)} offset:{q*1024}")
        a("s_nop 3")
        for q in range(4): a(f"ds_write_b128 v10, {vr(ACC+16+4*q,4)} offset:{(4+q)*1024}")
        a("s_waitcnt lgkmcnt(0)")
        self.stamp(8)
        self.lds_signal(16)
        self.lds_wait(16, 20)
        R = 20
        for src in range(4):
            for kb in range(2):
                a(f"ds_read_b128 {vr(R+(src*2+kb)*4,4)}, v11 offset:{src*8192+kb*4096}")
        a(f"s_mov_b32 s{T+3}, 0x{f32bits(192**-0.5*math.log2(math.e)):08x}")
        a("s_waitcnt lgkmcnt(4)")
        for k in range(8): a(f"v_add_f32 v{R+k}, v{R+k}, v{R+8+k}")
        a("s_waitcnt lgkmcnt(0)")
        reads = []
        if self.early_frags:
            self.lds_wait(32, 60)
            self.stamp(14)
            reads = self.pv_read_frags(self.L_S, defer=True)
        def v(ins):
            a(ins)
            if reads: a(reads.pop(0))
        for k in range(8): v(f"v_add_f32 v{R+16+k}, v{R+16+k}, v{R+24+k}")
        for k in range(8): v(f"v_add_f32 v{R+k}, v{R+k}, v{R+16+k}")
        for k in range(8): v(f"v_mul_f32 v{R+k}, s{T+3}, v{R+k}")
        for kb in range(2):
            v(f"v_max3_f32 v{R+8+kb}, v{R+kb*4}, v{R+kb*4+1}, v{R+kb*4+2}")
        for kb in range(2):
            v(f"v_max_f32 v{R+8+kb}, v{R+8+kb}, v{R+kb*4+3}")
        a(f"v_mov_b32 v{R+10}, v{R+8}")
        a(f"v_mov_b32 v{R+11}, v{R+9}")
        a("s_nop 1")
        a(f"v_permlane32_swap_b32 v{R+8}, v{R+10}")
        a(f"v_permlane32_swap_b32 v{R+9}, v{R+11}")
        a("s_nop 1")
        a(f"v_max_f32 v{R+8}, v{R+8}, v{R+10}")
        a(f"v_max_f32 v{R+9}, v{R+9}, v{R+11}")
        a(f"v_ceil_f32 v{R+8}, v{R+8}")
        a(f"v_ceil_f32 v{R+9}, v{R+9}")
        for kb in range(2):
            for r in range(4): v(f"v_sub_f32 v{R+kb*4+r}, v{R+kb*4+r}, v{R+8+kb}")
        for k in range(8): v(f"v_exp_f32 v{R+k}, v{R+k}")
        a(f"v_min_u32 v{R+8}, 0xfffffffe, v{R+8}")
        a(f"v_min_u32 v{R+9}, 0xfffffffe, v{R+9}")
        P = R + 12
        for kb in range(2):
            a(f"v_cvt_pk_bf16_f32 v{P+kb*2}, v{R+kb*4}, v{R+kb*4+1}")
            a(f"v_cvt_pk_bf16_f32 v{P+kb*2+1}, v{R+kb*4+2}, v{R+kb*4+3}")
        for k in range(4): a(f"v_and_b32 v{P+k}, 0x7fff7fff, v{P+k}")
        paths = ([(WS_PBL, "")] if self.local else []) + [(WS_PBG, " sc1")]
        for base, fl in paths:
            a(f"s_add_u32 s{T+7}, s{T+5}, {base}")
            a(f"s_add_u32 s{T+8}, s{T+6}, {base}")
            a(f"buffer_store_dwordx2 {vr(P,2)}, v12, {srd('WS')}, s{T+7} offen{fl}")
            a(f"buffer_store_dwordx2 {vr(P+2,2)}, v12, {srd('WS')}, s{T+7} offen offset:{PBS}{fl}")
            a(f"buffer_store_dword v{R+8}, v13, {srd('WS')}, s{T+8} offen{fl}")
            a(f"buffer_store_dword v{R+9}, v13, {srd('WS')}, s{T+8} offen offset:{PBS}{fl}")
        self.stamp(5)
        for r in reads: a(r)
        if not self.early_frags:
            self.lds_wait(32, 60)
            self.stamp(14)
            self.pv_read_frags(self.L_S)
        a(f"s_branch {j4}")
        a.label(notS)
        a("s_barrier")
        if self.qa_order == 2: self.lds_wait(64, 20)
        self.pv_dma(0, self.L_PA, 4, 4)
        self.pv_dma(1, self.L_S, 4, 4)
        self.stamp(20)
        a("s_waitcnt vmcnt(12)")
        self.lds_signal(0)
        self.lds_wait(0, 20)
        self.stamp(19)
        self.pv_read_frags(self.L_PA)
        a("s_waitcnt vmcnt(0)")
        self.lds_signal(32)
        nocf = a.newlabel("nocf")
        self.skip_if(f"s_cmp_lg_u32 s{S_W}, 4", nocf)
        self.cf_check(20)
        a(f"v_mov_b32 v6, {self.L_FLAG+48}")
        a("v_mov_b32 v7, 1")
        a("ds_write_b32 v6, v7")
        a.label(nocf)
        self.stamp(14)
        a.label(j4)

    def pv_read_frags(self, base, defer=False):
        a = self.a; T = S_T + 8; AF = 84
        a("v_lshrrev_b32 v14, 4, v1")
        a("v_and_b32 v15, 15, v1")
        a("v_lshrrev_b32 v16, 2, v15")
        a("v_lshl_add_u32 v16, v14, 3, v16")
        a("v_mul_u32_u24 v16, 192, v16")
        a("v_and_b32 v15, 3, v15")
        a("v_lshl_add_u32 v16, v15, 3, v16")
        a(f"s_lshr_b32 s9, s{S_W}, 1")
        a("s_and_b32 s9, s9, 1")
        a("s_mul_i32 s9, s9, 96")
        a(f"s_add_u32 s9, s9, {base}")
        a("v_add_u32 v16, s9, v16")
        reads = []
        for bb in range(8):
            for ct in range(3):
                r = AF + (bb*3+ct)*4; off = bb*6144 + ct*32
                reads.append(f"ds_read_b64_tr_b16 {vr(r,2)}, v16 offset:{off}")
                reads.append(f"ds_read_b64_tr_b16 {vr(r+2,2)}, v16 offset:{off+768}")
        if defer: return reads
        for n, r in enumerate(reads):
            a(r)
            if n % 12 == 11: a("s_waitcnt lgkmcnt(6)")

    def bset_pv_phase(self):
        a = self.a; T = S_T
        AF = 84; P = 20; MI = 52; DL = 60; ACC = 180; LA = 192; ON = 196
        a(f"s_cmp_lt_u32 s{S_W}, 4")
        a(f"s_cselect_b32 s{T}, 8, 0")
        a(f"s_lshl_b32 s{T+1}, s{S_G}, 4")
        a(f"s_add_u32 s{T+1}, s{T+1}, s{T}")
        a(f"s_and_b32 s{T+2}, s{S_W}, 1")
        a(f"s_mul_i32 s{T+3}, s{T+1}, {PBS}")
        a(f"s_lshl_b32 s{T+4}, s{T+2}, 10")
        a(f"s_add_u32 s{T+3}, s{T+3}, s{T+4}")
        a(f"s_add_u32 s{T+4}, s{T+3}, {WS_PBG}")
        a(f"s_add_u32 s{T+3}, s{T+3}, {WS_PBL}")
        a("v_lshlrev_b32 v5, 4, v1")
        a("v_and_b32 v6, 15, v1")
        a("v_lshlrev_b32 v6, 2, v6")
        a("v_lshrrev_b32 v7, 4, v1")
        a("v_lshl_add_u32 v6, v7, 7, v6")
        a(f"s_mul_i32 s{T+5}, s{T+2}, 960")
        a(f"s_sub_u32 s{T+5}, 2048, s{T+5}")
        a(f"v_add_u32 v6, s{T+5}, v6")
        for k in range(4): a(f"v_mov_b32 v{ON+k}, 0x3f803f80")
        a("v_and_b32 v14, 15, v1")
        a(f"s_mov_b32 s{T+5}, 49152")
        a(f"v_mul_lo_u32 v15, v14, s{T+5}")
        a("v_lshl_add_u32 v15, v7, 4, v15")
        a(f"s_mul_i32 s{T+5}, s{T+2}, {16*49152}")
        a(f"s_lshl_b32 s{T+6}, s{S_S}, 4")
        a(f"s_add_u32 s{T+6}, s{T+6}, s{S_G}")
        a(f"s_mul_i32 s{T+6}, s{T+6}, 384")
        a(f"s_add_u32 s{T+5}, s{T+5}, s{T+6}")
        a(f"s_lshr_b32 s{T+6}, s{S_W}, 1")
        a(f"s_and_b32 s{T+6}, s{T+6}, 1")
        a(f"s_mul_i32 s{T+7}, s{T+6}, 192")
        a(f"s_add_u32 s{T+5}, s{T+5}, s{T+7}")
        a(f"s_add_u32 s{T+5}, s{T+5}, {WS_OP}")
        a("v_lshlrev_b32 v14, 7, v14")
        a("v_mov_b32 v16, 0x7fffffff")
        a("v_cmp_gt_u32 vcc, 16, v1")
        a(f"s_lshl_b32 s{T+8}, s{T+2}, 11")
        a(f"s_lshl_b32 s{T+7}, s{S_G}, 3")
        a(f"s_add_u32 s{T+8}, s{T+8}, s{T+7}")
        a(f"s_add_u32 s{T+8}, s{T+8}, {WS_ML}")
        a("v_cndmask_b32 v14, v16, v14, vcc")
        a(f"s_or_b32 s{T+7}, s{T+6}, s{S_S}")
        a(f"s_cmp_eq_u32 s{T+7}, 0")
        a(f"s_cselect_b32 s{T+8}, s{T+8}, 0x7fffff00")
        a(f"s_and_b32 s{T+9}, s{S_W}, 3")
        a(f"s_lshl_b32 s{T+9}, s{T+9}, 12")
        a(f"s_add_u32 s{T+9}, s{T+9}, {self.L_PR}")
        a(f"v_add_u32 v17, s{T+9}, v5")
        def p_pre():
            if self.local:
                a(f"s_and_b32 s9, s{S_CNT}, {self.lperiod-1}")
                a(f"s_cmp_eq_u32 s9, {self.lperiod-1}")
                a(f"s_cselect_b32 s{S_PB}, s{T+4}, s{T+3}")
            else:
                a(f"s_mov_b32 s{S_PB}, s{T+4}")
        def p_issue(bb):
            a(f"s_add_u32 s9, s{S_PB}, {bb*PBS}")
            a(f"buffer_load_dwordx4 {vr(P+4*bb,4)}, v5, {srd('WS')}, s9 offen sc1")
            a(f"buffer_load_dword v{MI+bb}, v6, {srd('WS')}, s9 offen sc1")
        def p_check(bb):
            a(f"v_or3_b32 v7, v{P+4*bb}, v{P+4*bb+1}, v{P+4*bb+2}")
            a(f"v_or_b32 v7, v7, v{P+4*bb+3}")
            a("v_and_b32 v7, 0x80008000, v7")
            a(f"v_cmp_eq_u32 vcc, -1, v{MI+bb}")
            a("s_nop 1")
            a("v_cndmask_b32 v8, 0, 1, vcc")
            a("v_or_b32 v7, v7, v8")
            a("v_cmp_ne_u32 vcc, 0, v7")
        a(f"v_mov_b32 v7, {self.L_FLAG+48}")
        l = self.poll_begin()
        a("ds_read_b32 v8, v7")
        a("s_waitcnt lgkmcnt(0)")
        a("v_xor_b32 v8, 1, v8")
        self.poll_end(l, 8)
        self.stamp(15)
        self.gpoll(8, p_issue, p_check, pre=p_pre, masks=[24,26,28,30,32,34,36,38])
        self.stamp(6)
        self.stamp_val(17, S_CNT)
        a(f"v_max3_f32 v9, v{MI}, v{MI+1}, v{MI+2}")
        a(f"v_max3_f32 v9, v9, v{MI+3}, v{MI+4}")
        a(f"v_max3_f32 v9, v9, v{MI+5}, v{MI+6}")
        a(f"v_max_f32 v9, v9, v{MI+7}")
        a("v_mov_b32 v10, v9")
        a("s_nop 1")
        a("v_permlane16_swap_b32 v9, v10")
        a("s_nop 1")
        a("v_max_f32 v9, v9, v10")
        a("v_mov_b32 v10, v9")
        a("s_nop 1")
        a("v_permlane32_swap_b32 v9, v10")
        a("s_nop 1")
        a("v_max_f32 v9, v9, v10")
        a(f"s_mov_b32 s{T+10}, 0x437f0000")
        a(f"s_mov_b32 s{T+11}, 0x00800080")
        for bb in range(8): a(f"v_sub_f32 v{DL+bb}, v9, v{MI+bb}")
        for bb in range(8): a(f"v_min_f32 v{DL+bb}, s{T+10}, v{DL+bb}")
        for bb in range(8): a(f"v_cvt_u32_f32 v{DL+bb}, v{DL+bb}")
        for bb in range(8): a(f"v_mul_u32_u24 v{DL+bb}, s{T+11}, v{DL+bb}")
        for k in range(4): a(f"v_pk_sub_u16 v{P+k}, v{P+k}, v{DL} clamp")
        for bb in range(8):
            if bb < 7:
                for k in range(4): a(f"v_pk_sub_u16 v{P+4*(bb+1)+k}, v{P+4*(bb+1)+k}, v{DL+bb+1} clamp")
            else:
                a("s_nop 1")
            for ct in range(3):
                c = "0" if bb == 0 else vr(ACC+4*ct, 4)
                a(f"v_mfma_f32_16x16x32_bf16 {vr(ACC+4*ct,4)}, {vr(AF+(bb*3+ct)*4,4)}, {vr(P+4*bb,4)}, {c}")
            c = "0" if bb == 0 else vr(LA, 4)
            a(f"v_mfma_f32_16x16x32_bf16 {vr(LA,4)}, {vr(ON,4)}, {vr(P+4*bb,4)}, {c}")
        a("s_nop 7")
        self.stamp(11)
        kp1 = a.newlabel("kp1")
        self.skip_if(f"s_cmp_lt_u32 s{S_W}, 4", kp1)
        a(f"v_mov_b32 v{LA+1}, v9")
        for ct in range(3): a(f"ds_write_b128 v17, {vr(ACC+4*ct,4)} offset:{ct*1024}")
        a(f"ds_write_b128 v17, {vr(LA,4)} offset:3072")
        a("s_waitcnt lgkmcnt(0)")
        a.label(kp1)
        a("s_barrier")
        self.stamp(12)
        fin = a.newlabel("pvfin")
        self.skip_if(f"s_cmp_ge_u32 s{S_W}, 4", fin)
        O = 20
        for k in range(4): a(f"ds_read_b128 {vr(O+4*k,4)}, v17 offset:{k*1024}")
        a("s_waitcnt lgkmcnt(0)")
        a(f"v_max_f32 v10, v9, v{O+13}")
        a("v_sub_f32 v11, v9, v10")
        a(f"v_sub_f32 v12, v{O+13}, v10")
        a("v_exp_f32 v11, v11")
        a("v_exp_f32 v12, v12")
        a("s_nop 0")
        for k in range(12): a(f"v_mul_f32 v{ACC+k}, v{ACC+k}, v11")
        for k in range(12): a(f"v_fmac_f32 v{ACC+k}, v{O+k}, v12")
        for k in range(12): a(f"v_min_u32 v{ACC+k}, 0xfffffffe, v{ACC+k}")
        if self.exp_linear:
            a(f"s_lshl_b32 s{T+5}, s{S_G}, 3")
            a(f"s_add_u32 s{T+5}, s{T+5}, s{S_S}")
            a(f"s_lshl_b32 s{T+5}, s{T+5}, 2")
            a(f"s_add_u32 s{T+5}, s{T+5}, s{S_W}")
            a(f"s_mul_i32 s{T+5}, s{T+5}, 3072")
            a(f"s_add_u32 s{T+5}, s{T+5}, {WS_OP}")
            for ct in range(3):
                a(f"buffer_store_dwordx4 {vr(ACC+4*ct,4)}, v5, {srd('WS')}, s{T+5} offen offset:{ct*1024} sc1")
        else:
          for ct in range(3):
            a(f"buffer_store_dwordx4 {vr(ACC+4*ct,4)}, v15, {srd('WS')}, s{T+5} offen offset:{ct*64} sc1")
        a(f"v_mul_f32 v{LA}, v{LA}, v11")
        a(f"v_fmac_f32 v{LA}, v{O+12}, v12")
        a(f"v_min_u32 v11, 0xfffffffe, v{LA}")
        a("v_min_u32 v10, 0xfffffffe, v10")
        a(f"buffer_store_dwordx2 v[10:11], v14, {srd('WS')}, s{T+8} offen sc1")
        a.label(fin)
        self.stamp(7)

    def bset_final(self):
        a = self.a; T = S_T
        self.skip_if(f"s_cmp_ge_u32 s{S_LB}, 5", "L_bend")
        self.skip_if(f"s_cmp_lg_u32 s{S_W}, 0", "L_bend")
        a("v_lshlrev_b32 v5, 2, v1")
        for i in range(5):
            a(f"buffer_load_dword v{20+i}, v5, {srd('X')}, 0 offen offset:{256*i}")
            a(f"buffer_load_dword v{25+i}, v5, {srd('GW')}, 0 offen offset:{256*i}")
        a("v_mov_b32 v30, 0")
        a(f"s_mul_i32 s{T}, s{S_X}, 5")
        a(f"s_add_u32 s{T}, s{T}, s{S_LB}")
        a(f"s_lshl_b32 s{T+1}, s{T}, 6")
        a(f"s_add_u32 s{T+1}, s{T+1}, {WS_OUTP}")
        a("v_lshrrev_b32 v6, 2, v1")
        a("v_mul_u32_u24 v6, 2560, v6")
        a("v_and_b32 v7, 3, v1")
        a("v_lshl_add_u32 v6, v7, 4, v6")
        a("v_lshlrev_b32 v8, 2, v7")
        a("v_bfe_u32 v9, v1, 5, 1")
        a("v_lshl_add_u32 v8, v9, 1, v8")
        a("v_bfe_u32 v9, v1, 4, 1")
        a("v_add_u32 v8, v8, v9")
        a("v_lshlrev_b32 v11, 1, v8")
        a("v_and_b32 v9, 12, v1")
        a("v_mov_b32 v10, 0x7fffffff")
        a("v_cmp_eq_u32 vcc, 0, v9")
        a(f"s_lshl_b32 s{T+2}, s{T}, 5")
        a("v_cndmask_b32 v11, v10, v11, vcc")
        a("s_waitcnt vmcnt(0)")
        for i in range(5): a(f"v_dot2c_f32_bf16 v30, v{20+i}, v{25+i}")
        a("s_nop 2")
        for ctrl in ["quad_perm:[1,0,3,2]", "quad_perm:[2,3,0,1]", "row_half_mirror", "row_mirror"]:
            a(f"v_add_f32_dpp v30, v30, v30 {ctrl} row_mask:0xf bank_mask:0xf")
            a("s_nop 1")
        a("v_mov_b32 v31, v30")
        a("s_nop 1")
        a("v_permlane16_swap_b32 v30, v31")
        a("s_nop 1")
        a("v_add_f32 v30, v30, v31")
        a("v_mov_b32 v31, v30")
        a("s_nop 1")
        a("v_permlane32_swap_b32 v30, v31")
        a("s_nop 1")
        a("v_add_f32 v30, v30, v31")
        a(f"v_mul_f32 v30, 0x{f32bits(-math.log2(math.e)):08x}, v30")
        a("v_exp_f32 v30, v30")
        a("s_nop 0")
        a("v_add_f32 v30, 1.0, v30")
        a("v_rcp_f32 v30, v30")
        a("s_nop 0")
        a("v_sub_f32 v31, 1.0, v30")
        a("v_cmp_le_u32 vcc, 48, v1")
        a("s_nop 1")
        a("v_cndmask_b32 v30, v30, v31, vcc")
        O = 32
        for i in range(8): a(f"s_add_u32 s{T+3+i}, s{T+1}, {i*16*2560}")
        def f_issue(i):
            a(f"buffer_load_dwordx4 {vr(O+4*i,4)}, v6, {srd('WS')}, s{T+3+i} offen sc1")
        def f_check(i):
            a(f"v_max3_u32 v8, v{O+4*i}, v{O+4*i+1}, v{O+4*i+2}")
            a(f"v_max_u32 v8, v8, v{O+4*i+3}")
            a("v_cmp_eq_u32 vcc, -1, v8")
        self.gpoll(8, f_issue, f_check, masks=[24,26,28,30,32,34,36,38])
        self.stamp(9)
        self.stamp_val(18, S_CNT)
        for k in range(4):
            a(f"v_add_f32 v{O+k}, v{O+k}, v{O+4+k}")
            a(f"v_add_f32 v{O+8+k}, v{O+8+k}, v{O+12+k}")
            a(f"v_add_f32 v{O+16+k}, v{O+16+k}, v{O+20+k}")
            a(f"v_add_f32 v{O+24+k}, v{O+24+k}, v{O+28+k}")
        for k in range(4):
            a(f"v_add_f32 v{O+k}, v{O+k}, v{O+8+k}")
            a(f"v_add_f32 v{O+16+k}, v{O+16+k}, v{O+24+k}")
        for k in range(4): a(f"v_add_f32 v{O+k}, v{O+k}, v{O+16+k}")
        for k in range(4): a(f"v_mul_f32 v{O+k}, v{O+k}, v30")
        a("s_nop 1")
        a("v_permlane32_swap_b32 v32, v34")
        a("v_permlane32_swap_b32 v33, v35")
        a("s_nop 1")
        a("v_add_f32 v32, v32, v34")
        a("v_add_f32 v33, v33, v35")
        a("s_nop 1")
        a("v_permlane16_swap_b32 v32, v33")
        a("s_nop 1")
        a("v_add_f32 v32, v32, v33")
        a("s_nop 1")
        a("v_add_f32_dpp v32, v32, v32 row_ror:8 row_mask:0xf bank_mask:0xf")
        a("s_nop 1")
        a("v_add_f32_dpp v32, v32, v32 row_ror:4 row_mask:0xf bank_mask:0xf")
        a("s_nop 0")
        a("v_cvt_pk_bf16_f32 v32, v32, v32")
        a(f"buffer_store_short v32, v11, {srd('OUT')}, s{T+2} offen")
        noep = a.newlabel("noep")
        self.skip_if(f"s_cmp_lg_u32 s{T}, 0", noep)
        a(f"v_mov_b32 v6, s{S_EP}")
        a("v_mov_b32 v7, 0")
        a("s_mov_b64 exec, 1")
        a(f"buffer_store_dword v6, v7, {srd('WS')}, 0 offen sc1")
        a("s_mov_b64 exec, -1")
        a.label(noep)
        if self.dbl:
            a("s_waitcnt vmcnt(0)")
            a("s_memrealtime s[44:45]")
            a("s_waitcnt lgkmcnt(0)")
            a("s_sub_u32 s46, s44, s42")
            a(f"s_mul_i32 s46, s46, {self.dbl}")
            a("s_lshr_b32 s46, s46, 2")
            a("s_add_u32 s46, s46, s44")
            lp = a.newlabel("dbl")
            a.label(lp)
            a("s_memrealtime s[44:45]")
            a("s_waitcnt lgkmcnt(0)")
            a("s_sub_u32 s47, s44, s46")
            a("s_cmp_lt_i32 s47, 0")
            a(f"s_cbranch_scc1 {lp}")
        self.stamp(10)
        a.label("L_bend")

    def build(self):
        a = self.a
        self.prologue()
        self.bset_front()
        a("s_branch L_bs")
        a.label("L_aset")
        self.aset_front()
        a("s_branch L_aback")
        a.label("L_bs")
        self.bset_s_phase()
        self.bset_pv_phase()
        a("s_branch L_bfin")
        a.label("L_aback")
        self.aset_back()
        self.stamp_flush()
        a("s_branch L_exit")
        a.label("L_bfin")
        self.bset_final()
        self.stamp_flush()
        a.label("L_exit")
        a("s_endpgm")
        hdr = f"""; Hand-written (own generator script) persistent kernel: MLA decode with weight absorption + GLU + gated mix.
; @launch grid=(256,1,1) block=(512,1,1) lds=163840
.amdgcn_target "amdgcn-amd-amdhsa--gfx950"
.text
.globl {NAME}_kernel
.p2align 8
.type {NAME}_kernel,@function
{NAME}_kernel:
"""
        ftr = f""".section .rodata,"a"
.p2align 6
.amdhsa_kernel {NAME}_kernel
  .amdhsa_next_free_vgpr 256
  .amdhsa_next_free_sgpr 102
  .amdhsa_accum_offset 256
  .amdhsa_group_segment_fixed_size 0
  .amdhsa_kernarg_size 112
  .amdhsa_user_sgpr_count 2
  .amdhsa_user_sgpr_kernarg_segment_ptr 1
  .amdhsa_system_sgpr_workgroup_id_x 1
.end_amdhsa_kernel
"""
        return hdr + a.text() + ftr

if __name__ == "__main__":
    out = sys.argv[1] if len(sys.argv) > 1 else "k.s"
    kw = {}
    for arg in sys.argv[2:]:
        if arg == "--stamps": kw["stamps"] = True
        elif arg.startswith("--"):
            k, v = arg[2:].split("="); kw[k] = int(v)
    open(out, "w").write(Gen(**kw).build())
```

```python
import sys, math, struct

NAME = "gated_mix__compressed_kv_cla__glu_gated_glu__decode"

WS_EPOCH = 0
WS_CF    = 0x400
WS_QA    = 0x10000
WS_QPG   = 0x20000
WS_QPL   = 0x80000
WS_PBG   = 0x100000
WS_PBL   = 0x1A0000
WS_ML    = 0x240000
WS_OUTP  = 0x250000
WS_OP    = 0x2A0000
WS_ST    = 0x440000
WS_SIZE  = 0x480000
PBS = 2560

S_W, S_X, S_LI, S_H, S_J4, S_EP = 3, 4, 5, 6, 7, 8
S_LB, S_BLK, S_G, S_S = 10, 11, 12, 13
S_WSCF = 14
SRD = dict(X=16, CKV=20, WQ=24, WUK=28, WUV=32, WO=36, WG=44, WU=48, WD=52, GW=56, OUT=60, WS=64)
SRD_SIZE = dict(X=1280, CKV=12582912, WQ=7864320, WUK=9437184, WUV=9437184, WO=7864320,
                WG=1966080, WU=1966080, WD=1966080, GW=1280, OUT=1280, WS=WS_SIZE)
KARG = dict(X=0, CKV=8, WQ=16, WUK=24, WUV=32, WO=40, WG=56, WU=64, WD=72, GW=80, OUT=88, WS=104)
S_M8 = 72
S_T = 74
S_CNT = 96
S_PB = 97
S_PM = 15
S_STAMP = 98
POLL_LIMIT = 100000

class Asm:
    def __init__(self):
        self.L = []; self.uid = 0
    def __call__(self, s):
        for line in s.strip("\n").split("\n"):
            self.L.append("    " + line.strip())
    def label(self, n): self.L.append(n + ":")
    def newlabel(self, base):
        self.uid += 1
        return f"L_{base}_{self.uid}"
    def text(self):
        import re
        out = []
        for line in self.L:
            t = line.strip()
            if t.startswith("v_cndmask") and t.endswith("vcc"):
                st = 0; k = len(out) - 1; found = False
                while k >= 0 and st < 2:
                    p = out[k].strip()
                    if p.endswith(":"): break
                    if p.startswith("v_cmp") and "vcc" in p:
                        found = True; break
                    m = re.match(r"s_nop (\d+)", p)
                    st += int(m.group(1)) + 1 if m else 1
                    k -= 1
                if found and st < 2:
                    out.append(f"    s_nop {1 - st}")
            out.append(line)
        return "\n".join(out) + "\n"

def srd(n):
    b = SRD[n]; return f"s[{b}:{b+3}]"
def vr(b, n=1):
    return f"v{b}" if n == 1 else f"v[{b}:{b+n-1}]"
def f32bits(x):
    return struct.unpack("<I", struct.pack("<f", x))[0]

class Gen:
    def __init__(self, stamps=False, probe=-1, probew=0, dbl=0, dbgout=0, s_trig=0, wq_pf=0, sde=0, sde_win=24, perm=0, qa_order=0, early_frags=0, fin1=0, masked=1, qa_early=0, code_pf=17, tlb_warm=0, tlb_shift=21, nt_front=False, nt_ckv=False, nt_back=False, local=True, lperiod=8, a_delay=1, qa_ack=0, exp_linear=0, a_win=63, s_win=63, pv_win=63, mlpoll=2, exp_nobulk=0, a_probe=0, s_probe=0, exp_noclear=0, exp_nowuk=0):
        self.a = Asm()
        self.stamps = stamps
        self.NTF = " nt" if nt_front else ""
        self.NTC = " nt" if nt_ckv else ""
        self.NTB = " nt" if nt_back else ""
        self.local = local
        self.a_delay = a_delay
        self.qa_ack = qa_ack
        self.code_pf = code_pf
        self.probe = probe; self.probew = probew
        self.dbl = dbl
        self.dbgout = dbgout
        self.selB = [0, 24, 25, 26, 3, 21, 16, 17]; self.selA = [23, 1, 16, 4, 17, 6, 25, 26]
        self.s_trig = s_trig
        self.wq_pf = wq_pf
        self.sde = sde; self.sde_win = sde_win
        self.perm = perm
        self.qa_order = qa_order
        self.early_frags = early_frags; self.fin1 = fin1
        self.masked = masked; self.qa_early = qa_early
        self.tlb_warm = tlb_warm; self.tlb_shift = tlb_shift
        self.exp_noclear = exp_noclear; self.exp_nowuk = exp_nowuk
        self.a_probe = a_probe; self.s_probe = s_probe
        self.exp_nobulk = exp_nobulk
        self.a_win = a_win; self.s_win = s_win; self.pv_win = pv_win; self.mlpoll = mlpoll
        self.exp_linear = exp_linear
        self.lperiod = lperiod
        self.L_Q = 0; self.L_QS = 512; self.L_F = 3072; self.L_FLAG = 2048; self.L_X = 4096
        self.L_S = 8192; self.L_PA = 106496; self.L_RED = 57344; self.L_PR = 90112
        self.L_O = 4096; self.L_C = 12288; self.L_CB = 14336; self.L_R = 16384
        self.PVO = 212

    def stamp(self, idx):
        if not self.stamps: return
        a = self.a
        a(f"s_memrealtime s[{S_STAMP}:{S_STAMP+1}]")
        a("s_waitcnt lgkmcnt(0)")
        a(f"v_writelane_b32 v255, s{S_STAMP}, {idx}")
    def stamp_val(self, idx, sreg):
        if not self.stamps: return
        self.a(f"s_add_u32 s9, s{sreg}, 1")
        self.a(f"v_writelane_b32 v255, s9, {idx}")
    def stamp_flush(self):
        if not self.stamps: return
        a = self.a
        if self.probe >= 0:
            sk = a.newlabel("prb"); lp = a.newlabel("prl")
            a("s_lshl_b32 s9, s2, 3")
            a(f"s_add_u32 s9, s9, s{S_W}")
            self.skip_if(f"s_cmp_lg_u32 s9, {self.probew*8}", sk)
            a(f"v_readlane_b32 s46, v255, {self.probe}")
            a("s_nop 3")
            a("s_add_u32 s46, s46, 3000")
            a.label(lp)
            a("s_memrealtime s[44:45]")
            a("s_waitcnt lgkmcnt(0)")
            a("s_sub_u32 s47, s44, s46")
            a("s_cmp_lt_i32 s47, 0")
            a(f"s_cbranch_scc1 {lp}")
            a.label(sk)
            return
        if self.dbgout:
            sk = a.newlabel("dbo")
            a(f"s_and_b32 s9, s2, 127")
            a(f"s_lshl_b32 s9, s9, 3")
            a(f"s_add_u32 s9, s9, s{S_W}")
            self.skip_if(f"s_cmp_lg_u32 s9, {(self.dbgout-1)*8}", sk)
            a("s_load_dwordx2 s[40:41], s[0:1], 96")
            a("s_mov_b32 s42, 256")
            a("s_mov_b32 s43, 0x00020000")
            a("s_memtime s[46:47]")
            a("s_memrealtime s[48:49]")
            a("s_waitcnt lgkmcnt(0)")
            a("v_writelane_b32 v255, s46, 25")
            a("v_writelane_b32 v255, s48, 26")
            selB = self.selB; selA = self.selA
            a("s_cmp_lt_u32 s2, 128")
            a("s_cselect_b32 s9, 0, 32")
            for k in range(8):
                a(f"v_readlane_b32 s44, v255, {selB[k]}")
                a(f"v_readlane_b32 s45, v255, {selA[k]}")
                a("s_cmp_lt_u32 s2, 128")
                a("s_cselect_b32 s44, s44, s45")
                a(f"v_writelane_b32 v252, s44, {k}")
            a("v_lshlrev_b32 v253, 2, v1")
            a("v_add_u32 v253, s9, v253")
            a("s_waitcnt lgkmcnt(0)")
            a("s_mov_b64 exec, 0xff")
            a("buffer_store_dword v252, v253, s[40:43], 0 offen")
            a("s_mov_b64 exec, -1")
            a.label(sk)
            return
        a(f"s_lshl_b32 s{S_T+20}, s2, 3")
        a(f"s_add_u32 s{S_T+20}, s{S_T+20}, s{S_W}")
        a(f"s_lshl_b32 s{S_T+20}, s{S_T+20}, 7")
        a(f"s_add_u32 s{S_T+20}, s{S_T+20}, {WS_ST}")
        a("v_lshlrev_b32 v252, 2, v1")
        a("s_mov_b32 exec_lo, -1")
        a("s_mov_b32 exec_hi, 0")
        a(f"buffer_store_dword v255, v252, {srd('WS')}, s{S_T+20} offen")
        a("s_mov_b64 exec, -1")

    def treduce8(self, acc, t0, t1):
        a = self.a
        a("s_nop 2")
        for k in range(4): a(f"v_permlane32_swap_b32 v{acc+k}, v{acc+k+4}")
        a("s_nop 1")
        for k in range(4): a(f"v_add_f32 v{acc+k}, v{acc+k}, v{acc+k+4}")
        a("s_nop 1")
        for k in range(2): a(f"v_permlane16_swap_b32 v{acc+k}, v{acc+k+2}")
        a("s_nop 1")
        for k in range(2): a(f"v_add_f32 v{acc+k}, v{acc+k}, v{acc+k+2}")
        a("s_nop 0")
        a(f"v_cndmask_b32 v{t0}, v{acc}, v{acc+1}, s[{S_M8}:{S_M8+1}]")
        a(f"v_cndmask_b32 v{t1}, v{acc+1}, v{acc}, s[{S_M8}:{S_M8+1}]")
        a("s_nop 1")
        a(f"v_add_f32_dpp v{acc}, v{t1}, v{t0} row_ror:8 row_mask:0xf bank_mask:0xf")

    def skip_if(self, cmp, label):
        self.a(cmp); self.a(f"s_cbranch_scc1 {label}")

    def poll_begin(self, lbase=None, gbase=None):
        a = self.a
        l = a.newlabel("poll")
        a(f"s_mov_b32 s{S_CNT}, 0")
        a.label(l)
        if lbase is not None:
            if self.local:
                a(f"s_and_b32 s9, s{S_CNT}, {self.lperiod-1}")
                a(f"s_cmp_eq_u32 s9, {self.lperiod-1}")
                a(f"s_cselect_b32 s{S_PB}, s{gbase}, s{lbase}")
            else:
                a(f"s_mov_b32 s{S_PB}, s{gbase}")
        return l
    def poll_end(self, l, vbad):
        a = self.a
        ok = a.newlabel("ok")
        a(f"v_cmp_ne_u32 vcc, 0, v{vbad}")
        a(f"s_cbranch_vccz {ok}")
        a(f"s_add_u32 s{S_CNT}, s{S_CNT}, 1")
        a(f"s_cmp_lt_u32 s{S_CNT}, {POLL_LIMIT}")
        a(f"s_cbranch_scc1 {l}")
        a.label(ok)

    def gpoll(self, n, issue, check, pre=None, first_issued=False, masks=None):
        a = self.a
        top = a.newlabel("gp"); done = a.newlabel("gpd")
        if not self.masked: masks = None
        a(f"s_mov_b32 s{S_PM}, {(1<<n)-1}")
        a(f"s_mov_b32 s{S_CNT}, 0")
        if masks:
            for m in masks: a(f"s_mov_b64 s[{m}:{m+1}], -1")
        if first_issued:
            chk = a.newlabel("gpc")
            a(f"s_branch {chk}")
        a.label(top)
        if pre: pre()
        for i in range(n):
            sk = a.newlabel("gi")
            a(f"s_bitcmp0_b32 s{S_PM}, {i}")
            a(f"s_cbranch_scc1 {sk}")
            if masks: a(f"s_mov_b64 exec, s[{masks[i]}:{masks[i]+1}]")
            issue(i)
            a.label(sk)
        if masks: a("s_mov_b64 exec, -1")
        if first_issued: a.label(chk)
        a("s_waitcnt vmcnt(0)")
        for i in range(n):
            sk = a.newlabel("gc")
            a(f"s_bitcmp0_b32 s{S_PM}, {i}")
            a(f"s_cbranch_scc1 {sk}")
            check(i)
            if masks: a(f"s_mov_b64 s[{masks[i]}:{masks[i]+1}], vcc")
            a(f"s_cbranch_vccnz {sk}")
            a(f"s_bitset0_b32 s{S_PM}, {i}")
            a.label(sk)
        a(f"s_cmp_eq_u32 s{S_PM}, 0")
        a(f"s_cbranch_scc1 {done}")
        a(f"s_add_u32 s{S_CNT}, s{S_CNT}, 1")
        a(f"s_cmp_lt_u32 s{S_CNT}, {POLL_LIMIT}")
        a(f"s_cbranch_scc1 {top}")
        a.label(done)

    def lds_signal(self, base, widx_mask=3):
        a = self.a
        a(f"s_and_b32 s9, s{S_W}, {widx_mask}")
        a("s_lshl_b32 s9, s9, 2")
        a(f"s_add_u32 s9, s9, {self.L_FLAG+base}")
        a("v_mov_b32 v6, s9")
        a("v_mov_b32 v7, 1")
        a("ds_write_b32 v6, v7")
    def lds_wait(self, base, vt):
        a = self.a
        a(f"v_mov_b32 v6, {self.L_FLAG+base}")
        l = self.poll_begin()
        a(f"ds_read_b128 {vr(vt,4)}, v6")
        a("s_waitcnt lgkmcnt(0)")
        a(f"v_and_b32 v{vt}, v{vt}, v{vt+1}")
        a(f"v_and_b32 v{vt+2}, v{vt+2}, v{vt+3}")
        a(f"v_and_b32 v{vt}, v{vt}, v{vt+2}")
        a(f"v_xor_b32 v{vt}, 1, v{vt}")
        self.poll_end(l, vt)

    def cf_check(self, vb):
        a = self.a
        a(f"v_lshlrev_b32 v{vb+4}, 4, v1")
        l = self.poll_begin()
        a(f"buffer_load_dwordx4 {vr(vb,4)}, v{vb+4}, {srd('WS')}, s{S_WSCF} offen sc1")
        a("s_waitcnt vmcnt(0)")
        for k in range(4): a(f"v_xor_b32 v{vb+k}, s{S_EP}, v{vb+k}")
        a(f"v_or3_b32 v{vb}, v{vb}, v{vb+1}, v{vb+2}")
        a(f"v_or_b32 v{vb}, v{vb}, v{vb+3}")
        self.poll_end(l, vb)

    def mk_srd(self, n):
        a = self.a; b = SRD[n]
        if n != "WS":
            src = 76 + KARG[n] // 4
            a(f"s_mov_b64 s[{b}:{b+1}], s[{src}:{src+1}]")
        a(f"s_mov_b32 s{b+2}, {SRD_SIZE[n]}")
        a(f"s_mov_b32 s{b+3}, 0x00020000")

    def prologue(self):
        a = self.a; T = S_T
        if self.stamps or self.dbl: a("s_memrealtime s[42:43]")
        a("s_cmp_ge_u32 s2, 256")
        a("s_cbranch_scc1 L_exit")
        if self.perm == 1:
            a("s_lshr_b32 s3, s2, 3")
            a("s_and_b32 s2, s2, 7")
            a("s_lshl_b32 s2, s2, 5")
            a("s_or_b32 s2, s2, s3")
        elif self.perm:
            a(f"s_mul_i32 s2, s2, {self.perm}")
            a("s_and_b32 s2, s2, 255")
        a("s_load_dwordx16 s[76:91], s[0:1], 0")
        a("s_load_dwordx8 s[92:99], s[0:1], 64")
        a("s_load_dwordx2 s[64:65], s[0:1], 104")
        a("v_lshrrev_b32 v2, 6, v0")
        a("v_and_b32 v1, 63, v0")
        a(f"v_readfirstlane_b32 s{S_W}, v2")
        a(f"s_lshr_b32 s{S_LI}, s2, 3")
        a(f"s_and_b32 s{S_LI}, s{S_LI}, 15")
        if self.code_pf:
            npf = a.newlabel("npf"); lp = a.newlabel("pfl")
            a(f"s_and_b32 s9, s{S_LI}, 7")
            a("s_lshl_b32 s9, s9, 3")
            a(f"s_add_u32 s9, s9, s{S_W}")
            self.skip_if("s_cmp_lg_u32 s9, 7", npf)
            a("s_getpc_b64 s[40:41]")
            a("v_lshlrev_b32 v252, 4, v1")
            a(f"s_mov_b32 s9, {self.code_pf}")
            a.label(lp)
            a("global_load_dwordx4 v[248:251], v252, s[40:41]")
            a("v_add_u32 v252, 1024, v252")
            a("s_sub_u32 s9, s9, 1")
            a("s_cmp_lg_u32 s9, 0")
            a(f"s_cbranch_scc1 {lp}")
            a.label(npf)
        a(f"s_and_b32 s{S_X}, s2, 7")
        a(f"s_and_b32 s9, s{S_LI}, 3")
        a(f"s_lshl_b32 s{S_H}, s{S_X}, 2")
        a(f"s_add_u32 s{S_H}, s{S_H}, s9")
        a(f"s_lshr_b32 s{S_J4}, s{S_LI}, 2")
        a("v_lshrrev_b32 v2, 3, v1")
        a("v_and_b32 v3, 7, v1")
        a("v_mul_u32_u24 v4, 12288, v2")
        a("v_lshl_add_u32 v4, v3, 4, v4")
        a("s_cmp_lt_u32 s2, 128")
        a("s_cbranch_scc0 L_apre")
        a(f"s_cmp_ge_u32 s{S_W}, 3")
        a("s_cselect_b32 s100, 1, 0")
        a("s_mul_i32 s101, s100, 3")
        a(f"s_sub_u32 s101, s{S_W}, s101")
        a(f"s_mul_i32 s44, s{S_J4}, 160")
        a("s_mul_i32 s45, s100, 80")
        a("s_add_u32 s44, s44, s45")
        a("s_lshl_b32 s46, s44, 1")
        a("s_mul_i32 s44, s44, 12288")
        a(f"s_mul_i32 s45, s{S_H}, 384")
        a("s_add_u32 s44, s44, s45")
        a("s_lshl_b32 s45, s101, 7")
        a("s_add_u32 s44, s44, s45")
        a(f"s_mov_b32 s{SRD['WQ']+2}, {SRD_SIZE['WQ']}")
        a(f"s_mov_b32 s{SRD['WQ']+3}, 0x00020000")
        a("s_waitcnt lgkmcnt(0)")
        a(f"s_mov_b64 s[{SRD['WQ']}:{SRD['WQ']+1}], s[80:81]")
        nl = a.newlabel("bnl")
        self.skip_if(f"s_cmp_ge_u32 s{S_W}, 6", nl)
        for i in range(10):
            a(f"buffer_load_dwordx4 {vr(20+4*i,4)}, v4, {srd('WQ')}, s44 offen{self.NTF}")
            if i < 9: a("s_add_u32 s44, s44, 98304")
        a.label(nl)
        a("s_branch L_pre2")
        a.label("L_apre")
        a(f"s_lshr_b32 s100, s{S_W}, 1")
        a(f"s_and_b32 s101, s{S_W}, 1")
        a(f"s_mul_i32 s44, s{S_J4}, 192")
        a("s_mul_i32 s45, s100, 48")
        a("s_add_u32 s44, s44, s45")
        a("s_lshl_b32 s45, s101, 3")
        a("s_add_u32 s44, s44, s45")
        a("s_mul_i32 s44, s44, 12288")
        a(f"s_mul_i32 s45, s{S_H}, 384")
        a("s_add_u32 s44, s44, s45")
        a(f"s_mov_b32 s{SRD['WUK']+2}, {SRD_SIZE['WUK']}")
        a(f"s_mov_b32 s{SRD['WUK']+3}, 0x00020000")
        a("s_waitcnt lgkmcnt(0)")
        a(f"s_mov_b64 s[{SRD['WUK']}:{SRD['WUK']+1}], s[82:83]")
        if self.wq_pf:
            a(f"s_mov_b64 s[{SRD['WQ']}:{SRD['WQ']+1}], s[80:81]")
            a(f"s_mov_b32 s{SRD['WQ']+2}, {SRD_SIZE['WQ']}")
            a(f"s_mov_b32 s{SRD['WQ']+3}, 0x00020000")
            a(f"s_mul_i32 s46, s{S_J4}, 160")
            a(f"s_lshl_b32 s47, s{S_W}, 3")
            a("s_add_u32 s46, s46, s47")
            if self.wq_pf in (1, 3): a("s_add_u32 s46, s46, 80")
            a("s_mul_i32 s46, s46, 12288")
            a("s_add_u32 s46, s46, s45")
            if self.wq_pf in (1, 3):
                for t in range(3):
                    a(f"buffer_load_dwordx4 v[100:103], v4, {srd('WQ')}, s46 offen offset:{t*128}")
                a(f"s_add_u32 s46, s46, {64*12288}")
                npf2 = a.newlabel("npf2")
                self.skip_if(f"s_cmp_ge_u32 s{S_W}, 2", npf2)
                for t in range(3):
                    a(f"buffer_load_dwordx4 v[100:103], v4, {srd('WQ')}, s46 offen offset:{t*128}")
                a.label(npf2)
            else:
                for rep in range(3):
                    if rep == 2:
                        npf2 = a.newlabel("npf2")
                        self.skip_if(f"s_cmp_ge_u32 s{S_W}, 4", npf2)
                    for t in range(3):
                        a(f"buffer_load_dwordx4 v[100:103], v4, {srd('WQ')}, s46 offen offset:{t*128}")
                    if rep < 2: a(f"s_add_u32 s46, s46, {64*12288}")
                a.label(npf2)
            if self.wq_pf == 3: a("s_waitcnt vmcnt(0)")
        for f in range(3):
            for t in range(3):
                a(f"buffer_load_dwordx4 {vr(20+(f*3+t)*4,4)}, v4, {srd('WUK')}, s44 offen offset:{t*128}{self.NTF}")
            if f < 2: a("s_add_u32 s44, s44, 196608")
        a.label("L_pre2")
        a(f"s_load_dword s{S_EP}, s[64:65], {WS_EPOCH}")
        a(f"s_mov_b32 s{T}, s100")
        a(f"s_mov_b32 s{T+1}, s101")
        a(f"s_mov_b32 s{S_PM}, s46")
        for n in SRD: self.mk_srd(n)
        if self.stamps:
            a("v_mov_b32 v255, 0")
            self.stamp(0)
            a("v_writelane_b32 v255, s42, 23")
            a("s_memtime s[42:43]")
            a("s_waitcnt lgkmcnt(0)")
            a("v_writelane_b32 v255, s42, 24")
        a(f"s_mov_b32 s{S_M8}, 0xff00ff00")
        a(f"s_mov_b32 s{S_M8+1}, 0xff00ff00")
        a(f"s_mov_b32 s{S_WSCF}, {WS_CF}")
        a("s_cmp_lt_u32 s2, 128")
        a("s_cbranch_scc0 L_aset")

    def aset_front(self):
        a = self.a; T = S_T
        W0 = 20; QF = 56; ACC = 68
        a(f"s_lshl_b32 s{T+10}, s{S_X}, 4")
        a(f"s_add_u32 s{T+10}, s{T+10}, s{S_LI}")
        a(f"s_mul_i32 s{T+10}, s{T+10}, 2560")
        a(f"s_add_u32 s{T+10}, s{T+10}, {WS_OUTP}")
        a("v_mov_b32 v76, -1\nv_mov_b32 v77, -1\nv_mov_b32 v78, -1\nv_mov_b32 v79, -1")
        a("v_lshlrev_b32 v80, 4, v0")
        a("v_mov_b32 v81, 0x7fffffff")
        a("v_cmp_gt_u32 vcc, 160, v0")
        a("s_nop 1")
        a("v_cndmask_b32 v80, v81, v80, vcc")
        a(f"buffer_store_dwordx4 v[76:79], v80, {srd('WS')}, s{T+10} offen sc1")
        a("v_lshlrev_b32 v5, 2, v1")
        a("v_mov_b32 v6, 0")
        a(f"ds_write_b32 v5, v6 offset:{self.L_CB}")
        a(f"ds_write_b32 v5, v6 offset:{self.L_CB+256}")
        a(f"s_mul_i32 s{T+5}, s{S_H}, {8*1536}")
        a(f"s_add_u32 s{T+6}, s{T+5}, {WS_QPL}")
        a(f"s_add_u32 s{T+5}, s{T+5}, {WS_QPG}")
        a("s_waitcnt vmcnt(0) lgkmcnt(0)")
        a(f"s_add_u32 s{S_EP}, s{S_EP}, 1")
        self.stamp(1)
        skip = a.newlabel("e1skip")
        self.skip_if(f"s_cmp_ge_u32 s{S_W}, 3", skip)
        a("v_lshlrev_b32 v5, 3, v0")
        G = 84
        l = self.poll_begin(T+6, T+5)
        for p in range(8):
            a(f"buffer_load_dwordx2 {vr(G+2*p,2)}, v5, {srd('WS')}, s{S_PB} offen offset:{(p%2)*1536} sc1")
            if p % 2 == 1 and p < 7: a(f"s_add_u32 s{S_PB}, s{S_PB}, 3072")
        a("s_waitcnt vmcnt(0)")
        a(f"v_xor_b32 v6, s{S_EP}, v{G+1}")
        for p in range(1, 8):
            a(f"v_xor_b32 v7, s{S_EP}, v{G+2*p+1}")
            a("v_or_b32 v6, v6, v7")
        self.poll_end(l, 6)
        self.stamp_val(16, S_CNT)
        for p in range(1, 8): a(f"v_add_f32 v{G}, v{G}, v{G+2*p}")
        a(f"v_cvt_pk_bf16_f32 v6, v{G}, v{G}")
        a("v_lshlrev_b32 v7, 1, v0")
        a(f"ds_write_b16 v7, v6 offset:{self.L_Q}")
        a("s_waitcnt lgkmcnt(0)")
        a.label(skip)
        a("v_lshlrev_b32 v5, 4, v3")
        a(f"s_lshl_b32 s{T+7}, s{S_W}, 6")
        a("v_lshlrev_b32 v10, 1, v2")
        a(f"v_add_u32 v10, s{T+7}, v10")
        a("v_lshlrev_b32 v6, 4, v1")
        a("v_mov_b32 v7, 4")
        a("v_cmp_eq_u32 vcc, 3, v1")
        a("v_mov_b32 v8, 12")
        a("v_mov_b32 v9, 16")
        a("v_cndmask_b32 v6, v6, v8, vcc")
        a("v_cndmask_b32 v7, v7, v9, vcc")
        a("v_and_b32 v6, 63, v6")
        a(f"v_add_u32 v11, s{T+7}, v6")
        a("v_add_u32 v12, v11, v7")
        a("v_add_u32 v13, v12, v7")
        a(f"s_lshl_b32 s{T+8}, s{S_J4}, 2")
        a(f"s_add_u32 s{T+8}, s{T+8}, s{T}")
        a(f"s_lshl_b32 s{T+8}, s{T+8}, 12")
        a(f"s_lshl_b32 s{T+9}, s{T+1}, 9")
        a(f"s_add_u32 s{T+8}, s{T+8}, s{T+9}")
        a(f"s_lshl_b32 s{T+9}, s{S_H}, 4")
        a(f"s_add_u32 s{T+8}, s{T+8}, s{T+9}")
        a(f"s_add_u32 s{T+8}, s{T+8}, {WS_QA}")
        a("v_lshlrev_b32 v14, 10, v1")
        a("v_mov_b32 v7, 0x7fffffff")
        a("v_cmp_gt_u32 vcc, 4, v1")
        a(f"v_mov_b32 v75, s{S_EP}")
        a("v_cndmask_b32 v14, v7, v14, vcc")
        for f in range(3): a(f"v_mov_b32 v{ACC+f}, 0")
        a("s_barrier")
        self.stamp(2)
        for t in range(3):
            a(f"ds_read_b128 {vr(QF+4*t,4)}, v5 offset:{self.L_Q + t*128}")
        for t in range(3):
            a(f"s_waitcnt lgkmcnt({2-t})")
            for k in range(4):
                for f in range(3):
                    a(f"v_dot2c_f32_bf16 v{ACC+f}, v{W0+(f*3+t)*4+k}, v{QF+4*t+k}")
        a("s_nop 2")
        for ctrl in ["quad_perm:[1,0,3,2]", "quad_perm:[2,3,0,1]", "row_half_mirror"]:
            for f in range(3):
                a(f"v_add_f32_dpp v{ACC+f}, v{ACC+f}, v{ACC+f} {ctrl} row_mask:0xf bank_mask:0xf")
        for f in range(3): a(f"v_cvt_pk_bf16_f32 v{ACC+f}, v{ACC+f}, v{ACC+f}")
        for f in range(3): a(f"ds_write_b16 v10, v{ACC+f} offset:{self.L_QS + f*16}")
        a("s_waitcnt lgkmcnt(0)")
        a(f"ds_read_b32 v72, v11 offset:{self.L_QS}")
        a(f"ds_read_b32 v73, v12 offset:{self.L_QS}")
        a(f"ds_read_b32 v74, v13 offset:{self.L_QS}")
        a("s_waitcnt lgkmcnt(0)")
        a(f"buffer_store_dwordx4 v[72:75], v14, {srd('WS')}, s{T+8} offen sc1")
        self.stamp(3)
        if self.qa_ack: a("s_waitcnt vmcnt(0)")
        a("s_barrier")

    def wo_lane_offsets(self):
        a = self.a
        a("v_mul_u32_u24 v6, 52429, v0")
        a("v_lshrrev_b32 v6, 22, v6")
        a("v_mul_u32_u24 v7, 80, v6")
        a("v_sub_u32 v7, v0, v7")
        a("v_mul_u32_u24 v5, 1280, v6")
        a("v_lshl_add_u32 v5, v7, 4, v5")
        a("v_mov_b32 v8, 0x7fffffff")
        a("v_cmp_gt_u32 vcc, 480, v0")
        a("s_nop 1")
        a("v_cndmask_b32 v5, v8, v5, vcc")

    def preperm(self, W0, npairs, t0):
        a = self.a
        a("s_mov_b32 s94, 0x05040100")
        a("s_mov_b32 s95, 0x07060302")
        for p in range(npairs):
            for k in range(4):
                r0 = W0 + 8*p + k; r1 = r0 + 4
                a(f"v_perm_b32 v{t0}, v{r1}, v{r0}, s94")
                a(f"v_perm_b32 v{r1}, v{r1}, v{r0}, s95")
                a(f"v_mov_b32 v{r0}, v{t0}")

    def gemv_pairs(self, W0, npairs, CO, ACC):
        a = self.a
        for p in range(npairs):
            for k in range(4):
                a(f"v_dot2c_f32_bf16 v{ACC+2*k}, v{W0+8*p+k}, v{CO+p}")
            for k in range(4):
                a(f"v_dot2c_f32_bf16 v{ACC+2*k+1}, v{W0+8*p+4+k}, v{CO+p}")

    def out_reduce_publish(self, ACC, outp_soff):
        a = self.a
        a("s_nop 2")
        a(f"ds_write_b128 v129, {vr(ACC,4)} offset:{self.L_R}")
        a(f"ds_write_b128 v129, {vr(ACC+4,4)} offset:{self.L_R+16}")
        a("s_waitcnt lgkmcnt(0)")
        a("s_barrier")
        skip = a.newlabel("go")
        self.skip_if(f"s_cmp_ge_u32 s{S_W}, 3", skip)
        R = 132
        for sl in range(6):
            a(f"ds_read_b128 {vr(R+4*sl,4)}, v131 offset:{self.L_R+sl*2560}")
        a("s_waitcnt lgkmcnt(0)")
        for k in range(4):
            a(f"v_add_f32 v{R+k}, v{R+k}, v{R+4+k}")
            a(f"v_add_f32 v{R+8+k}, v{R+8+k}, v{R+12+k}")
            a(f"v_add_f32 v{R+16+k}, v{R+16+k}, v{R+20+k}")
        for k in range(4): a(f"v_add_f32 v{R+k}, v{R+k}, v{R+8+k}")
        for k in range(4): a(f"v_add_f32 v{R+k}, v{R+k}, v{R+16+k}")
        for k in range(4): a(f"v_min_u32 v{R+k}, 0xfffffffe, v{R+k}")
        a(f"buffer_store_dwordx4 {vr(R,4)}, v130, {srd('WS')}, s{outp_soff} offen sc1")
        a.label(skip)

    def write_pairs(self, vsrc, t0, t1, nvalid):
        a = self.a
        a(f"v_lshlrev_b32 v{t0}, 2, v1")
        a(f"v_add_u32 v{t1}, {self.L_CB - 24 + 2}, v{t0}")
        a(f"v_add_u32 v{t0}, {self.L_CB}, v{t0}")
        a(f"v_mov_b32 v{t0+2}, {self.L_CB + 500}")
        a("v_cmp_gt_u32 vcc, 6, v1")
        a("s_nop 1")
        a(f"v_cndmask_b32 v{t1}, v{t1}, v{t0+2}, vcc")
        if nvalid < 64:
            a(f"v_cmp_le_u32 vcc, {nvalid}, v1")
            a("s_nop 1")
            a(f"v_cndmask_b32 v{t1}, v{t1}, v{t0+2}, vcc")
            a(f"v_cndmask_b32 v{t0}, v{t0}, v{t0+2}, vcc")
        a(f"ds_write_b16 v{t0}, v{vsrc}")
        a(f"ds_write_b16 v{t1}, v{vsrc}")

    def out_addr_regs(self):
        a = self.a
        a("v_mul_u32_u24 v129, 2560, v6")
        a("v_lshl_add_u32 v129, v7, 5, v129")
        a("v_lshlrev_b32 v131, 4, v0")
        a("v_mov_b32 v130, 0x7fffffff")
        a("v_cmp_gt_u32 vcc, 160, v0")
        a("s_nop 1")
        a("v_cndmask_b32 v130, v130, v131, vcc")

    def aset_back(self):
        a = self.a; T = S_T
        self.wo_lane_offsets()
        self.out_addr_regs()
        if self.exp_nobulk:
            a(f"s_lshl_b32 s{T+1}, s{S_H}, 7")
            a(f"s_add_u32 s{T+1}, s{T+1}, {WS_ML}")
            a("v_and_b32 v14, 15, v1")
            a("v_lshlrev_b32 v14, 3, v14")
            self.cf_check(132)
            l = self.poll_begin()
            a(f"buffer_load_dwordx2 v[116:117], v14, {srd('WS')}, s{T+1} offen sc1")
            a("s_waitcnt vmcnt(0)")
            a("v_max_u32 v15, v116, v117")
            a("v_cmp_eq_u32 vcc, -1, v15")
            a("s_nop 1")
            a("v_cndmask_b32 v15, 0, 1, vcc")
            a("s_sleep 4")
            self.poll_end(l, 15)
        self.skip_if(f"s_cmp_ge_u32 s{S_LI}, 12", "L_bbranch")
        WV = 20; WO = 68
        a(f"s_mul_i32 s{T}, s{S_W}, {96*12288}")
        a(f"s_mul_i32 s{T+1}, s{S_H}, 384")
        a(f"s_add_u32 s{T}, s{T}, s{T+1}")
        a(f"s_lshl_b32 s{T+1}, s{S_J4}, 7")
        a(f"s_add_u32 s{T}, s{T}, s{T+1}")
        for i in range(12):
            a(f"buffer_load_dwordx4 {vr(WV+4*i,4)}, v4, {srd('WUV')}, s{T} offen{self.NTB}")
            if i >= self.a_win: a(f"s_waitcnt vmcnt({self.a_win})")
            if i < 11: a(f"s_add_u32 s{T}, s{T}, 98304")
        a(f"s_mul_i32 s{T}, s{S_H}, 192")
        a(f"s_lshl_b32 s{T+1}, s{S_J4}, 6")
        a(f"s_add_u32 s{T}, s{T}, s{T+1}")
        a(f"s_mul_i32 s{T}, s{T}, 1280")
        for i in range(10):
            a(f"buffer_load_dwordx4 {vr(WO+4*i,4)}, v5, {srd('WO')}, s{T} offen{self.NTB}")
            if 12 + i >= self.a_win: a(f"s_waitcnt vmcnt({self.a_win})")
            a(f"s_add_u32 s{T}, s{T}, 7680")
        a("v_cmp_gt_u32 vcc, 4, v6")
        a("s_nop 1")
        a("v_cndmask_b32 v9, v8, v5, vcc")
        a(f"buffer_load_dwordx4 {vr(WO+40,4)}, v9, {srd('WO')}, s{T} offen{self.NTB}")
        for k in range(4): a(f"v_mov_b32 v{WO+44+k}, 0")
        self.stamp(4)
        a("v_cmp_le_u32 vcc, 24, v1")
        a("s_nop 1")
        a("v_cndmask_b32 v10, 0, 1, vcc")
        a("v_mul_u32_u24 v11, 24, v10")
        a("v_sub_u32 v11, v1, v11")
        a("v_mul_u32_u24 v12, 384, v10")
        a("v_lshl_add_u32 v12, v11, 4, v12")
        a(f"s_lshl_b32 s{T+2}, s{S_W}, 10")
        a(f"s_add_u32 s{T+2}, s{T+2}, {self.L_O}")
        a(f"v_add_u32 v13, s{T+2}, v12")
        a("v_cmp_gt_u32 vcc, 48, v1")
        a("v_lshlrev_b32 v16, 2, v2")
        a(f"v_add_u32 v16, s{T+2}, v16")
        a("v_cndmask_b32 v12, v8, v12, vcc")
        a(f"s_lshl_b32 s{T}, s{S_H}, 3")
        a(f"s_add_u32 s{T}, s{T}, s{S_W}")
        a(f"s_mul_i32 s{T}, s{T}, {16*384}")
        a(f"s_add_u32 s{T}, s{T}, {WS_OP}")
        a(f"s_lshl_b32 s{T+1}, s{S_H}, 7")
        a(f"s_add_u32 s{T+1}, s{T+1}, {WS_ML}")
        a("v_and_b32 v14, 15, v1")
        a("v_lshlrev_b32 v14, 3, v14")
        a("v_lshlrev_b32 v121, 2, v10")
        a("v_lshlrev_b32 v17, 5, v3")
        a("v_lshl_add_u32 v17, v2, 2, v17")
        a(f"s_lshl_b32 s{T+3}, s{S_W}, 8")
        a(f"v_add_u32 v17, s{T+3}, v17")
        a("v_lshlrev_b32 v18, 2, v6")
        a("v_lshlrev_b32 v172, 2, v1")
        a(f"v_add_u32 v173, {self.L_CB - 24 + 2}, v172")
        a(f"v_add_u32 v172, {self.L_CB}, v172")
        a(f"v_mov_b32 v174, {self.L_CB + 500}")
        a("v_cmp_gt_u32 vcc, 6, v1")
        a("s_nop 1")
        a("v_cndmask_b32 v173, v173, v174, vcc")
        a("s_waitcnt vmcnt(11)")
        self.preperm(WV, 6, 128)
        a("s_waitcnt vmcnt(0)")
        self.preperm(WO, 6, 128)
        self.stamp(5)
        self.cf_check(132)
        OPV = 132
        def e4_issue(i):
            if i == 8:
                a(f"buffer_load_dwordx2 v[116:117], v14, {srd('WS')}, s{T+1} offen sc1")
            else:
                so = T if i < 4 else T+2
                a(f"buffer_load_dwordx4 {vr(OPV+4*i,4)}, v12, {srd('WS')}, s{so} offen offset:{(i%4)*768} sc1")
        def e4_check(i):
            if i == 8:
                a("v_max_u32 v15, v116, v117")
            else:
                a(f"v_max3_u32 v15, v{OPV+4*i}, v{OPV+4*i+1}, v{OPV+4*i+2}")
                a(f"v_max_u32 v15, v15, v{OPV+4*i+3}")
            a("v_cmp_eq_u32 vcc, -1, v15")
        a(f"s_add_u32 s{T+2}, s{T}, 3072")
        if self.mlpoll == 1:
            l = self.poll_begin()
            a(f"buffer_load_dwordx2 v[116:117], v14, {srd('WS')}, s{T+1} offen sc1")
            a("s_waitcnt vmcnt(0)")
            a("v_max_u32 v15, v116, v117")
            a("v_cmp_eq_u32 vcc, -1, v15")
            a("s_nop 1")
            a("v_cndmask_b32 v15, 0, 1, vcc")
            self.poll_end(l, 15)
            self.gpoll(8, e4_issue, e4_check, masks=[20,22,24,26,28,30,44,46])
        elif self.mlpoll == 2:
            l = a.newlabel("mla"); ok = a.newlabel("mlo")
            a(f"s_mov_b32 s{S_CNT}, 0")
            a.label(l)
            a(f"buffer_load_dwordx2 v[116:117], v14, {srd('WS')}, s{T+1} offen sc1")
            a("s_waitcnt vmcnt(0)")
            a("v_max_u32 v15, v116, v117")
            a("v_cmp_ne_u32 vcc, -1, v15")
            a(f"s_cbranch_vccnz {ok}")
            a("s_sleep 2")
            a(f"s_add_u32 s{S_CNT}, s{S_CNT}, 1")
            a(f"s_cmp_lt_u32 s{S_CNT}, {POLL_LIMIT}")
            a(f"s_cbranch_scc1 {l}")
            a.label(ok)
            self.gpoll(9, e4_issue, e4_check, masks=[20,22,24,26,28,30,44,46,48])
        else:
            self.gpoll(9, e4_issue, e4_check)
        self.stamp(6)
        self.stamp_val(17, S_CNT)
        a("v_mov_b32 v118, v116")
        a("s_nop 1")
        for ctrl in ["quad_perm:[1,0,3,2]", "quad_perm:[2,3,0,1]", "row_half_mirror", "row_mirror"]:
            a(f"v_max_f32_dpp v118, v118, v118 {ctrl} row_mask:0xf bank_mask:0xf")
            a("s_nop 1")
        a("v_sub_f32 v119, v116, v118")
        a("v_exp_f32 v119, v119")
        a("s_nop 0")
        a("v_mul_f32 v120, v117, v119")
        WN = 164
        for i in range(8): a(f"ds_bpermute_b32 v{WN+i}, v121, v119 offset:{8*i}")
        for ctrl in ["quad_perm:[1,0,3,2]", "quad_perm:[2,3,0,1]", "row_half_mirror", "row_mirror"]:
            a(f"v_add_f32_dpp v120, v120, v120 {ctrl} row_mask:0xf bank_mask:0xf")
            a("s_nop 1")
        a("v_rcp_f32 v120, v120")
        a("s_waitcnt lgkmcnt(0)")
        for k in range(4): a(f"v_mul_f32 v{122+k}, v{WN}, v{OPV+k}")
        for i in range(1, 8):
            for k in range(4): a(f"v_fmac_f32 v{122+k}, v{WN+i}, v{OPV+4*i+k}")
        for k in range(4): a(f"v_mul_f32 v{122+k}, v{122+k}, v120")
        a("s_mov_b32 exec_hi, 0xffff")
        a("ds_write_b128 v13, v[122:125]")
        a("s_mov_b32 exec_hi, -1")
        a("s_waitcnt lgkmcnt(0)")
        OV = 132
        for i in range(12):
            a(f"ds_read2_b32 {vr(OV+2*i,2)}, v16 offset0:{8*i} offset1:{8*i+96}")
        ACC = 120
        for k in range(8): a(f"v_mov_b32 v{ACC+k}, 0")
        CO = 160
        for p in range(6):
            a(f"s_waitcnt lgkmcnt({10-2*p})")
            a(f"v_add_f32 v{OV+4*p}, v{OV+4*p}, v{OV+4*p+1}")
            a(f"v_add_f32 v{OV+4*p+2}, v{OV+4*p+2}, v{OV+4*p+3}")
            a(f"v_cvt_pk_bf16_f32 v{CO+p}, v{OV+4*p}, v{OV+4*p+2}")
        self.gemv_pairs(WV, 6, CO, ACC)
        self.treduce8(ACC, 128, 118)
        a(f"ds_write_b32 v17, v{ACC} offset:{self.L_C}")
        a("s_waitcnt lgkmcnt(0)")
        a("s_barrier")
        self.stamp(7)
        skip = a.newlabel("cx")
        self.skip_if(f"s_cmp_lg_u32 s{S_W}, 0", skip)
        a("v_lshlrev_b32 v13, 2, v1")
        for w in range(8): a(f"ds_read_b32 v{132+w}, v13 offset:{self.L_C+w*256}")
        a("s_waitcnt lgkmcnt(0)")
        a("v_add_f32 v132, v132, v133\nv_add_f32 v134, v134, v135\nv_add_f32 v136, v136, v137\nv_add_f32 v138, v138, v139")
        a("v_add_f32 v132, v132, v134\nv_add_f32 v136, v136, v138")
        a("v_add_f32 v132, v132, v136")
        a("v_cvt_pk_bf16_f32 v132, v132, v132")
        a("ds_write_b16 v172, v132")
        a("ds_write_b16 v173, v132")
        a("s_waitcnt lgkmcnt(0)")
        a.label(skip)
        for k in range(8): a(f"v_mov_b32 v{ACC+k}, 0")
        a("s_barrier")
        for p in range(6):
            a(f"ds_read_b32 v{CO+p}, v18 offset:{self.L_CB+48*p}")
        a("s_waitcnt lgkmcnt(0)")
        self.gemv_pairs(WO, 6, CO, ACC)
        self.out_reduce_publish(ACC, T+10)
        self.stamp(8)
        a("s_branch L_aend")

        a.label("L_bbranch")
        WG = 20; XB = 84; WD = 160
        a("v_lshlrev_b32 v19, 2, v6")
        a(f"s_lshl_b32 s{T}, s{S_X}, 2")
        a(f"s_add_u32 s{T}, s{T}, s{S_LI}")
        a(f"s_sub_u32 s{T}, s{T}, 12")
        a("v_mul_u32_u24 v10, 43, v1")
        a("v_lshrrev_b32 v10, 8, v10")
        a("v_mul_u32_u24 v11, 6, v10")
        a("v_sub_u32 v11, v1, v11")
        a("v_mul_u32_u24 v12, 3072, v10")
        a("v_lshl_add_u32 v12, v11, 4, v12")
        a("v_cmp_gt_u32 vcc, 60, v1")
        a("v_lshlrev_b32 v13, 1, v10")
        a("v_cndmask_b32 v12, v8, v12, vcc")
        a(f"s_and_b32 s{T+1}, s{S_W}, 3")
        a(f"s_mul_i32 s{T+2}, s{T+1}, 320")
        for i in range(16):
            a(f"buffer_load_ushort v{XB+i}, v13, {srd('X')}, s{T+2} offen offset:{20*i}")
        a(f"s_mul_i32 s{T+2}, s{T+1}, {160*3072}")
        a(f"s_mul_i32 s{T+3}, s{T}, 96")
        a(f"s_add_u32 s{T+2}, s{T+2}, s{T+3}")
        up = a.newlabel("up"); upd = a.newlabel("upd")
        self.skip_if(f"s_cmp_ge_u32 s{S_W}, 4", up)
        for i in range(16):
            a(f"buffer_load_dwordx4 {vr(WG+4*i,4)}, v12, {srd('WG')}, s{T+2} offen{self.NTB}")
            if i >= self.a_win: a(f"s_waitcnt vmcnt({self.a_win})")
            a(f"s_add_u32 s{T+2}, s{T+2}, 30720")
        a(f"s_branch {upd}")
        a.label(up)
        for i in range(16):
            a(f"buffer_load_dwordx4 {vr(WG+4*i,4)}, v12, {srd('WU')}, s{T+2} offen{self.NTB}")
            if i >= self.a_win: a(f"s_waitcnt vmcnt({self.a_win})")
            a(f"s_add_u32 s{T+2}, s{T+2}, 30720")
        a.label(upd)
        a(f"s_mul_i32 s{T+2}, s{T}, {48*1280}")
        for i in range(8):
            a(f"buffer_load_dwordx4 {vr(WD+4*i,4)}, v5, {srd('WD')}, s{T+2} offen{self.NTB}")
            if 16 + i >= self.a_win: a(f"s_waitcnt vmcnt({self.a_win})")
            a(f"s_add_u32 s{T+2}, s{T+2}, 7680")
        ACC = 120
        for k in range(8): a(f"v_mov_b32 v{ACC+k}, 0")
        for i in range(16):
            a(f"s_waitcnt vmcnt({8+15-i})")
            a(f"v_lshlrev_b32 v128, 16, v{XB+i}")
            for k in range(4): a(f"v_dot2c_f32_bf16 v{ACC+2*k}, v{WG+4*i+k}, v{XB+i}")
            for k in range(4): a(f"v_dot2c_f32_bf16 v{ACC+2*k+1}, v{WG+4*i+k}, v128")
        a(f"s_mul_i32 s{T+2}, s{S_W}, 1920")
        a("v_mul_u32_u24 v13, 192, v10")
        a("v_lshl_add_u32 v13, v11, 5, v13")
        a(f"v_add_u32 v13, s{T+2}, v13")
        a("s_mov_b32 exec_hi, 0x0fffffff")
        a(f"ds_write_b128 v13, {vr(ACC,4)} offset:{self.L_R}")
        a(f"ds_write_b128 v13, {vr(ACC+4,4)} offset:{self.L_R+16}")
        a("s_mov_b32 exec_hi, -1")
        a("s_waitcnt lgkmcnt(0)")
        a("s_barrier")
        skip = a.newlabel("bg")
        self.skip_if(f"s_cmp_ge_u32 s{S_W}, 2", skip)
        a("v_cmp_le_u32 vcc, 48, v0")
        a("v_mov_b32 v14, 7488")
        a("v_lshlrev_b32 v13, 2, v0")
        a("v_cndmask_b32 v14, 0, v14, vcc")
        a("v_add_u32 v13, v13, v14")
        a("v_min_u32 v13, 7868, v13")
        for j in range(40):
            a(f"ds_read_b32 v{20+j}, v13 offset:{self.L_R+j*192}")
            if j % 8 == 7: a("s_waitcnt lgkmcnt(0)")
        for j in range(1, 40): a(f"v_add_f32 v20, v20, v{20+j}")
        a("v_lshlrev_b32 v13, 2, v0")
        a(f"ds_write_b32 v13, v20 offset:{self.L_C}")
        a("s_waitcnt lgkmcnt(0)")
        a.label(skip)
        a("s_barrier")
        skip = a.newlabel("bh")
        self.skip_if(f"s_cmp_lg_u32 s{S_W}, 0", skip)
        a("v_lshlrev_b32 v13, 2, v1")
        a(f"ds_read_b32 v20, v13 offset:{self.L_C}")
        a(f"ds_read_b32 v21, v13 offset:{self.L_C+192}")
        a("s_waitcnt lgkmcnt(0)")
        a(f"v_mul_f32 v20, 0x{f32bits(-math.log2(math.e)):08x}, v20")
        a("v_exp_f32 v20, v20")
        a("s_nop 0")
        a("v_add_f32 v20, 1.0, v20")
        a("v_rcp_f32 v20, v20")
        a("s_nop 0")
        a("v_mul_f32 v20, v20, v21")
        a("v_cvt_pk_bf16_f32 v20, v20, v20")
        self.write_pairs(20, 13, 14, 48)
        a("s_waitcnt lgkmcnt(0)")
        a.label(skip)
        for k in range(8): a(f"v_mov_b32 v{ACC+k}, 0")
        a("s_waitcnt vmcnt(0)")
        self.preperm(WD, 4, 128)
        a("s_barrier")
        CO = 100
        for p in range(4):
            a(f"ds_read_b32 v{CO+p}, v19 offset:{self.L_CB+48*p}")
        a("s_waitcnt lgkmcnt(0)")
        self.gemv_pairs(WD, 4, CO, ACC)
        self.out_reduce_publish(ACC, T+10)
        self.stamp(8)
        a.label("L_aend")

    def bset_ids(self):
        a = self.a
        a(f"s_mov_b32 s{S_LB}, s{S_LI}")
        a(f"s_lshl_b32 s{S_BLK}, s{S_X}, 5")
        a(f"s_lshl_b32 s9, s{S_LB}, 1")
        a(f"s_add_u32 s{S_BLK}, s{S_BLK}, s9")
        a(f"s_lshl_b32 s{S_G}, s{S_X}, 1")
        a(f"s_lshr_b32 s9, s{S_LB}, 3")
        a(f"s_add_u32 s{S_G}, s{S_G}, s9")
        a(f"s_and_b32 s{S_S}, s{S_LB}, 7")

    def pv_lane_offsets(self):
        a = self.a
        for n in range(3):
            a(f"v_add_u32 v5, {64*n}, v1")
            a("v_mul_u32_u24 v6, 5462, v5")
            a("v_lshrrev_b32 v6, 16, v6")
            a("v_mul_u32_u24 v7, 12, v6")
            a("v_sub_u32 v7, v5, v7")
            a("v_mul_u32_u24 v6, 1536, v6")
            a(f"v_lshl_add_u32 v{self.PVO+n}, v7, 4, v6")

    def pv_dma(self, kp, ldsbase, nw, w0):
        a = self.a; T = S_T + 8
        per = 48 // nw; rows = 256 // nw
        a(f"s_sub_u32 s{T+2}, s{S_W}, {w0}")
        a(f"s_lshl_b32 s{T}, s{S_G}, 9")
        a(f"s_mul_i32 s{T+1}, s{T+2}, {rows}")
        a(f"s_add_u32 s{T}, s{T}, s{T+1}")
        if kp: a(f"s_add_u32 s{T}, s{T}, 256")
        a(f"s_mul_i32 s{T}, s{T}, 1536")
        a(f"s_mul_i32 s{T+1}, s{S_S}, 192")
        a(f"s_add_u32 s{T}, s{T}, s{T+1}")
        a(f"s_mul_i32 s{T+1}, s{T+2}, {per*1024}")
        a(f"s_add_u32 s{T+1}, s{T+1}, {ldsbase}")
        for n in range(per):
            a(f"s_add_u32 m0, s{T+1}, {n*1024}")
            if n % 3 == 0 and n > 0: a(f"s_add_u32 s{T}, s{T}, {16*1536}")
            else: a("s_nop 0")
            a(f"buffer_load_dwordx4 v{self.PVO+(n%3)}, {srd('CKV')}, s{T} offen{self.NTC} lds")
            if self.pv_win < 63: a(f"s_waitcnt vmcnt({self.pv_win})")

    def s_dma_prep(self):
        a = self.a
        a("v_mov_b32 v216, 0")
        a("v_mov_b32 v219, v1")
        a("v_cmp_le_u32 vcc, 32, v1")
        a("v_add_u32 v5, 64, v1")
        a("v_subrev_u32 v6, 32, v1")
        a("v_cndmask_b32 v217, 0, 1, vcc")
        a("v_cndmask_b32 v220, v5, v6, vcc")
        a("v_mov_b32 v218, 1")
        a("v_add_u32 v221, 32, v1")
        for b in range(3): a(f"v_mul_u32_u24 v{222+b}, 1536, v{216+b}")
        T = S_T + 8
        a(f"s_and_b32 s{T+2}, s{S_W}, 1")
        a(f"s_lshl_b32 s{T+2}, s{T+2}, 3")
        for aa in range(4):
            for b in range(3):
                n = 3*aa + b
                a(f"s_add_u32 s{T+4}, s{T+2}, {2*aa}")
                a(f"v_add_u32 v5, s{T+4}, v{216+b}")
                a(f"v_xor_b32 v5, v5, v{219+b}")
                a(f"v_lshl_add_u32 v{226+n}, v5, 4, v{222+b}")

    def s_dma(self):
        a = self.a; T = S_T + 8
        a(f"s_lshl_b32 s{T}, s{S_X}, 10")
        a(f"s_lshl_b32 s{T+1}, s{S_LB}, 6")
        a(f"s_add_u32 s{T}, s{T}, s{T+1}")
        a(f"s_lshl_b32 s{T+1}, s{S_W}, 3")
        a(f"s_add_u32 s{T}, s{T}, s{T+1}")
        a(f"s_mul_i32 s{T}, s{T}, 1536")
        a(f"s_mul_i32 s{T+3}, s{S_W}, 12288")
        a(f"s_add_u32 s{T+3}, s{T+3}, {self.L_S}")
        for n in range(12):
            a(f"s_add_u32 m0, s{T+3}, {n*1024}")
            if n % 3 == 0 and n > 0: a(f"s_add_u32 s{T}, s{T}, {2*1536}")
            else: a("s_nop 0")
            a(f"buffer_load_dwordx4 v{226+n}, {srd('CKV')}, s{T} offen{self.NTC} lds")
            if n >= self.s_win: a(f"s_waitcnt vmcnt({self.s_win})")
            if self.s_probe and n == self.s_probe-1: a(f"s_waitcnt vmcnt({self.s_probe-1})")

    def s_dma_early(self):
        a = self.a; T = S_T + 8
        a(f"s_sub_u32 s{T+2}, s{S_W}, 6")
        a(f"s_lshl_b32 s{T}, s{S_X}, 10")
        a(f"s_lshl_b32 s{T+1}, s{S_LB}, 6")
        a(f"s_add_u32 s{T}, s{T}, s{T+1}")
        a(f"s_lshl_b32 s{T+1}, s{T+2}, 5")
        a(f"s_add_u32 s{T}, s{T}, s{T+1}")
        a(f"s_mul_i32 s{T}, s{T}, 1536")
        a(f"s_mul_i32 s{T+3}, s{T+2}, 49152")
        a(f"s_add_u32 s{T+3}, s{T+3}, {self.L_S}")
        for aa in range(16):
            for b in range(3):
                n = 3*aa + b
                a(f"v_add_u32 v5, {(2*aa) & 15}, v{216+b}")
                a(f"v_xor_b32 v5, v5, v{219+b}")
                a(f"v_lshl_add_u32 v5, v5, 4, v{222+b}")
                a(f"s_add_u32 m0, s{T+3}, {n*1024}")
                a(f"s_add_u32 s{T+5}, s{T}, {2*aa*1536}")
                a(f"buffer_load_dwordx4 v5, {srd('CKV')}, s{T+5} offen{self.NTC} lds")
                if n >= self.sde_win: a(f"s_waitcnt vmcnt({self.sde_win})")

    def bset_clears(self):
        a = self.a; T = S_T + 8
        a("v_subrev_u32 v5, 384, v0")
        a("v_mov_b32 v76, -1\nv_mov_b32 v77, -1\nv_mov_b32 v78, -1\nv_mov_b32 v79, -1")
        a("v_lshlrev_b32 v6, 4, v5")
        a("v_mov_b32 v7, 0x7fffffff")
        a("v_cmp_gt_u32 vcc, 64, v5")
        a(f"s_mul_i32 s{T+2}, s{S_BLK}, {PBS}")
        a("v_cndmask_b32 v8, v7, v6, vcc")
        for base in (WS_PBG, WS_PBL):
            a(f"s_add_u32 s{T+3}, s{T+2}, {base}")
            a(f"buffer_store_dwordx4 v[76:79], v6, {srd('WS')}, s{T+3} offen sc1")
            a(f"buffer_store_dwordx4 v[76:79], v6, {srd('WS')}, s{T+3} offen offset:2048 sc1")
            a(f"s_add_u32 s{T+3}, s{T+3}, 4096")
            a(f"buffer_store_dwordx4 v[76:79], v8, {srd('WS')}, s{T+3} offen sc1")
        a(f"s_lshl_b32 s{T+5}, s{S_S}, 4")
        a(f"s_add_u32 s{T+5}, s{T+5}, s{S_G}")
        a(f"s_mul_i32 s{T+5}, s{T+5}, 384")
        a(f"s_add_u32 s{T+5}, s{T+5}, {WS_OP}")
        a(f"s_mov_b32 s{T+6}, 49152")
        for i in range(6):
            a(f"v_add_u32 v8, {128*i}, v5")
            a("v_mul_u32_u24 v9, 2731, v8")
            a("v_lshrrev_b32 v9, 16, v9")
            a("v_mul_u32_u24 v70, 24, v9")
            a("v_sub_u32 v70, v8, v70")
            a(f"v_mul_lo_u32 v9, v9, s{T+6}")
            a("v_lshl_add_u32 v9, v70, 4, v9")
            a(f"buffer_store_dwordx4 v[76:79], v9, {srd('WS')}, s{T+5} offen sc1")
        a("v_lshlrev_b32 v8, 7, v5")
        a("v_cmp_gt_u32 vcc, 32, v5")
        a(f"s_lshl_b32 s{T+5}, s{S_G}, 3")
        a(f"s_add_u32 s{T+5}, s{T+5}, {WS_ML}")
        a("v_cndmask_b32 v8, v7, v8, vcc")
        a(f"s_cmp_eq_u32 s{S_S}, 0")
        a(f"s_cselect_b32 s{T+5}, s{T+5}, 0x7fffff00")
        a(f"buffer_store_dwordx2 v[76:77], v8, {srd('WS')}, s{T+5} offen sc1")

    def bset_front(self):
        a = self.a; T = S_T
        XV = 10; W0 = 20; ACC = 60
        a(f"v_mov_b32 v5, {self.L_FLAG}")
        for k in range(4): a(f"v_mov_b32 v{6+k}, 0")
        a("ds_write_b128 v5, v[6:9]")
        a("ds_write_b128 v5, v[6:9] offset:16")
        a("ds_write_b128 v5, v[6:9] offset:32")
        a("ds_write_b128 v5, v[6:9] offset:48")
        a("ds_write_b128 v5, v[6:9] offset:64")
        a("v_lshlrev_b32 v5, 1, v2")
        a(f"v_add_u32 v9, s{S_PM}, v5")
        nox = a.newlabel("nox")
        self.skip_if(f"s_cmp_lg_u32 s{S_W}, 6", nox)
        a("v_lshlrev_b32 v8, 4, v1")
        a(f"buffer_load_dwordx4 v[20:23], v8, {srd('X')}, 0 offen")
        a(f"buffer_load_dwordx4 v[24:27], v8, {srd('X')}, 0 offen offset:1024")
        a.label(nox)
        self.bset_ids()
        self.pv_lane_offsets()
        self.s_dma_prep()
        nox2 = a.newlabel("nox2")
        self.skip_if(f"s_cmp_lg_u32 s{S_W}, 6", nox2)
        a("s_waitcnt vmcnt(0)")
        a(f"ds_write_b128 v8, v[20:23] offset:{self.L_X}")
        a(f"ds_write_b128 v8, v[24:27] offset:{self.L_X+1024}")
        a.label(nox2)
        a("s_waitcnt lgkmcnt(0)")
        a("s_barrier")
        ldr = a.newlabel("p1ldr"); j = a.newlabel("p1j")
        self.skip_if(f"s_cmp_ge_u32 s{S_W}, 6", ldr)
        a(f"s_lshl_b32 s{T+5}, s{S_H}, 3")
        a(f"s_lshl_b32 s{T+6}, s{S_J4}, 1")
        a(f"s_add_u32 s{T+5}, s{T+5}, s{T+6}")
        a(f"s_add_u32 s{T+5}, s{T+5}, s{T}")
        a(f"s_mul_i32 s{T+5}, s{T+5}, 1536")
        a(f"s_lshl_b32 s{T+6}, s{T+1}, 9")
        a(f"s_add_u32 s{T+5}, s{T+5}, s{T+6}")
        a(f"s_add_u32 s{T+6}, s{T+5}, {WS_QPG}")
        a(f"s_add_u32 s{T+5}, s{T+5}, {WS_QPL}")
        a("v_lshlrev_b32 v5, 6, v3")
        a("v_lshl_add_u32 v5, v2, 3, v5")
        for k in range(8): a(f"v_mov_b32 v{ACC+k}, 0")
        for i in range(10):
            a(f"ds_read_u16 v{XV+i}, v9 offset:{self.L_X+16*i}")
        a("s_waitcnt lgkmcnt(0)")
        a(f"s_add_u32 s{S_EP}, s{S_EP}, 1")
        for i in range(10):
            a(f"s_waitcnt vmcnt({9-i})")
            if i == 9: self.stamp(13)
            a(f"v_lshlrev_b32 v68, 16, v{XV+i}")
            for k in range(4): a(f"v_dot2c_f32_bf16 v{ACC+2*k}, v{W0+4*i+k}, v{XV+i}")
            for k in range(4): a(f"v_dot2c_f32_bf16 v{ACC+2*k+1}, v{W0+4*i+k}, v68")
        self.treduce8(ACC, 68, 69)
        a(f"v_mov_b32 v{ACC+1}, s{S_EP}")
        if self.local:
            a(f"buffer_store_dwordx2 {vr(ACC,2)}, v5, {srd('WS')}, s{T+5} offen")
        a(f"buffer_store_dwordx2 {vr(ACC,2)}, v5, {srd('WS')}, s{T+6} offen sc1")
        self.stamp(1)
        a(f"s_branch {j}")
        a.label(ldr)
        if not self.exp_noclear: self.bset_clears()
        a("s_waitcnt lgkmcnt(0)")
        a(f"s_add_u32 s{S_EP}, s{S_EP}, 1")
        def cf_store():
            a(f"s_lshl_b32 s{T+13}, s2, 1")
            a(f"s_add_u32 s{T+13}, s{T+13}, s{S_W}")
            a(f"s_lshl_b32 s{T+13}, s{T+13}, 2")
            a(f"s_add_u32 s{T+13}, s{T+13}, {WS_CF - 24}")
            a(f"v_mov_b32 v5, s{S_EP}")
            a("v_mov_b32 v6, 0")
            a("s_mov_b64 exec, 1")
            a(f"buffer_store_dword v5, v6, {srd('WS')}, s{T+13} offen sc1")
            a("s_mov_b64 exec, -1")
        nocf = a.newlabel("nocf")
        if self.s_trig:
            notr = a.newlabel("notr")
            self.skip_if(f"s_cmp_lg_u32 s{S_W}, 7", notr)
            a(f"s_mul_i32 s{T+5}, s{S_H}, {8*1536}")
            a(f"s_add_u32 s{T+6}, s{T+5}, {WS_QPL}")
            a(f"s_add_u32 s{T+5}, s{T+5}, {WS_QPG}")
            a("v_and_b32 v5, 7, v1")
            a("v_mul_u32_u24 v5, 1536, v5")
            l = self.poll_begin(T+6, T+5)
            a(f"buffer_load_dwordx2 v[20:21], v5, {srd('WS')}, s{S_PB} offen sc1")
            a("s_waitcnt vmcnt(0)")
            a(f"v_xor_b32 v20, s{S_EP}, v21")
            self.poll_end(l, 20)
            if self.s_trig == 2:
                a(f"s_lshl_b32 s{T+5}, s{S_H}, 4")
                a(f"s_add_u32 s{T+5}, s{T+5}, {WS_QA}")
                a("v_mov_b32 v5, 0")
                l = self.poll_begin()
                a(f"buffer_load_dwordx4 v[20:23], v5, {srd('WS')}, s{T+5} offen sc1")
                a("s_waitcnt vmcnt(0)")
                a(f"v_xor_b32 v20, s{S_EP}, v23")
                self.poll_end(l, 20)
            a.label(notr)
        if self.sde:
            self.s_dma_early()
            cf_store()
            a.label(j)
        else:
            a.label(j)
            a("s_barrier")
            self.s_dma()
            self.skip_if(f"s_cmp_lt_u32 s{S_W}, 6", nocf)
            a("s_waitcnt vmcnt(12)")
            cf_store()
        a.label(nocf)
        self.stamp(2)

    def bset_s_phase(self):
        a = self.a; T = S_T
        QA = 20; AF = 84; ACC = 180
        a("v_and_b32 v6, 31, v1")
        a("v_lshrrev_b32 v7, 5, v1")
        a("v_and_b32 v8, 15, v6")
        a("v_xor_b32 v8, v8, v7")
        a("v_mul_u32_u24 v6, 1536, v6")
        a(f"v_add_u32 v6, {self.L_S}, v6")
        a(f"s_mul_i32 s{T+2}, s{S_W}, 24")
        for i in range(12):
            a(f"s_add_u32 s{T+3}, s{T+2}, {2*i}")
            a(f"v_xor_b32 v9, s{T+3}, v8")
            a(f"v_lshl_add_u32 v{226+i}, v9, 4, v6")
        a(f"s_lshl_b32 s{T}, s{S_W}, 14")
        a(f"s_add_u32 s{T}, s{T}, {WS_QA}")
        a("v_lshlrev_b32 v5, 4, v1")
        for g in range(4): a(f"s_add_u32 s{T+9+g}, s{T}, {4096*g}")
        def qa_first():
            for n in range(16):
                a(f"buffer_load_dwordx4 {vr(QA+4*n,4)}, v5, {srd('WS')}, s{T+9+n//4} offen offset:{(n%4)*1024} sc1")
        if self.qa_early:
            a("s_barrier")
            notS0 = a.newlabel("notS0")
            self.skip_if(f"s_cmp_ge_u32 s{S_W}, 4", notS0)
            qa_first()
            a("s_waitcnt vmcnt(16)")
            a.label(notS0)
            nw = a.newlabel("nw")
            self.skip_if(f"s_cmp_lt_u32 s{S_W}, 4", nw)
            a("s_waitcnt vmcnt(0)")
            a.label(nw)
        else:
            a("s_waitcnt vmcnt(0)")
        a("s_barrier")
        self.stamp(3)
        notS = a.newlabel("notS"); j4 = a.newlabel("j4")
        self.skip_if(f"s_cmp_ge_u32 s{S_W}, 4", notS)
        if not self.qa_early and not self.qa_order: qa_first()
        for i in range(12):
            a(f"ds_read_b128 {vr(AF+4*i,4)}, v{226+i}")
            a(f"ds_read_b128 {vr(AF+48+4*i,4)}, v{226+i} offset:49152")
            if i == 5: a("s_waitcnt lgkmcnt(0)")
        a("s_waitcnt lgkmcnt(0)")
        a("s_barrier")
        self.stamp(21)
        if self.qa_order:
            qa_first()
            if self.qa_order == 2: self.lds_signal(64)
        a(f"s_lshl_b32 s{T+2}, s{S_W}, 13")
        a(f"s_add_u32 s{T+2}, s{T+2}, {self.L_RED}")
        a(f"v_add_u32 v10, s{T+2}, v5")
        a(f"s_lshl_b32 s{T+2}, s{S_W}, 10")
        a(f"s_add_u32 s{T+2}, s{T+2}, {self.L_RED}")
        a(f"v_add_u32 v11, s{T+2}, v5")
        a("v_bfe_u32 v12, v1, 4, 1")
        a("v_lshlrev_b32 v12, 10, v12")
        a("v_and_b32 v9, 15, v1")
        a("v_lshl_add_u32 v12, v9, 4, v12")
        a("v_lshrrev_b32 v9, 5, v1")
        a("v_lshl_add_u32 v12, v9, 3, v12")
        a("v_and_b32 v13, 31, v1")
        a("v_lshlrev_b32 v13, 2, v13")
        a("v_mov_b32 v9, 0x7fffffff")
        a("v_cmp_gt_u32 vcc, 32, v1")
        a(f"s_mul_i32 s{T+4}, s{S_BLK}, {PBS}")
        a("v_cndmask_b32 v13, v9, v13, vcc")
        a(f"s_lshl_b32 s{T+3}, s{S_W}, 8")
        a(f"s_add_u32 s{T+5}, s{T+4}, s{T+3}")
        a(f"s_lshl_b32 s{T+3}, s{S_W}, 7")
        a(f"s_add_u32 s{T+6}, s{T+4}, s{T+3}")
        a(f"s_add_u32 s{T+6}, s{T+6}, 2048")
        def qa_issue(g):
            for k in range(4):
                n = 4*g + k
                a(f"buffer_load_dwordx4 {vr(QA+4*n,4)}, v5, {srd('WS')}, s{T+9+g} offen offset:{k*1024} sc1")
        def qa_check(g):
            a(f"v_xor_b32 v6, s{S_EP}, v{QA+16*g+3}")
            for k in range(1, 4):
                a(f"v_xor_b32 v7, s{S_EP}, v{QA+16*g+4*k+3}")
                a("v_or_b32 v6, v6, v7")
            a("v_cmp_ne_u32 vcc, 0, v6")
        self.gpoll(4, qa_issue, qa_check, first_issued=True, masks=[24,26,28,30])
        self.stamp(4)
        self.stamp_val(16, S_CNT)
        for sg in range(4):
            for f in range(3): a(f"v_mov_b32 v{QA+(sg*4+f)*4+3}, v{QA+(sg*4+3)*4+f}")
        a("s_nop 0")
        for i in range(12):
            sg, f = i // 3, i % 3
            B = QA + (sg*4+f)*4
            for kb in range(2):
                c = "0" if i == 0 else vr(ACC+16*kb, 16)
                a(f"v_mfma_f32_32x32x16_bf16 {vr(ACC+16*kb,16)}, {vr(AF+48*kb+4*i,4)}, {vr(B,4)}, {c}")
        a("s_nop 3")
        a("s_nop 7")
        for q in range(4): a(f"ds_write_b128 v10, {vr(ACC+4*q,4)} offset:{q*1024}")
        a("s_nop 3")
        for q in range(4): a(f"ds_write_b128 v10, {vr(ACC+16+4*q,4)} offset:{(4+q)*1024}")
        a("s_waitcnt lgkmcnt(0)")
        self.stamp(8)
        self.lds_signal(16)
        self.lds_wait(16, 20)
        R = 20
        for src in range(4):
            for kb in range(2):
                a(f"ds_read_b128 {vr(R+(src*2+kb)*4,4)}, v11 offset:{src*8192+kb*4096}")
        a(f"s_mov_b32 s{T+3}, 0x{f32bits(192**-0.5*math.log2(math.e)):08x}")
        a("s_waitcnt lgkmcnt(4)")
        for k in range(8): a(f"v_add_f32 v{R+k}, v{R+k}, v{R+8+k}")
        a("s_waitcnt lgkmcnt(0)")
        reads = []
        if self.early_frags:
            self.lds_wait(32, 60)
            self.stamp(14)
            reads = self.pv_read_frags(self.L_S, defer=True)
        def v(ins):
            a(ins)
            if reads: a(reads.pop(0))
        for k in range(8): v(f"v_add_f32 v{R+16+k}, v{R+16+k}, v{R+24+k}")
        for k in range(8): v(f"v_add_f32 v{R+k}, v{R+k}, v{R+16+k}")
        for k in range(8): v(f"v_mul_f32 v{R+k}, s{T+3}, v{R+k}")
        for kb in range(2):
            v(f"v_max3_f32 v{R+8+kb}, v{R+kb*4}, v{R+kb*4+1}, v{R+kb*4+2}")
        for kb in range(2):
            v(f"v_max_f32 v{R+8+kb}, v{R+8+kb}, v{R+kb*4+3}")
        a(f"v_mov_b32 v{R+10}, v{R+8}")
        a(f"v_mov_b32 v{R+11}, v{R+9}")
        a("s_nop 1")
        a(f"v_permlane32_swap_b32 v{R+8}, v{R+10}")
        a(f"v_permlane32_swap_b32 v{R+9}, v{R+11}")
        a("s_nop 1")
        a(f"v_max_f32 v{R+8}, v{R+8}, v{R+10}")
        a(f"v_max_f32 v{R+9}, v{R+9}, v{R+11}")
        a(f"v_ceil_f32 v{R+8}, v{R+8}")
        a(f"v_ceil_f32 v{R+9}, v{R+9}")
        for kb in range(2):
            for r in range(4): v(f"v_sub_f32 v{R+kb*4+r}, v{R+kb*4+r}, v{R+8+kb}")
        for k in range(8): v(f"v_exp_f32 v{R+k}, v{R+k}")
        a(f"v_min_u32 v{R+8}, 0xfffffffe, v{R+8}")
        a(f"v_min_u32 v{R+9}, 0xfffffffe, v{R+9}")
        P = R + 12
        for kb in range(2):
            a(f"v_cvt_pk_bf16_f32 v{P+kb*2}, v{R+kb*4}, v{R+kb*4+1}")
            a(f"v_cvt_pk_bf16_f32 v{P+kb*2+1}, v{R+kb*4+2}, v{R+kb*4+3}")
        for k in range(4): a(f"v_and_b32 v{P+k}, 0x7fff7fff, v{P+k}")
        paths = ([(WS_PBL, "")] if self.local else []) + [(WS_PBG, " sc1")]
        for base, fl in paths:
            a(f"s_add_u32 s{T+7}, s{T+5}, {base}")
            a(f"s_add_u32 s{T+8}, s{T+6}, {base}")
            a(f"buffer_store_dwordx2 {vr(P,2)}, v12, {srd('WS')}, s{T+7} offen{fl}")
            a(f"buffer_store_dwordx2 {vr(P+2,2)}, v12, {srd('WS')}, s{T+7} offen offset:{PBS}{fl}")
            a(f"buffer_store_dword v{R+8}, v13, {srd('WS')}, s{T+8} offen{fl}")
            a(f"buffer_store_dword v{R+9}, v13, {srd('WS')}, s{T+8} offen offset:{PBS}{fl}")
        self.stamp(5)
        for r in reads: a(r)
        if not self.early_frags:
            self.lds_wait(32, 60)
            self.stamp(14)
            self.pv_read_frags(self.L_S)
        a(f"s_branch {j4}")
        a.label(notS)
        a("s_barrier")
        if self.qa_order == 2: self.lds_wait(64, 20)
        self.pv_dma(0, self.L_PA, 4, 4)
        self.pv_dma(1, self.L_S, 4, 4)
        self.stamp(20)
        a("s_waitcnt vmcnt(12)")
        self.lds_signal(0)
        self.lds_wait(0, 20)
        self.stamp(19)
        self.pv_read_frags(self.L_PA)
        a("s_waitcnt vmcnt(0)")
        self.lds_signal(32)
        nocf = a.newlabel("nocf")
        self.skip_if(f"s_cmp_lg_u32 s{S_W}, 4", nocf)
        self.cf_check(20)
        a(f"v_mov_b32 v6, {self.L_FLAG+48}")
        a("v_mov_b32 v7, 1")
        a("ds_write_b32 v6, v7")
        a.label(nocf)
        self.stamp(14)
        a.label(j4)

    def pv_read_frags(self, base, defer=False):
        a = self.a; T = S_T + 8; AF = 84
        a("v_lshrrev_b32 v14, 4, v1")
        a("v_and_b32 v15, 15, v1")
        a("v_lshrrev_b32 v16, 2, v15")
        a("v_lshl_add_u32 v16, v14, 3, v16")
        a("v_mul_u32_u24 v16, 192, v16")
        a("v_and_b32 v15, 3, v15")
        a("v_lshl_add_u32 v16, v15, 3, v16")
        a(f"s_lshr_b32 s9, s{S_W}, 1")
        a("s_and_b32 s9, s9, 1")
        a("s_mul_i32 s9, s9, 96")
        a(f"s_add_u32 s9, s9, {base}")
        a("v_add_u32 v16, s9, v16")
        reads = []
        for bb in range(8):
            for ct in range(3):
                r = AF + (bb*3+ct)*4; off = bb*6144 + ct*32
                reads.append(f"ds_read_b64_tr_b16 {vr(r,2)}, v16 offset:{off}")
                reads.append(f"ds_read_b64_tr_b16 {vr(r+2,2)}, v16 offset:{off+768}")
        if defer: return reads
        for n, r in enumerate(reads):
            a(r)
            if n % 12 == 11: a("s_waitcnt lgkmcnt(6)")

    def bset_pv_phase(self):
        a = self.a; T = S_T
        AF = 84; P = 20; MI = 52; DL = 60; ACC = 180; LA = 192; ON = 196
        a(f"s_cmp_lt_u32 s{S_W}, 4")
        a(f"s_cselect_b32 s{T}, 8, 0")
        a(f"s_lshl_b32 s{T+1}, s{S_G}, 4")
        a(f"s_add_u32 s{T+1}, s{T+1}, s{T}")
        a(f"s_and_b32 s{T+2}, s{S_W}, 1")
        a(f"s_mul_i32 s{T+3}, s{T+1}, {PBS}")
        a(f"s_lshl_b32 s{T+4}, s{T+2}, 10")
        a(f"s_add_u32 s{T+3}, s{T+3}, s{T+4}")
        a(f"s_add_u32 s{T+4}, s{T+3}, {WS_PBG}")
        a(f"s_add_u32 s{T+3}, s{T+3}, {WS_PBL}")
        a("v_lshlrev_b32 v5, 4, v1")
        a("v_and_b32 v6, 15, v1")
        a("v_lshlrev_b32 v6, 2, v6")
        a("v_lshrrev_b32 v7, 4, v1")
        a("v_lshl_add_u32 v6, v7, 7, v6")
        a(f"s_mul_i32 s{T+5}, s{T+2}, 960")
        a(f"s_sub_u32 s{T+5}, 2048, s{T+5}")
        a(f"v_add_u32 v6, s{T+5}, v6")
        for k in range(4): a(f"v_mov_b32 v{ON+k}, 0x3f803f80")
        a("v_and_b32 v14, 15, v1")
        a(f"s_mov_b32 s{T+5}, 49152")
        a(f"v_mul_lo_u32 v15, v14, s{T+5}")
        a("v_lshl_add_u32 v15, v7, 4, v15")
        a(f"s_mul_i32 s{T+5}, s{T+2}, {16*49152}")
        a(f"s_lshl_b32 s{T+6}, s{S_S}, 4")
        a(f"s_add_u32 s{T+6}, s{T+6}, s{S_G}")
        a(f"s_mul_i32 s{T+6}, s{T+6}, 384")
        a(f"s_add_u32 s{T+5}, s{T+5}, s{T+6}")
        a(f"s_lshr_b32 s{T+6}, s{S_W}, 1")
        a(f"s_and_b32 s{T+6}, s{T+6}, 1")
        a(f"s_mul_i32 s{T+7}, s{T+6}, 192")
        a(f"s_add_u32 s{T+5}, s{T+5}, s{T+7}")
        a(f"s_add_u32 s{T+5}, s{T+5}, {WS_OP}")
        a("v_lshlrev_b32 v14, 7, v14")
        a("v_mov_b32 v16, 0x7fffffff")
        a("v_cmp_gt_u32 vcc, 16, v1")
        a(f"s_lshl_b32 s{T+8}, s{T+2}, 11")
        a(f"s_lshl_b32 s{T+7}, s{S_G}, 3")
        a(f"s_add_u32 s{T+8}, s{T+8}, s{T+7}")
        a(f"s_add_u32 s{T+8}, s{T+8}, {WS_ML}")
        a("v_cndmask_b32 v14, v16, v14, vcc")
        a(f"s_or_b32 s{T+7}, s{T+6}, s{S_S}")
        a(f"s_cmp_eq_u32 s{T+7}, 0")
        a(f"s_cselect_b32 s{T+8}, s{T+8}, 0x7fffff00")
        a(f"s_and_b32 s{T+9}, s{S_W}, 3")
        a(f"s_lshl_b32 s{T+9}, s{T+9}, 12")
        a(f"s_add_u32 s{T+9}, s{T+9}, {self.L_PR}")
        a(f"v_add_u32 v17, s{T+9}, v5")
        def p_pre():
            if self.local:
                a(f"s_and_b32 s9, s{S_CNT}, {self.lperiod-1}")
                a(f"s_cmp_eq_u32 s9, {self.lperiod-1}")
                a(f"s_cselect_b32 s{S_PB}, s{T+4}, s{T+3}")
            else:
                a(f"s_mov_b32 s{S_PB}, s{T+4}")
        def p_issue(bb):
            a(f"s_add_u32 s9, s{S_PB}, {bb*PBS}")
            a(f"buffer_load_dwordx4 {vr(P+4*bb,4)}, v5, {srd('WS')}, s9 offen sc1")
            a(f"buffer_load_dword v{MI+bb}, v6, {srd('WS')}, s9 offen sc1")
        def p_check(bb):
            a(f"v_or3_b32 v7, v{P+4*bb}, v{P+4*bb+1}, v{P+4*bb+2}")
            a(f"v_or_b32 v7, v7, v{P+4*bb+3}")
            a("v_and_b32 v7, 0x80008000, v7")
            a(f"v_cmp_eq_u32 vcc, -1, v{MI+bb}")
            a("s_nop 1")
            a("v_cndmask_b32 v8, 0, 1, vcc")
            a("v_or_b32 v7, v7, v8")
            a("v_cmp_ne_u32 vcc, 0, v7")
        a(f"v_mov_b32 v7, {self.L_FLAG+48}")
        l = self.poll_begin()
        a("ds_read_b32 v8, v7")
        a("s_waitcnt lgkmcnt(0)")
        a("v_xor_b32 v8, 1, v8")
        self.poll_end(l, 8)
        self.stamp(15)
        self.gpoll(8, p_issue, p_check, pre=p_pre, masks=[24,26,28,30,32,34,36,38])
        self.stamp(6)
        self.stamp_val(17, S_CNT)
        a(f"v_max3_f32 v9, v{MI}, v{MI+1}, v{MI+2}")
        a(f"v_max3_f32 v9, v9, v{MI+3}, v{MI+4}")
        a(f"v_max3_f32 v9, v9, v{MI+5}, v{MI+6}")
        a(f"v_max_f32 v9, v9, v{MI+7}")
        a("v_mov_b32 v10, v9")
        a("s_nop 1")
        a("v_permlane16_swap_b32 v9, v10")
        a("s_nop 1")
        a("v_max_f32 v9, v9, v10")
        a("v_mov_b32 v10, v9")
        a("s_nop 1")
        a("v_permlane32_swap_b32 v9, v10")
        a("s_nop 1")
        a("v_max_f32 v9, v9, v10")
        a(f"s_mov_b32 s{T+10}, 0x437f0000")
        a(f"s_mov_b32 s{T+11}, 0x00800080")
        for bb in range(8): a(f"v_sub_f32 v{DL+bb}, v9, v{MI+bb}")
        for bb in range(8): a(f"v_min_f32 v{DL+bb}, s{T+10}, v{DL+bb}")
        for bb in range(8): a(f"v_cvt_u32_f32 v{DL+bb}, v{DL+bb}")
        for bb in range(8): a(f"v_mul_u32_u24 v{DL+bb}, s{T+11}, v{DL+bb}")
        for k in range(4): a(f"v_pk_sub_u16 v{P+k}, v{P+k}, v{DL} clamp")
        for bb in range(8):
            if bb < 7:
                for k in range(4): a(f"v_pk_sub_u16 v{P+4*(bb+1)+k}, v{P+4*(bb+1)+k}, v{DL+bb+1} clamp")
            else:
                a("s_nop 1")
            for ct in range(3):
                c = "0" if bb == 0 else vr(ACC+4*ct, 4)
                a(f"v_mfma_f32_16x16x32_bf16 {vr(ACC+4*ct,4)}, {vr(AF+(bb*3+ct)*4,4)}, {vr(P+4*bb,4)}, {c}")
            c = "0" if bb == 0 else vr(LA, 4)
            a(f"v_mfma_f32_16x16x32_bf16 {vr(LA,4)}, {vr(ON,4)}, {vr(P+4*bb,4)}, {c}")
        a("s_nop 7")
        self.stamp(11)
        kp1 = a.newlabel("kp1")
        self.skip_if(f"s_cmp_lt_u32 s{S_W}, 4", kp1)
        a(f"v_mov_b32 v{LA+1}, v9")
        for ct in range(3): a(f"ds_write_b128 v17, {vr(ACC+4*ct,4)} offset:{ct*1024}")
        a(f"ds_write_b128 v17, {vr(LA,4)} offset:3072")
        a("s_waitcnt lgkmcnt(0)")
        a.label(kp1)
        a("s_barrier")
        self.stamp(12)
        fin = a.newlabel("pvfin")
        self.skip_if(f"s_cmp_ge_u32 s{S_W}, 4", fin)
        O = 20
        for k in range(4): a(f"ds_read_b128 {vr(O+4*k,4)}, v17 offset:{k*1024}")
        a("s_waitcnt lgkmcnt(0)")
        a(f"v_max_f32 v10, v9, v{O+13}")
        a("v_sub_f32 v11, v9, v10")
        a(f"v_sub_f32 v12, v{O+13}, v10")
        a("v_exp_f32 v11, v11")
        a("v_exp_f32 v12, v12")
        a("s_nop 0")
        for k in range(12): a(f"v_mul_f32 v{ACC+k}, v{ACC+k}, v11")
        for k in range(12): a(f"v_fmac_f32 v{ACC+k}, v{O+k}, v12")
        for k in range(12): a(f"v_min_u32 v{ACC+k}, 0xfffffffe, v{ACC+k}")
        if self.exp_linear:
            a(f"s_lshl_b32 s{T+5}, s{S_G}, 3")
            a(f"s_add_u32 s{T+5}, s{T+5}, s{S_S}")
            a(f"s_lshl_b32 s{T+5}, s{T+5}, 2")
            a(f"s_add_u32 s{T+5}, s{T+5}, s{S_W}")
            a(f"s_mul_i32 s{T+5}, s{T+5}, 3072")
            a(f"s_add_u32 s{T+5}, s{T+5}, {WS_OP}")
            for ct in range(3):
                a(f"buffer_store_dwordx4 {vr(ACC+4*ct,4)}, v5, {srd('WS')}, s{T+5} offen offset:{ct*1024} sc1")
        else:
          for ct in range(3):
            a(f"buffer_store_dwordx4 {vr(ACC+4*ct,4)}, v15, {srd('WS')}, s{T+5} offen offset:{ct*64} sc1")
        a(f"v_mul_f32 v{LA}, v{LA}, v11")
        a(f"v_fmac_f32 v{LA}, v{O+12}, v12")
        a(f"v_min_u32 v11, 0xfffffffe, v{LA}")
        a("v_min_u32 v10, 0xfffffffe, v10")
        a(f"buffer_store_dwordx2 v[10:11], v14, {srd('WS')}, s{T+8} offen sc1")
        a.label(fin)
        self.stamp(7)

    def bset_final(self):
        a = self.a; T = S_T
        self.skip_if(f"s_cmp_ge_u32 s{S_LB}, 5", "L_bend")
        self.skip_if(f"s_cmp_lg_u32 s{S_W}, 0", "L_bend")
        a("v_lshlrev_b32 v5, 2, v1")
        for i in range(5):
            a(f"buffer_load_dword v{20+i}, v5, {srd('X')}, 0 offen offset:{256*i}")
            a(f"buffer_load_dword v{25+i}, v5, {srd('GW')}, 0 offen offset:{256*i}")
        a("v_mov_b32 v30, 0")
        a(f"s_mul_i32 s{T}, s{S_X}, 5")
        a(f"s_add_u32 s{T}, s{T}, s{S_LB}")
        a(f"s_lshl_b32 s{T+1}, s{T}, 6")
        a(f"s_add_u32 s{T+1}, s{T+1}, {WS_OUTP}")
        a("v_lshrrev_b32 v6, 2, v1")
        a("v_mul_u32_u24 v6, 2560, v6")
        a("v_and_b32 v7, 3, v1")
        a("v_lshl_add_u32 v6, v7, 4, v6")
        a("v_lshlrev_b32 v8, 2, v7")
        a("v_bfe_u32 v9, v1, 5, 1")
        a("v_lshl_add_u32 v8, v9, 1, v8")
        a("v_bfe_u32 v9, v1, 4, 1")
        a("v_add_u32 v8, v8, v9")
        a("v_lshlrev_b32 v11, 1, v8")
        a("v_and_b32 v9, 12, v1")
        a("v_mov_b32 v10, 0x7fffffff")
        a("v_cmp_eq_u32 vcc, 0, v9")
        a(f"s_lshl_b32 s{T+2}, s{T}, 5")
        a("v_cndmask_b32 v11, v10, v11, vcc")
        a("s_waitcnt vmcnt(0)")
        for i in range(5): a(f"v_dot2c_f32_bf16 v30, v{20+i}, v{25+i}")
        a("s_nop 2")
        for ctrl in ["quad_perm:[1,0,3,2]", "quad_perm:[2,3,0,1]", "row_half_mirror", "row_mirror"]:
            a(f"v_add_f32_dpp v30, v30, v30 {ctrl} row_mask:0xf bank_mask:0xf")
            a("s_nop 1")
        a("v_mov_b32 v31, v30")
        a("s_nop 1")
        a("v_permlane16_swap_b32 v30, v31")
        a("s_nop 1")
        a("v_add_f32 v30, v30, v31")
        a("v_mov_b32 v31, v30")
        a("s_nop 1")
        a("v_permlane32_swap_b32 v30, v31")
        a("s_nop 1")
        a("v_add_f32 v30, v30, v31")
        a(f"v_mul_f32 v30, 0x{f32bits(-math.log2(math.e)):08x}, v30")
        a("v_exp_f32 v30, v30")
        a("s_nop 0")
        a("v_add_f32 v30, 1.0, v30")
        a("v_rcp_f32 v30, v30")
        a("s_nop 0")
        a("v_sub_f32 v31, 1.0, v30")
        a("v_cmp_le_u32 vcc, 48, v1")
        a("s_nop 1")
        a("v_cndmask_b32 v30, v30, v31, vcc")
        O = 32
        for i in range(8): a(f"s_add_u32 s{T+3+i}, s{T+1}, {i*16*2560}")
        def f_issue(i):
            a(f"buffer_load_dwordx4 {vr(O+4*i,4)}, v6, {srd('WS')}, s{T+3+i} offen sc1")
        def f_check(i):
            a(f"v_max3_u32 v8, v{O+4*i}, v{O+4*i+1}, v{O+4*i+2}")
            a(f"v_max_u32 v8, v8, v{O+4*i+3}")
            a("v_cmp_eq_u32 vcc, -1, v8")
        self.gpoll(8, f_issue, f_check, masks=[24,26,28,30,32,34,36,38])
        self.stamp(9)
        self.stamp_val(18, S_CNT)
        for k in range(4):
            a(f"v_add_f32 v{O+k}, v{O+k}, v{O+4+k}")
            a(f"v_add_f32 v{O+8+k}, v{O+8+k}, v{O+12+k}")
            a(f"v_add_f32 v{O+16+k}, v{O+16+k}, v{O+20+k}")
            a(f"v_add_f32 v{O+24+k}, v{O+24+k}, v{O+28+k}")
        for k in range(4):
            a(f"v_add_f32 v{O+k}, v{O+k}, v{O+8+k}")
            a(f"v_add_f32 v{O+16+k}, v{O+16+k}, v{O+24+k}")
        for k in range(4): a(f"v_add_f32 v{O+k}, v{O+k}, v{O+16+k}")
        for k in range(4): a(f"v_mul_f32 v{O+k}, v{O+k}, v30")
        a("s_nop 1")
        a("v_permlane32_swap_b32 v32, v34")
        a("v_permlane32_swap_b32 v33, v35")
        a("s_nop 1")
        a("v_add_f32 v32, v32, v34")
        a("v_add_f32 v33, v33, v35")
        a("s_nop 1")
        a("v_permlane16_swap_b32 v32, v33")
        a("s_nop 1")
        a("v_add_f32 v32, v32, v33")
        a("s_nop 1")
        a("v_add_f32_dpp v32, v32, v32 row_ror:8 row_mask:0xf bank_mask:0xf")
        a("s_nop 1")
        a("v_add_f32_dpp v32, v32, v32 row_ror:4 row_mask:0xf bank_mask:0xf")
        a("s_nop 0")
        a("v_cvt_pk_bf16_f32 v32, v32, v32")
        a(f"buffer_store_short v32, v11, {srd('OUT')}, s{T+2} offen")
        noep = a.newlabel("noep")
        self.skip_if(f"s_cmp_lg_u32 s{T}, 0", noep)
        a(f"v_mov_b32 v6, s{S_EP}")
        a("v_mov_b32 v7, 0")
        a("s_mov_b64 exec, 1")
        a(f"buffer_store_dword v6, v7, {srd('WS')}, 0 offen sc1")
        a("s_mov_b64 exec, -1")
        a.label(noep)
        if self.dbl:
            a("s_waitcnt vmcnt(0)")
            a("s_memrealtime s[44:45]")
            a("s_waitcnt lgkmcnt(0)")
            a("s_sub_u32 s46, s44, s42")
            a(f"s_mul_i32 s46, s46, {self.dbl}")
            a("s_lshr_b32 s46, s46, 2")
            a("s_add_u32 s46, s46, s44")
            lp = a.newlabel("dbl")
            a.label(lp)
            a("s_memrealtime s[44:45]")
            a("s_waitcnt lgkmcnt(0)")
            a("s_sub_u32 s47, s44, s46")
            a("s_cmp_lt_i32 s47, 0")
            a(f"s_cbranch_scc1 {lp}")
        self.stamp(10)
        a.label("L_bend")

    def bset_final8(self):
        a = self.a; T = S_T
        self.skip_if(f"s_cmp_ge_u32 s{S_LB}, 5", "L_bend")
        a("v_lshlrev_b32 v5, 2, v1")
        for i in range(5):
            a(f"buffer_load_dword v{20+i}, v5, {srd('X')}, 0 offen offset:{256*i}")
            a(f"buffer_load_dword v{25+i}, v5, {srd('GW')}, 0 offen offset:{256*i}")
        a("v_mov_b32 v30, 0")
        a("s_waitcnt vmcnt(0)")
        for i in range(5): a(f"v_dot2c_f32_bf16 v30, v{20+i}, v{25+i}")
        a("s_nop 2")
        for ctrl in ["quad_perm:[1,0,3,2]", "quad_perm:[2,3,0,1]", "row_half_mirror", "row_mirror"]:
            a(f"v_add_f32_dpp v30, v30, v30 {ctrl} row_mask:0xf bank_mask:0xf")
            a("s_nop 1")
        a("v_mov_b32 v31, v30")
        a("s_nop 1")
        a("v_permlane16_swap_b32 v30, v31")
        a("s_nop 1")
        a("v_add_f32 v30, v30, v31")
        a("v_mov_b32 v31, v30")
        a("s_nop 1")
        a("v_permlane32_swap_b32 v30, v31")
        a("s_nop 1")
        a("v_add_f32 v30, v30, v31")
        a(f"v_mul_f32 v30, 0x{f32bits(-math.log2(math.e)):08x}, v30")
        a("v_exp_f32 v30, v30")
        a("s_nop 0")
        a("v_add_f32 v30, 1.0, v30")
        a("v_rcp_f32 v30, v30")
        a("s_nop 0")
        a("v_sub_f32 v31, 1.0, v30")
        a("v_cmp_le_u32 vcc, 48, v1")
        a("s_nop 1")
        a("v_cndmask_b32 v30, v30, v31, vcc")
        a(f"s_mul_i32 s{T}, s{S_X}, 5")
        a(f"s_add_u32 s{T}, s{T}, s{S_LB}")
        a(f"s_lshl_b32 s{T+1}, s{T}, 6")
        a(f"s_add_u32 s{T+1}, s{T+1}, {WS_OUTP}")
        a("v_lshrrev_b32 v6, 2, v0")
        a("v_mul_u32_u24 v6, 2560, v6")
        a("v_and_b32 v7, 3, v0")
        a("v_lshl_add_u32 v6, v7, 4, v6")
        a("v_and_b32 v8, 3, v1")
        a("v_lshlrev_b32 v8, 2, v8")
        a("v_bfe_u32 v9, v1, 5, 1")
        a("v_lshl_add_u32 v8, v9, 1, v8")
        a("v_bfe_u32 v9, v1, 4, 1")
        a("v_add_u32 v8, v8, v9")
        a("v_lshlrev_b32 v8, 2, v8")
        a(f"s_lshl_b32 s{T+2}, s{S_W}, 6")
        a(f"v_add_u32 v10, s{T+2}, v8")
        a("v_and_b32 v11, 15, v1")
        a("v_lshlrev_b32 v12, 2, v11")
        a("v_lshlrev_b32 v11, 1, v11")
        a("v_mov_b32 v9, 0x7fffffff")
        a("v_cmp_gt_u32 vcc, 16, v1")
        a(f"s_lshl_b32 s{T+2}, s{T}, 5")
        a("v_cndmask_b32 v11, v9, v11, vcc")
        l = self.poll_begin()
        a(f"buffer_load_dwordx4 v[32:35], v6, {srd('WS')}, s{T+1} offen sc1")
        a("s_waitcnt vmcnt(0)")
        a("v_max3_u32 v8, v32, v33, v34")
        a("v_max_u32 v8, v8, v35")
        a("v_cmp_eq_u32 vcc, -1, v8")
        a("s_nop 1")
        a("v_cndmask_b32 v8, 0, 1, vcc")
        self.poll_end(l, 8)
        self.stamp(9)
        self.stamp_val(18, S_CNT)
        for k in range(4): a(f"v_mul_f32 v{32+k}, v{32+k}, v30")
        a("s_nop 1")
        a("v_permlane32_swap_b32 v32, v34")
        a("v_permlane32_swap_b32 v33, v35")
        a("s_nop 1")
        a("v_add_f32 v32, v32, v34")
        a("v_add_f32 v33, v33, v35")
        a("s_nop 1")
        a("v_permlane16_swap_b32 v32, v33")
        a("s_nop 1")
        a("v_add_f32 v32, v32, v33")
        a("s_nop 1")
        a("v_add_f32_dpp v32, v32, v32 row_ror:8 row_mask:0xf bank_mask:0xf")
        a("s_nop 1")
        a("v_add_f32_dpp v32, v32, v32 row_ror:4 row_mask:0xf bank_mask:0xf")
        a(f"ds_write_b32 v10, v32 offset:{self.L_F}")
        a("s_waitcnt lgkmcnt(0)")
        a("s_barrier")
        self.skip_if(f"s_cmp_lg_u32 s{S_W}, 0", "L_bend")
        for w in range(8): a(f"ds_read_b32 v{40+w}, v12 offset:{self.L_F+w*64}")
        a("s_waitcnt lgkmcnt(0)")
        a("v_add_f32 v40, v40, v41\nv_add_f32 v42, v42, v43\nv_add_f32 v44, v44, v45\nv_add_f32 v46, v46, v47")
        a("v_add_f32 v40, v40, v42\nv_add_f32 v44, v44, v46")
        a("v_add_f32 v40, v40, v44")
        a("v_cvt_pk_bf16_f32 v40, v40, v40")
        a(f"buffer_store_short v40, v11, {srd('OUT')}, s{T+2} offen")
        noep = a.newlabel("noep")
        self.skip_if(f"s_cmp_lg_u32 s{T}, 0", noep)
        a(f"v_mov_b32 v6, s{S_EP}")
        a("v_mov_b32 v7, 0")
        a("s_mov_b64 exec, 1")
        a(f"buffer_store_dword v6, v7, {srd('WS')}, 0 offen sc1")
        a("s_mov_b64 exec, -1")
        a.label(noep)
        self.stamp(10)
        a.label("L_bend")

    def build(self):
        a = self.a
        self.prologue()
        self.bset_front()
        a("s_branch L_bs")
        a.label("L_aset")
        self.aset_front()
        a("s_branch L_aback")
        a.label("L_bs")
        self.bset_s_phase()
        self.bset_pv_phase()
        a("s_branch L_bfin")
        a.label("L_aback")
        self.aset_back()
        self.stamp_flush()
        a("s_branch L_exit")
        a.label("L_bfin")
        (self.bset_final if self.fin1 else self.bset_final8)()
        self.stamp_flush()
        a.label("L_exit")
        a("s_endpgm")
        hdr = f"""; Hand-written (own generator script) persistent kernel: MLA decode with weight absorption + GLU + gated mix.
; @launch grid=(256,1,1) block=(512,1,1) lds=163840
.amdgcn_target "amdgcn-amd-amdhsa--gfx950"
.text
.globl {NAME}_kernel
.p2align 8
.type {NAME}_kernel,@function
{NAME}_kernel:
"""
        ftr = f""".section .rodata,"a"
.p2align 6
.amdhsa_kernel {NAME}_kernel
  .amdhsa_next_free_vgpr 256
  .amdhsa_next_free_sgpr 102
  .amdhsa_accum_offset 256
  .amdhsa_group_segment_fixed_size 0
  .amdhsa_kernarg_size 112
  .amdhsa_user_sgpr_count 2
  .amdhsa_user_sgpr_kernarg_segment_ptr 1
  .amdhsa_system_sgpr_workgroup_id_x 1
.end_amdhsa_kernel
"""
        return hdr + a.text() + ftr

if __name__ == "__main__":
    out = sys.argv[1] if len(sys.argv) > 1 else "k.s"
    kw = {}
    for arg in sys.argv[2:]:
        if arg == "--stamps": kw["stamps"] = True
        elif arg.startswith("--"):
            k, v = arg[2:].split("="); kw[k] = int(v)
    open(out, "w").write(Gen(**kw).build())
```
